```python
import torch

def _softmax(x, axis=-1):
    return torch.softmax(x, dim=axis)

def _gelu(x):
    return torch.nn.functional.gelu(x, approximate='tanh')

def _silu(x):
    return torch.nn.functional.silu(x)

def _sigmoid(x):
    return torch.sigmoid(x)

def _layernorm(x, axis=-1, eps=1e-05):
    m = x.mean(dim=axis, keepdim=True)
    v = x.var(dim=axis, keepdim=True, unbiased=False)
    return (x - m) / torch.sqrt(v + eps)

def _scatter_add(tgt, idx, src, axis=0):
    return tgt.clone().index_add_(axis, idx, src)

def _segment_sum(src, seg, n):
    out = torch.zeros((n,) + src.shape[1:], dtype=src.dtype)
    return out.index_add_(0, seg, src)

def _pad(x, pw):
    flat = tuple((v for pair in reversed(pw) for v in pair))
    return torch.nn.functional.pad(x, flat)
kernel_name = 'adaLN_cond__sliding_block_cached__swiglu_ffn__decode'

def setup_inputs():

    _w = lambda a: (lambda t: t.to(torch.bfloat16) if t.is_floating_point() else t)(torch.as_tensor(a))

    def _A_setup():
        B, Sq, D = (4, 1, 512)
        Hq, Hkv, Sk, Dh = (32, 8, 8192, 128)
        assert Hq % Hkv == 0, (Hq, Hkv)
        return {'x': _w((lambda *s: torch.randn(*s, dtype=torch.bfloat16) * 0.05)(B, Sq, D)), 'k_cache': _w((lambda *s: torch.randn(*s, dtype=torch.bfloat16) * 3.2)(B, Hkv, Sk, Dh)), 'v_cache': _w((lambda *s: torch.randn(*s, dtype=torch.bfloat16) * 0.4)(B, Hkv, Sk, Dh)), 'wq': _w((lambda *s: torch.randn(*s, dtype=torch.bfloat16) * 3.2)(D, Hq * Dh) * D ** (-0.5)), 'wo': _w((lambda *s: torch.randn(*s, dtype=torch.bfloat16) * 0.4)(Hq * Dh, D) * (Hq * Dh) ** (-0.5))}
    _A_in = _A_setup()

    def _B_setup():
        B, S, D, F = (4, 1, 512, 1792)
        return {'x': _w((lambda *s: torch.randn(*s, dtype=torch.bfloat16) * 0.05)(B, S, D)), 'w_gate': _w((lambda *s: torch.randn(*s, dtype=torch.bfloat16) * 0.05)(D, F)), 'w_up': _w((lambda *s: torch.randn(*s, dtype=torch.bfloat16) * 0.05)(D, F)), 'w_down': _w((lambda *s: torch.randn(*s, dtype=torch.bfloat16) * 0.05)(F, D))}
    _B_in = _B_setup()
    return {'A_x': _A_in['x'], 'A_k_cache': _A_in['k_cache'], 'A_v_cache': _A_in['v_cache'], 'A_wq': _A_in['wq'], 'A_wo': _A_in['wo'], 'B_x': _B_in['x'], 'B_w_gate': _B_in['w_gate'], 'B_w_up': _B_in['w_up'], 'B_w_down': _B_in['w_down'], 'c': _w((lambda *s: torch.randn(*s, dtype=torch.bfloat16) * 0.1)(4, 512) * 8.0), 'w_mod': _w((lambda *s: torch.randn(*s, dtype=torch.bfloat16) * 0.1)(512, 6 * 512) * 512 ** (-0.5) * 8.0)}

def reference(A_x, A_k_cache, A_v_cache, A_wq, A_wo, B_x, B_w_gate, B_w_up, B_w_down, c, w_mod):

    def _A_ref(x, k_cache, v_cache, wq, wo):
        B, Sq, D = x.shape
        Hq, Dh = (32, 128)
        Hkv, Sk = (k_cache.shape[1], k_cache.shape[2])
        W = min(4096, max(256, Sk // 4))
        rep = Hq // Hkv
        q = (lambda x, *d: x.permute(*d))((x @ wq).reshape(B, Sq, Hq, Dh), 0, 2, 1, 3)
        k = (lambda x, n, axis: torch.repeat_interleave(x, n, dim=axis))(k_cache[:, :, Sk - W:, :], rep, axis=1)
        v = (lambda x, n, axis: torch.repeat_interleave(x, n, dim=axis))(v_cache[:, :, Sk - W:, :], rep, axis=1)
        scores = torch.einsum('bhqd,bhkd->bhqk', q, k) * Dh ** (-0.5)
        p = _softmax(scores, axis=-1)
        o = torch.einsum('bhqk,bhkd->bhqd', p, v)
        return (lambda x, *d: x.permute(*d))(o, 0, 2, 1, 3).reshape(B, Sq, Hq * Dh) @ wo

    def _B_ref(x, w_gate, w_up, w_down):
        g = _silu(x @ w_gate)
        u = x @ w_up
        return g * u @ w_down
    x = A_x
    mod = (_silu(c) @ w_mod).reshape(c.shape[0], 6, 1, -1)
    sa, ca, ga, sb, cb, gb = (mod[:, 0].clone(), mod[:, 1].clone(), mod[:, 2].clone(), mod[:, 3].clone(), mod[:, 4].clone(), mod[:, 5].clone())
    h = _layernorm(x, axis=-1) * (1 + ca) + sa
    x = x + ga * _A_ref(h, A_k_cache, A_v_cache, A_wq, A_wo)
    h = _layernorm(x, axis=-1) * (1 + cb) + sb
    x = x + gb * _B_ref(h, B_w_gate, B_w_up, B_w_down)
    return x
```

```python
import sys

DIAG = int(sys.argv[2]) if len(sys.argv) > 2 else 0
import os
OPT = set(os.environ.get("OPT", "").split(","))
NAME = "adaLN_cond__sliding_block_cached__swiglu_ffn__decode"

L = []
def e(s): L.append("    " + s)
def lab(s): L.append(s + ":")
def c(s): L.append("    ; " + s)
def nop(n):
    while n > 0:
        k = min(n, 16); e(f"s_nop {k-1}"); n -= k
_uid = [0]
def uid(p):
    _uid[0] += 1
    return f"{p}_{_uid[0]}"

WS_EPOCH = 0
WS_XCC   = 0x100
WS_HS    = 0x200
WS_QS    = 0x400
WS_MS    = 0xC00
WS_H     = 0x1000
WS_X2    = 0x3000
WS_M     = 0x8000
WS_Q     = 0x10000
WS_OML   = 0x20000
WS_OD    = 0x40000
WS_AP    = 0xC0000
WS_DP    = 0x140000
WS_SC    = 0x1B0000
WS_STAMP = 0x200000
WS_SIZE  = 0x300000

S_V    = 0
S_E    = 81920
S_L    = 114688
S_MISC = 147456
S_ACT  = S_MISC
S_QL   = S_ACT + 4352
S_XN   = S_QL + 1280
S_EXC  = S_XN + 256
S_MAXB = S_EXC + 256
S_PB   = S_MAXB + 256
S_CNT  = S_PB + 2560
S_CG   = S_V
S_CML  = S_V + 8704
LDS_BYTES = 163840
C_EARLY, C_ACT, C_EXC, C_XN, C_KL, C_Q, C_MAX, C_P, F_V, C_PVD, C_LATE, C_HD, C_WQ, C_QD = range(14)

T_W    = 0
T_WQ   = 0
T_HST  = 122880
T_HM   = 155648
T_ACT  = T_HM
T_XN   = T_ACT + 4352
T_EXC  = T_XN + 256
T_CNT  = T_EXC + 256
T_SAME = T_CNT + 64
T_HL   = 131072 + 16384
T_MISC = 131072
T_ACC1 = T_MISC
T_ACC2 = T_ACC1 + 256
T_H2   = T_ACC2 + 256
T_GU   = T_H2 + 4352
T_ACTL = T_GU + 2048
T_RED  = T_ACTL + 768

sWAVE, sTAG, sX8, sR, sS = 3, 4, 5, 6, 7
WS, SA, SB, SC, SD, SE, SF = "s[8:11]", "s[12:15]", "s[16:19]", "s[20:23]", "s[24:27]", "s[28:31]", "s[32:35]"
P_X, P_K, P_V, P_WQ, P_WO, P_BX, P_WG, P_WU, P_WD, P_C, P_WM, P_OUT, P_DBG, P_WS = [36 + 2*i for i in range(14)]
sT0, sT1, sT2, sT3, sT4, sT5, sT6, sT7 = 64, 65, 66, 67, 68, 69, 70, 71
sM0, sM1 = 72, 73
sM2, sM3 = 74, 75
sSTAMP = 76
sKV = 77
sNT = 78
sU = 79
sUI = 80
sLATE = 81
sSPIN = 82
sSTRIDE = 83
sCB0, sCB1 = 84, 85
sP, sJ = 86, 87
sSAME = 88
sST0, sST1 = 90, 91
sH = 92; sNQ = 93; sQCU = 95

SPIN_MAX = 200000
LSPIN_MAX = 4000000

def csel2(dst, a, b):
    e(f"s_mov_b32 s{dst}, {b}")
    e(f"s_cselect_b32 s{dst}, {a}, s{dst}")

def srd(dst0, ptr, nbytes):
    e(f"s_mov_b32 s{dst0}, s{ptr}")
    e(f"s_and_b32 s{dst0+1}, s{ptr+1}, 0xffff")
    e(f"s_mov_b32 s{dst0+2}, {nbytes}")
    e(f"s_mov_b32 s{dst0+3}, 0x20000")

def stamp(k, wave=None):
    if not DIAG: return
    l = None
    if wave is not None:
        l = uid("ST"); e(f"s_cmp_lg_u32 s{sWAVE}, {wave}"); e(f"s_cbranch_scc1 {l}")
    e(f"s_memrealtime s[{sST0}:{sST1}]")
    e("s_waitcnt lgkmcnt(0)")
    e(f"v_writelane_b32 v0, s{sST0}, {k}")
    if l: lab(l)

def signal(cnt_base, k, vt0, vt1):
    e(f"v_mov_b32 v{vt0}, {cnt_base + 4*k}")
    e(f"v_mov_b32 v{vt1}, 1")
    e(f"s_mov_b64 s[{sM2}:{sM3}], exec")
    e("s_mov_b64 exec, 1")
    e(f"ds_add_u32 v{vt0}, v{vt1}")
    e(f"s_mov_b64 exec, s[{sM2}:{sM3}]")

def wait_cnt(cnt_base, k, target, vt0, vt1, sleep=1):
    l = uid("W"); d = uid("WD")
    e(f"v_mov_b32 v{vt0}, {cnt_base + 4*k}")
    e(f"s_mov_b32 s{sSPIN}, 0")
    lab(l)
    e(f"ds_read_b32 v{vt1}, v{vt0}")
    e("s_waitcnt lgkmcnt(0)")
    e(f"v_readfirstlane_b32 s{sT7}, v{vt1}")
    e(f"s_cmp_ge_u32 s{sT7}, {target}")
    e(f"s_cbranch_scc1 {d}")
    if sleep: e(f"s_sleep {sleep}")
    e(f"s_add_u32 s{sSPIN}, s{sSPIN}, 1")
    e(f"s_cmp_lt_u32 s{sSPIN}, {LSPIN_MAX}")
    e(f"s_cbranch_scc1 {l}")
    e("s_branch L_END")
    lab(d)

def wait_mask(cnt_base, k, need, vt0, vt1, sleep=0):
    l = uid("W"); d = uid("WD")
    e(f"v_mov_b32 v{vt0}, {cnt_base + 4*k}")
    e(f"s_mov_b32 s{sSPIN}, 0")
    lab(l)
    e(f"ds_read_b32 v{vt1}, v{vt0}")
    e("s_waitcnt lgkmcnt(0)")
    e(f"v_readfirstlane_b32 s{sT7}, v{vt1}")
    e(f"s_and_b32 s{sT7}, s{sT7}, {need}")
    e(f"s_cmp_eq_u32 s{sT7}, {need}")
    e(f"s_cbranch_scc1 {d}")
    if sleep: e(f"s_sleep {sleep}")
    e(f"s_add_u32 s{sSPIN}, s{sSPIN}, 1")
    e(f"s_cmp_lt_u32 s{sSPIN}, {LSPIN_MAX}")
    e(f"s_cbranch_scc1 {l}")
    e("s_branch L_END")
    lab(d)

def signal_or(cnt_base, k, sbit, vt0, vt1):
    e(f"v_mov_b32 v{vt0}, {cnt_base + 4*k}")
    e(f"v_mov_b32 v{vt1}, s{sbit}")
    e(f"s_mov_b64 s[{sM2}:{sM3}], exec")
    e("s_mov_b64 exec, 1")
    e(f"ds_or_b32 v{vt0}, v{vt1}")
    e(f"s_mov_b64 exec, s[{sM2}:{sM3}]")

def poll(loads, sleep=0, intra=False, pre=0):
    d = uid("PD")
    if pre: e(f"s_sleep {pre}")
    e(f"s_mov_b32 s{sSPIN}, 0")
    flavs = ["sc1"]
    lsc = None
    if intra:
        lsc = uid("PS")
        e(f"s_cmp_eq_u32 s{sSAME}, 1")
        e(f"s_cbranch_scc0 {lsc}")
        flavs = ["nt", "sc1"]
    for fi, fl in enumerate(flavs):
        if intra and fi == 1: lab(lsc)
        l = uid("P")
        lab(l)
        for (dst, voff, imm) in loads:
            e(f"buffer_load_dwordx4 v[{dst}:{dst+3}], v{voff}, {WS}, 0 offen offset:{imm} {fl}")
        e("s_waitcnt vmcnt(0)")
        first = True
        for (dst, voff, imm) in loads:
            if first:
                e(f"v_cmp_eq_u32 vcc, s{sTAG}, v{dst+1}")
                first = False
            else:
                e(f"v_cmp_eq_u32 s[{sM0}:{sM1}], s{sTAG}, v{dst+1}")
                e(f"s_and_b64 vcc, vcc, s[{sM0}:{sM1}]")
            e(f"v_cmp_eq_u32 s[{sM0}:{sM1}], s{sTAG}, v{dst+3}")
            e(f"s_and_b64 vcc, vcc, s[{sM0}:{sM1}]")
        e("s_cmp_eq_u64 vcc, exec")
        e(f"s_cbranch_scc1 {d}")
        if sleep: e(f"s_sleep {sleep}")
        e(f"s_add_u32 s{sSPIN}, s{sSPIN}, 1")
        e(f"s_cmp_lt_u32 s{sSPIN}, {SPIN_MAX}")
        e(f"s_cbranch_scc1 {l}")
        e("s_branch L_END")
    lab(d)

def load_tag():
    e(f"s_load_dword s{sTAG}, s[{P_WS}:{P_WS+1}], {WS_EPOCH}")

def fin_tag():
    e("s_waitcnt lgkmcnt(0)")
    e(f"s_add_u32 s{sTAG}, s{sTAG}, 0x9E3779B9")

def sentinel_store(soff_sgpr, vpair):
    e(f"s_mov_b64 s[{sM2}:{sM3}], exec")
    e("s_mov_b64 exec, 1")
    e(f"buffer_store_dwordx2 v[{vpair}:{vpair+1}], off, {WS}, s{soff_sgpr} sc1")
    e(f"s_mov_b64 exec, s[{sM2}:{sM3}]")

def poll_lanes(nlanes, dst, voff, sleep):
    e("s_mov_b64 s[98:99], exec")
    if nlanes < 64:
        m = (1 << nlanes) - 1
        e(f"s_mov_b32 exec_lo, {m & 0xffffffff:#x}")
        e(f"s_mov_b32 exec_hi, {m >> 32:#x}")
    poll([(dst, voff, 0)], sleep=sleep)
    e("s_mov_b64 exec, s[98:99]")

def allreduce2(va, vb, t0, t1, op="add"):
    ins = f"v_{op}_f32"
    nop(2)
    for ctl in ("quad_perm:[1,0,3,2]", "quad_perm:[2,3,0,1]", "row_half_mirror", "row_mirror"):
        e(f"{ins}_dpp v{va}, v{va}, v{va} {ctl} row_mask:0xf bank_mask:0xf")
        e(f"{ins}_dpp v{vb}, v{vb}, v{vb} {ctl} row_mask:0xf bank_mask:0xf")
        nop(1)
    for sw in ("v_permlane16_swap_b32", "v_permlane32_swap_b32"):
        e(f"v_mov_b32 v{t0}, v{va}")
        e(f"v_mov_b32 v{t1}, v{vb}")
        nop(2)
        e(f"{sw} v{va}, v{t0}")
        e(f"{sw} v{vb}, v{t1}")
        nop(1)
        e(f"{ins} v{va}, v{va}, v{t0}")
        e(f"{ins} v{vb}, v{vb}, v{t1}")

def rnd2(a, b, t):
    e(f"v_cvt_pk_bf16_f32 v{t}, v{a}, v{b}")
    e(f"v_lshlrev_b32 v{a}, 16, v{t}")
    e(f"v_and_b32 v{b}, 0xffff0000, v{t}")

def unpack2(src, lo, hi):
    e(f"v_lshlrev_b32 v{lo}, 16, v{src}")
    e(f"v_and_b32 v{hi}, 0xffff0000, v{src}")

LOG2E = 0x3fb8aa3b
NLOG2E = 0xbfb8aa3b
SCALE = 0x3db504f3
EPS = 0x3727c5ac
INV512 = 0x3b000000

def layernorm8(x0, t):
    d = t + 4
    a, b, t0, t1 = t, t+1, t+2, t+3
    e(f"v_readfirstlane_b32 s{sT0}, v{x0}")
    e(f"v_readfirstlane_b32 s{sT1}, v{x0}")
    nop(2)
    for i in range(0, 8, 2):
        e(f"v_pk_add_f32 v[{d+i}:{d+i+1}], v[{x0+i}:{x0+i+1}], s[{sT0}:{sT1}] neg_lo:[0,1] neg_hi:[0,1]")
    e(f"v_pk_add_f32 v[{t0}:{t1}], v[{d}:{d+1}], v[{d+2}:{d+3}]")
    e(f"v_pk_mul_f32 v[{a}:{b}], v[{d}:{d+1}], v[{d}:{d+1}]")
    e(f"v_pk_add_f32 v[{t0}:{t1}], v[{t0}:{t1}], v[{d+4}:{d+5}]")
    e(f"v_pk_fma_f32 v[{a}:{b}], v[{d+2}:{d+3}], v[{d+2}:{d+3}], v[{a}:{b}]")
    e(f"v_pk_add_f32 v[{t0}:{t1}], v[{t0}:{t1}], v[{d+6}:{d+7}]")
    e(f"v_pk_fma_f32 v[{a}:{b}], v[{d+4}:{d+5}], v[{d+4}:{d+5}], v[{a}:{b}]")
    e(f"v_pk_fma_f32 v[{a}:{b}], v[{d+6}:{d+7}], v[{d+6}:{d+7}], v[{a}:{b}]")
    e(f"v_add_f32 v{b}, v{a}, v{b}")
    e(f"v_add_f32 v{a}, v{t0}, v{t1}")
    allreduce2(a, b, t0, t1)
    e(f"v_mul_f32 v{a}, {INV512:#x}, v{a}")
    e(f"v_mul_f32 v{b}, {INV512:#x}, v{b}")
    e(f"v_fma_f32 v{b}, -v{a}, v{a}, v{b}")
    e(f"v_add_f32 v{a}, s{sT0}, v{a}")
    e(f"v_max_f32 v{b}, 0, v{b}")
    rnd2(a, b, t0)
    e(f"v_add_f32 v{b}, {EPS:#x}, v{b}")
    e(f"v_cvt_pk_bf16_f32 v{t0}, v{b}, v{b}")
    e(f"v_lshlrev_b32 v{b}, 16, v{t0}")
    e(f"v_sqrt_f32 v{b}, v{b}")
    nop(1)
    for i in range(0, 8, 2):
        e(f"v_pk_add_f32 v[{x0+i}:{x0+i+1}], v[{x0+i}:{x0+i+1}], v[{a}:{b}] op_sel_hi:[1,0] neg_lo:[0,1] neg_hi:[0,1]")
    e(f"v_cvt_pk_bf16_f32 v{t0}, v{b}, v{b}")
    e(f"v_lshlrev_b32 v{b}, 16, v{t0}")
    e(f"v_rcp_f32 v{t0}, v{b}")
    for i in range(0, 8, 2):
        rnd2(x0+i, x0+i+1, d)
    for i in range(0, 8, 2):
        e(f"v_pk_mul_f32 v[{x0+i}:{x0+i+1}], v[{x0+i}:{x0+i+1}], v[{t0}:{t1}] op_sel_hi:[1,0]")
    for i in range(0, 8, 2):
        rnd2(x0+i, x0+i+1, d)

def silu_inplace(x, t0, t1):
    e(f"v_mul_f32 v{t0}, {NLOG2E:#x}, v{x}")
    e(f"v_exp_f32 v{t0}, v{t0}")
    nop(1)
    e(f"v_add_f32 v{t0}, 1.0, v{t0}")
    e(f"v_rcp_f32 v{t1}, v{t0}")
    nop(1)
    e(f"v_mul_f32 v{x}, v{x}, v{t1}")


SSL = int(os.environ.get("SSL", "2"))
TSL = int(os.environ.get("TSL", "4"))
ENT = "" if "Enont" in OPT else " nt"
QKW = int(os.environ.get("QKW", "0"))
WK = int(os.environ.get("WK", "4"))
KOV = int(os.environ.get("KOV", "2"))
hdr = open("cdna_kernels/" + NAME + ".s.ref").read().split("\n")
for ln in hdr:
    if ln.startswith("; Override") or ln.startswith("; grid=") or ln.startswith("; @launch"): continue
    if ln.startswith(";"): L.append(ln)
    else: break
L.append(f"; @launch grid=(256,1,1) block=(1024,1,1) lds={LDS_BYTES}")
L.append('.amdgcn_target "amdgcn-amd-amdhsa--gfx950"')
L.append(".text")
L.append(f".globl {NAME}_kernel")
L.append(".p2align 8")
L.append(f".type {NAME}_kernel,@function")
lab(f"{NAME}_kernel")

sKVB = 94
sEX0, sEX1 = 96, 97

e("s_cmp_ge_u32 s2, 256")
e("s_cbranch_scc1 L_EXIT")
e("s_load_dwordx16 s[36:51], s[0:1], 0")
e("s_load_dwordx8 s[52:59], s[0:1], 64")
e("s_load_dwordx4 s[60:63], s[0:1], 96")
e("v_lshrrev_b32 v2, 6, v0")
e("v_and_b32 v1, 63, v0")
e(f"v_readfirstlane_b32 s{sWAVE}, v2")
e(f"s_and_b32 s{sX8}, s2, 7")
e(f"s_lshr_b32 s{sR}, s2, 3")
e("v_lshrrev_b32 v2, 4, v1")
e("v_and_b32 v3, 15, v1")
e(f"s_lshl_b32 s{sSTAMP}, s2, 4")
e(f"s_add_u32 s{sSTAMP}, s{sSTAMP}, s{sWAVE}")
e(f"s_lshl_b32 s{sSTAMP}, s{sSTAMP}, 7")
e(f"s_add_u32 s{sSTAMP}, s{sSTAMP}, {WS_STAMP}")
if DIAG: e("v_mov_b32 v0, 0")
stamp(0)
e("s_waitcnt lgkmcnt(0)")
srd(8, P_WS, WS_SIZE)
e(f"s_cmp_eq_u32 s{sX8}, 7")
e("s_cbranch_scc1 L_T")

def line_dma_voff(stride):
    e("v_lshrrev_b32 v4, 3, v1")
    e(f"v_mul_u32_u24 v4, {stride}, v4")
    e("v_bfe_u32 v5, v1, 1, 2")
    e("v_bfe_u32 v6, v1, 4, 2")
    e("v_xor_b32 v5, v5, v6")
    e("v_lshl_add_u32 v4, v5, 5, v4")
    e("v_and_b32 v5, 1, v1")
    e("v_lshl_add_u32 v4, v5, 4, v4")
def tr_line_addr(dst, base_sgpr):
    e("v_lshrrev_b32 v4, 2, v3")
    e("v_lshl_add_u32 v4, v2, 2, v4")
    e("v_bfe_u32 v5, v4, 1, 2")
    e(f"s_and_b32 s{sT1}, s{sWAVE}, 3")
    e(f"v_xor_b32 v5, s{sT1}, v5")
    e("v_lshlrev_b32 v4, 7, v4")
    e("v_lshl_add_u32 v4, v5, 5, v4")
    e("v_and_b32 v5, 3, v1")
    e("v_lshl_add_u32 v4, v5, 3, v4")
    e(f"v_add_u32 v{dst}, s{base_sgpr}, v4")
def mfma16(vaddr):
    def regs(grp, k):
        if grp % 2 == 0: return 8 + 4*k
        return [112, 116, 120, 28][k]
    def rd(grp):
        for k in range(4):
            b_ = regs(grp, k)
            e(f"ds_read_b128 v[{b_}:{b_+3}], v{vaddr} offset:{64*(4*grp+k)}")
    rd(0); rd(1)
    for grp in range(4):
        e(f"s_waitcnt lgkmcnt({4 if grp < 3 else 0})")
        for k in range(4):
            ks = 4*grp + k; b_ = regs(grp, k)
            cin = "0" if ks == 0 else "v[24:27]"
            e(f"v_mfma_f32_16x16x32_bf16 v[24:27], v[{32+4*ks}:{35+4*ks}], v[{b_}:{b_+3}], {cin}")
        if grp + 2 < 4: rd(grp + 2)
    nop(8)
def line_unit(actbase, cnt, stride, rowshift):
    lq8 = uid("Q8"); lq4 = uid("Q4")
    e(f"s_cmp_ge_u32 s{sWAVE}, 8")
    e(f"s_cbranch_scc1 {lq8}")
    line_dma_voff(stride)
    e(f"s_lshl_b32 s{sT1}, s{sWAVE}, 13")
    e(f"s_mul_i32 s{sT2}, s{sWAVE}, {64*stride}")
    e(f"s_add_u32 s{sT2}, s{sT2}, s{sCB0}")
    for k in range(8):
        e(f"s_mov_b32 m0, s{sT1}")
        e(f"s_add_u32 s{sT1}, s{sT1}, 1024")
        e(f"buffer_load_dwordx4 v4, {SC}, s{sT2} offen nt lds")
        e(f"s_add_u32 s{sT2}, s{sT2}, {8*stride}")
    load_tag()
    e("s_waitcnt vmcnt(0)")
    signal(cnt, C_WQ, 8, 9)
    fin_tag()
    e(f"s_cmp_ge_u32 s{sWAVE}, 4")
    e(f"s_cbranch_scc1 {lq4}")
    e(f"s_mov_b32 s{sT2}, 0")
    tr_line_addr(7, sT2)
    e("v_and_b32 v5, 3, v1")
    e("v_mul_u32_u24 v6, 1088, v5")
    e("v_lshl_add_u32 v6, v2, 4, v6")
    e(f"v_add_u32 v6, {actbase}, v6")
    wait_cnt(cnt, C_WQ, 8, 8, 9, sleep=1)
    stamp(1)
    for ks in range(16):
        e(f"ds_read_b64_tr_b16 v[{32+4*ks}:{33+4*ks}], v7 offset:{4096*ks}")
        e(f"ds_read_b64_tr_b16 v[{34+4*ks}:{35+4*ks}], v7 offset:{4096*ks+2048}")
    wait_cnt(cnt, C_ACT, 4, 8, 9, sleep=1)
    stamp(2)
    mfma16(6)
    e("v_cvt_pk_bf16_f32 v28, v24, v25")
    e(f"v_mov_b32 v29, s{sTAG}")
    e("v_cvt_pk_bf16_f32 v30, v26, v27")
    e(f"v_mov_b32 v31, s{sTAG}")
    e(f"s_lshl_b32 s{sT2}, s{sWAVE}, 6")
    e(f"s_add_u32 s{sT1}, s{sCB1}, s{sT2}")
    e(f"v_lshlrev_b32 v8, {rowshift}, v3")
    e("v_lshl_add_u32 v8, v2, 4, v8")
    e("v_cmp_gt_u32 vcc, 4, v3")
    e(f"s_and_saveexec_b64 s[{sM0}:{sM1}], vcc")
    e(f"buffer_store_dwordx4 v[28:31], v8, {WS}, s{sT1} offen sc1")
    e(f"s_mov_b64 exec, s[{sM0}:{sM1}]")
    signal(cnt, C_QD, 8, 9)
    stamp(3)
    e(f"s_branch {lq4}")
    lab(lq8)
    load_tag()
    fin_tag()
    lab(lq4)

c("S role")
e(f"s_lshl_b32 s{sS}, s{sX8}, 5")
e(f"s_add_u32 s{sS}, s{sS}, s{sR}")
e(f"s_mul_i32 s{sT0}, s{sR}, 37")
e(f"s_lshr_b32 s{sT0}, s{sT0}, 8")
e(f"s_mul_i32 s{sT0}, s{sT0}, 7")
e(f"s_sub_u32 s{sT0}, s{sR}, s{sT0}")
e(f"s_add_u32 s{sT1}, s{sX8}, 7")
e(f"s_sub_u32 s{sT1}, s{sT1}, s{sT0}")
e(f"s_sub_u32 s{sT2}, s{sT1}, 7")
e(f"s_cmp_ge_u32 s{sT1}, 7")
e(f"s_cselect_b32 s{sT1}, s{sT2}, s{sT1}")
e(f"s_lshl_b32 s{sUI}, s{sR}, 1")
e(f"s_cmp_eq_u32 s{sT1}, 0")
e(f"s_cselect_b32 s{sQCU}, 1, 0")
e(f"s_cmp_eq_u32 s{sT1}, 3")
e(f"s_cselect_b32 s{sQCU}, 1, s{sQCU}")
e(f"s_cmp_eq_u32 s{sT1}, 1")
e(f"s_cselect_b32 s{sU}, 1, 0")
e(f"s_cmp_eq_u32 s{sT1}, 4")
e(f"s_cselect_b32 s{sU}, 1, s{sU}")
e(f"s_cmp_ge_u32 s{sT1}, 3")
e(f"s_addc_u32 s{sUI}, s{sUI}, 0")
e(f"s_lshr_b32 s{sT2}, 0x36, s{sT1}")
e(f"s_and_b32 s{sLATE}, s{sT2}, 1")
e(f"s_sub_u32 s{sNQ}, s{sT1}, 1")
e(f"s_cmp_ge_u32 s{sT1}, 4")
e(f"s_cselect_b32 s{sT2}, 1, 0")
e(f"s_sub_u32 s{sNQ}, s{sNQ}, s{sT2}")
e(f"s_mov_b32 s{sH}, s{sR}")
e(f"s_cmp_eq_u32 s{sQCU}, 1")
e(f"s_cselect_b32 s{sNT}, 7, 10")
e(f"s_add_u32 s{sT2}, s{sT0}, 3")
e(f"s_sub_u32 s{sT3}, s{sT2}, 7")
e(f"s_cmp_ge_u32 s{sT2}, 7")
e(f"s_cselect_b32 s{sT2}, s{sT3}, s{sT2}")
e(f"s_mul_i32 s{sT3}, s{sX8}, 10")
e(f"s_cmp_lt_u32 s{sT0}, s{sX8}")
e(f"s_cselect_b32 s{sT5}, 3, 0")
e(f"s_sub_u32 s{sT3}, s{sT3}, s{sT5}")
e(f"s_cmp_lt_u32 s{sT2}, s{sX8}")
e(f"s_cselect_b32 s{sT5}, 3, 0")
e(f"s_sub_u32 s{sT3}, s{sT3}, s{sT5}")
e(f"s_lshl_b32 s{sT0}, s{sT3}, 13")
e(f"s_lshl_b32 s{sT1}, s{sR}, 21")
e(f"s_add_u32 s{sKVB}, s{sT0}, s{sT1}")
e(f"s_add_u32 s{sKVB}, s{sKVB}, {6144*256}")

e(f"s_cmp_ge_u32 s{sWAVE}, 12")
e("s_cbranch_scc1 L_S_STREAM")
e(f"s_cmp_ge_u32 s{sWAVE}, 10")
e("s_cbranch_scc1 L_S_JOB")

c("tile waves 0..9")
srd(12, P_K, 4*8*8192*128*2)
e(f"s_lshl_b32 s{sT0}, s{sWAVE}, 13")
e(f"s_add_u32 s{sKV}, s{sKVB}, s{sT0}")
e("s_barrier")
lnq = uid("NOQ")
e(f"s_cmp_eq_u32 s{sQCU}, 0")
e(f"s_cbranch_scc1 {lnq}")
srd(20, P_WQ, 512*4096*2)
e(f"s_lshl_b32 s{sCB0}, s{sUI}, 7")
e(f"s_lshl_b32 s{sCB1}, s{sUI}, 8")
e(f"s_add_u32 s{sCB1}, s{sCB1}, {WS_Q}")
line_unit(S_ACT, S_CNT, 8192, 14)
wait_cnt(S_CNT, C_QD, 4, 8, 9, sleep=1)
lab(lnq)
e("v_lshrrev_b32 v4, 2, v3")
e("v_and_b32 v5, 1, v1")
e("v_lshl_add_u32 v4, v4, 1, v5")
e("v_lshlrev_b32 v4, 8, v4")
e("v_bfe_u32 v5, v1, 1, 1")
e("v_lshl_add_u32 v4, v5, 6, v4")
e("v_lshl_add_u32 v4, v2, 4, v4")
e("v_and_b32 v8, 3, v1")
e("v_lshl_add_u32 v13, v2, 2, v8")
e("v_lshlrev_b32 v13, 4, v13")
e(f"v_add_u32 v13, {S_PB}, v13")
e(f"s_cmp_ge_u32 s{sWAVE}, s{sNT}")
e("s_cbranch_scc1 L_S_ATT_IDLE")
if "kafter" in OPT: wait_cnt(S_CNT, C_EARLY, 4, 8, 9, sleep=1)
lk = uid("K")
e(f"s_cmp_lt_u32 s{sWAVE}, {WK}")
e(f"s_cbranch_scc1 {lk}")
e(f"s_sub_u32 s{sT5}, s{sWAVE}, {WK-1}")
wait_cnt(S_CNT, C_KL, f"s{sT5}", 8, 9, sleep=1)
lab(lk)
e(f"s_add_u32 s{sT0}, s{sKV}, 4096")
for kg in range(4):
    so = sKV if kg < 2 else sT0
    for s_ in range(2):
        d = 32 + 8*kg + 4*s_
        e(f"buffer_load_dwordx4 v[{d}:{d+3}], v4, {SA}, s{so} offen offset:{(kg & 1)*2048 + 128*s_} nt")
load_tag()
stamp(11)
e("v_and_b32 v8, 3, v1")
e("v_mul_u32_u24 v10, 320, v8")
e("v_lshl_add_u32 v10, v2, 4, v10")
e("v_bfe_u32 v11, v1, 2, 1")
e("v_lshl_add_u32 v10, v11, 6, v10")
e(f"v_add_u32 v10, {S_QL}, v10")
e("v_lshlrev_b32 v11, 6, v8")
e(f"v_add_u32 v11, {S_MAXB}, v11")
e(f"s_lshl_b32 s{sT0}, s{sWAVE}, 2")
e(f"v_add_u32 v12, s{sT0}, v11")
e(f"s_lshl_b32 s{sT0}, s{sWAVE}, 8")
e(f"v_add_u32 v14, s{sT0}, v13")
e("s_waitcnt vmcnt(0)")
signal(S_CNT, C_KL, 8, 9)
fin_tag()
stamp(12)
wait_cnt(S_CNT, C_Q, 2, 8, 9, sleep=1)
stamp(14)
for s_ in range(2):
    e(f"ds_read_b128 v[{64+4*s_}:{67+4*s_}], v10 offset:{128*s_}")
e("s_waitcnt lgkmcnt(0)")
for s_ in range(2):
    for kg in range(4):
        A = 96 + 4*kg
        cin = "0" if s_ == 0 else f"v[{A}:{A+3}]"
        e(f"v_mfma_f32_16x16x32_bf16 v[{A}:{A+3}], v[{32+8*kg+4*s_}:{35+8*kg+4*s_}], v[{64+4*s_}:{67+4*s_}], {cin}")
e(f"s_mov_b32 s{sT2}, {SCALE:#x}")
e(f"s_mov_b32 s{sT3}, {SCALE:#x}")
e(f"s_mov_b32 s{sT4}, {LOG2E:#x}")
nop(5)
for kg in range(4):
    for e_ in range(2):
        A = 96 + 4*kg
        e(f"v_add_f32_dpp v{80+2*kg+e_}, v{A+2+e_}, v{A+e_} row_shl:4 row_mask:0xf bank_mask:0xf")
for i in range(0, 8, 2):
    rnd2(80+i, 81+i, 16)
for i in range(0, 8, 2):
    e(f"v_pk_mul_f32 v[{80+i}:{81+i}], v[{80+i}:{81+i}], s[{sT2}:{sT3}]")
for i in range(0, 8, 2):
    rnd2(80+i, 81+i, 16)
e("v_max3_f32 v16, v80, v81, v82")
e("v_max3_f32 v16, v16, v83, v84")
e("v_max3_f32 v16, v16, v85, v86")
e("v_max_f32 v16, v16, v87")
for sw in ("v_permlane16_swap_b32", "v_permlane32_swap_b32"):
    e("v_mov_b32 v17, v16")
    nop(2)
    e(f"{sw} v16, v17")
    nop(1)
    e("v_max_f32 v16, v16, v17")
e("v_cmp_gt_u32 vcc, 4, v1")
e(f"s_and_saveexec_b64 s[{sM0}:{sM1}], vcc")
e("ds_write_b32 v12, v16")
e(f"s_mov_b64 exec, s[{sM0}:{sM1}]")
signal(S_CNT, C_MAX, 8, 9)
wait_cnt(S_CNT, C_MAX, f"s{sNT}", 8, 9, sleep=0)
for i in range(3):
    e(f"ds_read_b128 v[{16+4*i}:{19+4*i}], v11 offset:{16*i}")
e("s_waitcnt lgkmcnt(0)")
e("v_max3_f32 v16, v16, v17, v18")
e("v_max3_f32 v19, v19, v20, v21")
e("v_max3_f32 v22, v22, v23, v24")
e("v_max3_f32 v25, v25, v26, v27")
e("v_max3_f32 v16, v16, v19, v22")
e("v_max_f32 v16, v16, v25")
e(f"v_mul_f32 v15, s{sT4}, v16")
for i in range(8):
    e(f"v_fma_f32 v{80+i}, v{80+i}, s{sT4}, -v15")
for i in range(8):
    e(f"v_exp_f32 v{80+i}, v{80+i}")
nop(1)
for i in range(4):
    e(f"v_cvt_pk_bf16_f32 v{16+i}, v{80+2*i}, v{81+2*i}")
e("v_cmp_gt_u32 vcc, 4, v3")
e(f"s_and_saveexec_b64 s[{sM0}:{sM1}], vcc")
e("ds_write_b128 v14, v[16:19]")
e(f"s_mov_b64 exec, s[{sM0}:{sM1}]")
signal(S_CNT, C_P, 8, 9)
stamp(15)
lab("L_S_PVSTART")
e(f"s_cmp_ge_u32 s{sWAVE}, 8")
e("s_cbranch_scc1 L_S_LATE")
e("v_bfe_u32 v9, v1, 3, 1")
e("v_bfe_u32 v10, v1, 2, 1")
e("v_lshl_add_u32 v10, v2, 1, v10")
e("v_lshl_add_u32 v11, v9, 3, v10")
e("v_lshlrev_b32 v9, 2, v9")
e("v_xor_b32 v10, v10, v9")
e(f"v_xor_b32 v10, s{sWAVE}, v10")
e("v_lshlrev_b32 v10, 5, v10")
e("v_lshl_add_u32 v10, v11, 8, v10")
e("v_and_b32 v11, 3, v1")
e("v_lshl_add_u32 v10, v11, 3, v10")
e("v_add_u32 v11, 0x10000, v10")
for i in range(4): e(f"v_mov_b32 v{28+i}, 0x3f803f80")
e(f"s_and_b32 s{sT0}, s{sR}, 7")
e(f"s_lshr_b32 s{sT1}, s{sR}, 3")
e(f"s_mul_i32 s{sT1}, s{sT1}, 7")
e(f"s_add_u32 s{sT1}, s{sT1}, s{sX8}")
e(f"s_mul_i32 s{sT0}, s{sT0}, {4*28}")
e(f"s_add_u32 s{sT0}, s{sT0}, s{sT1}")
e("v_mul_u32_u24 v12, 28, v3")
e(f"v_add_u32 v12, s{sT0}, v12")
e("v_lshlrev_b32 v14, 4, v12")
e("v_lshlrev_b32 v12, 9, v12")
e("v_lshl_add_u32 v12, v2, 4, v12")
e(f"s_lshl_b32 s{sT0}, s{sWAVE}, 6")
e(f"v_add_u32 v12, s{sT0}, v12")
e(f"v_mov_b32 v17, s{sTAG}")
e(f"v_mov_b32 v19, s{sTAG}")
e(f"v_mov_b32 v21, s{sTAG}")
e(f"v_mov_b32 v23, s{sTAG}")
wait_cnt(S_CNT, C_P, f"s{sNT}", 8, 9, sleep=0)
def vbase(a): return (10, a*8192) if a < 8 else (11, (a-8)*8192)
for NTv in (7, 10):
    lnext = uid("NT")
    if NTv == 7:
        e(f"s_cmp_eq_u32 s{sNT}, 7")
        e(f"s_cbranch_scc0 {lnext}")
    for a in range(NTv):
        e(f"ds_read_b128 v[{80+4*a}:{83+4*a}], v13 offset:{256*a}")
    for a in range(NTv):
        e(f"s_waitcnt lgkmcnt({NTv-1-a})")
        cin = "0" if a == 0 else "v[124:127]"
        e(f"v_mfma_f32_16x16x32_bf16 v[124:127], v[28:31], v[{80+4*a}:{83+4*a}], {cin}")
    wait_mask(S_CNT, F_V, (1 << (NTv-1)) - 1, 8, 9, sleep=1)
    stamp(16)
    n = NTv - 1; WIN = 7
    def vread(a):
        vb, off = vbase(a)
        e(f"ds_read_b64_tr_b16 v[{32+4*a}:{33+4*a}], v{vb} offset:{off}")
        e(f"ds_read_b64_tr_b16 v[{34+4*a}:{35+4*a}], v{vb} offset:{off+4096}")
    for a in range(min(WIN, n)): vread(a)
    for a in range(n):
        rem = 2*(min(a + WIN, n) - (a + 1))
        e(f"s_waitcnt lgkmcnt({rem})")
        cin = "0" if a == 0 else "v[120:123]"
        e(f"v_mfma_f32_16x16x32_bf16 v[120:123], v[{32+4*a}:{35+4*a}], v[{80+4*a}:{83+4*a}], {cin}")
        if a + WIN < n: vread(a + WIN)
    e("v_rcp_f32 v24, v124")
    wait_mask(S_CNT, F_V, (1 << NTv) - 1, 8, 9, sleep=0)
    stamp(13)
    a = NTv - 1
    vb, off = vbase(a)
    e(f"ds_read_b64_tr_b16 v[{32+4*a}:{33+4*a}], v{vb} offset:{off}")
    e(f"ds_read_b64_tr_b16 v[{34+4*a}:{35+4*a}], v{vb} offset:{off+4096}")
    e("s_waitcnt lgkmcnt(0)")
    e(f"v_mfma_f32_16x16x32_bf16 v[120:123], v[{32+4*a}:{35+4*a}], v[{80+4*a}:{83+4*a}], v[120:123]")
    if NTv == 7:
        e("s_branch L_S_PVEND")
        lab(lnext)
lab("L_S_PVEND")
signal(S_CNT, C_PVD, 8, 9)
e("v_mov_b32 v20, v15")
e("v_mov_b32 v22, v124")
nop(2)
e("v_pk_mul_f32 v[120:121], v[120:121], v[24:25] op_sel_hi:[1,0]")
e("v_pk_mul_f32 v[122:123], v[122:123], v[24:25] op_sel_hi:[1,0]")
e("v_cvt_pk_bf16_f32 v16, v120, v121")
e("v_cvt_pk_bf16_f32 v18, v122, v123")
e(f"s_mov_b32 s{sT2}, {WS_OD}")
e("v_cmp_gt_u32 vcc, 4, v3")
e(f"s_and_saveexec_b64 s[{sM0}:{sM1}], vcc")
e(f"buffer_store_dwordx4 v[16:19], v12, {WS}, s{sT2} offen sc1")
lml = uid("ML")
e(f"s_cmp_lg_u32 s{sWAVE}, 0")
e(f"s_cbranch_scc1 {lml}")
e("s_mov_b64 exec, 15")
e(f"s_mov_b32 s{sT2}, {WS_OML}")
e(f"buffer_store_dwordx4 v[20:23], v14, {WS}, s{sT2} offen sc1")
lab(lml)
e(f"s_mov_b64 exec, s[{sM0}:{sM1}]")
stamp(7)
e("s_branch L_S_LATE")
lab("L_S_ATT_IDLE")
load_tag()
fin_tag()
e("s_branch L_S_PVSTART")

lab("L_S_JOB")
c("job waves 10,11")
e("s_setprio 3")
def zero_counters(cnt, maxb=None):
    e("v_lshlrev_b32 v4, 2, v1")
    if maxb is not None:
        e(f"v_add_u32 v5, {maxb}, v4")
        e("v_mov_b32 v6, 0xff800000")
        e("ds_write_b32 v5, v6")
    e(f"v_add_u32 v4, {cnt}, v4")
    e("v_mov_b32 v5, 0")
    e("v_cmp_gt_u32 vcc, 16, v1")
    e(f"s_and_saveexec_b64 s[{sM0}:{sM1}], vcc")
    e("ds_write_b32 v4, v5")
    e(f"s_mov_b64 exec, s[{sM0}:{sM1}]")
    e("s_waitcnt lgkmcnt(0)")
zero_counters(S_CNT, S_MAXB)
e("s_barrier")
load_tag()
e(f"s_sub_u32 s{sT4}, s{sWAVE}, 10")
stamp(20)
def gemv_job(ebase, actbase, cnt, act_target):
    e("v_lshrrev_b32 v4, 2, v3")
    e("v_lshl_add_u32 v4, v2, 2, v4")
    e("v_lshlrev_b32 v4, 6, v4")
    e("v_and_b32 v5, 1, v2")
    e(f"v_xor_b32 v5, s{sT4}, v5")
    e("v_lshl_add_u32 v4, v5, 5, v4")
    e("v_and_b32 v5, 3, v1")
    e("v_lshl_add_u32 v4, v5, 3, v4")
    e(f"v_add_u32 v4, {ebase}, v4")
    e("v_mul_u32_u24 v6, 1088, v5")
    e("v_lshl_add_u32 v6, v2, 4, v6")
    e(f"v_add_u32 v6, {actbase}, v6")
    wait_cnt(cnt, C_EARLY, 4, 8, 9, sleep=1)
    stamp(1)
    for ks in range(16):
        e(f"ds_read_b64_tr_b16 v[{32+4*ks}:{33+4*ks}], v4 offset:{2048*ks}")
        e(f"ds_read_b64_tr_b16 v[{34+4*ks}:{35+4*ks}], v4 offset:{2048*ks+1024}")
    wait_cnt(cnt, C_ACT, act_target, 8, 9, sleep=1)
    stamp(2)
    BB = [96, 8]
    def bread(grp):
        base = BB[grp % 2]
        for k in range(4):
            ks = 4*grp + k
            e(f"ds_read_b128 v[{base+4*k}:{base+4*k+3}], v6 offset:{64*ks}")
    bread(0); bread(1)
    for grp in range(4):
        e(f"s_waitcnt lgkmcnt({4 if grp < 3 else 0})")
        base = BB[grp % 2]
        for k in range(4):
            ks = 4*grp + k
            cin = "0" if ks == 0 else "v[24:27]"
            e(f"v_mfma_f32_16x16x32_bf16 v[24:27], v[{32+4*ks}:{35+4*ks}], v[{base+4*k}:{base+4*k+3}], {cin}")
        if grp + 2 < 4: bread(grp + 2)
    nop(8)
fin_tag()
e(f"s_cmp_eq_u32 s{sU}, 0")
e("s_cbranch_scc1 L_S_JOB_Q")
gemv_job(S_E, S_ACT, S_CNT, 4)
e("v_cvt_pk_bf16_f32 v28, v24, v25")
e(f"v_mov_b32 v29, s{sTAG}")
e("v_cvt_pk_bf16_f32 v30, v26, v27")
e(f"v_mov_b32 v31, s{sTAG}")
e(f"s_lshl_b32 s{sT1}, s{sUI}, 7")
e(f"s_add_u32 s{sT1}, s{sT1}, {WS_M}")
e(f"s_lshl_b32 s{sT2}, s{sT4}, 6")
e(f"s_add_u32 s{sT1}, s{sT1}, s{sT2}")
e("v_lshlrev_b32 v8, 13, v3")
e("v_lshl_add_u32 v8, v2, 4, v8")
e("v_cmp_gt_u32 vcc, 4, v3")
e(f"s_and_saveexec_b64 s[{sM0}:{sM1}], vcc")
e(f"buffer_store_dwordx4 v[28:31], v8, {WS}, s{sT1} offen sc1")
e(f"s_mov_b64 exec, s[{sM0}:{sM1}]")
stamp(3)
lab("L_S_JOB_Q")
ljq = uid("JQ")
e(f"s_cmp_eq_u32 s{sQCU}, 0")
e(f"s_cbranch_scc1 {ljq}")
wait_cnt(S_CNT, C_QD, 4, 8, 9, sleep=2)
lab(ljq)
e(f"s_lshr_b32 s{sT0}, s{sR}, 3")
e(f"s_lshl_b32 s{sT0}, s{sT0}, 14")
e(f"s_and_b32 s{sT1}, s{sR}, 7")
e(f"s_lshl_b32 s{sT1}, s{sT1}, 11")
e(f"s_add_u32 s{sT0}, s{sT0}, s{sT1}")
e(f"s_lshl_b32 s{sT1}, s{sT4}, 10")
e(f"s_add_u32 s{sT0}, s{sT0}, s{sT1}")
e(f"s_add_u32 s{sT0}, s{sT0}, {WS_Q}")
e("v_lshlrev_b32 v5, 4, v1")
e(f"v_add_u32 v5, s{sT0}, v5")
e("v_lshrrev_b32 v6, 5, v1")
e(f"s_lshl_b32 s{sT0}, s{sT4}, 1")
e(f"v_add_u32 v6, s{sT0}, v6")
e("v_mul_u32_u24 v6, 320, v6")
e("v_and_b32 v7, 31, v1")
e("v_lshl_add_u32 v6, v7, 3, v6")
e(f"v_add_u32 v6, {S_QL}, v6")
poll([(8, 5, 0)], sleep=SSL)
e("v_mov_b32 v9, v10")
e("ds_write_b64 v6, v[8:9]")
signal(S_CNT, C_Q, 24, 25)
stamp(5)
e("s_branch L_S_LATE")

def early_dma(ebase, scb0, scb1, stride):
    e("v_lshrrev_b32 v5, 2, v1")
    e(f"v_mul_u32_u24 v5, {stride}, v5")
    e("v_bfe_u32 v6, v1, 1, 1")
    e("v_bfe_u32 v7, v1, 4, 1")
    e("v_xor_b32 v6, v6, v7")
    e(f"v_mov_b32 v7, s{scb0}")
    e(f"v_mov_b32 v16, s{scb1}")
    e("v_cmp_eq_u32 vcc, 1, v6")
    nop(2)
    e("v_cndmask_b32 v7, v7, v16, vcc")
    e("v_add_u32 v5, v5, v7")
    e("v_and_b32 v6, 1, v1")
    e("v_lshl_add_u32 v5, v6, 4, v5")
    e(f"s_lshl_b32 s{sT1}, s{sT4}, 3")
    e(f"s_mul_i32 s{sT2}, s{sT1}, {16*stride}")
    e(f"s_lshl_b32 s{sT1}, s{sT1}, 10")
    e(f"s_add_u32 s{sT1}, s{sT1}, {ebase}")
    for k in range(8):
        e(f"s_mov_b32 m0, s{sT1}")
        e(f"s_add_u32 s{sT1}, s{sT1}, 1024")
        e(f"buffer_load_dwordx4 v5, {SC}, s{sT2} offen nt lds")
        e(f"s_add_u32 s{sT2}, s{sT2}, {16*stride}")
def silu_to_act(actbase, cnt):
    for i in range(4):
        unpack2(8+i, 16+2*i, 17+2*i)
    for i in range(8):
        silu_inplace(16+i, 24, 25)
    for i in range(4):
        e(f"v_cvt_pk_bf16_f32 v{8+i}, v{16+2*i}, v{17+2*i}")
    e("v_lshrrev_b32 v6, 2, v1")
    e("v_lshlrev_b32 v6, 6, v6")
    e("v_and_b32 v7, 1, v1")
    e("v_lshl_add_u32 v6, v7, 5, v6")
    e("v_bfe_u32 v7, v1, 1, 1")
    e("v_lshl_add_u32 v6, v7, 3, v6")
    e(f"s_mul_i32 s{sT0}, s{sT4}, 1088")
    e(f"s_add_u32 s{sT0}, s{sT0}, {actbase}")
    e(f"v_add_u32 v6, s{sT0}, v6")
    e("ds_write_b64 v6, v[8:9]")
    e("ds_write_b64 v6, v[10:11] offset:16")
    signal(cnt, C_ACT, 24, 25)

lab("L_S_STREAM")
c("streamer waves 12..15")
e("s_setprio 2")
e(f"s_sub_u32 s{sT4}, s{sWAVE}, 12")
lnoe = uid("NOE")
e(f"s_cmp_eq_u32 s{sU}, 0")
e(f"s_cbranch_scc1 {lnoe}")
srd(28, P_C, 4096)
srd(20, P_WM, 512*3072*2)
e(f"s_lshl_b32 s{sT0}, s{sT4}, 10")
e("v_lshlrev_b32 v4, 4, v1")
e(f"buffer_load_dwordx4 v[8:11], v4, {SE}, s{sT0} offen")
e(f"s_lshl_b32 s{sCB0}, s{sUI}, 6")
e(f"s_add_u32 s{sCB0}, s{sCB0}, 2048")
e(f"s_add_u32 s{sCB1}, s{sCB0}, 32")
early_dma(S_E, sCB0, sCB1, 6144)
lab(lnoe)
e("s_barrier")
load_tag()
srd(16, P_V, 4*8*8192*128*2)
srd(24, P_WO, 4096*512*2)
lafter = uid("LAF")
e(f"s_cmp_eq_u32 s{sU}, 0")
e(f"s_cbranch_scc1 {lafter}")
e("s_waitcnt vmcnt(8)")
silu_to_act(S_ACT, S_CNT)
lab(lafter)
lnq2 = uid("NOQ")
e(f"s_cmp_eq_u32 s{sQCU}, 0")
e(f"s_cbranch_scc1 {lnq2}")
srd(32, P_X, 4096)
e(f"s_lshl_b32 s{sT0}, s{sT4}, 10")
e("v_lshlrev_b32 v4, 3, v1")
e(f"buffer_load_dwordx2 v[8:9], v4, {SF}, s{sT0} offen")
e(f"buffer_load_dwordx2 v[10:11], v4, {SF}, s{sT0} offen offset:512")
e(f"s_lshl_b32 s{sT0}, s{sT4}, 12")
e(f"s_add_u32 s{sT0}, s{sT0}, {WS_SC}")
e("v_lshlrev_b32 v5, 4, v1")
e(f"v_add_u32 v5, s{sT0}, v5")
e("v_lshrrev_b32 v6, 3, v1")
e("v_lshlrev_b32 v6, 6, v6")
e("v_and_b32 v7, 3, v1")
e("v_lshl_add_u32 v6, v7, 4, v6")
e("v_bfe_u32 v7, v1, 2, 1")
e("v_lshl_add_u32 v6, v7, 3, v6")
e(f"s_mul_i32 s{sT0}, s{sT4}, 1088")
e(f"s_add_u32 s{sT0}, s{sT0}, {S_ACT}")
e(f"v_add_u32 v6, s{sT0}, v6")
e("s_waitcnt vmcnt(0) lgkmcnt(0)")
e(f"s_add_u32 s{sTAG}, s{sTAG}, 0x9E3779B9")
for i in range(4): unpack2(8+i, 16+2*i, 17+2*i)
layernorm8(16, 24)
wait_cnt(S_CNT, C_WQ, 8, 36, 37, sleep=1)
poll([(40, 5, 0), (44, 5, 1024), (48, 5, 2048), (52, 5, 3072)], sleep=1)
for (src, dst) in ((48, 56), (50, 58), (52, 60), (54, 62)): unpack2(src, dst, dst+1)
for i in range(0, 8, 2): e(f"v_pk_add_f32 v[{56+i}:{57+i}], v[{56+i}:{57+i}], 1.0 op_sel_hi:[1,0]")
for i in range(0, 8, 2): rnd2(56+i, 57+i, 24)
for i in range(0, 8, 2): e(f"v_pk_mul_f32 v[{16+i}:{17+i}], v[{16+i}:{17+i}], v[{56+i}:{57+i}]")
for i in range(0, 8, 2): rnd2(16+i, 17+i, 24)
for (src, dst) in ((40, 56), (42, 58), (44, 60), (46, 62)): unpack2(src, dst, dst+1)
for i in range(0, 8, 2): e(f"v_pk_add_f32 v[{16+i}:{17+i}], v[{16+i}:{17+i}], v[{56+i}:{57+i}]")
for i in range(4): e(f"v_cvt_pk_bf16_f32 v{8+i}, v{16+2*i}, v{17+2*i}")
e("ds_write_b64 v6, v[8:9]")
e("ds_write_b64 v6, v[10:11] offset:512")
signal(S_CNT, C_ACT, 24, 25)
stamp(6)
wait_cnt(S_CNT, C_QD, 4, 24, 25, sleep=1)
e(f"s_sub_u32 s{sTAG}, s{sTAG}, 0x9E3779B9")
lab(lnq2)
e("v_lshrrev_b32 v5, 1, v3")
e("v_xor_b32 v5, v5, v2")
e("v_lshlrev_b32 v5, 5, v5")
e("v_and_b32 v6, 1, v1")
e("v_lshl_add_u32 v5, v6, 4, v5")
e("v_lshl_add_u32 v7, v2, 10, v5")
e("v_lshl_add_u32 v5, v2, 8, v5")
e("v_xor_b32 v6, 128, v5")
e("v_xor_b32 v10, 128, v7")
e("s_waitcnt vmcnt(0)")
signal(S_CNT, C_EARLY, 24, 25)
fin_tag()
stamp(4)
e(f"s_sub_u32 s{sT5}, s{sNT}, {KOV}")
e(f"s_cmp_eq_u32 s{sQCU}, 1")
e(f"s_cselect_b32 s{sT5}, {QKW}, s{sT5}")
wait_cnt(S_CNT, C_KL, f"s{sT5}", 24, 25, sleep=1)
stamp(18)
def v_issue(sa):
    e(f"s_lshl_b32 s{sT1}, s{sa}, 13")
    e(f"s_add_u32 s{sT0}, s{sKVB}, s{sT1}")
    e(f"s_mov_b32 m0, s{sT1}")
    e(f"s_add_u32 s{sT1}, s{sT1}, 4096")
    for i in range(4):
        e(f"buffer_load_dwordx4 v{5 + ((i ^ (i >> 1)) & 1)}, {SB}, s{sT0} offen offset:{1024*i} nt lds")
    e(f"s_mov_b32 m0, s{sT1}")
    e(f"s_add_u32 s{sT0}, s{sT0}, 4096")
    for i in range(4):
        e(f"buffer_load_dwordx4 v{5 + ((i ^ (i >> 1)) & 1)}, {SB}, s{sT0} offen offset:{1024*i} nt lds")
if "vdeep" in OPT:
    ldone = uid("VD"); l2 = uid("V2"); l1 = uid("V1")
    e(f"s_mov_b32 s{sT5}, s{sT4}"); v_issue(sT5)
    e(f"s_add_u32 s{sT5}, s{sT4}, 4")
    e(f"s_cmp_lt_u32 s{sT5}, s{sNT}")
    e(f"s_cbranch_scc0 {l1}")
    v_issue(sT5)
    e(f"s_add_u32 s{sT5}, s{sT4}, 8")
    e(f"s_cmp_lt_u32 s{sT5}, s{sNT}")
    e(f"s_cbranch_scc0 {l2}")
    v_issue(sT5)
    e(f"s_lshl_b32 s{sT2}, 1, s{sT4}")
    for w in (16, 8, 0):
        e(f"s_waitcnt vmcnt({w})")
        signal_or(S_CNT, F_V, sT2, 24, 25)
        if w: e(f"s_lshl_b32 s{sT2}, s{sT2}, 4")
    e(f"s_branch {ldone}")
    lab(l2)
    e(f"s_lshl_b32 s{sT2}, 1, s{sT4}")
    for w in (8, 0):
        e(f"s_waitcnt vmcnt({w})")
        signal_or(S_CNT, F_V, sT2, 24, 25)
        if w: e(f"s_lshl_b32 s{sT2}, s{sT2}, 4")
    e(f"s_branch {ldone}")
    lab(l1)
    e(f"s_lshl_b32 s{sT2}, 1, s{sT4}")
    e("s_waitcnt vmcnt(0)")
    signal_or(S_CNT, F_V, sT2, 24, 25)
    lab(ldone)
else:
    e(f"s_mov_b32 s{sT5}, s{sT4}")
    lv = uid("V"); lvd = uid("VD")
    lab(lv)
    v_issue(sT5)
    e(f"s_lshl_b32 s{sT2}, 1, s{sT5}")
    e("s_waitcnt vmcnt(0)")
    signal_or(S_CNT, F_V, sT2, 24, 25)
    e(f"s_add_u32 s{sT5}, s{sT5}, 4")
    e(f"s_cmp_lt_u32 s{sT5}, s{sNT}")
    e(f"s_cbranch_scc1 {lv}")
stamp(19)
e(f"s_cmp_eq_u32 s{sLATE}, 0")
e("s_cbranch_scc1 L_END")
e(f"s_lshl_b32 s{sT0}, s{sT4}, 3")
e(f"s_lshl_b32 s{sT1}, s{sT0}, 10")
e(f"s_add_u32 s{sT1}, s{sT1}, {S_L}")
e(f"s_lshl_b32 s{sT2}, s{sT0}, 12")
e(f"s_lshl_b32 s{sT3}, s{sH}, 17")
e(f"s_add_u32 s{sT2}, s{sT2}, s{sT3}")
e(f"s_lshl_b32 s{sT3}, s{sNQ}, 8")
e(f"s_add_u32 s{sT2}, s{sT2}, s{sT3}")
for k in range(8):
    e(f"s_mov_b32 m0, s{sT1}")
    e(f"s_add_u32 s{sT1}, s{sT1}, 1024")
    e(f"buffer_load_dwordx4 v{[7, 10][(k >> 1) & 1]}, {SD}, s{sT2} offen nt lds")
    e(f"s_add_u32 s{sT2}, s{sT2}, 4096")
e("s_waitcnt vmcnt(0)")
signal(S_CNT, C_LATE, 24, 25)

lab("L_S_LATE")
e(f"s_cmp_eq_u32 s{sLATE}, 0")
e("s_cbranch_scc1 L_END")
e("s_setprio 0")
e(f"s_lshl_b32 s{sT6}, s{sWAVE}, 6"); e(f"v_add_u32 v4, s{sT6}, v1")
e(f"s_mul_i32 s{sT0}, s{sH}, {28*512}")
e(f"s_add_u32 s{sT0}, s{sT0}, {WS_OD}")
e(f"s_mul_i32 s{sT1}, s{sH}, {28*16}")
e(f"s_add_u32 s{sT1}, s{sT1}, {WS_OML - 896*16}")
e(f"s_cmp_lt_u32 s{sWAVE}, 14")
e(f"s_cselect_b32 s{sT0}, s{sT0}, s{sT1}")
e("v_lshlrev_b32 v5, 4, v4")
e(f"v_add_u32 v5, s{sT0}, v5")
e("v_lshrrev_b32 v6, 5, v4")
e(f"s_cmp_lt_u32 s{sWAVE}, 14")
lw = uid("LW"); lw2 = uid("LW")
e(f"s_cbranch_scc1 {lw}")
e("v_mov_b32 v6, v1")
lab(lw)
e("v_mul_u32_u24 v7, 37, v6")
e("v_lshrrev_b32 v7, 8, v7")
e("v_add_u32 v6, v6, v7")
e(f"s_cmp_lt_u32 s{sWAVE}, 14")
e(f"s_cbranch_scc1 {lw2}")
e("v_lshlrev_b32 v6, 3, v6")
e(f"v_add_u32 v6, {S_CML}, v6")
lw3 = uid("LW")
e(f"s_branch {lw3}")
lab(lw2)
e("v_mul_u32_u24 v6, 272, v6")
e("v_and_b32 v7, 31, v4")
e("v_lshl_add_u32 v6, v7, 3, v6")
e(f"v_add_u32 v6, {S_CG}, v6")
lab(lw3)
lnw = uid("LNW")
e(f"s_cmp_ge_u32 s{sWAVE}, 8")
e(f"s_cbranch_scc1 {lnw}")
wait_cnt(S_CNT, C_LATE, 4, 8, 9, sleep=1)
e("v_lshrrev_b32 v12, 2, v3")
e("v_lshl_add_u32 v13, v2, 3, v12")
e("v_and_b32 v14, 1, v2")
e("v_lshl_add_u32 v12, v14, 2, v12")
e(f"v_xor_b32 v12, s{sWAVE}, v12")
e("v_lshlrev_b32 v12, 5, v12")
e("v_lshl_add_u32 v12, v13, 8, v12")
e("v_and_b32 v14, 3, v1")
e("v_lshl_add_u32 v12, v14, 3, v12")
e(f"v_add_u32 v12, {S_L}, v12")
for ks in range(4):
    e(f"ds_read_b64_tr_b16 v[{32+4*ks}:{33+4*ks}], v12 offset:{8192*ks}")
    e(f"ds_read_b64_tr_b16 v[{34+4*ks}:{35+4*ks}], v12 offset:{8192*ks+1024}")
e("v_mul_u32_u24 v56, 272, v3")
e("v_lshl_add_u32 v56, v2, 4, v56")
e(f"v_add_u32 v56, {S_CG}, v56")
e("v_lshlrev_b32 v57, 3, v3")
e(f"v_add_u32 v57, {S_CML}, v57")
e(f"s_lshl_b32 s{sT0}, s{sNQ}, 3")
e(f"s_add_u32 s{sT0}, s{sT0}, s{sWAVE}")
e(f"s_lshl_b32 s{sT0}, s{sT0}, 5")
e(f"s_add_u32 s{sT0}, s{sT0}, s{sH}")
e(f"s_lshl_b32 s{sT0}, s{sT0}, 9")
e(f"s_add_u32 s{sT0}, s{sT0}, {WS_AP}")
e("v_bfe_u32 v58, v1, 3, 1")
e("v_lshlrev_b32 v58, 7, v58")
e("v_lshl_add_u32 v58, v2, 5, v58")
e("v_bfe_u32 v59, v1, 1, 1")
e("v_lshl_add_u32 v58, v59, 8, v58")
e("v_and_b32 v59, 1, v1")
e("v_lshl_add_u32 v58, v59, 4, v58")
e(f"v_add_u32 v58, s{sT0}, v58")
e(f"v_mov_b32 v61, s{sTAG}")
e(f"v_mov_b32 v63, s{sTAG}")
lab(lnw)
lz = uid("LZ"); lzd = uid("LZD")
e(f"s_cmp_eq_u32 s{sWAVE}, 15")
e(f"s_cbranch_scc1 {lz}")
e("s_mov_b64 s[98:99], exec")
e(f"s_cmp_lg_u32 s{sWAVE}, 14")
lfull = uid("LF")
e(f"s_cbranch_scc1 {lfull}")
e("s_mov_b32 exec_lo, 0x0fffffff")
e("s_mov_b32 exec_hi, 0")
lab(lfull)
poll([(8, 5, 0)])
stamp(17)
e("v_mov_b32 v9, v10")
wait_cnt(S_CNT, C_PVD, 8, 12, 13, sleep=0)
e("ds_write_b64 v6, v[8:9]")
e("s_mov_b64 exec, s[98:99]")
e(f"s_branch {lzd}")
lab(lz)
wait_cnt(S_CNT, C_PVD, 8, 12, 13, sleep=1)
e("v_lshlrev_b32 v6, 3, v2")
e("v_add_u32 v6, 7, v6")
e("v_mul_u32_u24 v7, 272, v6")
e("v_lshl_add_u32 v7, v3, 4, v7")
e(f"v_add_u32 v7, {S_CG}, v7")
for i in range(4): e(f"v_mov_b32 v{12+i}, 0")
e("ds_write_b128 v7, v[12:15]")
e("v_lshlrev_b32 v6, 3, v6")
e(f"v_add_u32 v6, {S_CML}, v6")
e("v_mov_b32 v12, 0xff800000")
e("ds_write_b64 v6, v[12:13]")
lab(lzd)
e("s_waitcnt lgkmcnt(0)")
e("s_barrier")
e(f"s_cmp_ge_u32 s{sWAVE}, 8")
e("s_cbranch_scc1 L_END")
stamp(9)
e("ds_read_b64 v[8:9], v57")
e("ds_read_b64 v[10:11], v57 offset:128")
for ct in range(2):
    for ks in range(4):
        d = 64 + 16*ct + 4*ks
        e(f"ds_read_b128 v[{d}:{d+3}], v56 offset:{16*272*ct + 64*ks}")
e("s_waitcnt lgkmcnt(8)")
e("v_mov_b32 v12, v8")
e("v_mov_b32 v13, v10")
nop(1)
for ctl in ("quad_perm:[1,0,3,2]", "quad_perm:[2,3,0,1]", "row_half_mirror"):
    e(f"v_max_f32_dpp v12, v12, v12 {ctl} row_mask:0xf bank_mask:0xf")
    e(f"v_max_f32_dpp v13, v13, v13 {ctl} row_mask:0xf bank_mask:0xf")
    nop(1)
e("v_sub_f32 v8, v8, v12")
e("v_sub_f32 v10, v10, v13")
e("v_exp_f32 v8, v8")
e("v_exp_f32 v10, v10")
e("s_waitcnt lgkmcnt(0)")
for ks in range(4):
    for ct in range(2):
        d = 64 + 16*ct + 4*ks
        cin = "0" if ks == 0 else f"v[{16+4*ct}:{19+4*ct}]"
        e(f"v_mfma_f32_16x16x32_bf16 v[{16+4*ct}:{19+4*ct}], v[{32+4*ks}:{35+4*ks}], v[{d}:{d+3}], {cin}")
e("v_mul_f32 v8, v8, v9")
e("v_mul_f32 v10, v10, v11")
e("v_mov_b32 v12, v8")
e("v_mov_b32 v13, v10")
nop(1)
for ctl in ("quad_perm:[1,0,3,2]", "quad_perm:[2,3,0,1]", "row_half_mirror"):
    e(f"v_add_f32_dpp v12, v12, v12 {ctl} row_mask:0xf bank_mask:0xf")
    e(f"v_add_f32_dpp v13, v13, v13 {ctl} row_mask:0xf bank_mask:0xf")
    nop(1)
e("v_rcp_f32 v12, v12")
e("v_rcp_f32 v13, v13")
e("v_and_b32 v14, 1, v1")
e(f"v_cmp_eq_u32 s[{sM0}:{sM1}], 1, v14")
e("v_bfe_u32 v14, v1, 1, 1")
e("v_cmp_eq_u32 vcc, 1, v14")
e("v_mul_f32 v8, v8, v12")
e("v_mul_f32 v10, v10, v13")
nop(1)
e("v_pk_mul_f32 v[16:17], v[16:17], v[8:9] op_sel_hi:[1,0]")
e("v_pk_mul_f32 v[18:19], v[18:19], v[8:9] op_sel_hi:[1,0]")
e("v_pk_mul_f32 v[20:21], v[20:21], v[10:11] op_sel_hi:[1,0]")
e("v_pk_mul_f32 v[22:23], v[22:23], v[10:11] op_sel_hi:[1,0]")
nop(1)
for ctl in ("quad_perm:[1,0,3,2]", "quad_perm:[2,3,0,1]", "row_half_mirror"):
    for i in range(8):
        e(f"v_add_f32_dpp v{16+i}, v{16+i}, v{16+i} {ctl} row_mask:0xf bank_mask:0xf")
e(f"v_cndmask_b32 v24, v16, v18, s[{sM0}:{sM1}]")
e(f"v_cndmask_b32 v25, v20, v22, s[{sM0}:{sM1}]")
e(f"v_cndmask_b32 v26, v17, v19, s[{sM0}:{sM1}]")
e(f"v_cndmask_b32 v27, v21, v23, s[{sM0}:{sM1}]")
e("v_cndmask_b32 v60, v24, v25, vcc")
e("v_cndmask_b32 v62, v26, v27, vcc")
e("v_and_b32 v14, 4, v1")
e("v_cmp_eq_u32 vcc, 0, v14")
e(f"s_and_saveexec_b64 s[{sM0}:{sM1}], vcc")
e(f"buffer_store_dwordx4 v[60:63], v58, {WS}, 0 offen sc1")
e(f"s_mov_b64 exec, s[{sM0}:{sM1}]")
stamp(10)
e("s_branch L_END")

lab("L_T")
c("T role: t = sR")
srd(20, P_WM, 512*3072*2)
srd(28, P_C, 4096)
srd(32, P_X, 4096)
srd(24, P_OUT, 4096)
e(f"s_cmp_ge_u32 s{sWAVE}, 12")
e("s_cbranch_scc1 L_T_STREAM")
lt1 = uid("T1")
e(f"s_cmp_lg_u32 s{sWAVE}, 10")
e(f"s_cbranch_scc1 {lt1}")
zero_counters(T_CNT)
lab(lt1)
e("s_barrier")
lt2 = uid("T2")
e(f"s_cmp_ge_u32 s{sR}, 16")
e(f"s_cbranch_scc1 {lt2}")
e(f"s_lshl_b32 s{sCB0}, s{sR}, 7")
e(f"s_lshl_b32 s{sCB1}, s{sR}, 8")
e(f"s_add_u32 s{sCB1}, s{sCB1}, {WS_SC}")
line_unit(T_ACT, T_CNT, 6144, 12)
e("s_branch L_T_AUX")
lab(lt2)
load_tag()
fin_tag()
lab("L_T_AUX")
e(f"s_cmp_lg_u32 s{sWAVE}, 8")
e("s_cbranch_scc1 L_T_B1")
e(f"s_getreg_b32 s{sT0}, hwreg(HW_REG_XCC_ID)")
e(f"s_and_b32 s{sT0}, s{sT0}, 0xf")
e(f"v_mov_b32 v8, s{sT0}")
e(f"v_mov_b32 v9, s{sTAG}")
e(f"s_lshl_b32 s{sT1}, s{sR}, 3")
e(f"s_add_u32 s{sT1}, s{sT1}, {WS_XCC}")
sentinel_store(sT1, 8)
e("s_branch L_T_B1")
lab("L_T_STREAM")
e(f"s_sub_u32 s{sT4}, s{sWAVE}, 12")
e(f"s_lshl_b32 s{sT0}, s{sT4}, 10")
e("v_lshlrev_b32 v4, 4, v1")
e(f"buffer_load_dwordx4 v[8:11], v4, {SE}, s{sT0} offen")
e("s_barrier")
load_tag()
e("s_waitcnt vmcnt(0)")
silu_to_act(T_ACT, T_CNT)
fin_tag()
lab("L_T_B1")
e("s_waitcnt lgkmcnt(0)")
e("s_barrier")
stamp(19)
srd(12, P_WG, 512*1792*2)
srd(16, P_WU, 512*1792*2)
lnoffn = uid("NF")
e(f"s_cmp_ge_u32 s{sR}, 28")
e(f"s_cbranch_scc1 {lnoffn}")
line_dma_voff(3584)
e(f"s_and_b32 s{sT0}, s{sWAVE}, 7")
e(f"s_lshl_b32 s{sT0}, s{sT0}, 3")
e(f"s_mul_i32 s{sT2}, s{sT0}, {8*3584}")
e(f"s_lshl_b32 s{sT3}, s{sR}, 7")
e(f"s_add_u32 s{sT2}, s{sT2}, s{sT3}")
e(f"s_lshl_b32 s{sT1}, s{sWAVE}, 13")
lup = uid("UP"); lgd = uid("GD")
e(f"s_cmp_ge_u32 s{sWAVE}, 8")
e(f"s_cbranch_scc1 {lup}")
for k in range(8):
    e(f"s_mov_b32 m0, s{sT1}")
    e(f"s_add_u32 s{sT1}, s{sT1}, 1024")
    e(f"buffer_load_dwordx4 v4, {SA}, s{sT2} offen nt lds")
    e(f"s_add_u32 s{sT2}, s{sT2}, {8*3584}")
e(f"s_branch {lgd}")
lab(lup)
for k in range(8):
    e(f"s_mov_b32 m0, s{sT1}")
    e(f"s_add_u32 s{sT1}, s{sT1}, 1024")
    e(f"buffer_load_dwordx4 v4, {SB}, s{sT2} offen nt lds")
    e(f"s_add_u32 s{sT2}, s{sT2}, {8*3584}")
lab(lgd)
lab(lnoffn)
lmods = uid("MODS"); lb2 = uid("B2")
e(f"s_cmp_lt_u32 s{sWAVE}, 8")
e(f"s_cbranch_scc1 {lb2}")
lab(lmods)
lm1 = uid("LM"); lm2 = uid("LM")
e(f"s_cmp_ge_u32 s{sWAVE}, 12")
e(f"s_cbranch_scc1 {lm1}")
e(f"s_sub_u32 s{sT0}, s{sWAVE}, 8")
e(f"s_lshl_b32 s{sT0}, s{sT0}, 13")
e(f"s_add_u32 s{sT0}, s{sT0}, {WS_M}")
e("v_lshlrev_b32 v4, 4, v1")
e(f"v_add_u32 v4, s{sT0}, v4")
e("v_add_u32 v5, 2048, v4")
e("v_add_u32 v6, 4096, v4")
poll([(32, 5, 0), (36, 5, 1024), (40, 6, 0), (44, 6, 1024)], sleep=2)
for (src, dst) in ((32, 48), (36, 52)):
    unpack2(src, dst, dst+1); unpack2(src+2, dst+2, dst+3)
for (src, dst) in ((40, 56), (44, 60)):
    unpack2(src, dst, dst+1); unpack2(src+2, dst+2, dst+3)
for i in range(8):
    e(f"v_add_f32 v{56+i}, 1.0, v{56+i}")
for i in range(0, 8, 2):
    rnd2(56+i, 57+i, 4)
e(f"s_branch {lb2}")
lab(lm1)
e(f"s_cmp_lg_u32 s{sWAVE}, 12")
e(f"s_cbranch_scc1 {lm2}")
e("v_lshrrev_b32 v4, 2, v1")
e("v_lshlrev_b32 v4, 13, v4")
e("v_and_b32 v5, 3, v1")
e("v_lshl_add_u32 v4, v5, 4, v4")
e(f"s_lshl_b32 s{sT0}, s{sR}, 6")
e(f"s_add_u32 s{sT0}, s{sT0}, {WS_M}")
e(f"v_add_u32 v4, s{sT0}, v4")
e("v_add_u32 v6, 6144, v4")
e("v_lshrrev_b32 v7, 2, v1")
e("v_lshlrev_b32 v7, 10, v7")
e("v_lshl_add_u32 v7, v5, 3, v7")
e(f"s_lshl_b32 s{sT0}, s{sR}, 5")
e("s_mov_b64 s[98:99], exec")
e("s_mov_b64 exec, 0xffff")
e(f"buffer_load_dwordx2 v[44:45], v7, {SF}, s{sT0} offen")
poll([(32, 4, 0), (36, 6, 0)], sleep=2)
e("s_mov_b64 exec, s[98:99]")
unpack2(32, 48, 49); unpack2(34, 50, 51)
unpack2(36, 52, 53); unpack2(38, 54, 55)
unpack2(44, 56, 57); unpack2(45, 58, 59)
e(f"s_branch {lb2}")
lab(lm2)
e(f"s_cmp_lg_u32 s{sWAVE}, 13")
e(f"s_cbranch_scc1 {lb2}")
e("v_lshlrev_b32 v5, 4, v1")
e(f"v_add_u32 v5, {WS_XCC}, v5")
e("s_mov_b64 s[98:99], exec")
e("s_mov_b64 exec, 0xffff")
poll([(8, 5, 0)], sleep=4)
e(f"s_getreg_b32 s{sT0}, hwreg(HW_REG_XCC_ID)")
e(f"s_and_b32 s{sT0}, s{sT0}, 0xf")
e(f"v_cmp_eq_u32 vcc, s{sT0}, v8")
e(f"v_cmp_eq_u32 s[{sM0}:{sM1}], s{sT0}, v10")
e(f"s_and_b64 vcc, vcc, s[{sM0}:{sM1}]")
e("s_cmp_eq_u64 vcc, exec")
e(f"s_cselect_b32 s{sSAME}, 1, 0")
if "forcesc1" in OPT: e(f"s_mov_b32 s{sSAME}, 0")
e("s_mov_b64 exec, s[98:99]")
e(f"v_mov_b32 v8, {T_SAME}")
e(f"v_mov_b32 v9, s{sSAME}")
e("ds_write_b32 v8, v9")
lab(lb2)
e("s_waitcnt lgkmcnt(0)")
stamp(15)
def read_same():
    e(f"v_mov_b32 v8, {T_SAME}")
    e("ds_read_b32 v9, v8")
    e("s_waitcnt lgkmcnt(0)")
    e(f"v_readfirstlane_b32 s{sSAME}, v9")
srd(20, P_WD, 1792*512*2)
e("s_waitcnt vmcnt(0)")
e("s_barrier")
read_same()
stamp(1)
lnt = uid("NT")
e(f"s_cmp_ge_u32 s{sR}, 28")
e(f"s_cbranch_scc1 {lnt}")
e(f"s_cmp_ge_u32 s{sWAVE}, 8")
e(f"s_cbranch_scc1 {lnt}")
e(f"s_lshr_b32 s{sT0}, s{sWAVE}, 2")
e(f"s_lshl_b32 s{sT0}, s{sT0}, 16")
tr_line_addr(4, sT0)
for ks in range(16):
    e(f"ds_read_b64_tr_b16 v[{32+4*ks}:{33+4*ks}], v4 offset:{4096*ks}")
    e(f"ds_read_b64_tr_b16 v[{34+4*ks}:{35+4*ks}], v4 offset:{4096*ks+2048}")
lab(lnt)
e("s_waitcnt lgkmcnt(0)")
e("s_barrier")
lnd = uid("ND")
e(f"s_cmp_ge_u32 s{sR}, 28")
e(f"s_cbranch_scc1 {lnd}")
e("v_lshlrev_b32 v4, 4, v1")
e(f"s_lshl_b32 s{sT0}, s{sWAVE}, 2")
e(f"s_lshl_b32 s{sT1}, s{sT0}, 10")
e(f"s_lshl_b32 s{sT2}, s{sR}, 16")
e(f"s_add_u32 s{sT2}, s{sT2}, s{sT1}")
e(f"s_and_b32 s{sT3}, s{sT0}, 7")
e(f"s_lshl_b32 s{sT3}, s{sT3}, 5")
for k in range(4):
    e(f"s_add_u32 s{sT5}, s{sT3}, {32*k}")
    e(f"v_xor_b32 v5, s{sT5}, v4")
    e(f"s_mov_b32 m0, s{sT1}")
    e(f"s_add_u32 s{sT1}, s{sT1}, 1024")
    e(f"buffer_load_dwordx4 v5, {SC}, s{sT2} offen nt lds")
    e(f"s_add_u32 s{sT2}, s{sT2}, 1024")
lab(lnd)
e("s_waitcnt vmcnt(0)")
e("s_barrier")
lnd = uid("ND")
e(f"s_cmp_ge_u32 s{sR}, 28")
e(f"s_cbranch_scc1 {lnd}")
e("v_lshrrev_b32 v4, 2, v3")
e("v_lshl_add_u32 v4, v2, 2, v4")
e("v_and_b32 v5, 7, v4")
e(f"s_lshl_b32 s{sT0}, s{sWAVE}, 1")
e(f"v_xor_b32 v5, s{sT0}, v5")
e("v_lshlrev_b32 v5, 5, v5")
e("v_lshl_add_u32 v5, v4, 10, v5")
e("v_and_b32 v6, 3, v1")
e("v_lshl_add_u32 v5, v6, 3, v5")
e("v_xor_b32 v6, 32, v5")
for j in range(2):
    for ks in range(2):
        d = 96 + 8*j + 4*ks
        e(f"ds_read_b64_tr_b16 v[{d}:{d+1}], v{5+j} offset:{32768*ks}")
        e(f"ds_read_b64_tr_b16 v[{d+2}:{d+3}], v{5+j} offset:{32768*ks+16384}")
lab(lnd)
stamp(2)

e(f"s_lshl_b32 s{sT6}, s{sWAVE}, 10")
e("v_lshlrev_b32 v124, 4, v1")
e(f"v_add_u32 v124, s{sT6}, v124")
e(f"s_mul_i32 s{sT0}, s{sR}, {28*512}")
e(f"s_add_u32 s{sT0}, s{sT0}, {WS_DP}")
e(f"v_add_u32 v126, s{sT0}, v124")
e(f"s_lshl_b32 s{sT0}, s{sR}, 14")
e(f"s_add_u32 s{sT0}, s{sT0}, {WS_AP}")
e(f"v_add_u32 v124, s{sT0}, v124")
e("v_and_b32 v125, 31, v1")
e("v_lshlrev_b32 v125, 3, v125")
e(f"v_add_u32 v125, {T_ACC1}, v125")
e("s_waitcnt lgkmcnt(0)")
lpw = uid("PW")
e(f"s_cmp_eq_u32 s{sSAME}, 1")
e(f"s_cbranch_scc0 {lpw}")
e(f"buffer_load_dwordx4 v[8:11], v126, {WS}, 0 offen nt")
e(f"s_lshl_b32 s{sT0}, s{sWAVE}, 10")
e(f"s_and_b32 s{sT0}, s{sT0}, 0x1fff")
e(f"s_add_u32 s{sT0}, s{sT0}, {WS_X2}")
e("v_lshlrev_b32 v4, 4, v1")
e(f"buffer_load_dwordx4 v[12:15], v4, {WS}, s{sT0} offen nt")
e("s_waitcnt vmcnt(0)")
lab(lpw)
stamp(3)
larm = uid("ARM")
e(f"s_cmp_lg_u32 s{sWAVE}, 0")
e(f"s_cbranch_scc1 {larm}")
e(f"s_mul_i32 s{sT0}, s{sR}, {28*16}")
e(f"s_add_u32 s{sT0}, s{sT0}, {WS_OML}")
e("v_lshlrev_b32 v4, 4, v1")
e(f"v_add_u32 v4, s{sT0}, v4")
poll_lanes(28, 8, 4, 4)
lab(larm)
e(f"s_lshl_b32 s{sT0}, s{sWAVE}, 8")
e("v_and_b32 v127, 31, v1")
e("v_lshlrev_b32 v127, 3, v127")
e(f"v_add_u32 v127, s{sT0}, v127")
e(f"v_add_u32 v127, {T_RED}, v127")
e("s_barrier")
stamp(17)
poll([(8, 124, 0)])
stamp(9)
def red_write():
    e("v_mov_b32 v12, v8")
    e("v_mov_b32 v13, v10")
    nop(2)
    e("v_permlane32_swap_b32 v8, v12")
    e("v_permlane32_swap_b32 v10, v13")
    nop(1)
    e("v_add_f32 v8, v8, v12")
    e("v_add_f32 v9, v10, v13")
    e("s_mov_b32 exec_hi, 0")
    e("ds_write_b64 v127, v[8:9]")
    e("s_mov_b32 exec_hi, -1")
def red_read(nw):
    e("v_lshlrev_b32 v4, 10, v2")
    e("v_lshl_add_u32 v4, v3, 4, v4")
    e(f"v_add_u32 v4, {T_RED}, v4")
    for i in range(4):
        e(f"ds_read_b128 v[{8+4*i}:{11+4*i}], v4 offset:{256*i}")
    return
def red_sum(nw):
    e("s_waitcnt lgkmcnt(0)")
    if nw == 14:
        e("v_cmp_eq_u32 vcc, 3, v2")
        nop(2)
        for i in range(16, 24): e(f"v_cndmask_b32 v{i}, v{i}, 0, vcc") if False else e(f"v_cndmask_b32 v{i}, v{i}, v30, vcc")
    e("v_pk_add_f32 v[8:9], v[8:9], v[12:13]")
    e("v_pk_add_f32 v[10:11], v[10:11], v[14:15]")
    e("v_pk_add_f32 v[16:17], v[16:17], v[20:21]")
    e("v_pk_add_f32 v[18:19], v[18:19], v[22:23]")
    e("v_pk_add_f32 v[8:9], v[8:9], v[16:17]")
    e("v_pk_add_f32 v[10:11], v[10:11], v[18:19]")
    for sw in ("v_permlane16_swap_b32", "v_permlane32_swap_b32"):
        for i in range(4): e(f"v_mov_b32 v{12+i}, v{8+i}")
        nop(1)
        for i in range(4): e(f"{sw} v{8+i}, v{12+i}")
        nop(1)
        e("v_pk_add_f32 v[8:9], v[8:9], v[12:13]")
        e("v_pk_add_f32 v[10:11], v[10:11], v[14:15]")
red_write()
e("s_waitcnt lgkmcnt(0)")
e("s_barrier")
stamp(4)
lw12 = uid("W12")
e(f"s_cmp_lg_u32 s{sWAVE}, 12")
e(f"s_cbranch_scc1 {lw12}")
red_read(16)
e("v_lshrrev_b32 v4, 2, v1")
e("v_lshlrev_b32 v4, 11, v4")
e("v_and_b32 v5, 3, v1")
e("v_lshl_add_u32 v4, v5, 4, v4")
e(f"s_lshl_b32 s{sT0}, s{sR}, 6")
e(f"s_add_u32 s{sT0}, s{sT0}, {WS_X2}")
red_sum(16)
e(f"v_mov_b32 v17, s{sTAG}")
e(f"v_mov_b32 v19, s{sTAG}")
rnd2(8, 9, 12); rnd2(10, 11, 13)
e("v_pk_mul_f32 v[8:9], v[48:49], v[8:9]")
e("v_pk_mul_f32 v[10:11], v[50:51], v[10:11]")
rnd2(8, 9, 12); rnd2(10, 11, 13)
e("v_pk_add_f32 v[8:9], v[56:57], v[8:9]")
e("v_pk_add_f32 v[10:11], v[58:59], v[10:11]")
e("v_cvt_pk_bf16_f32 v16, v8, v9")
e("v_cvt_pk_bf16_f32 v18, v10, v11")
e("s_mov_b64 exec, 0xffff")
lsc = uid("SC"); lsd = uid("SD")
e(f"s_cmp_eq_u32 s{sSAME}, 1")
e(f"s_cbranch_scc0 {lsc}")
e(f"buffer_store_dwordx4 v[16:19], v4, {WS}, s{sT0} offen")
e(f"s_branch {lsd}")
lab(lsc)
e(f"buffer_store_dwordx4 v[16:19], v4, {WS}, s{sT0} offen sc1")
lab(lsd)
e("s_mov_b64 exec, -1")
unpack2(16, 60, 61); unpack2(18, 62, 63)
stamp(10)
lab(lw12)
lln = uid("LN")
e(f"s_cmp_lt_u32 s{sWAVE}, 8")
e(f"s_cbranch_scc1 {lln}")
e(f"s_cmp_ge_u32 s{sWAVE}, 12")
e(f"s_cbranch_scc1 {lln}")
e(f"s_sub_u32 s{sT4}, s{sWAVE}, 8")
e(f"s_lshl_b32 s{sT0}, s{sT4}, 11")
e(f"s_add_u32 s{sT0}, s{sT0}, {WS_X2}")
e("v_lshlrev_b32 v4, 4, v1")
e(f"v_add_u32 v4, s{sT0}, v4")
e("v_lshrrev_b32 v6, 3, v1")
e("v_lshlrev_b32 v6, 6, v6")
e("v_and_b32 v7, 3, v1")
e("v_lshl_add_u32 v6, v7, 4, v6")
e("v_bfe_u32 v7, v1, 2, 1")
e("v_lshl_add_u32 v6, v7, 3, v6")
e(f"s_mul_i32 s{sT0}, s{sT4}, 1088")
e(f"s_add_u32 s{sT0}, s{sT0}, {T_H2}")
e(f"v_add_u32 v6, s{sT0}, v6")
poll([(8, 4, 0), (12, 4, 1024)], intra=True)
stamp(11)
unpack2(8, 16, 17); unpack2(10, 18, 19); unpack2(12, 20, 21); unpack2(14, 22, 23)
layernorm8(16, 24)
for i in range(0, 8, 2):
    e(f"v_pk_mul_f32 v[{16+i}:{17+i}], v[{16+i}:{17+i}], v[{56+i}:{57+i}]")
for i in range(0, 8, 2):
    rnd2(16+i, 17+i, 24)
for i in range(0, 8, 2):
    e(f"v_pk_add_f32 v[{16+i}:{17+i}], v[{16+i}:{17+i}], v[{48+i}:{49+i}]")
for i in range(4):
    e(f"v_cvt_pk_bf16_f32 v{8+i}, v{16+2*i}, v{17+2*i}")
e("ds_write_b64 v6, v[8:9]")
e("ds_write_b64 v6, v[10:11] offset:512")
stamp(12)
lab(lln)
e("v_and_b32 v5, 3, v1")
e("v_mul_u32_u24 v6, 1088, v5")
e("v_lshl_add_u32 v6, v2, 4, v6")
e(f"v_add_u32 v6, {T_H2}, v6")
e("v_lshlrev_b32 v4, 6, v3")
e("v_lshl_add_u32 v4, v2, 4, v4")
e(f"s_lshl_b32 s{sT0}, s{sWAVE}, 8")
e(f"s_add_u32 s{sT0}, s{sT0}, {T_GU}")
e(f"v_add_u32 v4, s{sT0}, v4")
e("s_waitcnt lgkmcnt(0)")
e("s_barrier")
stamp(5)
lfin = uid("FIN")
e(f"s_cmp_ge_u32 s{sR}, 28")
e(f"s_cbranch_scc1 {lfin}")
lg = uid("G")
e(f"s_cmp_ge_u32 s{sWAVE}, 8")
e(f"s_cbranch_scc1 {lg}")
def tbread(grp):
    base = [8, 112][grp % 2]
    for k in range(4):
        ks = 4*grp + k
        e(f"ds_read_b128 v[{base+4*k}:{base+4*k+3}], v6 offset:{64*ks}")
def tb_regs(grp, k):
    if grp % 2 == 0: return 8 + 4*k
    return [112, 116, 120, 28][k]
def tbread2(grp):
    for k in range(4):
        ks = 4*grp + k; b_ = tb_regs(grp, k)
        e(f"ds_read_b128 v[{b_}:{b_+3}], v6 offset:{64*ks}")
tbread2(0); tbread2(1)
for grp in range(4):
    e(f"s_waitcnt lgkmcnt({4 if grp < 3 else 0})")
    for k in range(4):
        ks = 4*grp + k; b_ = tb_regs(grp, k)
        cin = "0" if ks == 0 else "v[24:27]"
        e(f"v_mfma_f32_16x16x32_bf16 v[24:27], v[{32+4*ks}:{35+4*ks}], v[{b_}:{b_+3}], {cin}")
    if grp + 2 < 4: tbread2(grp + 2)
nop(8)
stamp(13)
rnd2(24, 25, 28); rnd2(26, 27, 29)
lup2 = uid("UPW")
e(f"s_cmp_ge_u32 s{sWAVE}, 4")
e(f"s_cbranch_scc1 {lup2}")
for i in range(4): e(f"v_mul_f32 v{16+i}, {NLOG2E:#x}, v{24+i}")
for i in range(4): e(f"v_exp_f32 v{16+i}, v{16+i}")
nop(1)
for i in range(4): e(f"v_add_f32 v{16+i}, 1.0, v{16+i}")
for i in range(4): e(f"v_rcp_f32 v{16+i}, v{16+i}")
nop(1)
e("v_pk_mul_f32 v[24:25], v[24:25], v[16:17]")
e("v_pk_mul_f32 v[26:27], v[26:27], v[18:19]")
rnd2(24, 25, 28); rnd2(26, 27, 29)
e(f"s_branch {lg}")
lab(lup2)
e("v_cmp_gt_u32 vcc, 4, v3")
e(f"s_and_saveexec_b64 s[{sM0}:{sM1}], vcc")
e("ds_write_b128 v4, v[24:27]")
e(f"s_mov_b64 exec, s[{sM0}:{sM1}]")
lab(lg)
e("v_and_b32 v5, 3, v1")
e("v_lshlrev_b32 v4, 6, v5")
e("v_lshl_add_u32 v4, v2, 4, v4")
e(f"s_lshl_b32 s{sT0}, s{sWAVE}, 8")
e(f"s_add_u32 s{sT0}, s{sT0}, {T_GU + 1024}")
e(f"v_add_u32 v4, s{sT0}, v4")
e("v_mul_u32_u24 v7, 192, v5")
e("v_lshl_add_u32 v7, v2, 4, v7")
e(f"s_lshr_b32 s{sT0}, s{sWAVE}, 1")
e(f"s_lshl_b32 s{sT0}, s{sT0}, 6")
e(f"s_and_b32 s{sT1}, s{sWAVE}, 1")
e(f"s_lshl_b32 s{sT1}, s{sT1}, 3")
e(f"s_add_u32 s{sT0}, s{sT0}, s{sT1}")
e(f"s_add_u32 s{sT0}, s{sT0}, {T_ACTL}")
e(f"v_add_u32 v7, s{sT0}, v7")
e("v_mul_u32_u24 v6, 192, v5")
e("v_lshl_add_u32 v6, v2, 4, v6")
e(f"v_add_u32 v6, {T_ACTL}, v6")
e("s_waitcnt lgkmcnt(0)")
e("s_barrier")
la = uid("A")
e(f"s_cmp_ge_u32 s{sWAVE}, 4")
e(f"s_cbranch_scc1 {la}")
e("ds_read_b128 v[12:15], v4")
e("v_cmp_gt_u32 vcc, 4, v3")
e("s_waitcnt lgkmcnt(0)")
e("v_pk_mul_f32 v[24:25], v[24:25], v[12:13]")
e("v_pk_mul_f32 v[26:27], v[26:27], v[14:15]")
e("v_cvt_pk_bf16_f32 v8, v24, v25")
e("v_cvt_pk_bf16_f32 v9, v26, v27")
e(f"s_and_saveexec_b64 s[{sM0}:{sM1}], vcc")
e("ds_write_b64 v7, v[8:9]")
e(f"s_mov_b64 exec, s[{sM0}:{sM1}]")
lab(la)
e("v_lshlrev_b32 v4, 7, v5")
e("v_lshl_add_u32 v4, v2, 5, v4")
e("v_bfe_u32 v7, v1, 2, 1")
e("v_lshl_add_u32 v4, v7, 4, v4")
e(f"v_cmp_eq_u32 s[{sM0}:{sM1}], 1, v7")
e("v_bfe_u32 v7, v1, 3, 1")
e(f"v_mul_u32_u24 v16, {28*512}, v7")
e("v_add_u32 v4, v4, v16")
e(f"v_cmp_eq_u32 s[{sM2}:{sM3}], 1, v7")
e(f"s_lshl_b32 s{sT0}, s{sWAVE}, 1")
e(f"s_mul_i32 s{sT0}, s{sT0}, {28*512}")
e(f"s_lshl_b32 s{sT1}, s{sR}, 9")
e(f"s_add_u32 s{sT0}, s{sT0}, s{sT1}")
e(f"s_add_u32 s{sT0}, s{sT0}, {WS_DP}")
e(f"v_mov_b32 v29, s{sTAG}")
e(f"v_mov_b32 v31, s{sTAG}")
e("s_waitcnt lgkmcnt(0)")
e("s_barrier")
stamp(6)
e("ds_read_b128 v[8:11], v6")
e("ds_read_b128 v[12:15], v6 offset:64")
e("s_waitcnt lgkmcnt(0)")
for ks in range(2):
    for j in range(2):
        d = 96 + 8*j + 4*ks
        cin = "0" if ks == 0 else f"v[{16+4*j}:{19+4*j}]"
        e(f"v_mfma_f32_16x16x32_bf16 v[{16+4*j}:{19+4*j}], v[{d}:{d+3}], v[{8+4*ks}:{11+4*ks}], {cin}")
nop(8)
e(f"v_cndmask_b32 v24, v16, v18, s[{sM0}:{sM1}]")
e(f"v_cndmask_b32 v25, v20, v22, s[{sM0}:{sM1}]")
e(f"v_cndmask_b32 v26, v17, v19, s[{sM0}:{sM1}]")
e(f"v_cndmask_b32 v27, v21, v23, s[{sM0}:{sM1}]")
e(f"v_cndmask_b32 v28, v24, v25, s[{sM2}:{sM3}]")
e(f"v_cndmask_b32 v30, v26, v27, s[{sM2}:{sM3}]")
lsc = uid("SC"); lsd = uid("SD")
e(f"s_cmp_eq_u32 s{sSAME}, 1")
e(f"s_cbranch_scc0 {lsc}")
e(f"buffer_store_dwordx4 v[28:31], v4, {WS}, s{sT0} offen")
e(f"s_branch {lsd}")
lab(lsc)
e(f"buffer_store_dwordx4 v[28:31], v4, {WS}, s{sT0} offen sc1")
lab(lsd)
stamp(7)
lab(lfin)
lf2 = uid("F2")
e(f"s_cmp_ge_u32 s{sWAVE}, 14")
e(f"s_cbranch_scc1 {lf2}")
poll([(8, 126, 0)], intra=True)
stamp(14)
red_write()
lab(lf2)
e("s_waitcnt lgkmcnt(0)")
stamp(16)
e("s_barrier")
e(f"s_cmp_lg_u32 s{sWAVE}, 12")
e("s_cbranch_scc1 L_END")
red_read(14)
e("v_mov_b32 v30, 0")
e("v_lshrrev_b32 v4, 2, v1")
e("v_lshlrev_b32 v4, 10, v4")
e("v_and_b32 v5, 3, v1")
e("v_lshl_add_u32 v4, v5, 3, v4")
e(f"s_lshl_b32 s{sT0}, s{sR}, 5")
red_sum(14)
rnd2(8, 9, 12); rnd2(10, 11, 13)
e("v_pk_mul_f32 v[8:9], v[52:53], v[8:9]")
e("v_pk_mul_f32 v[10:11], v[54:55], v[10:11]")
rnd2(8, 9, 12); rnd2(10, 11, 13)
e("v_pk_add_f32 v[8:9], v[60:61], v[8:9]")
e("v_pk_add_f32 v[10:11], v[62:63], v[10:11]")
e("v_cvt_pk_bf16_f32 v16, v8, v9")
e("v_cvt_pk_bf16_f32 v17, v10, v11")
e("s_mov_b64 exec, 0xffff")
e(f"buffer_store_dwordx2 v[16:17], v4, {SD}, s{sT0} offen")
le = uid("EP")
e(f"s_cmp_lg_u32 s{sR}, 0")
e(f"s_cbranch_scc1 {le}")
e("s_mov_b64 exec, 1")
e(f"v_mov_b32 v8, s{sTAG}")
e(f"s_mov_b32 s{sT0}, {WS_EPOCH}")
e(f"buffer_store_dword v8, off, {WS}, s{sT0} sc1")
lab(le)
stamp(8)
lab("L_END")
if DIAG:
    e("s_mov_b64 exec, -1")
    stamp(31)
    e("v_lshlrev_b32 v4, 2, v1")
    e("v_cmp_gt_u32 vcc, 32, v1")
    e(f"s_and_saveexec_b64 s[{sM0}:{sM1}], vcc")
    e(f"buffer_store_dword v0, v4, {WS}, s{sSTAMP} offen")
lab("L_EXIT")
e("s_endpgm")

L.append('.section .rodata,"a"')
L.append(".p2align 6")
L.append(f".amdhsa_kernel {NAME}_kernel")
L.append("  .amdhsa_next_free_vgpr 128")
L.append("  .amdhsa_next_free_sgpr 102")
L.append("  .amdhsa_accum_offset 128")
L.append("  .amdhsa_group_segment_fixed_size 0")
L.append("  .amdhsa_kernarg_size 112")
L.append("  .amdhsa_user_sgpr_count 2")
L.append("  .amdhsa_user_sgpr_kernarg_segment_ptr 1")
L.append("  .amdhsa_system_sgpr_workgroup_id_x 1")
L.append("  .amdhsa_float_denorm_mode_32 3")
L.append(".end_amdhsa_kernel")

open(sys.argv[1], "w").write("\n".join(x for x in L if x is not None) + "\n")
```

```python
import sys

DIAG = int(sys.argv[2]) if len(sys.argv) > 2 else 0
import os
OPT = set(os.environ.get("OPT", "").split(","))
NAME = "adaLN_cond__sliding_block_cached__swiglu_ffn__decode"

L = []
def e(s): L.append("    " + s)
def lab(s): L.append(s + ":")
def c(s): L.append("    ; " + s)
def nop(n):
    while n > 0:
        k = min(n, 16); e(f"s_nop {k-1}"); n -= k
_uid = [0]
def uid(p):
    _uid[0] += 1
    return f"{p}_{_uid[0]}"

WS_EPOCH = 0
WS_XCC   = 0x100
WS_HS    = 0x200
WS_QS    = 0x400
WS_MS    = 0xC00
WS_H     = 0x1000
WS_X2    = 0x3000
WS_M     = 0x8000
WS_Q     = 0x10000
WS_OML   = 0x20000
WS_OD    = 0x40000
WS_AP    = 0xC0000
WS_DP    = 0x140000
WS_SC    = 0x1B0000
WS_STAMP = 0x200000
WS_SIZE  = 0x300000

S_V    = 0
S_E    = 81920
S_L    = 114688
S_MISC = 147456
S_ACT  = S_MISC
S_QL   = S_ACT + 4352
S_XN   = S_QL + 1280
S_EXC  = S_XN + 256
S_MAXB = S_EXC + 256
S_PB   = S_MAXB + 256
S_CNT  = S_PB + 2560
S_CG   = S_V
S_CML  = S_V + 8704
LDS_BYTES = 163840
C_EARLY, C_ACT, C_EXC, C_XN, C_KL, C_Q, C_MAX, C_P, F_V, C_PVD, C_LATE, C_HD, C_WQ, C_QD = range(14)

T_W    = 0
T_WQ   = 0
T_HST  = 122880
T_HM   = 155648
T_ACT  = T_HM
T_XN   = T_ACT + 4352
T_EXC  = T_XN + 256
T_CNT  = T_EXC + 256
T_SAME = T_CNT + 64
T_HL   = 131072 + 16384
T_MISC = 131072
T_ACC1 = T_MISC
T_ACC2 = T_ACC1 + 256
T_H2   = T_ACC2 + 256
T_GU   = T_H2 + 4352
T_ACTL = T_GU + 2048
T_RED  = T_ACTL + 768

sWAVE, sTAG, sX8, sR, sS = 3, 4, 5, 6, 7
WS, SA, SB, SC, SD, SE, SF = "s[8:11]", "s[12:15]", "s[16:19]", "s[20:23]", "s[24:27]", "s[28:31]", "s[32:35]"
P_X, P_K, P_V, P_WQ, P_WO, P_BX, P_WG, P_WU, P_WD, P_C, P_WM, P_OUT, P_DBG, P_WS = [36 + 2*i for i in range(14)]
sT0, sT1, sT2, sT3, sT4, sT5, sT6, sT7 = 64, 65, 66, 67, 68, 69, 70, 71
sM0, sM1 = 72, 73
sM2, sM3 = 74, 75
sSTAMP = 76
sKV = 77
sNT = 78
sU = 79
sUI = 80
sLATE = 81
sSPIN = 82
sSTRIDE = 83
sCB0, sCB1 = 84, 85
sP, sJ = 86, 87
sSAME = 88
sST0, sST1 = 90, 91
sH = 92; sNQ = 93; sQCU = 95

SPIN_MAX = 200000
LSPIN_MAX = 4000000

def csel2(dst, a, b):
    e(f"s_mov_b32 s{dst}, {b}")
    e(f"s_cselect_b32 s{dst}, {a}, s{dst}")

def srd(dst0, ptr, nbytes):
    e(f"s_mov_b32 s{dst0}, s{ptr}")
    e(f"s_and_b32 s{dst0+1}, s{ptr+1}, 0xffff")
    e(f"s_mov_b32 s{dst0+2}, {nbytes}")
    e(f"s_mov_b32 s{dst0+3}, 0x20000")

def stamp(k, wave=None):
    if not DIAG: return
    l = None
    if wave is not None:
        l = uid("ST"); e(f"s_cmp_lg_u32 s{sWAVE}, {wave}"); e(f"s_cbranch_scc1 {l}")
    e(f"s_memrealtime s[{sST0}:{sST1}]")
    e("s_waitcnt lgkmcnt(0)")
    e(f"v_writelane_b32 v0, s{sST0}, {k}")
    if l: lab(l)

def signal(cnt_base, k, vt0, vt1):
    e(f"v_mov_b32 v{vt0}, {cnt_base + 4*k}")
    e(f"v_mov_b32 v{vt1}, 1")
    e(f"s_mov_b64 s[{sM2}:{sM3}], exec")
    e("s_mov_b64 exec, 1")
    e(f"ds_add_u32 v{vt0}, v{vt1}")
    e(f"s_mov_b64 exec, s[{sM2}:{sM3}]")

def wait_cnt(cnt_base, k, target, vt0, vt1, sleep=1):
    l = uid("W"); d = uid("WD")
    e(f"v_mov_b32 v{vt0}, {cnt_base + 4*k}")
    e(f"s_mov_b32 s{sSPIN}, 0")
    lab(l)
    e(f"ds_read_b32 v{vt1}, v{vt0}")
    e("s_waitcnt lgkmcnt(0)")
    e(f"v_readfirstlane_b32 s{sT7}, v{vt1}")
    e(f"s_cmp_ge_u32 s{sT7}, {target}")
    e(f"s_cbranch_scc1 {d}")
    if sleep: e(f"s_sleep {sleep}")
    e(f"s_add_u32 s{sSPIN}, s{sSPIN}, 1")
    e(f"s_cmp_lt_u32 s{sSPIN}, {LSPIN_MAX}")
    e(f"s_cbranch_scc1 {l}")
    e("s_branch L_END")
    lab(d)

def wait_mask(cnt_base, k, need, vt0, vt1, sleep=0):
    l = uid("W"); d = uid("WD")
    e(f"v_mov_b32 v{vt0}, {cnt_base + 4*k}")
    e(f"s_mov_b32 s{sSPIN}, 0")
    lab(l)
    e(f"ds_read_b32 v{vt1}, v{vt0}")
    e("s_waitcnt lgkmcnt(0)")
    e(f"v_readfirstlane_b32 s{sT7}, v{vt1}")
    e(f"s_and_b32 s{sT7}, s{sT7}, {need}")
    e(f"s_cmp_eq_u32 s{sT7}, {need}")
    e(f"s_cbranch_scc1 {d}")
    if sleep: e(f"s_sleep {sleep}")
    e(f"s_add_u32 s{sSPIN}, s{sSPIN}, 1")
    e(f"s_cmp_lt_u32 s{sSPIN}, {LSPIN_MAX}")
    e(f"s_cbranch_scc1 {l}")
    e("s_branch L_END")
    lab(d)

def signal_or(cnt_base, k, sbit, vt0, vt1):
    e(f"v_mov_b32 v{vt0}, {cnt_base + 4*k}")
    e(f"v_mov_b32 v{vt1}, s{sbit}")
    e(f"s_mov_b64 s[{sM2}:{sM3}], exec")
    e("s_mov_b64 exec, 1")
    e(f"ds_or_b32 v{vt0}, v{vt1}")
    e(f"s_mov_b64 exec, s[{sM2}:{sM3}]")

def poll(loads, sleep=0, intra=False, pre=0):
    d = uid("PD")
    if pre: e(f"s_sleep {pre}")
    e(f"s_mov_b32 s{sSPIN}, 0")
    flavs = ["sc1"]
    lsc = None
    if intra:
        lsc = uid("PS")
        e(f"s_cmp_eq_u32 s{sSAME}, 1")
        e(f"s_cbranch_scc0 {lsc}")
        flavs = ["nt", "sc1"]
    for fi, fl in enumerate(flavs):
        if intra and fi == 1: lab(lsc)
        l = uid("P")
        lab(l)
        for (dst, voff, imm) in loads:
            e(f"buffer_load_dwordx4 v[{dst}:{dst+3}], v{voff}, {WS}, 0 offen offset:{imm} {fl}")
        e("s_waitcnt vmcnt(0)")
        first = True
        for (dst, voff, imm) in loads:
            if first:
                e(f"v_cmp_eq_u32 vcc, s{sTAG}, v{dst+1}")
                first = False
            else:
                e(f"v_cmp_eq_u32 s[{sM0}:{sM1}], s{sTAG}, v{dst+1}")
                e(f"s_and_b64 vcc, vcc, s[{sM0}:{sM1}]")
            e(f"v_cmp_eq_u32 s[{sM0}:{sM1}], s{sTAG}, v{dst+3}")
            e(f"s_and_b64 vcc, vcc, s[{sM0}:{sM1}]")
        e("s_cmp_eq_u64 vcc, exec")
        e(f"s_cbranch_scc1 {d}")
        if sleep: e(f"s_sleep {sleep}")
        e(f"s_add_u32 s{sSPIN}, s{sSPIN}, 1")
        e(f"s_cmp_lt_u32 s{sSPIN}, {SPIN_MAX}")
        e(f"s_cbranch_scc1 {l}")
        e("s_branch L_END")
    lab(d)

def load_tag():
    e(f"s_load_dword s{sTAG}, s[{P_WS}:{P_WS+1}], {WS_EPOCH}")

def fin_tag():
    e("s_waitcnt lgkmcnt(0)")
    e(f"s_add_u32 s{sTAG}, s{sTAG}, 0x9E3779B9")

def sentinel_store(soff_sgpr, vpair):
    e(f"s_mov_b64 s[{sM2}:{sM3}], exec")
    e("s_mov_b64 exec, 1")
    e(f"buffer_store_dwordx2 v[{vpair}:{vpair+1}], off, {WS}, s{soff_sgpr} sc1")
    e(f"s_mov_b64 exec, s[{sM2}:{sM3}]")

def poll_lanes(nlanes, dst, voff, sleep):
    e("s_mov_b64 s[98:99], exec")
    if nlanes < 64:
        m = (1 << nlanes) - 1
        e(f"s_mov_b32 exec_lo, {m & 0xffffffff:#x}")
        e(f"s_mov_b32 exec_hi, {m >> 32:#x}")
    poll([(dst, voff, 0)], sleep=sleep)
    e("s_mov_b64 exec, s[98:99]")

def allreduce2(va, vb, t0, t1, op="add"):
    ins = f"v_{op}_f32"
    nop(2)
    for ctl in ("quad_perm:[1,0,3,2]", "quad_perm:[2,3,0,1]", "row_half_mirror", "row_mirror"):
        e(f"{ins}_dpp v{va}, v{va}, v{va} {ctl} row_mask:0xf bank_mask:0xf")
        e(f"{ins}_dpp v{vb}, v{vb}, v{vb} {ctl} row_mask:0xf bank_mask:0xf")
        nop(1)
    for sw in ("v_permlane16_swap_b32", "v_permlane32_swap_b32"):
        e(f"v_mov_b32 v{t0}, v{va}")
        e(f"v_mov_b32 v{t1}, v{vb}")
        nop(2)
        e(f"{sw} v{va}, v{t0}")
        e(f"{sw} v{vb}, v{t1}")
        nop(1)
        e(f"{ins} v{va}, v{va}, v{t0}")
        e(f"{ins} v{vb}, v{vb}, v{t1}")

def rnd2(a, b, t):
    e(f"v_cvt_pk_bf16_f32 v{t}, v{a}, v{b}")
    e(f"v_lshlrev_b32 v{a}, 16, v{t}")
    e(f"v_and_b32 v{b}, 0xffff0000, v{t}")

def unpack2(src, lo, hi):
    e(f"v_lshlrev_b32 v{lo}, 16, v{src}")
    e(f"v_and_b32 v{hi}, 0xffff0000, v{src}")

LOG2E = 0x3fb8aa3b
NLOG2E = 0xbfb8aa3b
SCALE = 0x3db504f3
EPS = 0x3727c5ac
INV512 = 0x3b000000

def layernorm8(x0, t):
    d = t + 4
    a, b, t0, t1 = t, t+1, t+2, t+3
    e(f"v_readfirstlane_b32 s{sT0}, v{x0}")
    e(f"v_readfirstlane_b32 s{sT1}, v{x0}")
    nop(2)
    for i in range(0, 8, 2):
        e(f"v_pk_add_f32 v[{d+i}:{d+i+1}], v[{x0+i}:{x0+i+1}], s[{sT0}:{sT1}] neg_lo:[0,1] neg_hi:[0,1]")
    e(f"v_pk_add_f32 v[{t0}:{t1}], v[{d}:{d+1}], v[{d+2}:{d+3}]")
    e(f"v_pk_mul_f32 v[{a}:{b}], v[{d}:{d+1}], v[{d}:{d+1}]")
    e(f"v_pk_add_f32 v[{t0}:{t1}], v[{t0}:{t1}], v[{d+4}:{d+5}]")
    e(f"v_pk_fma_f32 v[{a}:{b}], v[{d+2}:{d+3}], v[{d+2}:{d+3}], v[{a}:{b}]")
    e(f"v_pk_add_f32 v[{t0}:{t1}], v[{t0}:{t1}], v[{d+6}:{d+7}]")
    e(f"v_pk_fma_f32 v[{a}:{b}], v[{d+4}:{d+5}], v[{d+4}:{d+5}], v[{a}:{b}]")
    e(f"v_pk_fma_f32 v[{a}:{b}], v[{d+6}:{d+7}], v[{d+6}:{d+7}], v[{a}:{b}]")
    e(f"v_add_f32 v{b}, v{a}, v{b}")
    e(f"v_add_f32 v{a}, v{t0}, v{t1}")
    allreduce2(a, b, t0, t1)
    e(f"v_mul_f32 v{a}, {INV512:#x}, v{a}")
    e(f"v_mul_f32 v{b}, {INV512:#x}, v{b}")
    e(f"v_fma_f32 v{b}, -v{a}, v{a}, v{b}")
    e(f"v_add_f32 v{a}, s{sT0}, v{a}")
    e(f"v_max_f32 v{b}, 0, v{b}")
    rnd2(a, b, t0)
    e(f"v_add_f32 v{b}, {EPS:#x}, v{b}")
    e(f"v_cvt_pk_bf16_f32 v{t0}, v{b}, v{b}")
    e(f"v_lshlrev_b32 v{b}, 16, v{t0}")
    e(f"v_sqrt_f32 v{b}, v{b}")
    nop(1)
    for i in range(0, 8, 2):
        e(f"v_pk_add_f32 v[{x0+i}:{x0+i+1}], v[{x0+i}:{x0+i+1}], v[{a}:{b}] op_sel_hi:[1,0] neg_lo:[0,1] neg_hi:[0,1]")
    e(f"v_cvt_pk_bf16_f32 v{t0}, v{b}, v{b}")
    e(f"v_lshlrev_b32 v{b}, 16, v{t0}")
    e(f"v_rcp_f32 v{t0}, v{b}")
    for i in range(0, 8, 2):
        rnd2(x0+i, x0+i+1, d)
    for i in range(0, 8, 2):
        e(f"v_pk_mul_f32 v[{x0+i}:{x0+i+1}], v[{x0+i}:{x0+i+1}], v[{t0}:{t1}] op_sel_hi:[1,0]")
    for i in range(0, 8, 2):
        rnd2(x0+i, x0+i+1, d)

def silu_inplace(x, t0, t1):
    e(f"v_mul_f32 v{t0}, {NLOG2E:#x}, v{x}")
    e(f"v_exp_f32 v{t0}, v{t0}")
    nop(1)
    e(f"v_add_f32 v{t0}, 1.0, v{t0}")
    e(f"v_rcp_f32 v{t1}, v{t0}")
    nop(1)
    e(f"v_mul_f32 v{x}, v{x}, v{t1}")


SSL = int(os.environ.get("SSL", "2"))
TSL = int(os.environ.get("TSL", "4"))
ENT = "" if "Enont" in OPT else " nt"
QKW = int(os.environ.get("QKW", "0"))
WK = int(os.environ.get("WK", "4"))
KOV = int(os.environ.get("KOV", "2"))
hdr = open("cdna_kernels/" + NAME + ".s.ref").read().split("\n")
for ln in hdr:
    if ln.startswith("; Override") or ln.startswith("; grid=") or ln.startswith("; @launch"): continue
    if ln.startswith(";"): L.append(ln)
    else: break
L.append(f"; @launch grid=(256,1,1) block=(1024,1,1) lds={LDS_BYTES}")
L.append('.amdgcn_target "amdgcn-amd-amdhsa--gfx950"')
L.append(".text")
L.append(f".globl {NAME}_kernel")
L.append(".p2align 8")
L.append(f".type {NAME}_kernel,@function")
lab(f"{NAME}_kernel")

sKVB = 94
sEX0, sEX1 = 96, 97

e("s_cmp_ge_u32 s2, 256")
e("s_cbranch_scc1 L_EXIT")
e("s_load_dwordx16 s[36:51], s[0:1], 0")
e("s_load_dwordx8 s[52:59], s[0:1], 64")
e("s_load_dwordx4 s[60:63], s[0:1], 96")
e("v_lshrrev_b32 v2, 6, v0")
e("v_and_b32 v1, 63, v0")
e(f"v_readfirstlane_b32 s{sWAVE}, v2")
e(f"s_and_b32 s{sX8}, s2, 7")
e(f"s_lshr_b32 s{sR}, s2, 3")
e("v_lshrrev_b32 v2, 4, v1")
e("v_and_b32 v3, 15, v1")
e(f"s_lshl_b32 s{sSTAMP}, s2, 4")
e(f"s_add_u32 s{sSTAMP}, s{sSTAMP}, s{sWAVE}")
e(f"s_lshl_b32 s{sSTAMP}, s{sSTAMP}, 7")
e(f"s_add_u32 s{sSTAMP}, s{sSTAMP}, {WS_STAMP}")
if DIAG: e("v_mov_b32 v0, 0")
stamp(0)
e("s_waitcnt lgkmcnt(0)")
srd(8, P_WS, WS_SIZE)
if "span" in OPT:
    lsp = uid("SP")
    e(f"s_cmp_lg_u32 s{sWAVE}, 0")
    e(f"s_cbranch_scc1 {lsp}")
    e(f"s_mov_b32 s28, s{P_DBG}")
    e(f"s_and_b32 s29, s{P_DBG+1}, 0xffff")
    e("s_mov_b32 s30, 256")
    e("s_mov_b32 s31, 0x20000")
    e(f"s_memrealtime s[{sST0}:{sST1}]")
    e("s_waitcnt lgkmcnt(0)")
    e(f"s_not_b32 s{sST0}, s{sST0}")
    e(f"v_mov_b32 v8, s{sST0}")
    e("s_mov_b64 exec, 1")
    e("buffer_atomic_umax v8, off, s[28:31], 0")
    e("s_mov_b64 exec, -1")
    lab(lsp)
e(f"s_cmp_eq_u32 s{sX8}, 7")
e("s_cbranch_scc1 L_T")

def line_dma_voff(stride):
    e("v_lshrrev_b32 v4, 3, v1")
    e(f"v_mul_u32_u24 v4, {stride}, v4")
    e("v_bfe_u32 v5, v1, 1, 2")
    e("v_bfe_u32 v6, v1, 4, 2")
    e("v_xor_b32 v5, v5, v6")
    e("v_lshl_add_u32 v4, v5, 5, v4")
    e("v_and_b32 v5, 1, v1")
    e("v_lshl_add_u32 v4, v5, 4, v4")
def tr_line_addr(dst, base_sgpr):
    e("v_lshrrev_b32 v4, 2, v3")
    e("v_lshl_add_u32 v4, v2, 2, v4")
    e("v_bfe_u32 v5, v4, 1, 2")
    e(f"s_and_b32 s{sT1}, s{sWAVE}, 3")
    e(f"v_xor_b32 v5, s{sT1}, v5")
    e("v_lshlrev_b32 v4, 7, v4")
    e("v_lshl_add_u32 v4, v5, 5, v4")
    e("v_and_b32 v5, 3, v1")
    e("v_lshl_add_u32 v4, v5, 3, v4")
    e(f"v_add_u32 v{dst}, s{base_sgpr}, v4")
def mfma16(vaddr):
    def regs(grp, k):
        if grp % 2 == 0: return 8 + 4*k
        return [112, 116, 120, 28][k]
    def rd(grp):
        for k in range(4):
            b_ = regs(grp, k)
            e(f"ds_read_b128 v[{b_}:{b_+3}], v{vaddr} offset:{64*(4*grp+k)}")
    rd(0); rd(1)
    for grp in range(4):
        e(f"s_waitcnt lgkmcnt({4 if grp < 3 else 0})")
        for k in range(4):
            ks = 4*grp + k; b_ = regs(grp, k)
            cin = "0" if ks == 0 else "v[24:27]"
            e(f"v_mfma_f32_16x16x32_bf16 v[24:27], v[{32+4*ks}:{35+4*ks}], v[{b_}:{b_+3}], {cin}")
        if grp + 2 < 4: rd(grp + 2)
    nop(8)
def line_unit(actbase, cnt, stride, rowshift):
    lq8 = uid("Q8"); lq4 = uid("Q4")
    e(f"s_cmp_ge_u32 s{sWAVE}, 8")
    e(f"s_cbranch_scc1 {lq8}")
    line_dma_voff(stride)
    e(f"s_lshl_b32 s{sT1}, s{sWAVE}, 13")
    e(f"s_mul_i32 s{sT2}, s{sWAVE}, {64*stride}")
    e(f"s_add_u32 s{sT2}, s{sT2}, s{sCB0}")
    for k in range(8):
        e(f"s_mov_b32 m0, s{sT1}")
        e(f"s_add_u32 s{sT1}, s{sT1}, 1024")
        e(f"buffer_load_dwordx4 v4, {SC}, s{sT2} offen nt lds")
        e(f"s_add_u32 s{sT2}, s{sT2}, {8*stride}")
    load_tag()
    e("s_waitcnt vmcnt(0)")
    signal(cnt, C_WQ, 8, 9)
    fin_tag()
    e(f"s_cmp_ge_u32 s{sWAVE}, 4")
    e(f"s_cbranch_scc1 {lq4}")
    e(f"s_mov_b32 s{sT2}, 0")
    tr_line_addr(7, sT2)
    e("v_and_b32 v5, 3, v1")
    e("v_mul_u32_u24 v6, 1088, v5")
    e("v_lshl_add_u32 v6, v2, 4, v6")
    e(f"v_add_u32 v6, {actbase}, v6")
    wait_cnt(cnt, C_WQ, 8, 8, 9, sleep=1)
    stamp(1)
    for ks in range(16):
        e(f"ds_read_b64_tr_b16 v[{32+4*ks}:{33+4*ks}], v7 offset:{4096*ks}")
        e(f"ds_read_b64_tr_b16 v[{34+4*ks}:{35+4*ks}], v7 offset:{4096*ks+2048}")
    wait_cnt(cnt, C_ACT, 4, 8, 9, sleep=1)
    stamp(2)
    mfma16(6)
    e("v_cvt_pk_bf16_f32 v28, v24, v25")
    e(f"v_mov_b32 v29, s{sTAG}")
    e("v_cvt_pk_bf16_f32 v30, v26, v27")
    e(f"v_mov_b32 v31, s{sTAG}")
    e(f"s_lshl_b32 s{sT2}, s{sWAVE}, 6")
    e(f"s_add_u32 s{sT1}, s{sCB1}, s{sT2}")
    e(f"v_lshlrev_b32 v8, {rowshift}, v3")
    e("v_lshl_add_u32 v8, v2, 4, v8")
    e("v_cmp_gt_u32 vcc, 4, v3")
    e(f"s_and_saveexec_b64 s[{sM0}:{sM1}], vcc")
    e(f"buffer_store_dwordx4 v[28:31], v8, {WS}, s{sT1} offen sc1")
    e(f"s_mov_b64 exec, s[{sM0}:{sM1}]")
    signal(cnt, C_QD, 8, 9)
    stamp(3)
    e(f"s_branch {lq4}")
    lab(lq8)
    load_tag()
    fin_tag()
    lab(lq4)

c("S role")
e(f"s_lshl_b32 s{sS}, s{sX8}, 5")
e(f"s_add_u32 s{sS}, s{sS}, s{sR}")
e(f"s_mul_i32 s{sT0}, s{sR}, 37")
e(f"s_lshr_b32 s{sT0}, s{sT0}, 8")
e(f"s_mul_i32 s{sT0}, s{sT0}, 7")
e(f"s_sub_u32 s{sT0}, s{sR}, s{sT0}")
e(f"s_add_u32 s{sT1}, s{sX8}, 7")
e(f"s_sub_u32 s{sT1}, s{sT1}, s{sT0}")
e(f"s_sub_u32 s{sT2}, s{sT1}, 7")
e(f"s_cmp_ge_u32 s{sT1}, 7")
e(f"s_cselect_b32 s{sT1}, s{sT2}, s{sT1}")
e(f"s_lshl_b32 s{sUI}, s{sR}, 1")
e(f"s_cmp_eq_u32 s{sT1}, 0")
e(f"s_cselect_b32 s{sQCU}, 1, 0")
e(f"s_cmp_eq_u32 s{sT1}, 3")
e(f"s_cselect_b32 s{sQCU}, 1, s{sQCU}")
e(f"s_cmp_eq_u32 s{sT1}, 1")
e(f"s_cselect_b32 s{sU}, 1, 0")
e(f"s_cmp_eq_u32 s{sT1}, 4")
e(f"s_cselect_b32 s{sU}, 1, s{sU}")
e(f"s_cmp_ge_u32 s{sT1}, 3")
e(f"s_addc_u32 s{sUI}, s{sUI}, 0")
e(f"s_lshr_b32 s{sT2}, 0x36, s{sT1}")
e(f"s_and_b32 s{sLATE}, s{sT2}, 1")
e(f"s_sub_u32 s{sNQ}, s{sT1}, 1")
e(f"s_cmp_ge_u32 s{sT1}, 4")
e(f"s_cselect_b32 s{sT2}, 1, 0")
e(f"s_sub_u32 s{sNQ}, s{sNQ}, s{sT2}")
e(f"s_mov_b32 s{sH}, s{sR}")
e(f"s_cmp_eq_u32 s{sQCU}, 1")
e(f"s_cselect_b32 s{sNT}, 7, 10")
e(f"s_add_u32 s{sT2}, s{sT0}, 3")
e(f"s_sub_u32 s{sT3}, s{sT2}, 7")
e(f"s_cmp_ge_u32 s{sT2}, 7")
e(f"s_cselect_b32 s{sT2}, s{sT3}, s{sT2}")
e(f"s_mul_i32 s{sT3}, s{sX8}, 10")
e(f"s_cmp_lt_u32 s{sT0}, s{sX8}")
e(f"s_cselect_b32 s{sT5}, 3, 0")
e(f"s_sub_u32 s{sT3}, s{sT3}, s{sT5}")
e(f"s_cmp_lt_u32 s{sT2}, s{sX8}")
e(f"s_cselect_b32 s{sT5}, 3, 0")
e(f"s_sub_u32 s{sT3}, s{sT3}, s{sT5}")
e(f"s_lshl_b32 s{sT0}, s{sT3}, 13")
e(f"s_lshl_b32 s{sT1}, s{sR}, 21")
e(f"s_add_u32 s{sKVB}, s{sT0}, s{sT1}")
e(f"s_add_u32 s{sKVB}, s{sKVB}, {6144*256}")

e(f"s_cmp_ge_u32 s{sWAVE}, 12")
e("s_cbranch_scc1 L_S_STREAM")
e(f"s_cmp_ge_u32 s{sWAVE}, 10")
e("s_cbranch_scc1 L_S_JOB")

c("tile waves 0..9")
srd(12, P_K, 4*8*8192*128*2)
e(f"s_lshl_b32 s{sT0}, s{sWAVE}, 13")
e(f"s_add_u32 s{sKV}, s{sKVB}, s{sT0}")
e("s_barrier")
lnq = uid("NOQ")
e(f"s_cmp_eq_u32 s{sQCU}, 0")
e(f"s_cbranch_scc1 {lnq}")
srd(20, P_WQ, 512*4096*2)
e(f"s_lshl_b32 s{sCB0}, s{sUI}, 7")
e(f"s_lshl_b32 s{sCB1}, s{sUI}, 8")
e(f"s_add_u32 s{sCB1}, s{sCB1}, {WS_Q}")
line_unit(S_ACT, S_CNT, 8192, 14)
wait_cnt(S_CNT, C_QD, 4, 8, 9, sleep=1)
lab(lnq)
e("v_lshrrev_b32 v4, 2, v3")
e("v_and_b32 v5, 1, v1")
e("v_lshl_add_u32 v4, v4, 1, v5")
e("v_lshlrev_b32 v4, 8, v4")
e("v_bfe_u32 v5, v1, 1, 1")
e("v_lshl_add_u32 v4, v5, 6, v4")
e("v_lshl_add_u32 v4, v2, 4, v4")
e("v_and_b32 v8, 3, v1")
e("v_lshl_add_u32 v13, v2, 2, v8")
e("v_lshlrev_b32 v13, 4, v13")
e(f"v_add_u32 v13, {S_PB}, v13")
e(f"s_cmp_ge_u32 s{sWAVE}, s{sNT}")
e("s_cbranch_scc1 L_S_ATT_IDLE")
if "kafter" in OPT: wait_cnt(S_CNT, C_EARLY, 4, 8, 9, sleep=1)
lk = uid("K")
e(f"s_cmp_lt_u32 s{sWAVE}, {WK}")
e(f"s_cbranch_scc1 {lk}")
e(f"s_sub_u32 s{sT5}, s{sWAVE}, {WK-1}")
wait_cnt(S_CNT, C_KL, f"s{sT5}", 8, 9, sleep=1)
lab(lk)
e(f"s_add_u32 s{sT0}, s{sKV}, 4096")
for kg in range(4):
    so = sKV if kg < 2 else sT0
    for s_ in range(2):
        d = 32 + 8*kg + 4*s_
        e(f"buffer_load_dwordx4 v[{d}:{d+3}], v4, {SA}, s{so} offen offset:{(kg & 1)*2048 + 128*s_} nt")
load_tag()
stamp(11)
e("v_and_b32 v8, 3, v1")
e("v_mul_u32_u24 v10, 320, v8")
e("v_lshl_add_u32 v10, v2, 4, v10")
e("v_bfe_u32 v11, v1, 2, 1")
e("v_lshl_add_u32 v10, v11, 6, v10")
e(f"v_add_u32 v10, {S_QL}, v10")
e("v_lshlrev_b32 v11, 6, v8")
e(f"v_add_u32 v11, {S_MAXB}, v11")
e(f"s_lshl_b32 s{sT0}, s{sWAVE}, 2")
e(f"v_add_u32 v12, s{sT0}, v11")
e(f"s_lshl_b32 s{sT0}, s{sWAVE}, 8")
e(f"v_add_u32 v14, s{sT0}, v13")
e("s_waitcnt vmcnt(0)")
signal(S_CNT, C_KL, 8, 9)
fin_tag()
stamp(12)
wait_cnt(S_CNT, C_Q, 2, 8, 9, sleep=1)
stamp(14)
for s_ in range(2):
    e(f"ds_read_b128 v[{64+4*s_}:{67+4*s_}], v10 offset:{128*s_}")
e("s_waitcnt lgkmcnt(0)")
for s_ in range(2):
    for kg in range(4):
        A = 96 + 4*kg
        cin = "0" if s_ == 0 else f"v[{A}:{A+3}]"
        e(f"v_mfma_f32_16x16x32_bf16 v[{A}:{A+3}], v[{32+8*kg+4*s_}:{35+8*kg+4*s_}], v[{64+4*s_}:{67+4*s_}], {cin}")
e(f"s_mov_b32 s{sT2}, {SCALE:#x}")
e(f"s_mov_b32 s{sT3}, {SCALE:#x}")
e(f"s_mov_b32 s{sT4}, {LOG2E:#x}")
nop(5)
for kg in range(4):
    for e_ in range(2):
        A = 96 + 4*kg
        e(f"v_add_f32_dpp v{80+2*kg+e_}, v{A+2+e_}, v{A+e_} row_shl:4 row_mask:0xf bank_mask:0xf")
for i in range(0, 8, 2):
    rnd2(80+i, 81+i, 16)
for i in range(0, 8, 2):
    e(f"v_pk_mul_f32 v[{80+i}:{81+i}], v[{80+i}:{81+i}], s[{sT2}:{sT3}]")
for i in range(0, 8, 2):
    rnd2(80+i, 81+i, 16)
e("v_max3_f32 v16, v80, v81, v82")
e("v_max3_f32 v16, v16, v83, v84")
e("v_max3_f32 v16, v16, v85, v86")
e("v_max_f32 v16, v16, v87")
for sw in ("v_permlane16_swap_b32", "v_permlane32_swap_b32"):
    e("v_mov_b32 v17, v16")
    nop(2)
    e(f"{sw} v16, v17")
    nop(1)
    e("v_max_f32 v16, v16, v17")
e("v_cmp_gt_u32 vcc, 4, v1")
e(f"s_and_saveexec_b64 s[{sM0}:{sM1}], vcc")
e("ds_write_b32 v12, v16")
e(f"s_mov_b64 exec, s[{sM0}:{sM1}]")
signal(S_CNT, C_MAX, 8, 9)
wait_cnt(S_CNT, C_MAX, f"s{sNT}", 8, 9, sleep=0)
for i in range(3):
    e(f"ds_read_b128 v[{16+4*i}:{19+4*i}], v11 offset:{16*i}")
e("s_waitcnt lgkmcnt(0)")
e("v_max3_f32 v16, v16, v17, v18")
e("v_max3_f32 v19, v19, v20, v21")
e("v_max3_f32 v22, v22, v23, v24")
e("v_max3_f32 v25, v25, v26, v27")
e("v_max3_f32 v16, v16, v19, v22")
e("v_max_f32 v16, v16, v25")
e(f"v_mul_f32 v15, s{sT4}, v16")
for i in range(8):
    e(f"v_fma_f32 v{80+i}, v{80+i}, s{sT4}, -v15")
for i in range(8):
    e(f"v_exp_f32 v{80+i}, v{80+i}")
nop(1)
for i in range(4):
    e(f"v_cvt_pk_bf16_f32 v{16+i}, v{80+2*i}, v{81+2*i}")
e("v_cmp_gt_u32 vcc, 4, v3")
e(f"s_and_saveexec_b64 s[{sM0}:{sM1}], vcc")
e("ds_write_b128 v14, v[16:19]")
e(f"s_mov_b64 exec, s[{sM0}:{sM1}]")
signal(S_CNT, C_P, 8, 9)
stamp(15)
lab("L_S_PVSTART")
e(f"s_cmp_ge_u32 s{sWAVE}, 8")
e("s_cbranch_scc1 L_S_LATE")
e("v_bfe_u32 v9, v1, 3, 1")
e("v_bfe_u32 v10, v1, 2, 1")
e("v_lshl_add_u32 v10, v2, 1, v10")
e("v_lshl_add_u32 v11, v9, 3, v10")
e("v_lshlrev_b32 v9, 2, v9")
e("v_xor_b32 v10, v10, v9")
e(f"v_xor_b32 v10, s{sWAVE}, v10")
e("v_lshlrev_b32 v10, 5, v10")
e("v_lshl_add_u32 v10, v11, 8, v10")
e("v_and_b32 v11, 3, v1")
e("v_lshl_add_u32 v10, v11, 3, v10")
e("v_add_u32 v11, 0x10000, v10")
for i in range(4): e(f"v_mov_b32 v{28+i}, 0x3f803f80")
e(f"s_and_b32 s{sT0}, s{sR}, 7")
e(f"s_lshr_b32 s{sT1}, s{sR}, 3")
e(f"s_mul_i32 s{sT1}, s{sT1}, 7")
e(f"s_add_u32 s{sT1}, s{sT1}, s{sX8}")
e(f"s_mul_i32 s{sT0}, s{sT0}, {4*28}")
e(f"s_add_u32 s{sT0}, s{sT0}, s{sT1}")
e("v_mul_u32_u24 v12, 28, v3")
e(f"v_add_u32 v12, s{sT0}, v12")
e("v_lshlrev_b32 v14, 4, v12")
e("v_lshlrev_b32 v12, 9, v12")
e("v_lshl_add_u32 v12, v2, 4, v12")
e(f"s_lshl_b32 s{sT0}, s{sWAVE}, 6")
e(f"v_add_u32 v12, s{sT0}, v12")
e(f"v_mov_b32 v17, s{sTAG}")
e(f"v_mov_b32 v19, s{sTAG}")
e(f"v_mov_b32 v21, s{sTAG}")
e(f"v_mov_b32 v23, s{sTAG}")
wait_cnt(S_CNT, C_P, f"s{sNT}", 8, 9, sleep=0)
def vbase(a): return (10, a*8192) if a < 8 else (11, (a-8)*8192)
for NTv in (7, 10):
    lnext = uid("NT")
    if NTv == 7:
        e(f"s_cmp_eq_u32 s{sNT}, 7")
        e(f"s_cbranch_scc0 {lnext}")
    for a in range(NTv):
        e(f"ds_read_b128 v[{80+4*a}:{83+4*a}], v13 offset:{256*a}")
    for a in range(NTv):
        e(f"s_waitcnt lgkmcnt({NTv-1-a})")
        cin = "0" if a == 0 else "v[124:127]"
        e(f"v_mfma_f32_16x16x32_bf16 v[124:127], v[28:31], v[{80+4*a}:{83+4*a}], {cin}")
    wait_mask(S_CNT, F_V, (1 << (NTv-1)) - 1, 8, 9, sleep=1)
    stamp(16)
    n = NTv - 1; WIN = 7
    def vread(a):
        vb, off = vbase(a)
        e(f"ds_read_b64_tr_b16 v[{32+4*a}:{33+4*a}], v{vb} offset:{off}")
        e(f"ds_read_b64_tr_b16 v[{34+4*a}:{35+4*a}], v{vb} offset:{off+4096}")
    for a in range(min(WIN, n)): vread(a)
    for a in range(n):
        rem = 2*(min(a + WIN, n) - (a + 1))
        e(f"s_waitcnt lgkmcnt({rem})")
        cin = "0" if a == 0 else "v[120:123]"
        e(f"v_mfma_f32_16x16x32_bf16 v[120:123], v[{32+4*a}:{35+4*a}], v[{80+4*a}:{83+4*a}], {cin}")
        if a + WIN < n: vread(a + WIN)
    e("v_rcp_f32 v24, v124")
    wait_mask(S_CNT, F_V, (1 << NTv) - 1, 8, 9, sleep=0)
    stamp(13)
    a = NTv - 1
    vb, off = vbase(a)
    e(f"ds_read_b64_tr_b16 v[{32+4*a}:{33+4*a}], v{vb} offset:{off}")
    e(f"ds_read_b64_tr_b16 v[{34+4*a}:{35+4*a}], v{vb} offset:{off+4096}")
    e("s_waitcnt lgkmcnt(0)")
    e(f"v_mfma_f32_16x16x32_bf16 v[120:123], v[{32+4*a}:{35+4*a}], v[{80+4*a}:{83+4*a}], v[120:123]")
    if NTv == 7:
        e("s_branch L_S_PVEND")
        lab(lnext)
lab("L_S_PVEND")
signal(S_CNT, C_PVD, 8, 9)
e("v_mov_b32 v20, v15")
e("v_mov_b32 v22, v124")
nop(2)
e("v_pk_mul_f32 v[120:121], v[120:121], v[24:25] op_sel_hi:[1,0]")
e("v_pk_mul_f32 v[122:123], v[122:123], v[24:25] op_sel_hi:[1,0]")
e("v_cvt_pk_bf16_f32 v16, v120, v121")
e("v_cvt_pk_bf16_f32 v18, v122, v123")
e(f"s_mov_b32 s{sT2}, {WS_OD}")
e("v_cmp_gt_u32 vcc, 4, v3")
e(f"s_and_saveexec_b64 s[{sM0}:{sM1}], vcc")
e(f"buffer_store_dwordx4 v[16:19], v12, {WS}, s{sT2} offen sc1")
lml = uid("ML")
e(f"s_cmp_lg_u32 s{sWAVE}, 0")
e(f"s_cbranch_scc1 {lml}")
e("s_mov_b64 exec, 15")
e(f"s_mov_b32 s{sT2}, {WS_OML}")
e(f"buffer_store_dwordx4 v[20:23], v14, {WS}, s{sT2} offen sc1")
lab(lml)
e(f"s_mov_b64 exec, s[{sM0}:{sM1}]")
stamp(7)
e("s_branch L_S_LATE")
lab("L_S_ATT_IDLE")
load_tag()
fin_tag()
e("s_branch L_S_PVSTART")

lab("L_S_JOB")
c("job waves 10,11")
e("s_setprio 3")
def zero_counters(cnt, maxb=None):
    e("v_lshlrev_b32 v4, 2, v1")
    if maxb is not None:
        e(f"v_add_u32 v5, {maxb}, v4")
        e("v_mov_b32 v6, 0xff800000")
        e("ds_write_b32 v5, v6")
    e(f"v_add_u32 v4, {cnt}, v4")
    e("v_mov_b32 v5, 0")
    e("v_cmp_gt_u32 vcc, 16, v1")
    e(f"s_and_saveexec_b64 s[{sM0}:{sM1}], vcc")
    e("ds_write_b32 v4, v5")
    e(f"s_mov_b64 exec, s[{sM0}:{sM1}]")
    e("s_waitcnt lgkmcnt(0)")
zero_counters(S_CNT, S_MAXB)
e("s_barrier")
load_tag()
e(f"s_sub_u32 s{sT4}, s{sWAVE}, 10")
stamp(20)
def gemv_job(ebase, actbase, cnt, act_target):
    e("v_lshrrev_b32 v4, 2, v3")
    e("v_lshl_add_u32 v4, v2, 2, v4")
    e("v_lshlrev_b32 v4, 6, v4")
    e("v_and_b32 v5, 1, v2")
    e(f"v_xor_b32 v5, s{sT4}, v5")
    e("v_lshl_add_u32 v4, v5, 5, v4")
    e("v_and_b32 v5, 3, v1")
    e("v_lshl_add_u32 v4, v5, 3, v4")
    e(f"v_add_u32 v4, {ebase}, v4")
    e("v_mul_u32_u24 v6, 1088, v5")
    e("v_lshl_add_u32 v6, v2, 4, v6")
    e(f"v_add_u32 v6, {actbase}, v6")
    wait_cnt(cnt, C_EARLY, 4, 8, 9, sleep=1)
    stamp(1)
    for ks in range(16):
        e(f"ds_read_b64_tr_b16 v[{32+4*ks}:{33+4*ks}], v4 offset:{2048*ks}")
        e(f"ds_read_b64_tr_b16 v[{34+4*ks}:{35+4*ks}], v4 offset:{2048*ks+1024}")
    wait_cnt(cnt, C_ACT, act_target, 8, 9, sleep=1)
    stamp(2)
    BB = [96, 8]
    def bread(grp):
        base = BB[grp % 2]
        for k in range(4):
            ks = 4*grp + k
            e(f"ds_read_b128 v[{base+4*k}:{base+4*k+3}], v6 offset:{64*ks}")
    bread(0); bread(1)
    for grp in range(4):
        e(f"s_waitcnt lgkmcnt({4 if grp < 3 else 0})")
        base = BB[grp % 2]
        for k in range(4):
            ks = 4*grp + k
            cin = "0" if ks == 0 else "v[24:27]"
            e(f"v_mfma_f32_16x16x32_bf16 v[24:27], v[{32+4*ks}:{35+4*ks}], v[{base+4*k}:{base+4*k+3}], {cin}")
        if grp + 2 < 4: bread(grp + 2)
    nop(8)
fin_tag()
e(f"s_cmp_eq_u32 s{sU}, 0")
e("s_cbranch_scc1 L_S_JOB_Q")
gemv_job(S_E, S_ACT, S_CNT, 4)
e("v_cvt_pk_bf16_f32 v28, v24, v25")
e(f"v_mov_b32 v29, s{sTAG}")
e("v_cvt_pk_bf16_f32 v30, v26, v27")
e(f"v_mov_b32 v31, s{sTAG}")
e(f"s_lshl_b32 s{sT1}, s{sUI}, 7")
e(f"s_add_u32 s{sT1}, s{sT1}, {WS_M}")
e(f"s_lshl_b32 s{sT2}, s{sT4}, 6")
e(f"s_add_u32 s{sT1}, s{sT1}, s{sT2}")
e("v_lshlrev_b32 v8, 13, v3")
e("v_lshl_add_u32 v8, v2, 4, v8")
e("v_cmp_gt_u32 vcc, 4, v3")
e(f"s_and_saveexec_b64 s[{sM0}:{sM1}], vcc")
e(f"buffer_store_dwordx4 v[28:31], v8, {WS}, s{sT1} offen sc1")
e(f"s_mov_b64 exec, s[{sM0}:{sM1}]")
stamp(3)
lab("L_S_JOB_Q")
ljq = uid("JQ")
e(f"s_cmp_eq_u32 s{sQCU}, 0")
e(f"s_cbranch_scc1 {ljq}")
wait_cnt(S_CNT, C_QD, 4, 8, 9, sleep=2)
lab(ljq)
e(f"s_lshr_b32 s{sT0}, s{sR}, 3")
e(f"s_lshl_b32 s{sT0}, s{sT0}, 14")
e(f"s_and_b32 s{sT1}, s{sR}, 7")
e(f"s_lshl_b32 s{sT1}, s{sT1}, 11")
e(f"s_add_u32 s{sT0}, s{sT0}, s{sT1}")
e(f"s_lshl_b32 s{sT1}, s{sT4}, 10")
e(f"s_add_u32 s{sT0}, s{sT0}, s{sT1}")
e(f"s_add_u32 s{sT0}, s{sT0}, {WS_Q}")
e("v_lshlrev_b32 v5, 4, v1")
e(f"v_add_u32 v5, s{sT0}, v5")
e("v_lshrrev_b32 v6, 5, v1")
e(f"s_lshl_b32 s{sT0}, s{sT4}, 1")
e(f"v_add_u32 v6, s{sT0}, v6")
e("v_mul_u32_u24 v6, 320, v6")
e("v_and_b32 v7, 31, v1")
e("v_lshl_add_u32 v6, v7, 3, v6")
e(f"v_add_u32 v6, {S_QL}, v6")
poll([(8, 5, 0)], sleep=SSL)
e("v_mov_b32 v9, v10")
e("ds_write_b64 v6, v[8:9]")
signal(S_CNT, C_Q, 24, 25)
stamp(5)
e("s_branch L_S_LATE")

def early_dma(ebase, scb0, scb1, stride):
    e("v_lshrrev_b32 v5, 2, v1")
    e(f"v_mul_u32_u24 v5, {stride}, v5")
    e("v_bfe_u32 v6, v1, 1, 1")
    e("v_bfe_u32 v7, v1, 4, 1")
    e("v_xor_b32 v6, v6, v7")
    e(f"v_mov_b32 v7, s{scb0}")
    e(f"v_mov_b32 v16, s{scb1}")
    e("v_cmp_eq_u32 vcc, 1, v6")
    nop(2)
    e("v_cndmask_b32 v7, v7, v16, vcc")
    e("v_add_u32 v5, v5, v7")
    e("v_and_b32 v6, 1, v1")
    e("v_lshl_add_u32 v5, v6, 4, v5")
    e(f"s_lshl_b32 s{sT1}, s{sT4}, 3")
    e(f"s_mul_i32 s{sT2}, s{sT1}, {16*stride}")
    e(f"s_lshl_b32 s{sT1}, s{sT1}, 10")
    e(f"s_add_u32 s{sT1}, s{sT1}, {ebase}")
    for k in range(8):
        e(f"s_mov_b32 m0, s{sT1}")
        e(f"s_add_u32 s{sT1}, s{sT1}, 1024")
        e(f"buffer_load_dwordx4 v5, {SC}, s{sT2} offen nt lds")
        e(f"s_add_u32 s{sT2}, s{sT2}, {16*stride}")
def silu_to_act(actbase, cnt):
    for i in range(4):
        unpack2(8+i, 16+2*i, 17+2*i)
    for i in range(8):
        silu_inplace(16+i, 24, 25)
    for i in range(4):
        e(f"v_cvt_pk_bf16_f32 v{8+i}, v{16+2*i}, v{17+2*i}")
    e("v_lshrrev_b32 v6, 2, v1")
    e("v_lshlrev_b32 v6, 6, v6")
    e("v_and_b32 v7, 1, v1")
    e("v_lshl_add_u32 v6, v7, 5, v6")
    e("v_bfe_u32 v7, v1, 1, 1")
    e("v_lshl_add_u32 v6, v7, 3, v6")
    e(f"s_mul_i32 s{sT0}, s{sT4}, 1088")
    e(f"s_add_u32 s{sT0}, s{sT0}, {actbase}")
    e(f"v_add_u32 v6, s{sT0}, v6")
    e("ds_write_b64 v6, v[8:9]")
    e("ds_write_b64 v6, v[10:11] offset:16")
    signal(cnt, C_ACT, 24, 25)

lab("L_S_STREAM")
c("streamer waves 12..15")
e("s_setprio 2")
e(f"s_sub_u32 s{sT4}, s{sWAVE}, 12")
lnoe = uid("NOE")
e(f"s_cmp_eq_u32 s{sU}, 0")
e(f"s_cbranch_scc1 {lnoe}")
srd(28, P_C, 4096)
srd(20, P_WM, 512*3072*2)
e(f"s_lshl_b32 s{sT0}, s{sT4}, 10")
e("v_lshlrev_b32 v4, 4, v1")
e(f"buffer_load_dwordx4 v[8:11], v4, {SE}, s{sT0} offen")
e(f"s_lshl_b32 s{sCB0}, s{sUI}, 6")
e(f"s_add_u32 s{sCB0}, s{sCB0}, 2048")
e(f"s_add_u32 s{sCB1}, s{sCB0}, 32")
early_dma(S_E, sCB0, sCB1, 6144)
lab(lnoe)
e("s_barrier")
load_tag()
srd(16, P_V, 4*8*8192*128*2)
srd(24, P_WO, 4096*512*2)
lafter = uid("LAF")
e(f"s_cmp_eq_u32 s{sU}, 0")
e(f"s_cbranch_scc1 {lafter}")
e("s_waitcnt vmcnt(8)")
silu_to_act(S_ACT, S_CNT)
lab(lafter)
lnq2 = uid("NOQ")
e(f"s_cmp_eq_u32 s{sQCU}, 0")
e(f"s_cbranch_scc1 {lnq2}")
srd(32, P_X, 4096)
e(f"s_lshl_b32 s{sT0}, s{sT4}, 10")
e("v_lshlrev_b32 v4, 3, v1")
e(f"buffer_load_dwordx2 v[8:9], v4, {SF}, s{sT0} offen")
e(f"buffer_load_dwordx2 v[10:11], v4, {SF}, s{sT0} offen offset:512")
e(f"s_lshl_b32 s{sT0}, s{sT4}, 12")
e(f"s_add_u32 s{sT0}, s{sT0}, {WS_SC}")
e("v_lshlrev_b32 v5, 4, v1")
e(f"v_add_u32 v5, s{sT0}, v5")
e("v_lshrrev_b32 v6, 3, v1")
e("v_lshlrev_b32 v6, 6, v6")
e("v_and_b32 v7, 3, v1")
e("v_lshl_add_u32 v6, v7, 4, v6")
e("v_bfe_u32 v7, v1, 2, 1")
e("v_lshl_add_u32 v6, v7, 3, v6")
e(f"s_mul_i32 s{sT0}, s{sT4}, 1088")
e(f"s_add_u32 s{sT0}, s{sT0}, {S_ACT}")
e(f"v_add_u32 v6, s{sT0}, v6")
e("s_waitcnt vmcnt(0) lgkmcnt(0)")
e(f"s_add_u32 s{sTAG}, s{sTAG}, 0x9E3779B9")
for i in range(4): unpack2(8+i, 16+2*i, 17+2*i)
layernorm8(16, 24)
wait_cnt(S_CNT, C_WQ, 8, 36, 37, sleep=1)
poll([(40, 5, 0), (44, 5, 1024), (48, 5, 2048), (52, 5, 3072)], sleep=1)
for (src, dst) in ((48, 56), (50, 58), (52, 60), (54, 62)): unpack2(src, dst, dst+1)
for i in range(0, 8, 2): e(f"v_pk_add_f32 v[{56+i}:{57+i}], v[{56+i}:{57+i}], 1.0 op_sel_hi:[1,0]")
for i in range(0, 8, 2): rnd2(56+i, 57+i, 24)
for i in range(0, 8, 2): e(f"v_pk_mul_f32 v[{16+i}:{17+i}], v[{16+i}:{17+i}], v[{56+i}:{57+i}]")
for i in range(0, 8, 2): rnd2(16+i, 17+i, 24)
for (src, dst) in ((40, 56), (42, 58), (44, 60), (46, 62)): unpack2(src, dst, dst+1)
for i in range(0, 8, 2): e(f"v_pk_add_f32 v[{16+i}:{17+i}], v[{16+i}:{17+i}], v[{56+i}:{57+i}]")
for i in range(4): e(f"v_cvt_pk_bf16_f32 v{8+i}, v{16+2*i}, v{17+2*i}")
e("ds_write_b64 v6, v[8:9]")
e("ds_write_b64 v6, v[10:11] offset:512")
signal(S_CNT, C_ACT, 24, 25)
stamp(6)
wait_cnt(S_CNT, C_QD, 4, 24, 25, sleep=1)
e(f"s_sub_u32 s{sTAG}, s{sTAG}, 0x9E3779B9")
lab(lnq2)
e("v_lshrrev_b32 v5, 1, v3")
e("v_xor_b32 v5, v5, v2")
e("v_lshlrev_b32 v5, 5, v5")
e("v_and_b32 v6, 1, v1")
e("v_lshl_add_u32 v5, v6, 4, v5")
e("v_lshl_add_u32 v7, v2, 10, v5")
e("v_lshl_add_u32 v5, v2, 8, v5")
e("v_xor_b32 v6, 128, v5")
e("v_xor_b32 v10, 128, v7")
e("s_waitcnt vmcnt(0)")
signal(S_CNT, C_EARLY, 24, 25)
fin_tag()
stamp(4)
e(f"s_sub_u32 s{sT5}, s{sNT}, {KOV}")
e(f"s_cmp_eq_u32 s{sQCU}, 1")
e(f"s_cselect_b32 s{sT5}, {QKW}, s{sT5}")
wait_cnt(S_CNT, C_KL, f"s{sT5}", 24, 25, sleep=1)
stamp(18)
def v_issue(sa):
    e(f"s_lshl_b32 s{sT1}, s{sa}, 13")
    e(f"s_add_u32 s{sT0}, s{sKVB}, s{sT1}")
    e(f"s_mov_b32 m0, s{sT1}")
    e(f"s_add_u32 s{sT1}, s{sT1}, 4096")
    for i in range(4):
        e(f"buffer_load_dwordx4 v{5 + ((i ^ (i >> 1)) & 1)}, {SB}, s{sT0} offen offset:{1024*i} nt lds")
    e(f"s_mov_b32 m0, s{sT1}")
    e(f"s_add_u32 s{sT0}, s{sT0}, 4096")
    for i in range(4):
        e(f"buffer_load_dwordx4 v{5 + ((i ^ (i >> 1)) & 1)}, {SB}, s{sT0} offen offset:{1024*i} nt lds")
if "vdeep" in OPT:
    ldone = uid("VD"); l2 = uid("V2"); l1 = uid("V1")
    e(f"s_mov_b32 s{sT5}, s{sT4}"); v_issue(sT5)
    e(f"s_add_u32 s{sT5}, s{sT4}, 4")
    e(f"s_cmp_lt_u32 s{sT5}, s{sNT}")
    e(f"s_cbranch_scc0 {l1}")
    v_issue(sT5)
    e(f"s_add_u32 s{sT5}, s{sT4}, 8")
    e(f"s_cmp_lt_u32 s{sT5}, s{sNT}")
    e(f"s_cbranch_scc0 {l2}")
    v_issue(sT5)
    e(f"s_lshl_b32 s{sT2}, 1, s{sT4}")
    for w in (16, 8, 0):
        e(f"s_waitcnt vmcnt({w})")
        signal_or(S_CNT, F_V, sT2, 24, 25)
        if w: e(f"s_lshl_b32 s{sT2}, s{sT2}, 4")
    e(f"s_branch {ldone}")
    lab(l2)
    e(f"s_lshl_b32 s{sT2}, 1, s{sT4}")
    for w in (8, 0):
        e(f"s_waitcnt vmcnt({w})")
        signal_or(S_CNT, F_V, sT2, 24, 25)
        if w: e(f"s_lshl_b32 s{sT2}, s{sT2}, 4")
    e(f"s_branch {ldone}")
    lab(l1)
    e(f"s_lshl_b32 s{sT2}, 1, s{sT4}")
    e("s_waitcnt vmcnt(0)")
    signal_or(S_CNT, F_V, sT2, 24, 25)
    lab(ldone)
else:
    e(f"s_mov_b32 s{sT5}, s{sT4}")
    lv = uid("V"); lvd = uid("VD")
    lab(lv)
    v_issue(sT5)
    e(f"s_lshl_b32 s{sT2}, 1, s{sT5}")
    e("s_waitcnt vmcnt(0)")
    signal_or(S_CNT, F_V, sT2, 24, 25)
    e(f"s_add_u32 s{sT5}, s{sT5}, 4")
    e(f"s_cmp_lt_u32 s{sT5}, s{sNT}")
    e(f"s_cbranch_scc1 {lv}")
stamp(19)
e(f"s_cmp_eq_u32 s{sLATE}, 0")
e("s_cbranch_scc1 L_END")
e(f"s_lshl_b32 s{sT0}, s{sT4}, 3")
e(f"s_lshl_b32 s{sT1}, s{sT0}, 10")
e(f"s_add_u32 s{sT1}, s{sT1}, {S_L}")
e(f"s_lshl_b32 s{sT2}, s{sT0}, 12")
e(f"s_lshl_b32 s{sT3}, s{sH}, 17")
e(f"s_add_u32 s{sT2}, s{sT2}, s{sT3}")
e(f"s_lshl_b32 s{sT3}, s{sNQ}, 8")
e(f"s_add_u32 s{sT2}, s{sT2}, s{sT3}")
for k in range(8):
    e(f"s_mov_b32 m0, s{sT1}")
    e(f"s_add_u32 s{sT1}, s{sT1}, 1024")
    e(f"buffer_load_dwordx4 v{[7, 10][(k >> 1) & 1]}, {SD}, s{sT2} offen nt lds")
    e(f"s_add_u32 s{sT2}, s{sT2}, 4096")
e("s_waitcnt vmcnt(0)")
signal(S_CNT, C_LATE, 24, 25)

lab("L_S_LATE")
e(f"s_cmp_eq_u32 s{sLATE}, 0")
e("s_cbranch_scc1 L_END")
e("s_setprio 0")
e("v_mov_b32 v58, 0")
e(f"s_lshl_b32 s{sT6}, s{sWAVE}, 6"); e(f"v_add_u32 v4, s{sT6}, v1")
e(f"s_mul_i32 s{sT0}, s{sH}, {28*512}")
e(f"s_add_u32 s{sT0}, s{sT0}, {WS_OD}")
e(f"s_mul_i32 s{sT1}, s{sH}, {28*16}")
e(f"s_add_u32 s{sT1}, s{sT1}, {WS_OML - 896*16}")
e(f"s_cmp_lt_u32 s{sWAVE}, 14")
e(f"s_cselect_b32 s{sT0}, s{sT0}, s{sT1}")
e("v_lshlrev_b32 v5, 4, v4")
e(f"v_add_u32 v5, s{sT0}, v5")
e("v_lshrrev_b32 v6, 5, v4")
e(f"s_cmp_lt_u32 s{sWAVE}, 14")
lw = uid("LW"); lw2 = uid("LW")
e(f"s_cbranch_scc1 {lw}")
e("v_mov_b32 v6, v1")
lab(lw)
e("v_mul_u32_u24 v7, 37, v6")
e("v_lshrrev_b32 v7, 8, v7")
e("v_add_u32 v6, v6, v7")
e(f"s_cmp_lt_u32 s{sWAVE}, 14")
e(f"s_cbranch_scc1 {lw2}")
e("v_lshlrev_b32 v6, 3, v6")
e(f"v_add_u32 v6, {S_CML}, v6")
lw3 = uid("LW")
e(f"s_branch {lw3}")
lab(lw2)
e("v_mul_u32_u24 v6, 272, v6")
e("v_and_b32 v7, 31, v4")
e("v_lshl_add_u32 v6, v7, 3, v6")
e(f"v_add_u32 v6, {S_CG}, v6")
lab(lw3)
lnw = uid("LNW")
e(f"s_cmp_ge_u32 s{sWAVE}, 8")
e(f"s_cbranch_scc1 {lnw}")
wait_cnt(S_CNT, C_LATE, 4, 8, 9, sleep=1)
e("v_lshrrev_b32 v12, 2, v3")
e("v_lshl_add_u32 v13, v2, 3, v12")
e("v_and_b32 v14, 1, v2")
e("v_lshl_add_u32 v12, v14, 2, v12")
e(f"v_xor_b32 v12, s{sWAVE}, v12")
e("v_lshlrev_b32 v12, 5, v12")
e("v_lshl_add_u32 v12, v13, 8, v12")
e("v_and_b32 v14, 3, v1")
e("v_lshl_add_u32 v12, v14, 3, v12")
e(f"v_add_u32 v12, {S_L}, v12")
for ks in range(4):
    e(f"ds_read_b64_tr_b16 v[{32+4*ks}:{33+4*ks}], v12 offset:{8192*ks}")
    e(f"ds_read_b64_tr_b16 v[{34+4*ks}:{35+4*ks}], v12 offset:{8192*ks+1024}")
e("v_mul_u32_u24 v56, 272, v3")
e("v_lshl_add_u32 v56, v2, 4, v56")
e(f"v_add_u32 v56, {S_CG}, v56")
e("v_lshlrev_b32 v57, 3, v3")
e(f"v_add_u32 v57, {S_CML}, v57")
e(f"s_lshl_b32 s{sT0}, s{sNQ}, 3")
e(f"s_add_u32 s{sT0}, s{sT0}, s{sWAVE}")
e(f"s_lshl_b32 s{sT0}, s{sT0}, 5")
e(f"s_add_u32 s{sT0}, s{sT0}, s{sH}")
e(f"s_lshl_b32 s{sT0}, s{sT0}, 9")
e(f"s_add_u32 s{sT0}, s{sT0}, {WS_AP}")
e("v_bfe_u32 v58, v1, 3, 1")
e("v_lshlrev_b32 v58, 7, v58")
e("v_lshl_add_u32 v58, v2, 5, v58")
e("v_bfe_u32 v59, v1, 1, 1")
e("v_lshl_add_u32 v58, v59, 8, v58")
e("v_and_b32 v59, 1, v1")
e("v_lshl_add_u32 v58, v59, 4, v58")
e(f"v_add_u32 v58, s{sT0}, v58")
e(f"v_mov_b32 v61, s{sTAG}")
e(f"v_mov_b32 v63, s{sTAG}")
lab(lnw)
lz = uid("LZ"); lzd = uid("LZD")
e(f"s_cmp_eq_u32 s{sWAVE}, 15")
e(f"s_cbranch_scc1 {lz}")
e("s_mov_b64 s[98:99], exec")
e(f"s_cmp_lg_u32 s{sWAVE}, 14")
lfull = uid("LF")
e(f"s_cbranch_scc1 {lfull}")
e("s_mov_b32 exec_lo, 0x0fffffff")
e("s_mov_b32 exec_hi, 0")
lab(lfull)
poll([(8, 5, 0)])
stamp(17)
e("v_mov_b32 v9, v10")
wait_cnt(S_CNT, C_PVD, 8, 12, 13, sleep=0)
e("ds_write_b64 v6, v[8:9]")
e("s_mov_b64 exec, s[98:99]")
e(f"s_branch {lzd}")
lab(lz)
wait_cnt(S_CNT, C_PVD, 8, 12, 13, sleep=1)
e("v_lshlrev_b32 v6, 3, v2")
e("v_add_u32 v6, 7, v6")
e("v_mul_u32_u24 v7, 272, v6")
e("v_lshl_add_u32 v7, v3, 4, v7")
e(f"v_add_u32 v7, {S_CG}, v7")
for i in range(4): e(f"v_mov_b32 v{12+i}, 0")
e("ds_write_b128 v7, v[12:15]")
e("v_lshlrev_b32 v6, 3, v6")
e(f"v_add_u32 v6, {S_CML}, v6")
e("v_mov_b32 v12, 0xff800000")
e("ds_write_b64 v6, v[12:13]")
lab(lzd)
e("s_waitcnt lgkmcnt(0)")
e("s_barrier")
e(f"s_cmp_ge_u32 s{sWAVE}, 8")
e("s_cbranch_scc1 L_END")
stamp(9)
e("ds_read_b64 v[8:9], v57")
e("ds_read_b64 v[10:11], v57 offset:128")
for ct in range(2):
    for ks in range(4):
        d = 64 + 16*ct + 4*ks
        e(f"ds_read_b128 v[{d}:{d+3}], v56 offset:{16*272*ct + 64*ks}")
e("s_waitcnt lgkmcnt(8)")
e("v_mov_b32 v12, v8")
e("v_mov_b32 v13, v10")
nop(1)
for ctl in ("quad_perm:[1,0,3,2]", "quad_perm:[2,3,0,1]", "row_half_mirror"):
    e(f"v_max_f32_dpp v12, v12, v12 {ctl} row_mask:0xf bank_mask:0xf")
    e(f"v_max_f32_dpp v13, v13, v13 {ctl} row_mask:0xf bank_mask:0xf")
    nop(1)
e("v_sub_f32 v8, v8, v12")
e("v_sub_f32 v10, v10, v13")
e("v_exp_f32 v8, v8")
e("v_exp_f32 v10, v10")
e("s_waitcnt lgkmcnt(0)")
for ks in range(4):
    for ct in range(2):
        d = 64 + 16*ct + 4*ks
        cin = "0" if ks == 0 else f"v[{16+4*ct}:{19+4*ct}]"
        e(f"v_mfma_f32_16x16x32_bf16 v[{16+4*ct}:{19+4*ct}], v[{32+4*ks}:{35+4*ks}], v[{d}:{d+3}], {cin}")
e("v_mul_f32 v8, v8, v9")
e("v_mul_f32 v10, v10, v11")
e("v_mov_b32 v12, v8")
e("v_mov_b32 v13, v10")
nop(1)
for ctl in ("quad_perm:[1,0,3,2]", "quad_perm:[2,3,0,1]", "row_half_mirror"):
    e(f"v_add_f32_dpp v12, v12, v12 {ctl} row_mask:0xf bank_mask:0xf")
    e(f"v_add_f32_dpp v13, v13, v13 {ctl} row_mask:0xf bank_mask:0xf")
    nop(1)
e("v_rcp_f32 v12, v12")
e("v_rcp_f32 v13, v13")
e("v_and_b32 v14, 1, v1")
e(f"v_cmp_eq_u32 s[{sM0}:{sM1}], 1, v14")
e("v_bfe_u32 v14, v1, 1, 1")
e("v_cmp_eq_u32 vcc, 1, v14")
e("v_mul_f32 v8, v8, v12")
e("v_mul_f32 v10, v10, v13")
nop(1)
e("v_pk_mul_f32 v[16:17], v[16:17], v[8:9] op_sel_hi:[1,0]")
e("v_pk_mul_f32 v[18:19], v[18:19], v[8:9] op_sel_hi:[1,0]")
e("v_pk_mul_f32 v[20:21], v[20:21], v[10:11] op_sel_hi:[1,0]")
e("v_pk_mul_f32 v[22:23], v[22:23], v[10:11] op_sel_hi:[1,0]")
nop(1)
for ctl in ("quad_perm:[1,0,3,2]", "quad_perm:[2,3,0,1]", "row_half_mirror"):
    for i in range(8):
        e(f"v_add_f32_dpp v{16+i}, v{16+i}, v{16+i} {ctl} row_mask:0xf bank_mask:0xf")
e(f"v_cndmask_b32 v24, v16, v18, s[{sM0}:{sM1}]")
e(f"v_cndmask_b32 v25, v20, v22, s[{sM0}:{sM1}]")
e(f"v_cndmask_b32 v26, v17, v19, s[{sM0}:{sM1}]")
e(f"v_cndmask_b32 v27, v21, v23, s[{sM0}:{sM1}]")
e("v_cndmask_b32 v60, v24, v25, vcc")
e("v_cndmask_b32 v62, v26, v27, vcc")
e("v_and_b32 v14, 4, v1")
e("v_cmp_eq_u32 vcc, 0, v14")
e(f"s_and_saveexec_b64 s[{sM0}:{sM1}], vcc")
e(f"buffer_store_dwordx4 v[60:63], v58, {WS}, 0 offen sc1")
e(f"s_mov_b64 exec, s[{sM0}:{sM1}]")
stamp(10)
e("s_branch L_END")

lab("L_T")
c("T role: t = sR")
srd(20, P_WM, 512*3072*2)
srd(28, P_C, 4096)
srd(32, P_X, 4096)
srd(24, P_OUT, 4096)
e(f"s_cmp_ge_u32 s{sWAVE}, 12")
e("s_cbranch_scc1 L_T_STREAM")
lt1 = uid("T1")
e(f"s_cmp_lg_u32 s{sWAVE}, 10")
e(f"s_cbranch_scc1 {lt1}")
zero_counters(T_CNT)
lab(lt1)
e("s_barrier")
lt2 = uid("T2")
e(f"s_cmp_ge_u32 s{sR}, 16")
e(f"s_cbranch_scc1 {lt2}")
e(f"s_lshl_b32 s{sCB0}, s{sR}, 7")
e(f"s_lshl_b32 s{sCB1}, s{sR}, 8")
e(f"s_add_u32 s{sCB1}, s{sCB1}, {WS_SC}")
line_unit(T_ACT, T_CNT, 6144, 12)
e("s_branch L_T_AUX")
lab(lt2)
load_tag()
fin_tag()
lab("L_T_AUX")
lw9 = uid("W9")
e(f"s_cmp_lg_u32 s{sWAVE}, 9")
e(f"s_cbranch_scc1 {lw9}")
e("v_lshlrev_b32 v5, 8, v1")
e(f"v_add_u32 v5, {WS_SC}, v5")
poll_lanes(16, 8, 5, 4)
e("s_branch L_T_B1")
lab(lw9)
e(f"s_cmp_lg_u32 s{sWAVE}, 8")
e("s_cbranch_scc1 L_T_B1")
e(f"s_getreg_b32 s{sT0}, hwreg(HW_REG_XCC_ID)")
e(f"s_and_b32 s{sT0}, s{sT0}, 0xf")
e(f"v_mov_b32 v8, s{sT0}")
e(f"v_mov_b32 v9, s{sTAG}")
e(f"s_lshl_b32 s{sT1}, s{sR}, 3")
e(f"s_add_u32 s{sT1}, s{sT1}, {WS_XCC}")
sentinel_store(sT1, 8)
e("s_branch L_T_B1")
lab("L_T_STREAM")
e(f"s_sub_u32 s{sT4}, s{sWAVE}, 12")
e(f"s_lshl_b32 s{sT0}, s{sT4}, 10")
e("v_lshlrev_b32 v4, 4, v1")
e(f"buffer_load_dwordx4 v[8:11], v4, {SE}, s{sT0} offen")
e("s_barrier")
load_tag()
e("s_waitcnt vmcnt(0)")
silu_to_act(T_ACT, T_CNT)
fin_tag()
lab("L_T_B1")
e("s_waitcnt lgkmcnt(0)")
e("s_barrier")
stamp(19)
srd(12, P_WG, 512*1792*2)
srd(16, P_WU, 512*1792*2)
lnoffn = uid("NF")
e(f"s_cmp_ge_u32 s{sR}, 28")
e(f"s_cbranch_scc1 {lnoffn}")
line_dma_voff(3584)
e(f"s_and_b32 s{sT0}, s{sWAVE}, 7")
e(f"s_lshl_b32 s{sT0}, s{sT0}, 3")
e(f"s_mul_i32 s{sT2}, s{sT0}, {8*3584}")
e(f"s_lshl_b32 s{sT3}, s{sR}, 7")
e(f"s_add_u32 s{sT2}, s{sT2}, s{sT3}")
e(f"s_lshl_b32 s{sT1}, s{sWAVE}, 13")
lup = uid("UP"); lgd = uid("GD")
e(f"s_cmp_ge_u32 s{sWAVE}, 8")
e(f"s_cbranch_scc1 {lup}")
for k in range(8):
    e(f"s_mov_b32 m0, s{sT1}")
    e(f"s_add_u32 s{sT1}, s{sT1}, 1024")
    e(f"buffer_load_dwordx4 v4, {SA}, s{sT2} offen nt lds")
    e(f"s_add_u32 s{sT2}, s{sT2}, {8*3584}")
e(f"s_branch {lgd}")
lab(lup)
for k in range(8):
    e(f"s_mov_b32 m0, s{sT1}")
    e(f"s_add_u32 s{sT1}, s{sT1}, 1024")
    e(f"buffer_load_dwordx4 v4, {SB}, s{sT2} offen nt lds")
    e(f"s_add_u32 s{sT2}, s{sT2}, {8*3584}")
lab(lgd)
lab(lnoffn)
lmods = uid("MODS"); lb2 = uid("B2")
e(f"s_cmp_lt_u32 s{sWAVE}, 8")
e(f"s_cbranch_scc1 {lb2}")
lab(lmods)
lm1 = uid("LM"); lm2 = uid("LM")
e(f"s_cmp_ge_u32 s{sWAVE}, 12")
e(f"s_cbranch_scc1 {lm1}")
e(f"s_sub_u32 s{sT0}, s{sWAVE}, 8")
e(f"s_lshl_b32 s{sT0}, s{sT0}, 13")
e(f"s_add_u32 s{sT0}, s{sT0}, {WS_M}")
e("v_lshlrev_b32 v4, 4, v1")
e(f"v_add_u32 v4, s{sT0}, v4")
e("v_add_u32 v5, 2048, v4")
e("v_add_u32 v6, 4096, v4")
poll([(32, 5, 0), (36, 5, 1024), (40, 6, 0), (44, 6, 1024)], sleep=2)
for (src, dst) in ((32, 48), (36, 52)):
    unpack2(src, dst, dst+1); unpack2(src+2, dst+2, dst+3)
for (src, dst) in ((40, 56), (44, 60)):
    unpack2(src, dst, dst+1); unpack2(src+2, dst+2, dst+3)
for i in range(8):
    e(f"v_add_f32 v{56+i}, 1.0, v{56+i}")
for i in range(0, 8, 2):
    rnd2(56+i, 57+i, 4)
e(f"s_branch {lb2}")
lab(lm1)
e(f"s_cmp_lg_u32 s{sWAVE}, 12")
e(f"s_cbranch_scc1 {lm2}")
e("v_lshrrev_b32 v4, 2, v1")
e("v_lshlrev_b32 v4, 13, v4")
e("v_and_b32 v5, 3, v1")
e("v_lshl_add_u32 v4, v5, 4, v4")
e(f"s_lshl_b32 s{sT0}, s{sR}, 6")
e(f"s_add_u32 s{sT0}, s{sT0}, {WS_M}")
e(f"v_add_u32 v4, s{sT0}, v4")
e("v_add_u32 v6, 6144, v4")
e("v_lshrrev_b32 v7, 2, v1")
e("v_lshlrev_b32 v7, 10, v7")
e("v_lshl_add_u32 v7, v5, 3, v7")
e(f"s_lshl_b32 s{sT0}, s{sR}, 5")
e("s_mov_b64 s[98:99], exec")
e("s_mov_b64 exec, 0xffff")
e(f"buffer_load_dwordx2 v[44:45], v7, {SF}, s{sT0} offen")
poll([(32, 4, 0), (36, 6, 0)], sleep=2)
e("s_mov_b64 exec, s[98:99]")
unpack2(32, 48, 49); unpack2(34, 50, 51)
unpack2(36, 52, 53); unpack2(38, 54, 55)
unpack2(44, 56, 57); unpack2(45, 58, 59)
e(f"s_branch {lb2}")
lab(lm2)
e(f"s_cmp_lg_u32 s{sWAVE}, 13")
e(f"s_cbranch_scc1 {lb2}")
e("v_lshlrev_b32 v5, 4, v1")
e(f"v_add_u32 v5, {WS_XCC}, v5")
e("s_mov_b64 s[98:99], exec")
e("s_mov_b64 exec, 0xffff")
poll([(8, 5, 0)], sleep=4)
e(f"s_getreg_b32 s{sT0}, hwreg(HW_REG_XCC_ID)")
e(f"s_and_b32 s{sT0}, s{sT0}, 0xf")
e(f"v_cmp_eq_u32 vcc, s{sT0}, v8")
e(f"v_cmp_eq_u32 s[{sM0}:{sM1}], s{sT0}, v10")
e(f"s_and_b64 vcc, vcc, s[{sM0}:{sM1}]")
e("s_cmp_eq_u64 vcc, exec")
e(f"s_cselect_b32 s{sSAME}, 1, 0")
if "forcesc1" in OPT: e(f"s_mov_b32 s{sSAME}, 0")
e("s_mov_b64 exec, s[98:99]")
e(f"v_mov_b32 v8, {T_SAME}")
e(f"v_mov_b32 v9, s{sSAME}")
e("ds_write_b32 v8, v9")
lab(lb2)
e("s_waitcnt lgkmcnt(0)")
stamp(15)
def read_same():
    e(f"v_mov_b32 v8, {T_SAME}")
    e("ds_read_b32 v9, v8")
    e("s_waitcnt lgkmcnt(0)")
    e(f"v_readfirstlane_b32 s{sSAME}, v9")
srd(20, P_WD, 1792*512*2)
e("s_waitcnt vmcnt(0)")
e("s_barrier")
read_same()
stamp(1)
lnt = uid("NT")
e(f"s_cmp_ge_u32 s{sR}, 28")
e(f"s_cbranch_scc1 {lnt}")
e(f"s_cmp_ge_u32 s{sWAVE}, 8")
e(f"s_cbranch_scc1 {lnt}")
e(f"s_lshr_b32 s{sT0}, s{sWAVE}, 2")
e(f"s_lshl_b32 s{sT0}, s{sT0}, 16")
tr_line_addr(4, sT0)
for ks in range(16):
    e(f"ds_read_b64_tr_b16 v[{32+4*ks}:{33+4*ks}], v4 offset:{4096*ks}")
    e(f"ds_read_b64_tr_b16 v[{34+4*ks}:{35+4*ks}], v4 offset:{4096*ks+2048}")
lab(lnt)
e("s_waitcnt lgkmcnt(0)")
e("s_barrier")
lnd = uid("ND")
e(f"s_cmp_ge_u32 s{sR}, 28")
e(f"s_cbranch_scc1 {lnd}")
e("v_lshlrev_b32 v4, 4, v1")
e(f"s_lshl_b32 s{sT0}, s{sWAVE}, 2")
e(f"s_lshl_b32 s{sT1}, s{sT0}, 10")
e(f"s_lshl_b32 s{sT2}, s{sR}, 16")
e(f"s_add_u32 s{sT2}, s{sT2}, s{sT1}")
e(f"s_and_b32 s{sT3}, s{sT0}, 7")
e(f"s_lshl_b32 s{sT3}, s{sT3}, 5")
for k in range(4):
    e(f"s_add_u32 s{sT5}, s{sT3}, {32*k}")
    e(f"v_xor_b32 v5, s{sT5}, v4")
    e(f"s_mov_b32 m0, s{sT1}")
    e(f"s_add_u32 s{sT1}, s{sT1}, 1024")
    e(f"buffer_load_dwordx4 v5, {SC}, s{sT2} offen nt lds")
    e(f"s_add_u32 s{sT2}, s{sT2}, 1024")
lab(lnd)
e("s_waitcnt vmcnt(0)")
e("s_barrier")
lnd = uid("ND")
e(f"s_cmp_ge_u32 s{sR}, 28")
e(f"s_cbranch_scc1 {lnd}")
e("v_lshrrev_b32 v4, 2, v3")
e("v_lshl_add_u32 v4, v2, 2, v4")
e("v_and_b32 v5, 7, v4")
e(f"s_lshl_b32 s{sT0}, s{sWAVE}, 1")
e(f"v_xor_b32 v5, s{sT0}, v5")
e("v_lshlrev_b32 v5, 5, v5")
e("v_lshl_add_u32 v5, v4, 10, v5")
e("v_and_b32 v6, 3, v1")
e("v_lshl_add_u32 v5, v6, 3, v5")
e("v_xor_b32 v6, 32, v5")
for j in range(2):
    for ks in range(2):
        d = 96 + 8*j + 4*ks
        e(f"ds_read_b64_tr_b16 v[{d}:{d+1}], v{5+j} offset:{32768*ks}")
        e(f"ds_read_b64_tr_b16 v[{d+2}:{d+3}], v{5+j} offset:{32768*ks+16384}")
lab(lnd)
stamp(2)

e(f"s_lshl_b32 s{sT6}, s{sWAVE}, 10")
e("v_lshlrev_b32 v124, 4, v1")
e(f"v_add_u32 v124, s{sT6}, v124")
e(f"s_mul_i32 s{sT0}, s{sR}, {28*512}")
e(f"s_add_u32 s{sT0}, s{sT0}, {WS_DP}")
e(f"v_add_u32 v126, s{sT0}, v124")
e(f"s_lshl_b32 s{sT0}, s{sR}, 14")
e(f"s_add_u32 s{sT0}, s{sT0}, {WS_AP}")
e(f"v_add_u32 v124, s{sT0}, v124")
e("v_and_b32 v125, 31, v1")
e("v_lshlrev_b32 v125, 3, v125")
e(f"v_add_u32 v125, {T_ACC1}, v125")
e("s_waitcnt lgkmcnt(0)")
lpw = uid("PW")
e(f"s_cmp_eq_u32 s{sSAME}, 1")
e(f"s_cbranch_scc0 {lpw}")
e(f"buffer_load_dwordx4 v[8:11], v126, {WS}, 0 offen nt")
e(f"s_lshl_b32 s{sT0}, s{sWAVE}, 10")
e(f"s_and_b32 s{sT0}, s{sT0}, 0x1fff")
e(f"s_add_u32 s{sT0}, s{sT0}, {WS_X2}")
e("v_lshlrev_b32 v4, 4, v1")
e(f"buffer_load_dwordx4 v[12:15], v4, {WS}, s{sT0} offen nt")
e("s_waitcnt vmcnt(0)")
lab(lpw)
stamp(3)
larm = uid("ARM")
e(f"s_cmp_lg_u32 s{sWAVE}, 0")
e(f"s_cbranch_scc1 {larm}")
e(f"s_mul_i32 s{sT0}, s{sR}, {28*16}")
e(f"s_add_u32 s{sT0}, s{sT0}, {WS_OML}")
e("v_lshlrev_b32 v4, 4, v1")
e(f"v_add_u32 v4, s{sT0}, v4")
poll_lanes(28, 8, 4, 4)
lab(larm)
e(f"s_lshl_b32 s{sT0}, s{sWAVE}, 8")
e("v_and_b32 v127, 31, v1")
e("v_lshlrev_b32 v127, 3, v127")
e(f"v_add_u32 v127, s{sT0}, v127")
e(f"v_add_u32 v127, {T_RED}, v127")
e("s_barrier")
stamp(17)
poll([(8, 124, 0)])
stamp(9)
def red_write():
    e("v_mov_b32 v12, v8")
    e("v_mov_b32 v13, v10")
    nop(2)
    e("v_permlane32_swap_b32 v8, v12")
    e("v_permlane32_swap_b32 v10, v13")
    nop(1)
    e("v_add_f32 v8, v8, v12")
    e("v_add_f32 v9, v10, v13")
    e("s_mov_b32 exec_hi, 0")
    e("ds_write_b64 v127, v[8:9]")
    e("s_mov_b32 exec_hi, -1")
def red_read(nw):
    e("v_lshlrev_b32 v4, 10, v2")
    e("v_lshl_add_u32 v4, v3, 4, v4")
    e(f"v_add_u32 v4, {T_RED}, v4")
    for i in range(4):
        e(f"ds_read_b128 v[{8+4*i}:{11+4*i}], v4 offset:{256*i}")
    return
def red_sum(nw):
    e("s_waitcnt lgkmcnt(0)")
    if nw == 14:
        e("v_cmp_eq_u32 vcc, 3, v2")
        nop(2)
        for i in range(16, 24): e(f"v_cndmask_b32 v{i}, v{i}, 0, vcc") if False else e(f"v_cndmask_b32 v{i}, v{i}, v30, vcc")
    e("v_pk_add_f32 v[8:9], v[8:9], v[12:13]")
    e("v_pk_add_f32 v[10:11], v[10:11], v[14:15]")
    e("v_pk_add_f32 v[16:17], v[16:17], v[20:21]")
    e("v_pk_add_f32 v[18:19], v[18:19], v[22:23]")
    e("v_pk_add_f32 v[8:9], v[8:9], v[16:17]")
    e("v_pk_add_f32 v[10:11], v[10:11], v[18:19]")
    for sw in ("v_permlane16_swap_b32", "v_permlane32_swap_b32"):
        for i in range(4): e(f"v_mov_b32 v{12+i}, v{8+i}")
        nop(1)
        for i in range(4): e(f"{sw} v{8+i}, v{12+i}")
        nop(1)
        e("v_pk_add_f32 v[8:9], v[8:9], v[12:13]")
        e("v_pk_add_f32 v[10:11], v[10:11], v[14:15]")
red_write()
e("s_waitcnt lgkmcnt(0)")
e("s_barrier")
stamp(4)
lw12 = uid("W12")
e(f"s_cmp_lg_u32 s{sWAVE}, 12")
e(f"s_cbranch_scc1 {lw12}")
red_read(16)
e("v_lshrrev_b32 v4, 2, v1")
e("v_lshlrev_b32 v4, 11, v4")
e("v_and_b32 v5, 3, v1")
e("v_lshl_add_u32 v4, v5, 4, v4")
e(f"s_lshl_b32 s{sT0}, s{sR}, 6")
e(f"s_add_u32 s{sT0}, s{sT0}, {WS_X2}")
red_sum(16)
e(f"v_mov_b32 v17, s{sTAG}")
e(f"v_mov_b32 v19, s{sTAG}")
rnd2(8, 9, 12); rnd2(10, 11, 13)
e("v_pk_mul_f32 v[8:9], v[48:49], v[8:9]")
e("v_pk_mul_f32 v[10:11], v[50:51], v[10:11]")
rnd2(8, 9, 12); rnd2(10, 11, 13)
e("v_pk_add_f32 v[8:9], v[56:57], v[8:9]")
e("v_pk_add_f32 v[10:11], v[58:59], v[10:11]")
e("v_cvt_pk_bf16_f32 v16, v8, v9")
e("v_cvt_pk_bf16_f32 v18, v10, v11")
e("s_mov_b64 exec, 0xffff")
lsc = uid("SC"); lsd = uid("SD")
e(f"s_cmp_eq_u32 s{sSAME}, 1")
e(f"s_cbranch_scc0 {lsc}")
e(f"buffer_store_dwordx4 v[16:19], v4, {WS}, s{sT0} offen")
e(f"s_branch {lsd}")
lab(lsc)
e(f"buffer_store_dwordx4 v[16:19], v4, {WS}, s{sT0} offen sc1")
lab(lsd)
e("s_mov_b64 exec, -1")
unpack2(16, 60, 61); unpack2(18, 62, 63)
stamp(10)
lab(lw12)
lln = uid("LN")
e(f"s_cmp_lt_u32 s{sWAVE}, 8")
e(f"s_cbranch_scc1 {lln}")
e(f"s_cmp_ge_u32 s{sWAVE}, 12")
e(f"s_cbranch_scc1 {lln}")
e(f"s_sub_u32 s{sT4}, s{sWAVE}, 8")
e(f"s_lshl_b32 s{sT0}, s{sT4}, 11")
e(f"s_add_u32 s{sT0}, s{sT0}, {WS_X2}")
e("v_lshlrev_b32 v4, 4, v1")
e(f"v_add_u32 v4, s{sT0}, v4")
e("v_lshrrev_b32 v6, 3, v1")
e("v_lshlrev_b32 v6, 6, v6")
e("v_and_b32 v7, 3, v1")
e("v_lshl_add_u32 v6, v7, 4, v6")
e("v_bfe_u32 v7, v1, 2, 1")
e("v_lshl_add_u32 v6, v7, 3, v6")
e(f"s_mul_i32 s{sT0}, s{sT4}, 1088")
e(f"s_add_u32 s{sT0}, s{sT0}, {T_H2}")
e(f"v_add_u32 v6, s{sT0}, v6")
poll([(8, 4, 0), (12, 4, 1024)], intra=True)
stamp(11)
unpack2(8, 16, 17); unpack2(10, 18, 19); unpack2(12, 20, 21); unpack2(14, 22, 23)
layernorm8(16, 24)
for i in range(0, 8, 2):
    e(f"v_pk_mul_f32 v[{16+i}:{17+i}], v[{16+i}:{17+i}], v[{56+i}:{57+i}]")
for i in range(0, 8, 2):
    rnd2(16+i, 17+i, 24)
for i in range(0, 8, 2):
    e(f"v_pk_add_f32 v[{16+i}:{17+i}], v[{16+i}:{17+i}], v[{48+i}:{49+i}]")
for i in range(4):
    e(f"v_cvt_pk_bf16_f32 v{8+i}, v{16+2*i}, v{17+2*i}")
e("ds_write_b64 v6, v[8:9]")
e("ds_write_b64 v6, v[10:11] offset:512")
stamp(12)
lab(lln)
e("v_and_b32 v5, 3, v1")
e("v_mul_u32_u24 v6, 1088, v5")
e("v_lshl_add_u32 v6, v2, 4, v6")
e(f"v_add_u32 v6, {T_H2}, v6")
e("v_lshlrev_b32 v4, 6, v3")
e("v_lshl_add_u32 v4, v2, 4, v4")
e(f"s_lshl_b32 s{sT0}, s{sWAVE}, 8")
e(f"s_add_u32 s{sT0}, s{sT0}, {T_GU}")
e(f"v_add_u32 v4, s{sT0}, v4")
e("s_waitcnt lgkmcnt(0)")
e("s_barrier")
stamp(5)
lfin = uid("FIN")
e(f"s_cmp_ge_u32 s{sR}, 28")
e(f"s_cbranch_scc1 {lfin}")
lg = uid("G")
e(f"s_cmp_ge_u32 s{sWAVE}, 8")
e(f"s_cbranch_scc1 {lg}")
def tbread(grp):
    base = [8, 112][grp % 2]
    for k in range(4):
        ks = 4*grp + k
        e(f"ds_read_b128 v[{base+4*k}:{base+4*k+3}], v6 offset:{64*ks}")
def tb_regs(grp, k):
    if grp % 2 == 0: return 8 + 4*k
    return [112, 116, 120, 28][k]
def tbread2(grp):
    for k in range(4):
        ks = 4*grp + k; b_ = tb_regs(grp, k)
        e(f"ds_read_b128 v[{b_}:{b_+3}], v6 offset:{64*ks}")
tbread2(0); tbread2(1)
for grp in range(4):
    e(f"s_waitcnt lgkmcnt({4 if grp < 3 else 0})")
    for k in range(4):
        ks = 4*grp + k; b_ = tb_regs(grp, k)
        cin = "0" if ks == 0 else "v[24:27]"
        e(f"v_mfma_f32_16x16x32_bf16 v[24:27], v[{32+4*ks}:{35+4*ks}], v[{b_}:{b_+3}], {cin}")
    if grp + 2 < 4: tbread2(grp + 2)
nop(8)
stamp(13)
rnd2(24, 25, 28); rnd2(26, 27, 29)
lup2 = uid("UPW")
e(f"s_cmp_ge_u32 s{sWAVE}, 4")
e(f"s_cbranch_scc1 {lup2}")
for i in range(4): e(f"v_mul_f32 v{16+i}, {NLOG2E:#x}, v{24+i}")
for i in range(4): e(f"v_exp_f32 v{16+i}, v{16+i}")
nop(1)
for i in range(4): e(f"v_add_f32 v{16+i}, 1.0, v{16+i}")
for i in range(4): e(f"v_rcp_f32 v{16+i}, v{16+i}")
nop(1)
e("v_pk_mul_f32 v[24:25], v[24:25], v[16:17]")
e("v_pk_mul_f32 v[26:27], v[26:27], v[18:19]")
rnd2(24, 25, 28); rnd2(26, 27, 29)
e(f"s_branch {lg}")
lab(lup2)
e("v_cmp_gt_u32 vcc, 4, v3")
e(f"s_and_saveexec_b64 s[{sM0}:{sM1}], vcc")
e("ds_write_b128 v4, v[24:27]")
e(f"s_mov_b64 exec, s[{sM0}:{sM1}]")
lab(lg)
e("v_and_b32 v5, 3, v1")
e("v_lshlrev_b32 v4, 6, v5")
e("v_lshl_add_u32 v4, v2, 4, v4")
e(f"s_lshl_b32 s{sT0}, s{sWAVE}, 8")
e(f"s_add_u32 s{sT0}, s{sT0}, {T_GU + 1024}")
e(f"v_add_u32 v4, s{sT0}, v4")
e("v_mul_u32_u24 v7, 192, v5")
e("v_lshl_add_u32 v7, v2, 4, v7")
e(f"s_lshr_b32 s{sT0}, s{sWAVE}, 1")
e(f"s_lshl_b32 s{sT0}, s{sT0}, 6")
e(f"s_and_b32 s{sT1}, s{sWAVE}, 1")
e(f"s_lshl_b32 s{sT1}, s{sT1}, 3")
e(f"s_add_u32 s{sT0}, s{sT0}, s{sT1}")
e(f"s_add_u32 s{sT0}, s{sT0}, {T_ACTL}")
e(f"v_add_u32 v7, s{sT0}, v7")
e("v_mul_u32_u24 v6, 192, v5")
e("v_lshl_add_u32 v6, v2, 4, v6")
e(f"v_add_u32 v6, {T_ACTL}, v6")
e("s_waitcnt lgkmcnt(0)")
e("s_barrier")
la = uid("A")
e(f"s_cmp_ge_u32 s{sWAVE}, 4")
e(f"s_cbranch_scc1 {la}")
e("ds_read_b128 v[12:15], v4")
e("v_cmp_gt_u32 vcc, 4, v3")
e("s_waitcnt lgkmcnt(0)")
e("v_pk_mul_f32 v[24:25], v[24:25], v[12:13]")
e("v_pk_mul_f32 v[26:27], v[26:27], v[14:15]")
e("v_cvt_pk_bf16_f32 v8, v24, v25")
e("v_cvt_pk_bf16_f32 v9, v26, v27")
e(f"s_and_saveexec_b64 s[{sM0}:{sM1}], vcc")
e("ds_write_b64 v7, v[8:9]")
e(f"s_mov_b64 exec, s[{sM0}:{sM1}]")
lab(la)
e("v_lshlrev_b32 v4, 7, v5")
e("v_lshl_add_u32 v4, v2, 5, v4")
e("v_bfe_u32 v7, v1, 2, 1")
e("v_lshl_add_u32 v4, v7, 4, v4")
e(f"v_cmp_eq_u32 s[{sM0}:{sM1}], 1, v7")
e("v_bfe_u32 v7, v1, 3, 1")
e(f"v_mul_u32_u24 v16, {28*512}, v7")
e("v_add_u32 v4, v4, v16")
e(f"v_cmp_eq_u32 s[{sM2}:{sM3}], 1, v7")
e(f"s_lshl_b32 s{sT0}, s{sWAVE}, 1")
e(f"s_mul_i32 s{sT0}, s{sT0}, {28*512}")
e(f"s_lshl_b32 s{sT1}, s{sR}, 9")
e(f"s_add_u32 s{sT0}, s{sT0}, s{sT1}")
e(f"s_add_u32 s{sT0}, s{sT0}, {WS_DP}")
e(f"v_mov_b32 v29, s{sTAG}")
e(f"v_mov_b32 v31, s{sTAG}")
e("s_waitcnt lgkmcnt(0)")
e("s_barrier")
stamp(6)
e("ds_read_b128 v[8:11], v6")
e("ds_read_b128 v[12:15], v6 offset:64")
e("s_waitcnt lgkmcnt(0)")
for ks in range(2):
    for j in range(2):
        d = 96 + 8*j + 4*ks
        cin = "0" if ks == 0 else f"v[{16+4*j}:{19+4*j}]"
        e(f"v_mfma_f32_16x16x32_bf16 v[{16+4*j}:{19+4*j}], v[{d}:{d+3}], v[{8+4*ks}:{11+4*ks}], {cin}")
nop(8)
e(f"v_cndmask_b32 v24, v16, v18, s[{sM0}:{sM1}]")
e(f"v_cndmask_b32 v25, v20, v22, s[{sM0}:{sM1}]")
e(f"v_cndmask_b32 v26, v17, v19, s[{sM0}:{sM1}]")
e(f"v_cndmask_b32 v27, v21, v23, s[{sM0}:{sM1}]")
e(f"v_cndmask_b32 v28, v24, v25, s[{sM2}:{sM3}]")
e(f"v_cndmask_b32 v30, v26, v27, s[{sM2}:{sM3}]")
lsc = uid("SC"); lsd = uid("SD")
e(f"s_cmp_eq_u32 s{sSAME}, 1")
e(f"s_cbranch_scc0 {lsc}")
e(f"buffer_store_dwordx4 v[28:31], v4, {WS}, s{sT0} offen")
e(f"s_branch {lsd}")
lab(lsc)
e(f"buffer_store_dwordx4 v[28:31], v4, {WS}, s{sT0} offen sc1")
lab(lsd)
stamp(7)
lab(lfin)
lf2 = uid("F2")
e(f"s_cmp_ge_u32 s{sWAVE}, 14")
e(f"s_cbranch_scc1 {lf2}")
poll([(8, 126, 0)], intra=True)
stamp(14)
red_write()
lab(lf2)
e("s_waitcnt lgkmcnt(0)")
stamp(16)
e("s_barrier")
e(f"s_cmp_lg_u32 s{sWAVE}, 12")
e("s_cbranch_scc1 L_END")
red_read(14)
e("v_mov_b32 v30, 0")
e("v_lshrrev_b32 v4, 2, v1")
e("v_lshlrev_b32 v4, 10, v4")
e("v_and_b32 v5, 3, v1")
e("v_lshl_add_u32 v4, v5, 3, v4")
e(f"s_lshl_b32 s{sT0}, s{sR}, 5")
red_sum(14)
rnd2(8, 9, 12); rnd2(10, 11, 13)
e("v_pk_mul_f32 v[8:9], v[52:53], v[8:9]")
e("v_pk_mul_f32 v[10:11], v[54:55], v[10:11]")
rnd2(8, 9, 12); rnd2(10, 11, 13)
e("v_pk_add_f32 v[8:9], v[60:61], v[8:9]")
e("v_pk_add_f32 v[10:11], v[62:63], v[10:11]")
e("v_cvt_pk_bf16_f32 v16, v8, v9")
e("v_cvt_pk_bf16_f32 v17, v10, v11")
e("s_mov_b64 exec, 0xffff")
e(f"buffer_store_dwordx2 v[16:17], v4, {SD}, s{sT0} offen")
le = uid("EP")
e(f"s_cmp_lg_u32 s{sR}, 0")
e(f"s_cbranch_scc1 {le}")
e("s_mov_b64 exec, 1")
e(f"v_mov_b32 v8, s{sTAG}")
e(f"s_mov_b32 s{sT0}, {WS_EPOCH}")
e(f"buffer_store_dword v8, off, {WS}, s{sT0} sc1")
lab(le)
if "span" in OPT:
    e(f"s_mov_b32 s28, s{P_DBG}")
    e(f"s_and_b32 s29, s{P_DBG+1}, 0xffff")
    e("s_mov_b32 s30, 256")
    e("s_mov_b32 s31, 0x20000")
    e("s_waitcnt vmcnt(0)")
    e(f"s_memrealtime s[{sST0}:{sST1}]")
    e("s_waitcnt lgkmcnt(0)")
    e(f"v_mov_b32 v8, s{sST0}")
    e("s_mov_b64 exec, 1")
    e("buffer_atomic_umax v8, off, s[28:31], 0 offset:4")
stamp(8)
lab("L_END")
if DIAG:
    e("s_mov_b64 exec, -1")
    stamp(31)
    e("v_lshlrev_b32 v4, 2, v1")
    e("v_cmp_gt_u32 vcc, 32, v1")
    e(f"s_and_saveexec_b64 s[{sM0}:{sM1}], vcc")
    e(f"buffer_store_dword v0, v4, {WS}, s{sSTAMP} offen")
lab("L_EXIT")
e("s_endpgm")

L.append('.section .rodata,"a"')
L.append(".p2align 6")
L.append(f".amdhsa_kernel {NAME}_kernel")
L.append("  .amdhsa_next_free_vgpr 128")
L.append("  .amdhsa_next_free_sgpr 102")
L.append("  .amdhsa_accum_offset 128")
L.append("  .amdhsa_group_segment_fixed_size 0")
L.append("  .amdhsa_kernarg_size 112")
L.append("  .amdhsa_user_sgpr_count 2")
L.append("  .amdhsa_user_sgpr_kernarg_segment_ptr 1")
L.append("  .amdhsa_system_sgpr_workgroup_id_x 1")
L.append("  .amdhsa_float_denorm_mode_32 3")
L.append(".end_amdhsa_kernel")

open(sys.argv[1], "w").write("\n".join(x for x in L if x is not None) + "\n")
```

```python
import sys

DIAG = int(sys.argv[2]) if len(sys.argv) > 2 else 0
import os
OPT = set(os.environ.get("OPT", "").split(","))
NAME = "adaLN_cond__sliding_block_cached__swiglu_ffn__decode"

L = []
def e(s): L.append("    " + s)
def lab(s): L.append(s + ":")
def c(s): L.append("    ; " + s)
def nop(n):
    while n > 0:
        k = min(n, 16); e(f"s_nop {k-1}"); n -= k
_uid = [0]
def uid(p):
    _uid[0] += 1
    return f"{p}_{_uid[0]}"

WS_EPOCH = 0
WS_XCC   = 0x100
WS_HS    = 0x200
WS_QS    = 0x400
WS_MS    = 0xC00
WS_H     = 0x1000
WS_X2    = 0x3000
WS_M     = 0x8000
WS_Q     = 0x10000
WS_OML   = 0x20000
WS_OD    = 0x40000
WS_AP    = 0xC0000
WS_DP    = 0x140000
WS_SC    = 0x1B0000
WS_STAMP = 0x200000
WS_SIZE  = 0x300000

S_V    = 0
S_E    = 81920
S_L    = 114688
S_MISC = 147456
S_ACT  = S_MISC
S_QL   = S_ACT + 4352
S_XN   = S_QL + 1280
S_EXC  = S_XN + 256
S_MAXB = S_EXC + 256
S_PB   = S_MAXB + 256
S_CNT  = S_PB + 2560
S_CG   = S_V
S_CML  = S_V + 8704
LDS_BYTES = 163840
C_EARLY, C_ACT, C_EXC, C_XN, C_KL, C_Q, C_MAX, C_P, F_V, C_PVD, C_LATE, C_HD, C_WQ, C_QD = range(14)

T_W    = 0
T_WQ   = 0
T_HST  = 122880
T_HM   = 155648
T_ACT  = T_HM
T_XN   = T_ACT + 4352
T_EXC  = T_XN + 256
T_CNT  = T_EXC + 256
T_SAME = T_CNT + 64
T_HL   = 131072 + 16384
T_MISC = 131072
T_ACC1 = T_MISC
T_ACC2 = T_ACC1 + 256
T_H2   = T_ACC2 + 256
T_GU   = T_H2 + 4352
T_ACTL = T_GU + 2048
T_RED  = T_ACTL + 768

sWAVE, sTAG, sX8, sR, sS = 3, 4, 5, 6, 7
WS, SA, SB, SC, SD, SE, SF = "s[8:11]", "s[12:15]", "s[16:19]", "s[20:23]", "s[24:27]", "s[28:31]", "s[32:35]"
P_X, P_K, P_V, P_WQ, P_WO, P_BX, P_WG, P_WU, P_WD, P_C, P_WM, P_OUT, P_DBG, P_WS = [36 + 2*i for i in range(14)]
sT0, sT1, sT2, sT3, sT4, sT5, sT6, sT7 = 64, 65, 66, 67, 68, 69, 70, 71
sM0, sM1 = 72, 73
sM2, sM3 = 74, 75
sSTAMP = 76
sKV = 77
sNT = 78
sU = 79
sUI = 80
sLATE = 81
sSPIN = 82
sSTRIDE = 83
sCB0, sCB1 = 84, 85
sP, sJ = 86, 87
sSAME = 88
sST0, sST1 = 90, 91
sH = 92; sNQ = 93; sQCU = 95

SPIN_MAX = 200000
LSPIN_MAX = 4000000

def csel2(dst, a, b):
    e(f"s_mov_b32 s{dst}, {b}")
    e(f"s_cselect_b32 s{dst}, {a}, s{dst}")

def srd(dst0, ptr, nbytes):
    e(f"s_mov_b32 s{dst0}, s{ptr}")
    e(f"s_and_b32 s{dst0+1}, s{ptr+1}, 0xffff")
    e(f"s_mov_b32 s{dst0+2}, {nbytes}")
    e(f"s_mov_b32 s{dst0+3}, 0x20000")

def stamp(k, wave=None):
    if not DIAG: return
    l = None
    if wave is not None:
        l = uid("ST"); e(f"s_cmp_lg_u32 s{sWAVE}, {wave}"); e(f"s_cbranch_scc1 {l}")
    e(f"s_memrealtime s[{sST0}:{sST1}]")
    e("s_waitcnt lgkmcnt(0)")
    e(f"v_writelane_b32 v0, s{sST0}, {k}")
    if l: lab(l)

def signal(cnt_base, k, vt0, vt1):
    e(f"v_mov_b32 v{vt0}, {cnt_base + 4*k}")
    e(f"v_mov_b32 v{vt1}, 1")
    e(f"s_mov_b64 s[{sM2}:{sM3}], exec")
    e("s_mov_b64 exec, 1")
    e(f"ds_add_u32 v{vt0}, v{vt1}")
    e(f"s_mov_b64 exec, s[{sM2}:{sM3}]")

def wait_cnt(cnt_base, k, target, vt0, vt1, sleep=1):
    l = uid("W"); d = uid("WD")
    e(f"v_mov_b32 v{vt0}, {cnt_base + 4*k}")
    e(f"s_mov_b32 s{sSPIN}, 0")
    lab(l)
    e(f"ds_read_b32 v{vt1}, v{vt0}")
    e("s_waitcnt lgkmcnt(0)")
    e(f"v_readfirstlane_b32 s{sT7}, v{vt1}")
    e(f"s_cmp_ge_u32 s{sT7}, {target}")
    e(f"s_cbranch_scc1 {d}")
    if sleep: e(f"s_sleep {sleep}")
    e(f"s_add_u32 s{sSPIN}, s{sSPIN}, 1")
    e(f"s_cmp_lt_u32 s{sSPIN}, {LSPIN_MAX}")
    e(f"s_cbranch_scc1 {l}")
    e("s_branch L_END")
    lab(d)

def wait_mask(cnt_base, k, need, vt0, vt1, sleep=0):
    l = uid("W"); d = uid("WD")
    e(f"v_mov_b32 v{vt0}, {cnt_base + 4*k}")
    e(f"s_mov_b32 s{sSPIN}, 0")
    lab(l)
    e(f"ds_read_b32 v{vt1}, v{vt0}")
    e("s_waitcnt lgkmcnt(0)")
    e(f"v_readfirstlane_b32 s{sT7}, v{vt1}")
    e(f"s_and_b32 s{sT7}, s{sT7}, {need}")
    e(f"s_cmp_eq_u32 s{sT7}, {need}")
    e(f"s_cbranch_scc1 {d}")
    if sleep: e(f"s_sleep {sleep}")
    e(f"s_add_u32 s{sSPIN}, s{sSPIN}, 1")
    e(f"s_cmp_lt_u32 s{sSPIN}, {LSPIN_MAX}")
    e(f"s_cbranch_scc1 {l}")
    e("s_branch L_END")
    lab(d)

def signal_or(cnt_base, k, sbit, vt0, vt1):
    e(f"v_mov_b32 v{vt0}, {cnt_base + 4*k}")
    e(f"v_mov_b32 v{vt1}, s{sbit}")
    e(f"s_mov_b64 s[{sM2}:{sM3}], exec")
    e("s_mov_b64 exec, 1")
    e(f"ds_or_b32 v{vt0}, v{vt1}")
    e(f"s_mov_b64 exec, s[{sM2}:{sM3}]")

def poll(loads, sleep=0, intra=False, pre=0):
    d = uid("PD")
    if pre: e(f"s_sleep {pre}")
    e(f"s_mov_b32 s{sSPIN}, 0")
    flavs = ["sc1"]
    lsc = None
    if intra:
        lsc = uid("PS")
        e(f"s_cmp_eq_u32 s{sSAME}, 1")
        e(f"s_cbranch_scc0 {lsc}")
        flavs = ["nt", "sc1"]
    for fi, fl in enumerate(flavs):
        if intra and fi == 1: lab(lsc)
        l = uid("P")
        lab(l)
        for (dst, voff, imm) in loads:
            e(f"buffer_load_dwordx4 v[{dst}:{dst+3}], v{voff}, {WS}, 0 offen offset:{imm} {fl}")
        e("s_waitcnt vmcnt(0)")
        first = True
        for (dst, voff, imm) in loads:
            if first:
                e(f"v_cmp_eq_u32 vcc, s{sTAG}, v{dst+1}")
                first = False
            else:
                e(f"v_cmp_eq_u32 s[{sM0}:{sM1}], s{sTAG}, v{dst+1}")
                e(f"s_and_b64 vcc, vcc, s[{sM0}:{sM1}]")
            e(f"v_cmp_eq_u32 s[{sM0}:{sM1}], s{sTAG}, v{dst+3}")
            e(f"s_and_b64 vcc, vcc, s[{sM0}:{sM1}]")
        e("s_cmp_eq_u64 vcc, exec")
        e(f"s_cbranch_scc1 {d}")
        if sleep: e(f"s_sleep {sleep}")
        e(f"s_add_u32 s{sSPIN}, s{sSPIN}, 1")
        e(f"s_cmp_lt_u32 s{sSPIN}, {SPIN_MAX}")
        e(f"s_cbranch_scc1 {l}")
        e("s_branch L_END")
    lab(d)

def load_tag():
    e(f"s_load_dword s{sTAG}, s[{P_WS}:{P_WS+1}], {WS_EPOCH}")

def fin_tag():
    e("s_waitcnt lgkmcnt(0)")
    e(f"s_add_u32 s{sTAG}, s{sTAG}, 0x9E3779B9")

def sentinel_store(soff_sgpr, vpair):
    e(f"s_mov_b64 s[{sM2}:{sM3}], exec")
    e("s_mov_b64 exec, 1")
    e(f"buffer_store_dwordx2 v[{vpair}:{vpair+1}], off, {WS}, s{soff_sgpr} sc1")
    e(f"s_mov_b64 exec, s[{sM2}:{sM3}]")

def poll_lanes(nlanes, dst, voff, sleep):
    e("s_mov_b64 s[98:99], exec")
    if nlanes < 64:
        m = (1 << nlanes) - 1
        e(f"s_mov_b32 exec_lo, {m & 0xffffffff:#x}")
        e(f"s_mov_b32 exec_hi, {m >> 32:#x}")
    poll([(dst, voff, 0)], sleep=sleep)
    e("s_mov_b64 exec, s[98:99]")

def allreduce2(va, vb, t0, t1, op="add"):
    ins = f"v_{op}_f32"
    nop(2)
    for ctl in ("quad_perm:[1,0,3,2]", "quad_perm:[2,3,0,1]", "row_half_mirror", "row_mirror"):
        e(f"{ins}_dpp v{va}, v{va}, v{va} {ctl} row_mask:0xf bank_mask:0xf")
        e(f"{ins}_dpp v{vb}, v{vb}, v{vb} {ctl} row_mask:0xf bank_mask:0xf")
        nop(1)
    for sw in ("v_permlane16_swap_b32", "v_permlane32_swap_b32"):
        e(f"v_mov_b32 v{t0}, v{va}")
        e(f"v_mov_b32 v{t1}, v{vb}")
        nop(2)
        e(f"{sw} v{va}, v{t0}")
        e(f"{sw} v{vb}, v{t1}")
        nop(1)
        e(f"{ins} v{va}, v{va}, v{t0}")
        e(f"{ins} v{vb}, v{vb}, v{t1}")

def rnd2(a, b, t):
    e(f"v_cvt_pk_bf16_f32 v{t}, v{a}, v{b}")
    e(f"v_lshlrev_b32 v{a}, 16, v{t}")
    e(f"v_and_b32 v{b}, 0xffff0000, v{t}")

def unpack2(src, lo, hi):
    e(f"v_lshlrev_b32 v{lo}, 16, v{src}")
    e(f"v_and_b32 v{hi}, 0xffff0000, v{src}")

LOG2E = 0x3fb8aa3b
NLOG2E = 0xbfb8aa3b
SCALE = 0x3db504f3
EPS = 0x3727c5ac
INV512 = 0x3b000000

def layernorm8(x0, t):
    d = t + 4
    a, b, t0, t1 = t, t+1, t+2, t+3
    e(f"v_readfirstlane_b32 s{sT0}, v{x0}")
    e(f"v_readfirstlane_b32 s{sT1}, v{x0}")
    nop(2)
    for i in range(0, 8, 2):
        e(f"v_pk_add_f32 v[{d+i}:{d+i+1}], v[{x0+i}:{x0+i+1}], s[{sT0}:{sT1}] neg_lo:[0,1] neg_hi:[0,1]")
    e(f"v_pk_add_f32 v[{t0}:{t1}], v[{d}:{d+1}], v[{d+2}:{d+3}]")
    e(f"v_pk_mul_f32 v[{a}:{b}], v[{d}:{d+1}], v[{d}:{d+1}]")
    e(f"v_pk_add_f32 v[{t0}:{t1}], v[{t0}:{t1}], v[{d+4}:{d+5}]")
    e(f"v_pk_fma_f32 v[{a}:{b}], v[{d+2}:{d+3}], v[{d+2}:{d+3}], v[{a}:{b}]")
    e(f"v_pk_add_f32 v[{t0}:{t1}], v[{t0}:{t1}], v[{d+6}:{d+7}]")
    e(f"v_pk_fma_f32 v[{a}:{b}], v[{d+4}:{d+5}], v[{d+4}:{d+5}], v[{a}:{b}]")
    e(f"v_pk_fma_f32 v[{a}:{b}], v[{d+6}:{d+7}], v[{d+6}:{d+7}], v[{a}:{b}]")
    e(f"v_add_f32 v{b}, v{a}, v{b}")
    e(f"v_add_f32 v{a}, v{t0}, v{t1}")
    allreduce2(a, b, t0, t1)
    e(f"v_mul_f32 v{a}, {INV512:#x}, v{a}")
    e(f"v_mul_f32 v{b}, {INV512:#x}, v{b}")
    e(f"v_fma_f32 v{b}, -v{a}, v{a}, v{b}")
    e(f"v_add_f32 v{a}, s{sT0}, v{a}")
    e(f"v_max_f32 v{b}, 0, v{b}")
    rnd2(a, b, t0)
    e(f"v_add_f32 v{b}, {EPS:#x}, v{b}")
    e(f"v_cvt_pk_bf16_f32 v{t0}, v{b}, v{b}")
    e(f"v_lshlrev_b32 v{b}, 16, v{t0}")
    e(f"v_sqrt_f32 v{b}, v{b}")
    nop(1)
    for i in range(0, 8, 2):
        e(f"v_pk_add_f32 v[{x0+i}:{x0+i+1}], v[{x0+i}:{x0+i+1}], v[{a}:{b}] op_sel_hi:[1,0] neg_lo:[0,1] neg_hi:[0,1]")
    e(f"v_cvt_pk_bf16_f32 v{t0}, v{b}, v{b}")
    e(f"v_lshlrev_b32 v{b}, 16, v{t0}")
    e(f"v_rcp_f32 v{t0}, v{b}")
    for i in range(0, 8, 2):
        rnd2(x0+i, x0+i+1, d)
    for i in range(0, 8, 2):
        e(f"v_pk_mul_f32 v[{x0+i}:{x0+i+1}], v[{x0+i}:{x0+i+1}], v[{t0}:{t1}] op_sel_hi:[1,0]")
    for i in range(0, 8, 2):
        rnd2(x0+i, x0+i+1, d)

def silu_inplace(x, t0, t1):
    e(f"v_mul_f32 v{t0}, {NLOG2E:#x}, v{x}")
    e(f"v_exp_f32 v{t0}, v{t0}")
    nop(1)
    e(f"v_add_f32 v{t0}, 1.0, v{t0}")
    e(f"v_rcp_f32 v{t1}, v{t0}")
    nop(1)
    e(f"v_mul_f32 v{x}, v{x}, v{t1}")


SSL = int(os.environ.get("SSL", "2"))
TSL = int(os.environ.get("TSL", "4"))
ENT = "" if "Enont" in OPT else " nt"
QKW = int(os.environ.get("QKW", "0"))
WK = int(os.environ.get("WK", "4"))
KOV = int(os.environ.get("KOV", "2"))
hdr = open("cdna_kernels/" + NAME + ".s.ref").read().split("\n")
for ln in hdr:
    if ln.startswith("; Override") or ln.startswith("; grid=") or ln.startswith("; @launch"): continue
    if ln.startswith(";"): L.append(ln)
    else: break
L.append(f"; @launch grid=(256,1,1) block=(1024,1,1) lds={LDS_BYTES}")
L.append('.amdgcn_target "amdgcn-amd-amdhsa--gfx950"')
L.append(".text")
L.append(f".globl {NAME}_kernel")
L.append(".p2align 8")
L.append(f".type {NAME}_kernel,@function")
lab(f"{NAME}_kernel")

sKVB = 94
sEX0, sEX1 = 96, 97

e("s_cmp_ge_u32 s2, 256")
e("s_cbranch_scc1 L_EXIT")
e("s_load_dwordx16 s[36:51], s[0:1], 0")
e("s_load_dwordx8 s[52:59], s[0:1], 64")
e("s_load_dwordx4 s[60:63], s[0:1], 96")
e("v_lshrrev_b32 v2, 6, v0")
e("v_and_b32 v1, 63, v0")
e(f"v_readfirstlane_b32 s{sWAVE}, v2")
e(f"s_and_b32 s{sX8}, s2, 7")
e(f"s_lshr_b32 s{sR}, s2, 3")
e("v_lshrrev_b32 v2, 4, v1")
e("v_and_b32 v3, 15, v1")
e(f"s_lshl_b32 s{sSTAMP}, s2, 4")
e(f"s_add_u32 s{sSTAMP}, s{sSTAMP}, s{sWAVE}")
e(f"s_lshl_b32 s{sSTAMP}, s{sSTAMP}, 7")
e(f"s_add_u32 s{sSTAMP}, s{sSTAMP}, {WS_STAMP}")
if DIAG: e("v_mov_b32 v0, 0")
stamp(0)
e("s_waitcnt lgkmcnt(0)")
srd(8, P_WS, WS_SIZE)
if "span" in OPT:
    lsp = uid("SP")
    e(f"s_cmp_lg_u32 s{sWAVE}, 0")
    e(f"s_cbranch_scc1 {lsp}")
    e(f"s_mov_b32 s28, s{P_DBG}")
    e(f"s_and_b32 s29, s{P_DBG+1}, 0xffff")
    e("s_mov_b32 s30, 256")
    e("s_mov_b32 s31, 0x20000")
    e(f"s_memrealtime s[{sST0}:{sST1}]")
    e("s_waitcnt lgkmcnt(0)")
    e(f"s_not_b32 s{sST0}, s{sST0}")
    e(f"v_mov_b32 v8, s{sST0}")
    e("s_mov_b64 exec, 1")
    e("buffer_atomic_umax v8, off, s[28:31], 0")
    e("s_mov_b64 exec, -1")
    lab(lsp)
e(f"s_cmp_eq_u32 s{sX8}, 7")
e("s_cbranch_scc1 L_T")

def line_dma_voff(stride):
    e("v_lshrrev_b32 v4, 3, v1")
    e(f"v_mul_u32_u24 v4, {stride}, v4")
    e("v_bfe_u32 v5, v1, 1, 2")
    e("v_bfe_u32 v6, v1, 4, 2")
    e("v_xor_b32 v5, v5, v6")
    e("v_lshl_add_u32 v4, v5, 5, v4")
    e("v_and_b32 v5, 1, v1")
    e("v_lshl_add_u32 v4, v5, 4, v4")
def tr_line_addr(dst, base_sgpr):
    e("v_lshrrev_b32 v4, 2, v3")
    e("v_lshl_add_u32 v4, v2, 2, v4")
    e("v_bfe_u32 v5, v4, 1, 2")
    e(f"s_and_b32 s{sT1}, s{sWAVE}, 3")
    e(f"v_xor_b32 v5, s{sT1}, v5")
    e("v_lshlrev_b32 v4, 7, v4")
    e("v_lshl_add_u32 v4, v5, 5, v4")
    e("v_and_b32 v5, 3, v1")
    e("v_lshl_add_u32 v4, v5, 3, v4")
    e(f"v_add_u32 v{dst}, s{base_sgpr}, v4")
def mfma16(vaddr):
    def regs(grp, k):
        if grp % 2 == 0: return 8 + 4*k
        return [112, 116, 120, 28][k]
    def rd(grp):
        for k in range(4):
            b_ = regs(grp, k)
            e(f"ds_read_b128 v[{b_}:{b_+3}], v{vaddr} offset:{64*(4*grp+k)}")
    rd(0); rd(1)
    for grp in range(4):
        e(f"s_waitcnt lgkmcnt({4 if grp < 3 else 0})")
        for k in range(4):
            ks = 4*grp + k; b_ = regs(grp, k)
            cin = "0" if ks == 0 else "v[24:27]"
            e(f"v_mfma_f32_16x16x32_bf16 v[24:27], v[{32+4*ks}:{35+4*ks}], v[{b_}:{b_+3}], {cin}")
        if grp + 2 < 4: rd(grp + 2)
    nop(8)
def line_unit(actbase, cnt, stride, rowshift):
    lq8 = uid("Q8"); lq4 = uid("Q4")
    e(f"s_cmp_ge_u32 s{sWAVE}, 8")
    e(f"s_cbranch_scc1 {lq8}")
    line_dma_voff(stride)
    e(f"s_lshl_b32 s{sT1}, s{sWAVE}, 13")
    e(f"s_mul_i32 s{sT2}, s{sWAVE}, {64*stride}")
    e(f"s_add_u32 s{sT2}, s{sT2}, s{sCB0}")
    for k in range(8):
        e(f"s_mov_b32 m0, s{sT1}")
        e(f"s_add_u32 s{sT1}, s{sT1}, 1024")
        e(f"buffer_load_dwordx4 v4, {SC}, s{sT2} offen nt lds")
        e(f"s_add_u32 s{sT2}, s{sT2}, {8*stride}")
    load_tag()
    e("s_waitcnt vmcnt(0)")
    signal(cnt, C_WQ, 8, 9)
    fin_tag()
    e(f"s_cmp_ge_u32 s{sWAVE}, 4")
    e(f"s_cbranch_scc1 {lq4}")
    e(f"s_mov_b32 s{sT2}, 0")
    tr_line_addr(7, sT2)
    e("v_and_b32 v5, 3, v1")
    e("v_mul_u32_u24 v6, 1088, v5")
    e("v_lshl_add_u32 v6, v2, 4, v6")
    e(f"v_add_u32 v6, {actbase}, v6")
    wait_cnt(cnt, C_WQ, 8, 8, 9, sleep=1)
    stamp(1)
    for ks in range(16):
        e(f"ds_read_b64_tr_b16 v[{32+4*ks}:{33+4*ks}], v7 offset:{4096*ks}")
        e(f"ds_read_b64_tr_b16 v[{34+4*ks}:{35+4*ks}], v7 offset:{4096*ks+2048}")
    wait_cnt(cnt, C_ACT, 4, 8, 9, sleep=1)
    stamp(2)
    mfma16(6)
    e("v_cvt_pk_bf16_f32 v28, v24, v25")
    e(f"v_mov_b32 v29, s{sTAG}")
    e("v_cvt_pk_bf16_f32 v30, v26, v27")
    e(f"v_mov_b32 v31, s{sTAG}")
    e(f"s_lshl_b32 s{sT2}, s{sWAVE}, 6")
    e(f"s_add_u32 s{sT1}, s{sCB1}, s{sT2}")
    e(f"v_lshlrev_b32 v8, {rowshift}, v3")
    e("v_lshl_add_u32 v8, v2, 4, v8")
    e("v_cmp_gt_u32 vcc, 4, v3")
    e(f"s_and_saveexec_b64 s[{sM0}:{sM1}], vcc")
    e(f"buffer_store_dwordx4 v[28:31], v8, {WS}, s{sT1} offen sc1")
    e(f"s_mov_b64 exec, s[{sM0}:{sM1}]")
    signal(cnt, C_QD, 8, 9)
    stamp(3)
    e(f"s_branch {lq4}")
    lab(lq8)
    load_tag()
    fin_tag()
    lab(lq4)

c("S role")
e(f"s_lshl_b32 s{sS}, s{sX8}, 5")
e(f"s_add_u32 s{sS}, s{sS}, s{sR}")
e(f"s_mul_i32 s{sT0}, s{sR}, 37")
e(f"s_lshr_b32 s{sT0}, s{sT0}, 8")
e(f"s_mul_i32 s{sT0}, s{sT0}, 7")
e(f"s_sub_u32 s{sT0}, s{sR}, s{sT0}")
e(f"s_add_u32 s{sT1}, s{sX8}, 7")
e(f"s_sub_u32 s{sT1}, s{sT1}, s{sT0}")
e(f"s_sub_u32 s{sT2}, s{sT1}, 7")
e(f"s_cmp_ge_u32 s{sT1}, 7")
e(f"s_cselect_b32 s{sT1}, s{sT2}, s{sT1}")
e(f"s_lshl_b32 s{sUI}, s{sR}, 1")
e(f"s_cmp_eq_u32 s{sT1}, 0")
e(f"s_cselect_b32 s{sQCU}, 1, 0")
e(f"s_cmp_eq_u32 s{sT1}, 3")
e(f"s_cselect_b32 s{sQCU}, 1, s{sQCU}")
e(f"s_cmp_eq_u32 s{sT1}, 1")
e(f"s_cselect_b32 s{sU}, 1, 0")
e(f"s_cmp_eq_u32 s{sT1}, 4")
e(f"s_cselect_b32 s{sU}, 1, s{sU}")
e(f"s_cmp_ge_u32 s{sT1}, 3")
e(f"s_addc_u32 s{sUI}, s{sUI}, 0")
e(f"s_lshr_b32 s{sT2}, 0x36, s{sT1}")
e(f"s_and_b32 s{sLATE}, s{sT2}, 1")
e(f"s_sub_u32 s{sNQ}, s{sT1}, 1")
e(f"s_cmp_ge_u32 s{sT1}, 4")
e(f"s_cselect_b32 s{sT2}, 1, 0")
e(f"s_sub_u32 s{sNQ}, s{sNQ}, s{sT2}")
e(f"s_mov_b32 s{sH}, s{sR}")
e(f"s_cmp_eq_u32 s{sQCU}, 1")
e(f"s_cselect_b32 s{sNT}, 7, 10")
e(f"s_add_u32 s{sT2}, s{sT0}, 3")
e(f"s_sub_u32 s{sT3}, s{sT2}, 7")
e(f"s_cmp_ge_u32 s{sT2}, 7")
e(f"s_cselect_b32 s{sT2}, s{sT3}, s{sT2}")
e(f"s_mul_i32 s{sT3}, s{sX8}, 10")
e(f"s_cmp_lt_u32 s{sT0}, s{sX8}")
e(f"s_cselect_b32 s{sT5}, 3, 0")
e(f"s_sub_u32 s{sT3}, s{sT3}, s{sT5}")
e(f"s_cmp_lt_u32 s{sT2}, s{sX8}")
e(f"s_cselect_b32 s{sT5}, 3, 0")
e(f"s_sub_u32 s{sT3}, s{sT3}, s{sT5}")
e(f"s_lshl_b32 s{sT0}, s{sT3}, 13")
e(f"s_lshl_b32 s{sT1}, s{sR}, 21")
e(f"s_add_u32 s{sKVB}, s{sT0}, s{sT1}")
e(f"s_add_u32 s{sKVB}, s{sKVB}, {6144*256}")

e(f"s_cmp_ge_u32 s{sWAVE}, 12")
e("s_cbranch_scc1 L_S_STREAM")
e(f"s_cmp_ge_u32 s{sWAVE}, 10")
e("s_cbranch_scc1 L_S_JOB")

c("tile waves 0..9")
srd(12, P_K, 4*8*8192*128*2)
e(f"s_lshl_b32 s{sT0}, s{sWAVE}, 13")
e(f"s_add_u32 s{sKV}, s{sKVB}, s{sT0}")
e("s_barrier")
lnq = uid("NOQ")
e(f"s_cmp_eq_u32 s{sQCU}, 0")
e(f"s_cbranch_scc1 {lnq}")
srd(20, P_WQ, 512*4096*2)
e(f"s_lshl_b32 s{sCB0}, s{sUI}, 7")
e(f"s_lshl_b32 s{sCB1}, s{sUI}, 8")
e(f"s_add_u32 s{sCB1}, s{sCB1}, {WS_Q}")
line_unit(S_ACT, S_CNT, 8192, 14)
wait_cnt(S_CNT, C_QD, 4, 8, 9, sleep=1)
lab(lnq)
e("v_lshrrev_b32 v4, 2, v3")
e("v_and_b32 v5, 1, v1")
e("v_lshl_add_u32 v4, v4, 1, v5")
e("v_lshlrev_b32 v4, 8, v4")
e("v_bfe_u32 v5, v1, 1, 1")
e("v_lshl_add_u32 v4, v5, 6, v4")
e("v_lshl_add_u32 v4, v2, 4, v4")
e("v_and_b32 v8, 3, v1")
e("v_lshl_add_u32 v13, v2, 2, v8")
e("v_lshlrev_b32 v13, 4, v13")
e(f"v_add_u32 v13, {S_PB}, v13")
e(f"s_cmp_ge_u32 s{sWAVE}, s{sNT}")
e("s_cbranch_scc1 L_S_ATT_IDLE")
if "kafter" in OPT: wait_cnt(S_CNT, C_EARLY, 4, 8, 9, sleep=1)
lk = uid("K")
e(f"s_cmp_lt_u32 s{sWAVE}, {WK}")
e(f"s_cbranch_scc1 {lk}")
e(f"s_sub_u32 s{sT5}, s{sWAVE}, {WK-1}")
wait_cnt(S_CNT, C_KL, f"s{sT5}", 8, 9, sleep=1)
lab(lk)
e(f"s_add_u32 s{sT0}, s{sKV}, 4096")
for kg in range(4):
    so = sKV if kg < 2 else sT0
    for s_ in range(2):
        d = 32 + 8*kg + 4*s_
        e(f"buffer_load_dwordx4 v[{d}:{d+3}], v4, {SA}, s{so} offen offset:{(kg & 1)*2048 + 128*s_} nt")
load_tag()
stamp(11)
e("v_and_b32 v8, 3, v1")
e("v_mul_u32_u24 v10, 320, v8")
e("v_lshl_add_u32 v10, v2, 4, v10")
e("v_bfe_u32 v11, v1, 2, 1")
e("v_lshl_add_u32 v10, v11, 6, v10")
e(f"v_add_u32 v10, {S_QL}, v10")
e("v_lshlrev_b32 v11, 6, v8")
e(f"v_add_u32 v11, {S_MAXB}, v11")
e(f"s_lshl_b32 s{sT0}, s{sWAVE}, 2")
e(f"v_add_u32 v12, s{sT0}, v11")
e(f"s_lshl_b32 s{sT0}, s{sWAVE}, 8")
e(f"v_add_u32 v14, s{sT0}, v13")
e("s_waitcnt vmcnt(0)")
signal(S_CNT, C_KL, 8, 9)
fin_tag()
stamp(12)
wait_cnt(S_CNT, C_Q, 2, 8, 9, sleep=1)
stamp(14)
for s_ in range(2):
    e(f"ds_read_b128 v[{64+4*s_}:{67+4*s_}], v10 offset:{128*s_}")
e("s_waitcnt lgkmcnt(0)")
for s_ in range(2):
    for kg in range(4):
        A = 96 + 4*kg
        cin = "0" if s_ == 0 else f"v[{A}:{A+3}]"
        e(f"v_mfma_f32_16x16x32_bf16 v[{A}:{A+3}], v[{32+8*kg+4*s_}:{35+8*kg+4*s_}], v[{64+4*s_}:{67+4*s_}], {cin}")
e(f"s_mov_b32 s{sT2}, {SCALE:#x}")
e(f"s_mov_b32 s{sT3}, {SCALE:#x}")
e(f"s_mov_b32 s{sT4}, {LOG2E:#x}")
nop(5)
for kg in range(4):
    for e_ in range(2):
        A = 96 + 4*kg
        e(f"v_add_f32_dpp v{80+2*kg+e_}, v{A+2+e_}, v{A+e_} row_shl:4 row_mask:0xf bank_mask:0xf")
for i in range(0, 8, 2):
    rnd2(80+i, 81+i, 16)
for i in range(0, 8, 2):
    e(f"v_pk_mul_f32 v[{80+i}:{81+i}], v[{80+i}:{81+i}], s[{sT2}:{sT3}]")
for i in range(0, 8, 2):
    rnd2(80+i, 81+i, 16)
e("v_max3_f32 v16, v80, v81, v82")
e("v_max3_f32 v16, v16, v83, v84")
e("v_max3_f32 v16, v16, v85, v86")
e("v_max_f32 v16, v16, v87")
for sw in ("v_permlane16_swap_b32", "v_permlane32_swap_b32"):
    e("v_mov_b32 v17, v16")
    nop(2)
    e(f"{sw} v16, v17")
    nop(1)
    e("v_max_f32 v16, v16, v17")
e("v_cmp_gt_u32 vcc, 4, v1")
e(f"s_and_saveexec_b64 s[{sM0}:{sM1}], vcc")
e("ds_write_b32 v12, v16")
e(f"s_mov_b64 exec, s[{sM0}:{sM1}]")
signal(S_CNT, C_MAX, 8, 9)
wait_cnt(S_CNT, C_MAX, f"s{sNT}", 8, 9, sleep=0)
for i in range(3):
    e(f"ds_read_b128 v[{16+4*i}:{19+4*i}], v11 offset:{16*i}")
e("s_waitcnt lgkmcnt(0)")
e("v_max3_f32 v16, v16, v17, v18")
e("v_max3_f32 v19, v19, v20, v21")
e("v_max3_f32 v22, v22, v23, v24")
e("v_max3_f32 v25, v25, v26, v27")
e("v_max3_f32 v16, v16, v19, v22")
e("v_max_f32 v16, v16, v25")
e(f"v_mul_f32 v15, s{sT4}, v16")
for i in range(8):
    e(f"v_fma_f32 v{80+i}, v{80+i}, s{sT4}, -v15")
for i in range(8):
    e(f"v_exp_f32 v{80+i}, v{80+i}")
nop(1)
for i in range(4):
    e(f"v_cvt_pk_bf16_f32 v{16+i}, v{80+2*i}, v{81+2*i}")
e("v_cmp_gt_u32 vcc, 4, v3")
e(f"s_and_saveexec_b64 s[{sM0}:{sM1}], vcc")
e("ds_write_b128 v14, v[16:19]")
e(f"s_mov_b64 exec, s[{sM0}:{sM1}]")
signal(S_CNT, C_P, 8, 9)
stamp(15)
lab("L_S_PVSTART")
e(f"s_cmp_ge_u32 s{sWAVE}, 8")
e("s_cbranch_scc1 L_S_LATE")
e("v_bfe_u32 v9, v1, 3, 1")
e("v_bfe_u32 v10, v1, 2, 1")
e("v_lshl_add_u32 v10, v2, 1, v10")
e("v_lshl_add_u32 v11, v9, 3, v10")
e("v_lshlrev_b32 v9, 2, v9")
e("v_xor_b32 v10, v10, v9")
e(f"v_xor_b32 v10, s{sWAVE}, v10")
e("v_lshlrev_b32 v10, 5, v10")
e("v_lshl_add_u32 v10, v11, 8, v10")
e("v_and_b32 v11, 3, v1")
e("v_lshl_add_u32 v10, v11, 3, v10")
e("v_add_u32 v11, 0x10000, v10")
for i in range(4): e(f"v_mov_b32 v{28+i}, 0x3f803f80")
e(f"s_and_b32 s{sT0}, s{sR}, 7")
e(f"s_lshr_b32 s{sT1}, s{sR}, 3")
e(f"s_mul_i32 s{sT1}, s{sT1}, 7")
e(f"s_add_u32 s{sT1}, s{sT1}, s{sX8}")
e(f"s_mul_i32 s{sT0}, s{sT0}, {4*28}")
e(f"s_add_u32 s{sT0}, s{sT0}, s{sT1}")
e("v_mul_u32_u24 v12, 28, v3")
e(f"v_add_u32 v12, s{sT0}, v12")
e("v_lshlrev_b32 v14, 4, v12")
e("v_lshlrev_b32 v12, 9, v12")
e("v_lshl_add_u32 v12, v2, 4, v12")
e(f"s_lshl_b32 s{sT0}, s{sWAVE}, 6")
e(f"v_add_u32 v12, s{sT0}, v12")
e(f"v_mov_b32 v17, s{sTAG}")
e(f"v_mov_b32 v19, s{sTAG}")
e(f"v_mov_b32 v21, s{sTAG}")
e(f"v_mov_b32 v23, s{sTAG}")
wait_cnt(S_CNT, C_P, f"s{sNT}", 8, 9, sleep=0)
def vbase(a): return (10, a*8192) if a < 8 else (11, (a-8)*8192)
for NTv in (7, 10):
    lnext = uid("NT")
    if NTv == 7:
        e(f"s_cmp_eq_u32 s{sNT}, 7")
        e(f"s_cbranch_scc0 {lnext}")
    for a in range(NTv):
        e(f"ds_read_b128 v[{80+4*a}:{83+4*a}], v13 offset:{256*a}")
    for a in range(NTv):
        e(f"s_waitcnt lgkmcnt({NTv-1-a})")
        cin = "0" if a == 0 else "v[124:127]"
        e(f"v_mfma_f32_16x16x32_bf16 v[124:127], v[28:31], v[{80+4*a}:{83+4*a}], {cin}")
    wait_mask(S_CNT, F_V, (1 << (NTv-1)) - 1, 8, 9, sleep=1)
    stamp(16)
    n = NTv - 1; WIN = 7
    def vread(a):
        vb, off = vbase(a)
        e(f"ds_read_b64_tr_b16 v[{32+4*a}:{33+4*a}], v{vb} offset:{off}")
        e(f"ds_read_b64_tr_b16 v[{34+4*a}:{35+4*a}], v{vb} offset:{off+4096}")
    for a in range(min(WIN, n)): vread(a)
    for a in range(n):
        rem = 2*(min(a + WIN, n) - (a + 1))
        e(f"s_waitcnt lgkmcnt({rem})")
        cin = "0" if a == 0 else "v[120:123]"
        e(f"v_mfma_f32_16x16x32_bf16 v[120:123], v[{32+4*a}:{35+4*a}], v[{80+4*a}:{83+4*a}], {cin}")
        if a + WIN < n: vread(a + WIN)
    e("v_rcp_f32 v24, v124")
    wait_mask(S_CNT, F_V, (1 << NTv) - 1, 8, 9, sleep=0)
    stamp(13)
    a = NTv - 1
    vb, off = vbase(a)
    e(f"ds_read_b64_tr_b16 v[{32+4*a}:{33+4*a}], v{vb} offset:{off}")
    e(f"ds_read_b64_tr_b16 v[{34+4*a}:{35+4*a}], v{vb} offset:{off+4096}")
    e("s_waitcnt lgkmcnt(0)")
    e(f"v_mfma_f32_16x16x32_bf16 v[120:123], v[{32+4*a}:{35+4*a}], v[{80+4*a}:{83+4*a}], v[120:123]")
    if NTv == 7:
        e("s_branch L_S_PVEND")
        lab(lnext)
lab("L_S_PVEND")
signal(S_CNT, C_PVD, 8, 9)
e("v_mov_b32 v20, v15")
e("v_mov_b32 v22, v124")
nop(2)
e("v_pk_mul_f32 v[120:121], v[120:121], v[24:25] op_sel_hi:[1,0]")
e("v_pk_mul_f32 v[122:123], v[122:123], v[24:25] op_sel_hi:[1,0]")
e("v_cvt_pk_bf16_f32 v16, v120, v121")
e("v_cvt_pk_bf16_f32 v18, v122, v123")
e(f"s_mov_b32 s{sT2}, {WS_OD}")
e("v_cmp_gt_u32 vcc, 4, v3")
e(f"s_and_saveexec_b64 s[{sM0}:{sM1}], vcc")
e(f"buffer_store_dwordx4 v[16:19], v12, {WS}, s{sT2} offen sc1")
lml = uid("ML")
e(f"s_cmp_lg_u32 s{sWAVE}, 0")
e(f"s_cbranch_scc1 {lml}")
e("s_mov_b64 exec, 15")
e(f"s_mov_b32 s{sT2}, {WS_OML}")
e(f"buffer_store_dwordx4 v[20:23], v14, {WS}, s{sT2} offen sc1")
lab(lml)
e(f"s_mov_b64 exec, s[{sM0}:{sM1}]")
stamp(7)
e("s_branch L_S_LATE")
lab("L_S_ATT_IDLE")
load_tag()
fin_tag()
e("s_branch L_S_PVSTART")

lab("L_S_JOB")
c("job waves 10,11")
e("s_setprio 3")
def zero_counters(cnt, maxb=None):
    e("v_lshlrev_b32 v4, 2, v1")
    if maxb is not None:
        e(f"v_add_u32 v5, {maxb}, v4")
        e("v_mov_b32 v6, 0xff800000")
        e("ds_write_b32 v5, v6")
    e(f"v_add_u32 v4, {cnt}, v4")
    e("v_mov_b32 v5, 0")
    e("v_cmp_gt_u32 vcc, 16, v1")
    e(f"s_and_saveexec_b64 s[{sM0}:{sM1}], vcc")
    e("ds_write_b32 v4, v5")
    e(f"s_mov_b64 exec, s[{sM0}:{sM1}]")
    e("s_waitcnt lgkmcnt(0)")
zero_counters(S_CNT, S_MAXB)
e("s_barrier")
load_tag()
e(f"s_sub_u32 s{sT4}, s{sWAVE}, 10")
stamp(20)
def gemv_job(ebase, actbase, cnt, act_target):
    e("v_lshrrev_b32 v4, 2, v3")
    e("v_lshl_add_u32 v4, v2, 2, v4")
    e("v_lshlrev_b32 v4, 6, v4")
    e("v_and_b32 v5, 1, v2")
    e(f"v_xor_b32 v5, s{sT4}, v5")
    e("v_lshl_add_u32 v4, v5, 5, v4")
    e("v_and_b32 v5, 3, v1")
    e("v_lshl_add_u32 v4, v5, 3, v4")
    e(f"v_add_u32 v4, {ebase}, v4")
    e("v_mul_u32_u24 v6, 1088, v5")
    e("v_lshl_add_u32 v6, v2, 4, v6")
    e(f"v_add_u32 v6, {actbase}, v6")
    wait_cnt(cnt, C_EARLY, 4, 8, 9, sleep=1)
    stamp(1)
    for ks in range(16):
        e(f"ds_read_b64_tr_b16 v[{32+4*ks}:{33+4*ks}], v4 offset:{2048*ks}")
        e(f"ds_read_b64_tr_b16 v[{34+4*ks}:{35+4*ks}], v4 offset:{2048*ks+1024}")
    wait_cnt(cnt, C_ACT, act_target, 8, 9, sleep=1)
    stamp(2)
    BB = [96, 8]
    def bread(grp):
        base = BB[grp % 2]
        for k in range(4):
            ks = 4*grp + k
            e(f"ds_read_b128 v[{base+4*k}:{base+4*k+3}], v6 offset:{64*ks}")
    bread(0); bread(1)
    for grp in range(4):
        e(f"s_waitcnt lgkmcnt({4 if grp < 3 else 0})")
        base = BB[grp % 2]
        for k in range(4):
            ks = 4*grp + k
            cin = "0" if ks == 0 else "v[24:27]"
            e(f"v_mfma_f32_16x16x32_bf16 v[24:27], v[{32+4*ks}:{35+4*ks}], v[{base+4*k}:{base+4*k+3}], {cin}")
        if grp + 2 < 4: bread(grp + 2)
    nop(8)
fin_tag()
e(f"s_cmp_eq_u32 s{sU}, 0")
e("s_cbranch_scc1 L_S_JOB_Q")
gemv_job(S_E, S_ACT, S_CNT, 4)
e("v_cvt_pk_bf16_f32 v28, v24, v25")
e(f"v_mov_b32 v29, s{sTAG}")
e("v_cvt_pk_bf16_f32 v30, v26, v27")
e(f"v_mov_b32 v31, s{sTAG}")
e(f"s_lshl_b32 s{sT1}, s{sUI}, 7")
e(f"s_add_u32 s{sT1}, s{sT1}, {WS_M}")
e(f"s_lshl_b32 s{sT2}, s{sT4}, 6")
e(f"s_add_u32 s{sT1}, s{sT1}, s{sT2}")
e("v_lshlrev_b32 v8, 13, v3")
e("v_lshl_add_u32 v8, v2, 4, v8")
e("v_cmp_gt_u32 vcc, 4, v3")
e(f"s_and_saveexec_b64 s[{sM0}:{sM1}], vcc")
e(f"buffer_store_dwordx4 v[28:31], v8, {WS}, s{sT1} offen sc1")
e(f"s_mov_b64 exec, s[{sM0}:{sM1}]")
stamp(3)
lab("L_S_JOB_Q")
ljq = uid("JQ")
e(f"s_cmp_eq_u32 s{sQCU}, 0")
e(f"s_cbranch_scc1 {ljq}")
wait_cnt(S_CNT, C_QD, 4, 8, 9, sleep=2)
lab(ljq)
e(f"s_lshr_b32 s{sT0}, s{sR}, 3")
e(f"s_lshl_b32 s{sT0}, s{sT0}, 14")
e(f"s_and_b32 s{sT1}, s{sR}, 7")
e(f"s_lshl_b32 s{sT1}, s{sT1}, 11")
e(f"s_add_u32 s{sT0}, s{sT0}, s{sT1}")
e(f"s_lshl_b32 s{sT1}, s{sT4}, 10")
e(f"s_add_u32 s{sT0}, s{sT0}, s{sT1}")
e(f"s_add_u32 s{sT0}, s{sT0}, {WS_Q}")
e("v_lshlrev_b32 v5, 4, v1")
e(f"v_add_u32 v5, s{sT0}, v5")
e("v_lshrrev_b32 v6, 5, v1")
e(f"s_lshl_b32 s{sT0}, s{sT4}, 1")
e(f"v_add_u32 v6, s{sT0}, v6")
e("v_mul_u32_u24 v6, 320, v6")
e("v_and_b32 v7, 31, v1")
e("v_lshl_add_u32 v6, v7, 3, v6")
e(f"v_add_u32 v6, {S_QL}, v6")
poll([(8, 5, 0)], sleep=SSL)
e("v_mov_b32 v9, v10")
e("ds_write_b64 v6, v[8:9]")
signal(S_CNT, C_Q, 24, 25)
stamp(5)
e("s_branch L_S_LATE")

def early_dma(ebase, scb0, scb1, stride):
    e("v_lshrrev_b32 v5, 2, v1")
    e(f"v_mul_u32_u24 v5, {stride}, v5")
    e("v_bfe_u32 v6, v1, 1, 1")
    e("v_bfe_u32 v7, v1, 4, 1")
    e("v_xor_b32 v6, v6, v7")
    e(f"v_mov_b32 v7, s{scb0}")
    e(f"v_mov_b32 v16, s{scb1}")
    e("v_cmp_eq_u32 vcc, 1, v6")
    nop(2)
    e("v_cndmask_b32 v7, v7, v16, vcc")
    e("v_add_u32 v5, v5, v7")
    e("v_and_b32 v6, 1, v1")
    e("v_lshl_add_u32 v5, v6, 4, v5")
    e(f"s_lshl_b32 s{sT1}, s{sT4}, 3")
    e(f"s_mul_i32 s{sT2}, s{sT1}, {16*stride}")
    e(f"s_lshl_b32 s{sT1}, s{sT1}, 10")
    e(f"s_add_u32 s{sT1}, s{sT1}, {ebase}")
    for k in range(8):
        e(f"s_mov_b32 m0, s{sT1}")
        e(f"s_add_u32 s{sT1}, s{sT1}, 1024")
        e(f"buffer_load_dwordx4 v5, {SC}, s{sT2} offen nt lds")
        e(f"s_add_u32 s{sT2}, s{sT2}, {16*stride}")
def silu_to_act(actbase, cnt):
    for i in range(4):
        unpack2(8+i, 16+2*i, 17+2*i)
    for i in range(8):
        silu_inplace(16+i, 24, 25)
    for i in range(4):
        e(f"v_cvt_pk_bf16_f32 v{8+i}, v{16+2*i}, v{17+2*i}")
    e("v_lshrrev_b32 v6, 2, v1")
    e("v_lshlrev_b32 v6, 6, v6")
    e("v_and_b32 v7, 1, v1")
    e("v_lshl_add_u32 v6, v7, 5, v6")
    e("v_bfe_u32 v7, v1, 1, 1")
    e("v_lshl_add_u32 v6, v7, 3, v6")
    e(f"s_mul_i32 s{sT0}, s{sT4}, 1088")
    e(f"s_add_u32 s{sT0}, s{sT0}, {actbase}")
    e(f"v_add_u32 v6, s{sT0}, v6")
    e("ds_write_b64 v6, v[8:9]")
    e("ds_write_b64 v6, v[10:11] offset:16")
    signal(cnt, C_ACT, 24, 25)

lab("L_S_STREAM")
c("streamer waves 12..15")
e("s_setprio 2")
e(f"s_sub_u32 s{sT4}, s{sWAVE}, 12")
lnoe = uid("NOE")
e(f"s_cmp_eq_u32 s{sU}, 0")
e(f"s_cbranch_scc1 {lnoe}")
srd(28, P_C, 4096)
srd(20, P_WM, 512*3072*2)
e(f"s_lshl_b32 s{sT0}, s{sT4}, 10")
e("v_lshlrev_b32 v4, 4, v1")
e(f"buffer_load_dwordx4 v[8:11], v4, {SE}, s{sT0} offen")
e(f"s_lshl_b32 s{sCB0}, s{sUI}, 6")
e(f"s_add_u32 s{sCB0}, s{sCB0}, 2048")
e(f"s_add_u32 s{sCB1}, s{sCB0}, 32")
early_dma(S_E, sCB0, sCB1, 6144)
lab(lnoe)
e("s_barrier")
load_tag()
srd(16, P_V, 4*8*8192*128*2)
srd(24, P_WO, 4096*512*2)
lafter = uid("LAF")
e(f"s_cmp_eq_u32 s{sU}, 0")
e(f"s_cbranch_scc1 {lafter}")
e("s_waitcnt vmcnt(8)")
silu_to_act(S_ACT, S_CNT)
lab(lafter)
lnq2 = uid("NOQ")
e(f"s_cmp_eq_u32 s{sQCU}, 0")
e(f"s_cbranch_scc1 {lnq2}")
srd(32, P_X, 4096)
e(f"s_lshl_b32 s{sT0}, s{sT4}, 10")
e("v_lshlrev_b32 v4, 3, v1")
e(f"buffer_load_dwordx2 v[8:9], v4, {SF}, s{sT0} offen")
e(f"buffer_load_dwordx2 v[10:11], v4, {SF}, s{sT0} offen offset:512")
e(f"s_lshl_b32 s{sT0}, s{sT4}, 12")
e(f"s_add_u32 s{sT0}, s{sT0}, {WS_SC}")
e("v_lshlrev_b32 v5, 4, v1")
e(f"v_add_u32 v5, s{sT0}, v5")
e("v_lshrrev_b32 v6, 3, v1")
e("v_lshlrev_b32 v6, 6, v6")
e("v_and_b32 v7, 3, v1")
e("v_lshl_add_u32 v6, v7, 4, v6")
e("v_bfe_u32 v7, v1, 2, 1")
e("v_lshl_add_u32 v6, v7, 3, v6")
e(f"s_mul_i32 s{sT0}, s{sT4}, 1088")
e(f"s_add_u32 s{sT0}, s{sT0}, {S_ACT}")
e(f"v_add_u32 v6, s{sT0}, v6")
e("s_waitcnt vmcnt(0) lgkmcnt(0)")
e(f"s_add_u32 s{sTAG}, s{sTAG}, 0x9E3779B9")
for i in range(4): unpack2(8+i, 16+2*i, 17+2*i)
layernorm8(16, 24)
wait_cnt(S_CNT, C_WQ, 8, 36, 37, sleep=1)
poll([(40, 5, 0), (44, 5, 1024), (48, 5, 2048), (52, 5, 3072)], sleep=1)
for (src, dst) in ((48, 56), (50, 58), (52, 60), (54, 62)): unpack2(src, dst, dst+1)
for i in range(0, 8, 2): e(f"v_pk_add_f32 v[{56+i}:{57+i}], v[{56+i}:{57+i}], 1.0 op_sel_hi:[1,0]")
for i in range(0, 8, 2): rnd2(56+i, 57+i, 24)
for i in range(0, 8, 2): e(f"v_pk_mul_f32 v[{16+i}:{17+i}], v[{16+i}:{17+i}], v[{56+i}:{57+i}]")
for i in range(0, 8, 2): rnd2(16+i, 17+i, 24)
for (src, dst) in ((40, 56), (42, 58), (44, 60), (46, 62)): unpack2(src, dst, dst+1)
for i in range(0, 8, 2): e(f"v_pk_add_f32 v[{16+i}:{17+i}], v[{16+i}:{17+i}], v[{56+i}:{57+i}]")
for i in range(4): e(f"v_cvt_pk_bf16_f32 v{8+i}, v{16+2*i}, v{17+2*i}")
e("ds_write_b64 v6, v[8:9]")
e("ds_write_b64 v6, v[10:11] offset:512")
signal(S_CNT, C_ACT, 24, 25)
stamp(6)
wait_cnt(S_CNT, C_QD, 4, 24, 25, sleep=1)
e(f"s_sub_u32 s{sTAG}, s{sTAG}, 0x9E3779B9")
lab(lnq2)
e("v_lshrrev_b32 v5, 1, v3")
e("v_xor_b32 v5, v5, v2")
e("v_lshlrev_b32 v5, 5, v5")
e("v_and_b32 v6, 1, v1")
e("v_lshl_add_u32 v5, v6, 4, v5")
e("v_lshl_add_u32 v7, v2, 10, v5")
e("v_lshl_add_u32 v5, v2, 8, v5")
e("v_xor_b32 v6, 128, v5")
e("v_xor_b32 v10, 128, v7")
e("s_waitcnt vmcnt(0)")
signal(S_CNT, C_EARLY, 24, 25)
fin_tag()
stamp(4)
e(f"s_sub_u32 s{sT5}, s{sNT}, {KOV}")
e(f"s_cmp_eq_u32 s{sQCU}, 1")
e(f"s_cselect_b32 s{sT5}, {QKW}, s{sT5}")
wait_cnt(S_CNT, C_KL, f"s{sT5}", 24, 25, sleep=1)
stamp(18)
def v_issue(sa):
    e(f"s_lshl_b32 s{sT1}, s{sa}, 13")
    e(f"s_add_u32 s{sT0}, s{sKVB}, s{sT1}")
    e(f"s_mov_b32 m0, s{sT1}")
    e(f"s_add_u32 s{sT1}, s{sT1}, 4096")
    for i in range(4):
        e(f"buffer_load_dwordx4 v{5 + ((i ^ (i >> 1)) & 1)}, {SB}, s{sT0} offen offset:{1024*i} nt lds")
    e(f"s_mov_b32 m0, s{sT1}")
    e(f"s_add_u32 s{sT0}, s{sT0}, 4096")
    for i in range(4):
        e(f"buffer_load_dwordx4 v{5 + ((i ^ (i >> 1)) & 1)}, {SB}, s{sT0} offen offset:{1024*i} nt lds")
if "vdeep" in OPT:
    ldone = uid("VD"); l2 = uid("V2"); l1 = uid("V1")
    e(f"s_mov_b32 s{sT5}, s{sT4}"); v_issue(sT5)
    e(f"s_add_u32 s{sT5}, s{sT4}, 4")
    e(f"s_cmp_lt_u32 s{sT5}, s{sNT}")
    e(f"s_cbranch_scc0 {l1}")
    v_issue(sT5)
    e(f"s_add_u32 s{sT5}, s{sT4}, 8")
    e(f"s_cmp_lt_u32 s{sT5}, s{sNT}")
    e(f"s_cbranch_scc0 {l2}")
    v_issue(sT5)
    e(f"s_lshl_b32 s{sT2}, 1, s{sT4}")
    for w in (16, 8, 0):
        e(f"s_waitcnt vmcnt({w})")
        signal_or(S_CNT, F_V, sT2, 24, 25)
        if w: e(f"s_lshl_b32 s{sT2}, s{sT2}, 4")
    e(f"s_branch {ldone}")
    lab(l2)
    e(f"s_lshl_b32 s{sT2}, 1, s{sT4}")
    for w in (8, 0):
        e(f"s_waitcnt vmcnt({w})")
        signal_or(S_CNT, F_V, sT2, 24, 25)
        if w: e(f"s_lshl_b32 s{sT2}, s{sT2}, 4")
    e(f"s_branch {ldone}")
    lab(l1)
    e(f"s_lshl_b32 s{sT2}, 1, s{sT4}")
    e("s_waitcnt vmcnt(0)")
    signal_or(S_CNT, F_V, sT2, 24, 25)
    lab(ldone)
else:
    e(f"s_mov_b32 s{sT5}, s{sT4}")
    lv = uid("V"); lvd = uid("VD")
    lab(lv)
    v_issue(sT5)
    e(f"s_lshl_b32 s{sT2}, 1, s{sT5}")
    e("s_waitcnt vmcnt(0)")
    signal_or(S_CNT, F_V, sT2, 24, 25)
    e(f"s_add_u32 s{sT5}, s{sT5}, 4")
    e(f"s_cmp_lt_u32 s{sT5}, s{sNT}")
    e(f"s_cbranch_scc1 {lv}")
stamp(19)
e(f"s_cmp_eq_u32 s{sLATE}, 0")
e("s_cbranch_scc1 L_END")
e(f"s_lshl_b32 s{sT0}, s{sT4}, 3")
e(f"s_lshl_b32 s{sT1}, s{sT0}, 10")
e(f"s_add_u32 s{sT1}, s{sT1}, {S_L}")
e(f"s_lshl_b32 s{sT2}, s{sT0}, 12")
e(f"s_lshl_b32 s{sT3}, s{sH}, 17")
e(f"s_add_u32 s{sT2}, s{sT2}, s{sT3}")
e(f"s_lshl_b32 s{sT3}, s{sNQ}, 8")
e(f"s_add_u32 s{sT2}, s{sT2}, s{sT3}")
for k in range(8):
    e(f"s_mov_b32 m0, s{sT1}")
    e(f"s_add_u32 s{sT1}, s{sT1}, 1024")
    e(f"buffer_load_dwordx4 v{[7, 10][(k >> 1) & 1]}, {SD}, s{sT2} offen nt lds")
    e(f"s_add_u32 s{sT2}, s{sT2}, 4096")
e("s_waitcnt vmcnt(0)")
signal(S_CNT, C_LATE, 24, 25)

lab("L_S_LATE")
e(f"s_cmp_eq_u32 s{sLATE}, 0")
e("s_cbranch_scc1 L_END")
e("s_setprio 0")
e("v_mov_b32 v58, 0")
e(f"s_lshl_b32 s{sT6}, s{sWAVE}, 6"); e(f"v_add_u32 v4, s{sT6}, v1")
e(f"s_mul_i32 s{sT0}, s{sH}, {28*512}")
e(f"s_add_u32 s{sT0}, s{sT0}, {WS_OD}")
e(f"s_mul_i32 s{sT1}, s{sH}, {28*16}")
e(f"s_add_u32 s{sT1}, s{sT1}, {WS_OML - 896*16}")
e(f"s_cmp_lt_u32 s{sWAVE}, 14")
e(f"s_cselect_b32 s{sT0}, s{sT0}, s{sT1}")
e("v_lshlrev_b32 v5, 4, v4")
e(f"v_add_u32 v5, s{sT0}, v5")
e("v_lshrrev_b32 v6, 5, v4")
e(f"s_cmp_lt_u32 s{sWAVE}, 14")
lw = uid("LW"); lw2 = uid("LW")
e(f"s_cbranch_scc1 {lw}")
e("v_mov_b32 v6, v1")
lab(lw)
e("v_mul_u32_u24 v7, 37, v6")
e("v_lshrrev_b32 v7, 8, v7")
e("v_add_u32 v6, v6, v7")
e(f"s_cmp_lt_u32 s{sWAVE}, 14")
e(f"s_cbranch_scc1 {lw2}")
e("v_lshlrev_b32 v6, 3, v6")
e(f"v_add_u32 v6, {S_CML}, v6")
lw3 = uid("LW")
e(f"s_branch {lw3}")
lab(lw2)
e("v_mul_u32_u24 v6, 272, v6")
e("v_and_b32 v7, 31, v4")
e("v_lshl_add_u32 v6, v7, 3, v6")
e(f"v_add_u32 v6, {S_CG}, v6")
lab(lw3)
lnw = uid("LNW")
e(f"s_cmp_ge_u32 s{sWAVE}, 8")
e(f"s_cbranch_scc1 {lnw}")
wait_cnt(S_CNT, C_LATE, 4, 8, 9, sleep=1)
e("v_lshrrev_b32 v12, 2, v3")
e("v_lshl_add_u32 v13, v2, 3, v12")
e("v_and_b32 v14, 1, v2")
e("v_lshl_add_u32 v12, v14, 2, v12")
e(f"v_xor_b32 v12, s{sWAVE}, v12")
e("v_lshlrev_b32 v12, 5, v12")
e("v_lshl_add_u32 v12, v13, 8, v12")
e("v_and_b32 v14, 3, v1")
e("v_lshl_add_u32 v12, v14, 3, v12")
e(f"v_add_u32 v12, {S_L}, v12")
for ks in range(4):
    e(f"ds_read_b64_tr_b16 v[{32+4*ks}:{33+4*ks}], v12 offset:{8192*ks}")
    e(f"ds_read_b64_tr_b16 v[{34+4*ks}:{35+4*ks}], v12 offset:{8192*ks+1024}")
e("v_mul_u32_u24 v56, 272, v3")
e("v_lshl_add_u32 v56, v2, 4, v56")
e(f"v_add_u32 v56, {S_CG}, v56")
e("v_lshlrev_b32 v57, 3, v3")
e(f"v_add_u32 v57, {S_CML}, v57")
e(f"s_lshl_b32 s{sT0}, s{sNQ}, 3")
e(f"s_add_u32 s{sT0}, s{sT0}, s{sWAVE}")
e(f"s_lshl_b32 s{sT0}, s{sT0}, 5")
e(f"s_add_u32 s{sT0}, s{sT0}, s{sH}")
e(f"s_lshl_b32 s{sT0}, s{sT0}, 9")
e(f"s_add_u32 s{sT0}, s{sT0}, {WS_AP}")
e("v_bfe_u32 v58, v1, 3, 1")
e("v_lshlrev_b32 v58, 7, v58")
e("v_lshl_add_u32 v58, v2, 5, v58")
e("v_bfe_u32 v59, v1, 1, 1")
e("v_lshl_add_u32 v58, v59, 8, v58")
e("v_and_b32 v59, 1, v1")
e("v_lshl_add_u32 v58, v59, 4, v58")
e(f"v_add_u32 v58, s{sT0}, v58")
e(f"v_mov_b32 v61, s{sTAG}")
e(f"v_mov_b32 v63, s{sTAG}")
lab(lnw)
lz = uid("LZ"); lzd = uid("LZD")
e(f"s_cmp_eq_u32 s{sWAVE}, 15")
e(f"s_cbranch_scc1 {lz}")
e("s_mov_b64 s[98:99], exec")
e(f"s_cmp_lg_u32 s{sWAVE}, 14")
lfull = uid("LF")
e(f"s_cbranch_scc1 {lfull}")
e("s_mov_b32 exec_lo, 0x0fffffff")
e("s_mov_b32 exec_hi, 0")
lab(lfull)
poll([(8, 5, 0)])
stamp(17)
e("v_mov_b32 v9, v10")
wait_cnt(S_CNT, C_PVD, 8, 12, 13, sleep=0)
e("ds_write_b64 v6, v[8:9]")
e("s_mov_b64 exec, s[98:99]")
e(f"s_branch {lzd}")
lab(lz)
wait_cnt(S_CNT, C_PVD, 8, 12, 13, sleep=1)
e("v_lshlrev_b32 v6, 3, v2")
e("v_add_u32 v6, 7, v6")
e("v_mul_u32_u24 v7, 272, v6")
e("v_lshl_add_u32 v7, v3, 4, v7")
e(f"v_add_u32 v7, {S_CG}, v7")
for i in range(4): e(f"v_mov_b32 v{12+i}, 0")
e("ds_write_b128 v7, v[12:15]")
e("v_lshlrev_b32 v6, 3, v6")
e(f"v_add_u32 v6, {S_CML}, v6")
e("v_mov_b32 v12, 0xff800000")
e("ds_write_b64 v6, v[12:13]")
lab(lzd)
e("s_waitcnt lgkmcnt(0)")
e("s_barrier")
e(f"s_cmp_ge_u32 s{sWAVE}, 8")
e("s_cbranch_scc1 L_END")
stamp(9)
e("ds_read_b64 v[8:9], v57")
e("ds_read_b64 v[10:11], v57 offset:128")
for ct in range(2):
    for ks in range(4):
        d = 64 + 16*ct + 4*ks
        e(f"ds_read_b128 v[{d}:{d+3}], v56 offset:{16*272*ct + 64*ks}")
e("s_waitcnt lgkmcnt(8)")
e("v_mov_b32 v12, v8")
e("v_mov_b32 v13, v10")
nop(1)
for ctl in ("quad_perm:[1,0,3,2]", "quad_perm:[2,3,0,1]", "row_half_mirror"):
    e(f"v_max_f32_dpp v12, v12, v12 {ctl} row_mask:0xf bank_mask:0xf")
    e(f"v_max_f32_dpp v13, v13, v13 {ctl} row_mask:0xf bank_mask:0xf")
    nop(1)
e("v_sub_f32 v8, v8, v12")
e("v_sub_f32 v10, v10, v13")
e("v_exp_f32 v8, v8")
e("v_exp_f32 v10, v10")
e("s_waitcnt lgkmcnt(0)")
for ks in range(4):
    for ct in range(2):
        d = 64 + 16*ct + 4*ks
        cin = "0" if ks == 0 else f"v[{16+4*ct}:{19+4*ct}]"
        e(f"v_mfma_f32_16x16x32_bf16 v[{16+4*ct}:{19+4*ct}], v[{32+4*ks}:{35+4*ks}], v[{d}:{d+3}], {cin}")
e("v_mul_f32 v8, v8, v9")
e("v_mul_f32 v10, v10, v11")
e("v_mov_b32 v12, v8")
e("v_mov_b32 v13, v10")
nop(1)
for ctl in ("quad_perm:[1,0,3,2]", "quad_perm:[2,3,0,1]", "row_half_mirror"):
    e(f"v_add_f32_dpp v12, v12, v12 {ctl} row_mask:0xf bank_mask:0xf")
    e(f"v_add_f32_dpp v13, v13, v13 {ctl} row_mask:0xf bank_mask:0xf")
    nop(1)
e("v_rcp_f32 v12, v12")
e("v_rcp_f32 v13, v13")
e("v_and_b32 v14, 1, v1")
e(f"v_cmp_eq_u32 s[{sM0}:{sM1}], 1, v14")
e("v_bfe_u32 v14, v1, 1, 1")
e("v_cmp_eq_u32 vcc, 1, v14")
e("v_mul_f32 v8, v8, v12")
e("v_mul_f32 v10, v10, v13")
nop(1)
e("v_pk_mul_f32 v[16:17], v[16:17], v[8:9] op_sel_hi:[1,0]")
e("v_pk_mul_f32 v[18:19], v[18:19], v[8:9] op_sel_hi:[1,0]")
e("v_pk_mul_f32 v[20:21], v[20:21], v[10:11] op_sel_hi:[1,0]")
e("v_pk_mul_f32 v[22:23], v[22:23], v[10:11] op_sel_hi:[1,0]")
nop(1)
for ctl in ("quad_perm:[1,0,3,2]", "quad_perm:[2,3,0,1]", "row_half_mirror"):
    for i in range(8):
        e(f"v_add_f32_dpp v{16+i}, v{16+i}, v{16+i} {ctl} row_mask:0xf bank_mask:0xf")
e(f"v_cndmask_b32 v24, v16, v18, s[{sM0}:{sM1}]")
e(f"v_cndmask_b32 v25, v20, v22, s[{sM0}:{sM1}]")
e(f"v_cndmask_b32 v26, v17, v19, s[{sM0}:{sM1}]")
e(f"v_cndmask_b32 v27, v21, v23, s[{sM0}:{sM1}]")
e("v_cndmask_b32 v60, v24, v25, vcc")
e("v_cndmask_b32 v62, v26, v27, vcc")
e("v_and_b32 v14, 4, v1")
e("v_cmp_eq_u32 vcc, 0, v14")
e(f"s_and_saveexec_b64 s[{sM0}:{sM1}], vcc")
e(f"buffer_store_dwordx4 v[60:63], v58, {WS}, 0 offen sc1")
e(f"s_mov_b64 exec, s[{sM0}:{sM1}]")
stamp(10)
e("s_branch L_END")

lab("L_T")
c("T role: t = sR")
srd(20, P_WM, 512*3072*2)
srd(28, P_C, 4096)
srd(32, P_X, 4096)
srd(24, P_OUT, 4096)
e(f"s_cmp_ge_u32 s{sWAVE}, 12")
e("s_cbranch_scc1 L_T_STREAM")
lt1 = uid("T1")
e(f"s_cmp_lg_u32 s{sWAVE}, 10")
e(f"s_cbranch_scc1 {lt1}")
zero_counters(T_CNT)
lab(lt1)
e("s_barrier")
lt2 = uid("T2")
e(f"s_cmp_ge_u32 s{sR}, 16")
e(f"s_cbranch_scc1 {lt2}")
e(f"s_lshl_b32 s{sCB0}, s{sR}, 7")
e(f"s_lshl_b32 s{sCB1}, s{sR}, 8")
e(f"s_add_u32 s{sCB1}, s{sCB1}, {WS_SC}")
line_unit(T_ACT, T_CNT, 6144, 12)
e("s_branch L_T_AUX")
lab(lt2)
load_tag()
fin_tag()
lab("L_T_AUX")
C_UP, C_UPR, C_G, C_SC = C_KL, C_Q, C_MAX, C_P
C_GO, C_ARM, C_RED, C_XS = F_V, C_PVD, C_LATE, C_HD
e(f"s_cmp_lt_u32 s{sWAVE}, 8")
e("s_cbranch_scc1 L_T_W")
lw9 = uid("W9"); lw8 = uid("W8")
e(f"s_cmp_lg_u32 s{sWAVE}, 9")
e(f"s_cbranch_scc1 {lw9}")
e("v_lshlrev_b32 v5, 8, v1")
e(f"v_add_u32 v5, {WS_SC}, v5")
poll_lanes(16, 8, 5, 4)
signal(T_CNT, C_SC, 10, 11)
e("s_branch L_T_MODS")
lab(lw9)
e(f"s_cmp_lg_u32 s{sWAVE}, 8")
e("s_cbranch_scc1 L_T_MODS")
e(f"s_getreg_b32 s{sT0}, hwreg(HW_REG_XCC_ID)")
e(f"s_and_b32 s{sT0}, s{sT0}, 0xf")
e(f"v_mov_b32 v8, s{sT0}")
e(f"v_mov_b32 v9, s{sTAG}")
e(f"s_lshl_b32 s{sT1}, s{sR}, 3")
e(f"s_add_u32 s{sT1}, s{sT1}, {WS_XCC}")
sentinel_store(sT1, 8)
e("s_branch L_T_MODS")
lab("L_T_W")
e(f"s_cmp_ge_u32 s{sR}, 28")
e("s_cbranch_scc1 L_T_WEND")
srd(12, P_WG, 512*1792*2)
srd(16, P_WU, 512*1792*2)
srd(20, P_WD, 1792*512*2)
def gu_dma(srdname, ldsbase):
    line_dma_voff(3584)
    e(f"s_lshl_b32 s{sT0}, s{sWAVE}, 3")
    e(f"s_mul_i32 s{sT2}, s{sT0}, {8*3584}")
    e(f"s_lshl_b32 s{sT3}, s{sR}, 7")
    e(f"s_add_u32 s{sT2}, s{sT2}, s{sT3}")
    e(f"s_lshl_b32 s{sT1}, s{sWAVE}, 13")
    e(f"s_add_u32 s{sT1}, s{sT1}, {ldsbase}")
    for k in range(8):
        e(f"s_mov_b32 m0, s{sT1}")
        e(f"s_add_u32 s{sT1}, s{sT1}, 1024")
        e(f"buffer_load_dwordx4 v4, {srdname}, s{sT2} offen nt lds")
        e(f"s_add_u32 s{sT2}, s{sT2}, {8*3584}")
def gu_frags(ldsbase):
    e(f"s_mov_b32 s{sT0}, {ldsbase}")
    tr_line_addr(4, sT0)
    for ks in range(16):
        e(f"ds_read_b64_tr_b16 v[{32+4*ks}:{33+4*ks}], v4 offset:{4096*ks}")
        e(f"ds_read_b64_tr_b16 v[{34+4*ks}:{35+4*ks}], v4 offset:{4096*ks+2048}")
    e("s_waitcnt lgkmcnt(0)")
wait_cnt(T_CNT, C_GO if "tearly" not in OPT else C_SC, 1, 8, 9, sleep=2)
stamp(19)
gu_dma(SB, 65536)
lq = uid("NQD")
e(f"s_cmp_ge_u32 s{sR}, 16")
e(f"s_cbranch_scc1 {lq}")
wait_cnt(T_CNT, C_QD, 4, 8, 9, sleep=1)
lab(lq)
gu_dma(SA, 0)
e("s_waitcnt vmcnt(8)")
signal(T_CNT, C_UP, 8, 9)
lnu = uid("NU")
e(f"s_cmp_lt_u32 s{sWAVE}, 4")
e(f"s_cbranch_scc1 {lnu}")
wait_cnt(T_CNT, C_UP, 8, 8, 9, sleep=1)
gu_frags(65536)
signal(T_CNT, C_UPR, 8, 9)
lab(lnu)
wait_cnt(T_CNT, C_UPR, 4, 8, 9, sleep=1)
stamp(15)
e("v_lshlrev_b32 v4, 4, v1")
e(f"s_lshl_b32 s{sT0}, s{sWAVE}, 13")
e(f"s_add_u32 s{sT1}, s{sT0}, 65536")
e(f"s_lshl_b32 s{sT2}, s{sR}, 16")
e(f"s_add_u32 s{sT2}, s{sT2}, s{sT0}")
for k in range(8):
    e(f"v_xor_b32 v5, {32*k}, v4")
    e(f"s_mov_b32 m0, s{sT1}")
    e(f"s_add_u32 s{sT1}, s{sT1}, 1024")
    e(f"buffer_load_dwordx4 v5, {SC}, s{sT2} offen nt lds")
    e(f"s_add_u32 s{sT2}, s{sT2}, 1024")
e("s_waitcnt vmcnt(8)")
signal(T_CNT, C_G, 8, 9)
lng = uid("NG")
e(f"s_cmp_ge_u32 s{sWAVE}, 4")
e(f"s_cbranch_scc1 {lng}")
wait_cnt(T_CNT, C_G, 8, 8, 9, sleep=1)
gu_frags(0)
lab(lng)
e("s_waitcnt vmcnt(0)")
stamp(1)
lab("L_T_WEND")
def tail_addr():
    e(f"s_lshl_b32 s{sT6}, s{sWAVE}, 10")
    e("v_lshlrev_b32 v126, 4, v1")
    e(f"v_add_u32 v126, s{sT6}, v126")
    e(f"s_mul_i32 s{sT0}, s{sR}, {28*512}")
    e(f"s_add_u32 s{sT0}, s{sT0}, {WS_DP}")
    e(f"v_add_u32 v126, s{sT0}, v126")
    e(f"s_lshl_b32 s{sT0}, s{sWAVE}, 8")
    e("v_and_b32 v127, 31, v1")
    e("v_lshlrev_b32 v127, 3, v127")
    e(f"v_add_u32 v127, s{sT0}, v127")
    e(f"v_add_u32 v127, {T_RED}, v127")
tail_addr()
e("s_branch L_T_H2")
lab("L_T_STREAM")
e(f"s_sub_u32 s{sT4}, s{sWAVE}, 12")
e(f"s_lshl_b32 s{sT0}, s{sT4}, 10")
e("v_lshlrev_b32 v4, 4, v1")
e(f"buffer_load_dwordx4 v[8:11], v4, {SE}, s{sT0} offen")
e("s_barrier")
load_tag()
e("s_waitcnt vmcnt(0)")
silu_to_act(T_ACT, T_CNT)
fin_tag()
lab("L_T_MODS")
lb2 = uid("B2")
C_SC = C_P
wait_cnt(T_CNT, C_SC, 1, 4, 5, sleep=4)
lm1 = uid("LM"); lm2 = uid("LM")
e(f"s_cmp_ge_u32 s{sWAVE}, 12")
e(f"s_cbranch_scc1 {lm1}")
e(f"s_sub_u32 s{sT0}, s{sWAVE}, 8")
e(f"s_lshl_b32 s{sT0}, s{sT0}, 13")
e(f"s_add_u32 s{sT0}, s{sT0}, {WS_M}")
e("v_lshlrev_b32 v4, 4, v1")
e(f"v_add_u32 v4, s{sT0}, v4")
e("v_add_u32 v5, 2048, v4")
e("v_add_u32 v6, 4096, v4")
poll([(32, 5, 0), (36, 5, 1024), (40, 6, 0), (44, 6, 1024)], sleep=2)
for (src, dst) in ((32, 48), (36, 52)):
    unpack2(src, dst, dst+1); unpack2(src+2, dst+2, dst+3)
for (src, dst) in ((40, 56), (44, 60)):
    unpack2(src, dst, dst+1); unpack2(src+2, dst+2, dst+3)
for i in range(8):
    e(f"v_add_f32 v{56+i}, 1.0, v{56+i}")
for i in range(0, 8, 2):
    rnd2(56+i, 57+i, 4)
e(f"s_branch {lb2}")
lab(lm1)
e(f"s_cmp_lg_u32 s{sWAVE}, 12")
e(f"s_cbranch_scc1 {lm2}")
e("v_lshrrev_b32 v4, 2, v1")
e("v_lshlrev_b32 v4, 13, v4")
e("v_and_b32 v5, 3, v1")
e("v_lshl_add_u32 v4, v5, 4, v4")
e(f"s_lshl_b32 s{sT0}, s{sR}, 6")
e(f"s_add_u32 s{sT0}, s{sT0}, {WS_M}")
e(f"v_add_u32 v4, s{sT0}, v4")
e("v_add_u32 v6, 6144, v4")
e("v_lshrrev_b32 v7, 2, v1")
e("v_lshlrev_b32 v7, 10, v7")
e("v_lshl_add_u32 v7, v5, 3, v7")
e(f"s_lshl_b32 s{sT0}, s{sR}, 5")
e("s_mov_b64 s[98:99], exec")
e("s_mov_b64 exec, 0xffff")
e(f"buffer_load_dwordx2 v[44:45], v7, {SF}, s{sT0} offen")
poll([(32, 4, 0), (36, 6, 0)], sleep=2)
e("s_mov_b64 exec, s[98:99]")
unpack2(32, 48, 49); unpack2(34, 50, 51)
unpack2(36, 52, 53); unpack2(38, 54, 55)
unpack2(44, 56, 57); unpack2(45, 58, 59)
e(f"s_branch {lb2}")
lab(lm2)
e(f"s_cmp_lg_u32 s{sWAVE}, 13")
e(f"s_cbranch_scc1 {lb2}")
e("v_lshlrev_b32 v5, 4, v1")
e(f"v_add_u32 v5, {WS_XCC}, v5")
e("s_mov_b64 s[98:99], exec")
e("s_mov_b64 exec, 0xffff")
poll([(8, 5, 0)], sleep=4)
e(f"s_getreg_b32 s{sT0}, hwreg(HW_REG_XCC_ID)")
e(f"s_and_b32 s{sT0}, s{sT0}, 0xf")
e(f"v_cmp_eq_u32 vcc, s{sT0}, v8")
e(f"v_cmp_eq_u32 s[{sM0}:{sM1}], s{sT0}, v10")
e(f"s_and_b64 vcc, vcc, s[{sM0}:{sM1}]")
e("s_cmp_eq_u64 vcc, exec")
e(f"s_cselect_b32 s{sSAME}, 1, 0")
if "forcesc1" in OPT: e(f"s_mov_b32 s{sSAME}, 0")
e("s_mov_b64 exec, s[98:99]")
e(f"v_mov_b32 v8, {T_SAME}")
e(f"v_mov_b32 v9, s{sSAME}")
e("ds_write_b32 v8, v9")
signal(T_CNT, C_XS, 10, 11)
lab(lb2)
def read_same():
    e(f"v_mov_b32 v8, {T_SAME}")
    e("ds_read_b32 v9, v8")
    e("s_waitcnt lgkmcnt(0)")
    e(f"v_readfirstlane_b32 s{sSAME}, v9")
wait_cnt(T_CNT, C_XS, 1, 8, 9, sleep=2)
read_same()
tail_addr()
e(f"s_sub_u32 s{sT4}, s{sWAVE}, 8")
e(f"s_lshl_b32 s{sT6}, s{sT4}, 10")
e("v_lshlrev_b32 v124, 4, v1")
e(f"v_add_u32 v124, s{sT6}, v124")
e(f"s_lshl_b32 s{sT0}, s{sR}, 14")
e(f"s_add_u32 s{sT0}, s{sT0}, {WS_AP}")
e(f"v_add_u32 v124, s{sT0}, v124")
e("v_add_u32 v123, 0x2000, v124")
e("v_subrev_u32 v125, 2048, v127")
e(f"s_lshl_b32 s{sT6}, s{sT4}, 11")
e("v_lshlrev_b32 v4, 4, v1")
e(f"v_add_u32 v4, s{sT6}, v4")
e(f"s_mul_i32 s{sT0}, s{sR}, {28*512}")
e(f"s_add_u32 s{sT0}, s{sT0}, {WS_DP}")
e(f"buffer_load_dwordx4 v[8:11], v4, {WS}, s{sT0} offen nt")
e(f"buffer_load_dwordx4 v[12:15], v4, {WS}, s{sT0} offen offset:1024 nt")
e(f"s_lshl_b32 s{sT0}, s{sR}, 8")
e(f"s_add_u32 s{sT0}, s{sT0}, {WS_X2}")
e("v_lshlrev_b32 v4, 4, v1")
e("s_mov_b64 exec, 0xffff")
e(f"buffer_load_dwordx4 v[16:19], v4, {WS}, s{sT0} offen nt")
e("s_mov_b64 exec, -1")
e("s_waitcnt vmcnt(0)")
stamp(3)
larm = uid("ARM"); lal = uid("AL"); lgo = uid("GO"); lad = uid("AD")
e(f"s_cmp_lg_u32 s{sWAVE}, 8")
e(f"s_cbranch_scc1 {larm}")
e(f"s_mul_i32 s{sT0}, s{sR}, {28*16}")
e(f"s_add_u32 s{sT0}, s{sT0}, {WS_OML}")
e("v_lshlrev_b32 v4, 4, v1")
e(f"v_add_u32 v4, s{sT0}, v4")
e(f"s_mov_b32 s{sT5}, 0")
e(f"s_mov_b32 s{sSPIN}, 0")
e("s_mov_b32 exec_lo, 0x0fffffff")
e("s_mov_b32 exec_hi, 0")
lab(lal)
e(f"buffer_load_dwordx4 v[8:11], v4, {WS}, 0 offen sc1")
e("s_waitcnt vmcnt(0)")
e(f"v_cmp_eq_u32 vcc, s{sTAG}, v9")
e(f"v_cmp_eq_u32 s[{sM0}:{sM1}], s{sTAG}, v11")
e(f"s_and_b64 vcc, vcc, s[{sM0}:{sM1}]")
e("s_cmp_eq_u64 vcc, 0")
e(f"s_cbranch_scc1 {lgo}")
e(f"s_cmp_lg_u32 s{sT5}, 0")
e(f"s_cbranch_scc1 {lgo}")
e(f"s_mov_b32 s{sT5}, 1")
e("s_mov_b64 s[96:97], vcc")
signal(T_CNT, C_GO, 12, 13)
e("s_mov_b64 vcc, s[96:97]")
lab(lgo)
e("s_cmp_eq_u64 vcc, exec")
e(f"s_cbranch_scc1 {lad}")
e("s_sleep 3")
e(f"s_add_u32 s{sSPIN}, s{sSPIN}, 1")
e(f"s_cmp_lt_u32 s{sSPIN}, {SPIN_MAX}")
e(f"s_cbranch_scc1 {lal}")
e("s_branch L_END")
lab(lad)
e("s_mov_b64 exec, -1")
signal(T_CNT, C_ARM, 12, 13)
lab(larm)
wait_cnt(T_CNT, C_ARM, 1, 8, 9, sleep=1)
stamp(17)
poll([(8, 124, 0), (12, 123, 0)])
stamp(9)
def red_write(addr):
    e("v_mov_b32 v12, v8")
    e("v_mov_b32 v13, v10")
    nop(2)
    e("v_permlane32_swap_b32 v8, v12")
    e("v_permlane32_swap_b32 v10, v13")
    nop(1)
    e("v_add_f32 v8, v8, v12")
    e("v_add_f32 v9, v10, v13")
    e("s_mov_b32 exec_hi, 0")
    e(f"ds_write_b64 v{addr}, v[8:9]")
    e("s_mov_b32 exec_hi, -1")
def red_read(nw):
    per = 4 if nw > 8 else 2
    e(f"v_lshlrev_b32 v4, {10 if per == 4 else 9}, v2")
    e("v_lshl_add_u32 v4, v3, 4, v4")
    e(f"v_add_u32 v4, {T_RED}, v4")
    for i in range(per):
        e(f"ds_read_b128 v[{8+4*i}:{11+4*i}], v4 offset:{256*i}")
def red_sum(nw):
    e("s_waitcnt lgkmcnt(0)")
    if nw == 14:
        e("v_cmp_eq_u32 vcc, 3, v2")
        nop(2)
        for i in range(16, 24): e(f"v_cndmask_b32 v{i}, v{i}, v30, vcc")
    e("v_pk_add_f32 v[8:9], v[8:9], v[12:13]")
    e("v_pk_add_f32 v[10:11], v[10:11], v[14:15]")
    if nw > 8:
        e("v_pk_add_f32 v[16:17], v[16:17], v[20:21]")
        e("v_pk_add_f32 v[18:19], v[18:19], v[22:23]")
        e("v_pk_add_f32 v[8:9], v[8:9], v[16:17]")
        e("v_pk_add_f32 v[10:11], v[10:11], v[18:19]")
    for sw in ("v_permlane16_swap_b32", "v_permlane32_swap_b32"):
        for i in range(4): e(f"v_mov_b32 v{12+i}, v{8+i}")
        nop(1)
        for i in range(4): e(f"{sw} v{8+i}, v{12+i}")
        nop(1)
        e("v_pk_add_f32 v[8:9], v[8:9], v[12:13]")
        e("v_pk_add_f32 v[10:11], v[10:11], v[14:15]")
e("v_add_f32 v8, v8, v12")
e("v_add_f32 v10, v10, v14")
red_write(125)
signal(T_CNT, C_RED, 12, 13)
stamp(4)
lw12 = uid("W12")
e(f"s_cmp_lg_u32 s{sWAVE}, 12")
e(f"s_cbranch_scc1 {lw12}")
wait_cnt(T_CNT, C_RED, 8, 8, 9, sleep=0)
red_read(8)
e("v_lshrrev_b32 v4, 2, v1")
e("v_lshlrev_b32 v4, 11, v4")
e("v_and_b32 v5, 3, v1")
e("v_lshl_add_u32 v4, v5, 4, v4")
e(f"s_lshl_b32 s{sT0}, s{sR}, 6")
e(f"s_add_u32 s{sT0}, s{sT0}, {WS_X2}")
red_sum(8)
e(f"v_mov_b32 v17, s{sTAG}")
e(f"v_mov_b32 v19, s{sTAG}")
rnd2(8, 9, 12); rnd2(10, 11, 13)
e("v_pk_mul_f32 v[8:9], v[48:49], v[8:9]")
e("v_pk_mul_f32 v[10:11], v[50:51], v[10:11]")
rnd2(8, 9, 12); rnd2(10, 11, 13)
e("v_pk_add_f32 v[8:9], v[56:57], v[8:9]")
e("v_pk_add_f32 v[10:11], v[58:59], v[10:11]")
e("v_cvt_pk_bf16_f32 v16, v8, v9")
e("v_cvt_pk_bf16_f32 v18, v10, v11")
e("s_mov_b64 exec, 0xffff")
lsc = uid("SC"); lsd = uid("SD")
e(f"s_cmp_eq_u32 s{sSAME}, 1")
e(f"s_cbranch_scc0 {lsc}")
e(f"buffer_store_dwordx4 v[16:19], v4, {WS}, s{sT0} offen")
e(f"s_branch {lsd}")
lab(lsc)
e(f"buffer_store_dwordx4 v[16:19], v4, {WS}, s{sT0} offen sc1")
lab(lsd)
e("s_mov_b64 exec, -1")
unpack2(16, 60, 61); unpack2(18, 62, 63)
stamp(10)
lab(lw12)
lln = uid("LN")
e(f"s_cmp_lt_u32 s{sWAVE}, 8")
e(f"s_cbranch_scc1 {lln}")
e(f"s_cmp_ge_u32 s{sWAVE}, 12")
e(f"s_cbranch_scc1 {lln}")
e(f"s_sub_u32 s{sT4}, s{sWAVE}, 8")
e(f"s_lshl_b32 s{sT0}, s{sT4}, 11")
e(f"s_add_u32 s{sT0}, s{sT0}, {WS_X2}")
e("v_lshlrev_b32 v4, 4, v1")
e(f"v_add_u32 v4, s{sT0}, v4")
e("v_lshrrev_b32 v6, 3, v1")
e("v_lshlrev_b32 v6, 6, v6")
e("v_and_b32 v7, 3, v1")
e("v_lshl_add_u32 v6, v7, 4, v6")
e("v_bfe_u32 v7, v1, 2, 1")
e("v_lshl_add_u32 v6, v7, 3, v6")
e(f"s_mul_i32 s{sT0}, s{sT4}, 1088")
e(f"s_add_u32 s{sT0}, s{sT0}, {T_H2}")
e(f"v_add_u32 v6, s{sT0}, v6")
poll([(8, 4, 0), (12, 4, 1024)], intra=True)
stamp(11)
unpack2(8, 16, 17); unpack2(10, 18, 19); unpack2(12, 20, 21); unpack2(14, 22, 23)
layernorm8(16, 24)
for i in range(0, 8, 2):
    e(f"v_pk_mul_f32 v[{16+i}:{17+i}], v[{16+i}:{17+i}], v[{56+i}:{57+i}]")
for i in range(0, 8, 2):
    rnd2(16+i, 17+i, 24)
for i in range(0, 8, 2):
    e(f"v_pk_add_f32 v[{16+i}:{17+i}], v[{16+i}:{17+i}], v[{48+i}:{49+i}]")
for i in range(4):
    e(f"v_cvt_pk_bf16_f32 v{8+i}, v{16+2*i}, v{17+2*i}")
e("ds_write_b64 v6, v[8:9]")
e("ds_write_b64 v6, v[10:11] offset:512")
stamp(12)
lab(lln)
lab("L_T_H2")
e("v_and_b32 v5, 3, v1")
e("v_mul_u32_u24 v6, 1088, v5")
e("v_lshl_add_u32 v6, v2, 4, v6")
e(f"v_add_u32 v6, {T_H2}, v6")
e("v_lshlrev_b32 v4, 6, v3")
e("v_lshl_add_u32 v4, v2, 4, v4")
e(f"s_lshl_b32 s{sT0}, s{sWAVE}, 8")
e(f"s_add_u32 s{sT0}, s{sT0}, {T_GU}")
e(f"v_add_u32 v4, s{sT0}, v4")
e("s_waitcnt lgkmcnt(0)")
e("s_barrier")
stamp(5)
e(f"v_mov_b32 v8, {T_SAME}")
e("ds_read_b32 v9, v8")
lfin = uid("FIN")
e(f"s_cmp_ge_u32 s{sR}, 28")
lfin0 = uid("FIN0")
e(f"s_cbranch_scc1 {lfin0}")
e("v_lshrrev_b32 v10, 2, v3")
e("v_lshl_add_u32 v10, v2, 2, v10")
e("v_and_b32 v11, 7, v10")
e(f"s_lshl_b32 s{sT0}, s{sWAVE}, 1")
e(f"v_xor_b32 v11, s{sT0}, v11")
e("v_lshlrev_b32 v11, 5, v11")
e("v_lshl_add_u32 v11, v10, 10, v11")
e("v_and_b32 v10, 3, v1")
e("v_lshl_add_u32 v11, v10, 3, v11")
e("v_add_u32 v11, 0x10000, v11")
e("v_xor_b32 v10, 32, v11")
for j in range(2):
    for ks in range(2):
        d = 96 + 8*j + 4*ks
        e(f"ds_read_b64_tr_b16 v[{d}:{d+1}], v{[11,10][j]} offset:{32768*ks}")
        e(f"ds_read_b64_tr_b16 v[{d+2}:{d+3}], v{[11,10][j]} offset:{32768*ks+16384}")
e("s_waitcnt lgkmcnt(8)")
e(f"v_readfirstlane_b32 s{sSAME}, v9")
lg = uid("G")
e(f"s_cmp_ge_u32 s{sWAVE}, 8")
e(f"s_cbranch_scc1 {lg}")
def tbread(grp):
    base = [8, 112][grp % 2]
    for k in range(4):
        ks = 4*grp + k
        e(f"ds_read_b128 v[{base+4*k}:{base+4*k+3}], v6 offset:{64*ks}")
def tb_regs(grp, k):
    if grp % 2 == 0: return 8 + 4*k
    return [112, 116, 120, 28][k]
def tbread2(grp):
    for k in range(4):
        ks = 4*grp + k; b_ = tb_regs(grp, k)
        e(f"ds_read_b128 v[{b_}:{b_+3}], v6 offset:{64*ks}")
tbread2(0); tbread2(1)
for grp in range(4):
    e(f"s_waitcnt lgkmcnt({4 if grp < 3 else 0})")
    for k in range(4):
        ks = 4*grp + k; b_ = tb_regs(grp, k)
        cin = "0" if ks == 0 else "v[24:27]"
        e(f"v_mfma_f32_16x16x32_bf16 v[24:27], v[{32+4*ks}:{35+4*ks}], v[{b_}:{b_+3}], {cin}")
    if grp + 2 < 4: tbread2(grp + 2)
nop(8)
stamp(13)
rnd2(24, 25, 28); rnd2(26, 27, 29)
lup2 = uid("UPW")
e(f"s_cmp_ge_u32 s{sWAVE}, 4")
e(f"s_cbranch_scc1 {lup2}")
for i in range(4): e(f"v_mul_f32 v{16+i}, {NLOG2E:#x}, v{24+i}")
for i in range(4): e(f"v_exp_f32 v{16+i}, v{16+i}")
nop(1)
for i in range(4): e(f"v_add_f32 v{16+i}, 1.0, v{16+i}")
for i in range(4): e(f"v_rcp_f32 v{16+i}, v{16+i}")
nop(1)
e("v_pk_mul_f32 v[24:25], v[24:25], v[16:17]")
e("v_pk_mul_f32 v[26:27], v[26:27], v[18:19]")
rnd2(24, 25, 28); rnd2(26, 27, 29)
e(f"s_branch {lg}")
lab(lup2)
e("v_cmp_gt_u32 vcc, 4, v3")
e(f"s_and_saveexec_b64 s[{sM0}:{sM1}], vcc")
e("ds_write_b128 v4, v[24:27]")
e(f"s_mov_b64 exec, s[{sM0}:{sM1}]")
lab(lg)
e("v_and_b32 v5, 3, v1")
e("v_lshlrev_b32 v4, 6, v5")
e("v_lshl_add_u32 v4, v2, 4, v4")
e(f"s_lshl_b32 s{sT0}, s{sWAVE}, 8")
e(f"s_add_u32 s{sT0}, s{sT0}, {T_GU + 1024}")
e(f"v_add_u32 v4, s{sT0}, v4")
e("v_mul_u32_u24 v7, 192, v5")
e("v_lshl_add_u32 v7, v2, 4, v7")
e(f"s_lshr_b32 s{sT0}, s{sWAVE}, 1")
e(f"s_lshl_b32 s{sT0}, s{sT0}, 6")
e(f"s_and_b32 s{sT1}, s{sWAVE}, 1")
e(f"s_lshl_b32 s{sT1}, s{sT1}, 3")
e(f"s_add_u32 s{sT0}, s{sT0}, s{sT1}")
e(f"s_add_u32 s{sT0}, s{sT0}, {T_ACTL}")
e(f"v_add_u32 v7, s{sT0}, v7")
e("v_mul_u32_u24 v6, 192, v5")
e("v_lshl_add_u32 v6, v2, 4, v6")
e(f"v_add_u32 v6, {T_ACTL}, v6")
e("s_waitcnt lgkmcnt(0)")
e("s_barrier")
la = uid("A")
e(f"s_cmp_ge_u32 s{sWAVE}, 4")
e(f"s_cbranch_scc1 {la}")
e("ds_read_b128 v[12:15], v4")
e("v_cmp_gt_u32 vcc, 4, v3")
e("s_waitcnt lgkmcnt(0)")
e("v_pk_mul_f32 v[24:25], v[24:25], v[12:13]")
e("v_pk_mul_f32 v[26:27], v[26:27], v[14:15]")
e("v_cvt_pk_bf16_f32 v8, v24, v25")
e("v_cvt_pk_bf16_f32 v9, v26, v27")
e(f"s_and_saveexec_b64 s[{sM0}:{sM1}], vcc")
e("ds_write_b64 v7, v[8:9]")
e(f"s_mov_b64 exec, s[{sM0}:{sM1}]")
lab(la)
e("v_lshlrev_b32 v4, 7, v5")
e("v_lshl_add_u32 v4, v2, 5, v4")
e("v_bfe_u32 v7, v1, 2, 1")
e("v_lshl_add_u32 v4, v7, 4, v4")
e(f"v_cmp_eq_u32 s[{sM0}:{sM1}], 1, v7")
e("v_bfe_u32 v7, v1, 3, 1")
e(f"v_mul_u32_u24 v16, {28*512}, v7")
e("v_add_u32 v4, v4, v16")
e(f"v_cmp_eq_u32 s[{sM2}:{sM3}], 1, v7")
e(f"s_lshl_b32 s{sT0}, s{sWAVE}, 1")
e(f"s_mul_i32 s{sT0}, s{sT0}, {28*512}")
e(f"s_lshl_b32 s{sT1}, s{sR}, 9")
e(f"s_add_u32 s{sT0}, s{sT0}, s{sT1}")
e(f"s_add_u32 s{sT0}, s{sT0}, {WS_DP}")
e(f"v_mov_b32 v29, s{sTAG}")
e(f"v_mov_b32 v31, s{sTAG}")
e("s_waitcnt lgkmcnt(0)")
e("s_barrier")
stamp(6)
e("ds_read_b128 v[8:11], v6")
e("ds_read_b128 v[12:15], v6 offset:64")
e("s_waitcnt lgkmcnt(0)")
for ks in range(2):
    for j in range(2):
        d = 96 + 8*j + 4*ks
        cin = "0" if ks == 0 else f"v[{16+4*j}:{19+4*j}]"
        e(f"v_mfma_f32_16x16x32_bf16 v[{16+4*j}:{19+4*j}], v[{d}:{d+3}], v[{8+4*ks}:{11+4*ks}], {cin}")
nop(8)
e(f"v_cndmask_b32 v24, v16, v18, s[{sM0}:{sM1}]")
e(f"v_cndmask_b32 v25, v20, v22, s[{sM0}:{sM1}]")
e(f"v_cndmask_b32 v26, v17, v19, s[{sM0}:{sM1}]")
e(f"v_cndmask_b32 v27, v21, v23, s[{sM0}:{sM1}]")
e(f"v_cndmask_b32 v28, v24, v25, s[{sM2}:{sM3}]")
e(f"v_cndmask_b32 v30, v26, v27, s[{sM2}:{sM3}]")
lsc = uid("SC"); lsd = uid("SD")
e(f"s_cmp_eq_u32 s{sSAME}, 1")
e(f"s_cbranch_scc0 {lsc}")
e(f"buffer_store_dwordx4 v[28:31], v4, {WS}, s{sT0} offen")
e(f"s_branch {lsd}")
lab(lsc)
e(f"buffer_store_dwordx4 v[28:31], v4, {WS}, s{sT0} offen sc1")
lab(lsd)
stamp(7)
e(f"s_branch {lfin}")
lab(lfin0)
e("s_waitcnt lgkmcnt(0)")
e(f"v_readfirstlane_b32 s{sSAME}, v9")
lab(lfin)
lf2 = uid("F2")
e(f"s_cmp_ge_u32 s{sWAVE}, 14")
e(f"s_cbranch_scc1 {lf2}")
poll([(8, 126, 0)], intra=True)
stamp(14)
red_write(127)
lab(lf2)
e("s_waitcnt lgkmcnt(0)")
stamp(16)
e("s_barrier")
e(f"s_cmp_lg_u32 s{sWAVE}, 12")
e("s_cbranch_scc1 L_END")
red_read(14)
e("v_mov_b32 v30, 0")
e("v_lshrrev_b32 v4, 2, v1")
e("v_lshlrev_b32 v4, 10, v4")
e("v_and_b32 v5, 3, v1")
e("v_lshl_add_u32 v4, v5, 3, v4")
e(f"s_lshl_b32 s{sT0}, s{sR}, 5")
red_sum(14)
rnd2(8, 9, 12); rnd2(10, 11, 13)
e("v_pk_mul_f32 v[8:9], v[52:53], v[8:9]")
e("v_pk_mul_f32 v[10:11], v[54:55], v[10:11]")
rnd2(8, 9, 12); rnd2(10, 11, 13)
e("v_pk_add_f32 v[8:9], v[60:61], v[8:9]")
e("v_pk_add_f32 v[10:11], v[62:63], v[10:11]")
e("v_cvt_pk_bf16_f32 v16, v8, v9")
e("v_cvt_pk_bf16_f32 v17, v10, v11")
e("s_mov_b64 exec, 0xffff")
e(f"buffer_store_dwordx2 v[16:17], v4, {SD}, s{sT0} offen")
le = uid("EP")
e(f"s_cmp_lg_u32 s{sR}, 0")
e(f"s_cbranch_scc1 {le}")
e("s_mov_b64 exec, 1")
e(f"v_mov_b32 v8, s{sTAG}")
e(f"s_mov_b32 s{sT0}, {WS_EPOCH}")
e(f"buffer_store_dword v8, off, {WS}, s{sT0} sc1")
lab(le)
if "span" in OPT:
    e(f"s_mov_b32 s28, s{P_DBG}")
    e(f"s_and_b32 s29, s{P_DBG+1}, 0xffff")
    e("s_mov_b32 s30, 256")
    e("s_mov_b32 s31, 0x20000")
    e("s_waitcnt vmcnt(0)")
    e(f"s_memrealtime s[{sST0}:{sST1}]")
    e("s_waitcnt lgkmcnt(0)")
    e(f"v_mov_b32 v8, s{sST0}")
    e("s_mov_b64 exec, 1")
    e("buffer_atomic_umax v8, off, s[28:31], 0 offset:4")
stamp(8)
lab("L_END")
if DIAG:
    e("s_mov_b64 exec, -1")
    stamp(31)
    e("v_lshlrev_b32 v4, 2, v1")
    e("v_cmp_gt_u32 vcc, 32, v1")
    e(f"s_and_saveexec_b64 s[{sM0}:{sM1}], vcc")
    e(f"buffer_store_dword v0, v4, {WS}, s{sSTAMP} offen")
lab("L_EXIT")
e("s_endpgm")

L.append('.section .rodata,"a"')
L.append(".p2align 6")
L.append(f".amdhsa_kernel {NAME}_kernel")
L.append("  .amdhsa_next_free_vgpr 128")
L.append("  .amdhsa_next_free_sgpr 102")
L.append("  .amdhsa_accum_offset 128")
L.append("  .amdhsa_group_segment_fixed_size 0")
L.append("  .amdhsa_kernarg_size 112")
L.append("  .amdhsa_user_sgpr_count 2")
L.append("  .amdhsa_user_sgpr_kernarg_segment_ptr 1")
L.append("  .amdhsa_system_sgpr_workgroup_id_x 1")
L.append("  .amdhsa_float_denorm_mode_32 3")
L.append(".end_amdhsa_kernel")

open(sys.argv[1], "w").write("\n".join(x for x in L if x is not None) + "\n")
```

```python
import sys

DIAG = int(sys.argv[2]) if len(sys.argv) > 2 else 0
import os
OPT = set(os.environ.get("OPT", "").split(","))
NAME = "adaLN_cond__sliding_block_cached__swiglu_ffn__decode"

L = []
def e(s): L.append("    " + s)
def lab(s): L.append(s + ":")
def c(s): L.append("    ; " + s)
def nop(n):
    while n > 0:
        k = min(n, 16); e(f"s_nop {k-1}"); n -= k
_uid = [0]
def uid(p):
    _uid[0] += 1
    return f"{p}_{_uid[0]}"

WS_EPOCH = 0
WS_XCC   = 0x100
WS_HS    = 0x200
WS_QS    = 0x400
WS_MS    = 0xC00
WS_H     = 0x1000
WS_X2    = 0x3000
WS_M     = 0x8000
WS_Q     = 0x10000
WS_OML   = 0x20000
WS_OD    = 0x40000
WS_AP    = 0xC0000
WS_DP    = 0x140000
WS_SC    = 0x1B0000
WS_STAMP = 0x200000
WS_SIZE  = 0x300000

S_V    = 0
S_E    = 81920
S_L    = 114688
S_MISC = 147456
S_ACT  = S_MISC
S_QL   = S_ACT + 4352
S_XN   = S_QL + 1280
S_EXC  = S_XN + 256
S_MAXB = S_EXC + 256
S_PB   = S_MAXB + 256
S_CNT  = S_PB + 2560
S_CG   = S_V
S_CML  = S_V + 8704
LDS_BYTES = 163840
C_EARLY, C_ACT, C_EXC, C_XN, C_KL, C_Q, C_MAX, C_P, F_V, C_PVD, C_LATE, C_HD, C_WQ, C_QD = range(14)

T_W    = 0
T_WQ   = 0
T_HST  = 122880
T_HM   = 155648
T_ACT  = T_HM
T_XN   = T_ACT + 4352
T_EXC  = T_XN + 256
T_CNT  = T_EXC + 256
T_SAME = T_CNT + 64
T_HL   = 131072 + 16384
T_MISC = 131072
T_ACC1 = T_MISC
T_ACC2 = T_ACC1 + 256
T_H2   = T_ACC2 + 256
T_GU   = T_H2 + 4352
T_ACTL = T_GU + 2048
T_RED  = T_ACTL + 768

sWAVE, sTAG, sX8, sR, sS = 3, 4, 5, 6, 7
WS, SA, SB, SC, SD, SE, SF = "s[8:11]", "s[12:15]", "s[16:19]", "s[20:23]", "s[24:27]", "s[28:31]", "s[32:35]"
P_X, P_K, P_V, P_WQ, P_WO, P_BX, P_WG, P_WU, P_WD, P_C, P_WM, P_OUT, P_DBG, P_WS = [36 + 2*i for i in range(14)]
sT0, sT1, sT2, sT3, sT4, sT5, sT6, sT7 = 64, 65, 66, 67, 68, 69, 70, 71
sM0, sM1 = 72, 73
sM2, sM3 = 74, 75
sSTAMP = 76
sKV = 77
sNT = 78
sU = 79
sUI = 80
sLATE = 81
sSPIN = 82
sSTRIDE = 83
sCB0, sCB1 = 84, 85
sP, sJ = 86, 87
sSAME = 88
sST0, sST1 = 90, 91
sH = 92; sNQ = 93; sQCU = 95; sKDONE = 100

SPIN_MAX = 200000
LSPIN_MAX = 4000000

def csel2(dst, a, b):
    e(f"s_mov_b32 s{dst}, {b}")
    e(f"s_cselect_b32 s{dst}, {a}, s{dst}")

def srd(dst0, ptr, nbytes):
    e(f"s_mov_b32 s{dst0}, s{ptr}")
    e(f"s_and_b32 s{dst0+1}, s{ptr+1}, 0xffff")
    e(f"s_mov_b32 s{dst0+2}, {nbytes}")
    e(f"s_mov_b32 s{dst0+3}, 0x20000")

def stamp(k, wave=None):
    if not DIAG: return
    l = None
    if wave is not None:
        l = uid("ST"); e(f"s_cmp_lg_u32 s{sWAVE}, {wave}"); e(f"s_cbranch_scc1 {l}")
    e(f"s_memrealtime s[{sST0}:{sST1}]")
    e("s_waitcnt lgkmcnt(0)")
    e(f"v_writelane_b32 v0, s{sST0}, {k}")
    if l: lab(l)

def signal(cnt_base, k, vt0, vt1):
    e(f"v_mov_b32 v{vt0}, {cnt_base + 4*k}")
    e(f"v_mov_b32 v{vt1}, 1")
    e(f"s_mov_b64 s[{sM2}:{sM3}], exec")
    e("s_mov_b64 exec, 1")
    e(f"ds_add_u32 v{vt0}, v{vt1}")
    e(f"s_mov_b64 exec, s[{sM2}:{sM3}]")

def wait_cnt(cnt_base, k, target, vt0, vt1, sleep=1):
    l = uid("W"); d = uid("WD")
    e(f"v_mov_b32 v{vt0}, {cnt_base + 4*k}")
    e(f"s_mov_b32 s{sSPIN}, 0")
    lab(l)
    e(f"ds_read_b32 v{vt1}, v{vt0}")
    e("s_waitcnt lgkmcnt(0)")
    e(f"v_readfirstlane_b32 s{sT7}, v{vt1}")
    e(f"s_cmp_ge_u32 s{sT7}, {target}")
    e(f"s_cbranch_scc1 {d}")
    if sleep: e(f"s_sleep {sleep}")
    e(f"s_add_u32 s{sSPIN}, s{sSPIN}, 1")
    e(f"s_cmp_lt_u32 s{sSPIN}, {LSPIN_MAX}")
    e(f"s_cbranch_scc1 {l}")
    e("s_branch L_END")
    lab(d)

def wait_mask(cnt_base, k, need, vt0, vt1, sleep=0):
    l = uid("W"); d = uid("WD")
    e(f"v_mov_b32 v{vt0}, {cnt_base + 4*k}")
    e(f"s_mov_b32 s{sSPIN}, 0")
    lab(l)
    e(f"ds_read_b32 v{vt1}, v{vt0}")
    e("s_waitcnt lgkmcnt(0)")
    e(f"v_readfirstlane_b32 s{sT7}, v{vt1}")
    e(f"s_and_b32 s{sT7}, s{sT7}, {need}")
    e(f"s_cmp_eq_u32 s{sT7}, {need}")
    e(f"s_cbranch_scc1 {d}")
    if sleep: e(f"s_sleep {sleep}")
    e(f"s_add_u32 s{sSPIN}, s{sSPIN}, 1")
    e(f"s_cmp_lt_u32 s{sSPIN}, {LSPIN_MAX}")
    e(f"s_cbranch_scc1 {l}")
    e("s_branch L_END")
    lab(d)

def signal_or(cnt_base, k, sbit, vt0, vt1):
    e(f"v_mov_b32 v{vt0}, {cnt_base + 4*k}")
    e(f"v_mov_b32 v{vt1}, s{sbit}")
    e(f"s_mov_b64 s[{sM2}:{sM3}], exec")
    e("s_mov_b64 exec, 1")
    e(f"ds_or_b32 v{vt0}, v{vt1}")
    e(f"s_mov_b64 exec, s[{sM2}:{sM3}]")

def poll(loads, sleep=0, intra=False, pre=0):
    d = uid("PD")
    if pre: e(f"s_sleep {pre}")
    e(f"s_mov_b32 s{sSPIN}, 0")
    flavs = ["sc1"]
    lsc = None
    if intra:
        lsc = uid("PS")
        e(f"s_cmp_eq_u32 s{sSAME}, 1")
        e(f"s_cbranch_scc0 {lsc}")
        flavs = ["nt", "sc1"]
    for fi, fl in enumerate(flavs):
        if intra and fi == 1: lab(lsc)
        l = uid("P")
        lab(l)
        for (dst, voff, imm) in loads:
            e(f"buffer_load_dwordx4 v[{dst}:{dst+3}], v{voff}, {WS}, 0 offen offset:{imm} {fl}")
        e("s_waitcnt vmcnt(0)")
        first = True
        for (dst, voff, imm) in loads:
            if first:
                e(f"v_cmp_eq_u32 vcc, s{sTAG}, v{dst+1}")
                first = False
            else:
                e(f"v_cmp_eq_u32 s[{sM0}:{sM1}], s{sTAG}, v{dst+1}")
                e(f"s_and_b64 vcc, vcc, s[{sM0}:{sM1}]")
            e(f"v_cmp_eq_u32 s[{sM0}:{sM1}], s{sTAG}, v{dst+3}")
            e(f"s_and_b64 vcc, vcc, s[{sM0}:{sM1}]")
        e("s_cmp_eq_u64 vcc, exec")
        e(f"s_cbranch_scc1 {d}")
        if sleep: e(f"s_sleep {sleep}")
        e(f"s_add_u32 s{sSPIN}, s{sSPIN}, 1")
        e(f"s_cmp_lt_u32 s{sSPIN}, {SPIN_MAX}")
        e(f"s_cbranch_scc1 {l}")
        e("s_branch L_END")
    lab(d)

def load_tag():
    e(f"s_load_dword s{sTAG}, s[{P_WS}:{P_WS+1}], {WS_EPOCH}")

def fin_tag():
    e("s_waitcnt lgkmcnt(0)")
    e(f"s_add_u32 s{sTAG}, s{sTAG}, 0x9E3779B9")

def sentinel_store(soff_sgpr, vpair):
    e(f"s_mov_b64 s[{sM2}:{sM3}], exec")
    e("s_mov_b64 exec, 1")
    e(f"buffer_store_dwordx2 v[{vpair}:{vpair+1}], off, {WS}, s{soff_sgpr} sc1")
    e(f"s_mov_b64 exec, s[{sM2}:{sM3}]")

def poll_lanes(nlanes, dst, voff, sleep):
    e("s_mov_b64 s[98:99], exec")
    if nlanes < 64:
        m = (1 << nlanes) - 1
        e(f"s_mov_b32 exec_lo, {m & 0xffffffff:#x}")
        e(f"s_mov_b32 exec_hi, {m >> 32:#x}")
    poll([(dst, voff, 0)], sleep=sleep)
    e("s_mov_b64 exec, s[98:99]")

def allreduce2(va, vb, t0, t1, op="add"):
    ins = f"v_{op}_f32"
    nop(2)
    for ctl in ("quad_perm:[1,0,3,2]", "quad_perm:[2,3,0,1]", "row_half_mirror", "row_mirror"):
        e(f"{ins}_dpp v{va}, v{va}, v{va} {ctl} row_mask:0xf bank_mask:0xf")
        e(f"{ins}_dpp v{vb}, v{vb}, v{vb} {ctl} row_mask:0xf bank_mask:0xf")
        nop(1)
    for sw in ("v_permlane16_swap_b32", "v_permlane32_swap_b32"):
        e(f"v_mov_b32 v{t0}, v{va}")
        e(f"v_mov_b32 v{t1}, v{vb}")
        nop(2)
        e(f"{sw} v{va}, v{t0}")
        e(f"{sw} v{vb}, v{t1}")
        nop(1)
        e(f"{ins} v{va}, v{va}, v{t0}")
        e(f"{ins} v{vb}, v{vb}, v{t1}")

def rnd2(a, b, t):
    e(f"v_cvt_pk_bf16_f32 v{t}, v{a}, v{b}")
    e(f"v_lshlrev_b32 v{a}, 16, v{t}")
    e(f"v_and_b32 v{b}, 0xffff0000, v{t}")

def unpack2(src, lo, hi):
    e(f"v_lshlrev_b32 v{lo}, 16, v{src}")
    e(f"v_and_b32 v{hi}, 0xffff0000, v{src}")

LOG2E = 0x3fb8aa3b
NLOG2E = 0xbfb8aa3b
SCALE = 0x3db504f3
EPS = 0x3727c5ac
INV512 = 0x3b000000

def layernorm8(x0, t):
    d = t + 4
    a, b, t0, t1 = t, t+1, t+2, t+3
    e(f"v_readfirstlane_b32 s{sT0}, v{x0}")
    e(f"v_readfirstlane_b32 s{sT1}, v{x0}")
    nop(2)
    for i in range(0, 8, 2):
        e(f"v_pk_add_f32 v[{d+i}:{d+i+1}], v[{x0+i}:{x0+i+1}], s[{sT0}:{sT1}] neg_lo:[0,1] neg_hi:[0,1]")
    e(f"v_pk_add_f32 v[{t0}:{t1}], v[{d}:{d+1}], v[{d+2}:{d+3}]")
    e(f"v_pk_mul_f32 v[{a}:{b}], v[{d}:{d+1}], v[{d}:{d+1}]")
    e(f"v_pk_add_f32 v[{t0}:{t1}], v[{t0}:{t1}], v[{d+4}:{d+5}]")
    e(f"v_pk_fma_f32 v[{a}:{b}], v[{d+2}:{d+3}], v[{d+2}:{d+3}], v[{a}:{b}]")
    e(f"v_pk_add_f32 v[{t0}:{t1}], v[{t0}:{t1}], v[{d+6}:{d+7}]")
    e(f"v_pk_fma_f32 v[{a}:{b}], v[{d+4}:{d+5}], v[{d+4}:{d+5}], v[{a}:{b}]")
    e(f"v_pk_fma_f32 v[{a}:{b}], v[{d+6}:{d+7}], v[{d+6}:{d+7}], v[{a}:{b}]")
    e(f"v_add_f32 v{b}, v{a}, v{b}")
    e(f"v_add_f32 v{a}, v{t0}, v{t1}")
    allreduce2(a, b, t0, t1)
    e(f"v_mul_f32 v{a}, {INV512:#x}, v{a}")
    e(f"v_mul_f32 v{b}, {INV512:#x}, v{b}")
    e(f"v_fma_f32 v{b}, -v{a}, v{a}, v{b}")
    e(f"v_add_f32 v{a}, s{sT0}, v{a}")
    e(f"v_max_f32 v{b}, 0, v{b}")
    rnd2(a, b, t0)
    e(f"v_add_f32 v{b}, {EPS:#x}, v{b}")
    e(f"v_cvt_pk_bf16_f32 v{t0}, v{b}, v{b}")
    e(f"v_lshlrev_b32 v{b}, 16, v{t0}")
    e(f"v_sqrt_f32 v{b}, v{b}")
    nop(1)
    for i in range(0, 8, 2):
        e(f"v_pk_add_f32 v[{x0+i}:{x0+i+1}], v[{x0+i}:{x0+i+1}], v[{a}:{b}] op_sel_hi:[1,0] neg_lo:[0,1] neg_hi:[0,1]")
    e(f"v_cvt_pk_bf16_f32 v{t0}, v{b}, v{b}")
    e(f"v_lshlrev_b32 v{b}, 16, v{t0}")
    e(f"v_rcp_f32 v{t0}, v{b}")
    for i in range(0, 8, 2):
        rnd2(x0+i, x0+i+1, d)
    for i in range(0, 8, 2):
        e(f"v_pk_mul_f32 v[{x0+i}:{x0+i+1}], v[{x0+i}:{x0+i+1}], v[{t0}:{t1}] op_sel_hi:[1,0]")
    for i in range(0, 8, 2):
        rnd2(x0+i, x0+i+1, d)

def silu_inplace(x, t0, t1):
    e(f"v_mul_f32 v{t0}, {NLOG2E:#x}, v{x}")
    e(f"v_exp_f32 v{t0}, v{t0}")
    nop(1)
    e(f"v_add_f32 v{t0}, 1.0, v{t0}")
    e(f"v_rcp_f32 v{t1}, v{t0}")
    nop(1)
    e(f"v_mul_f32 v{x}, v{x}, v{t1}")


SSL = int(os.environ.get("SSL", "2"))
TSL = int(os.environ.get("TSL", "4"))
ENT = "" if "Enont" in OPT else " nt"
EK = int(os.environ.get("EK", "3"))
PSL = int(os.environ.get("PSL", "8"))
QKW = int(os.environ.get("QKW", "0"))
WK = int(os.environ.get("WK", "4"))
KOV = int(os.environ.get("KOV", "2"))
hdr = open("cdna_kernels/" + NAME + ".s.ref").read().split("\n")
for ln in hdr:
    if ln.startswith("; Override") or ln.startswith("; grid=") or ln.startswith("; @launch"): continue
    if ln.startswith(";"): L.append(ln)
    else: break
L.append(f"; @launch grid=(256,1,1) block=(1024,1,1) lds={LDS_BYTES}")
L.append('.amdgcn_target "amdgcn-amd-amdhsa--gfx950"')
L.append(".text")
L.append(f".globl {NAME}_kernel")
L.append(".p2align 8")
L.append(f".type {NAME}_kernel,@function")
lab(f"{NAME}_kernel")

sKVB = 94
sEX0, sEX1 = 96, 97

e("s_cmp_ge_u32 s2, 256")
e("s_cbranch_scc1 L_EXIT")
e("s_load_dwordx16 s[36:51], s[0:1], 0")
e("s_load_dwordx8 s[52:59], s[0:1], 64")
e("s_load_dwordx4 s[60:63], s[0:1], 96")
e("v_lshrrev_b32 v2, 6, v0")
e("v_and_b32 v1, 63, v0")
e(f"v_readfirstlane_b32 s{sWAVE}, v2")
e(f"s_and_b32 s{sX8}, s2, 7")
e(f"s_lshr_b32 s{sR}, s2, 3")
e("v_lshrrev_b32 v2, 4, v1")
e("v_and_b32 v3, 15, v1")
e(f"s_lshl_b32 s{sSTAMP}, s2, 4")
e(f"s_add_u32 s{sSTAMP}, s{sSTAMP}, s{sWAVE}")
e(f"s_lshl_b32 s{sSTAMP}, s{sSTAMP}, 7")
e(f"s_add_u32 s{sSTAMP}, s{sSTAMP}, {WS_STAMP}")
if DIAG: e("v_mov_b32 v0, 0")
stamp(0)
e("s_waitcnt lgkmcnt(0)")
srd(8, P_WS, WS_SIZE)
if "span" in OPT:
    lsp = uid("SP")
    e(f"s_cmp_lg_u32 s{sWAVE}, 0")
    e(f"s_cbranch_scc1 {lsp}")
    e(f"s_mov_b32 s28, s{P_DBG}")
    e(f"s_and_b32 s29, s{P_DBG+1}, 0xffff")
    e("s_mov_b32 s30, 256")
    e("s_mov_b32 s31, 0x20000")
    e(f"s_memrealtime s[{sST0}:{sST1}]")
    e("s_waitcnt lgkmcnt(0)")
    e(f"s_not_b32 s{sST0}, s{sST0}")
    e(f"v_mov_b32 v8, s{sST0}")
    e("s_mov_b64 exec, 1")
    e("buffer_atomic_umax v8, off, s[28:31], 0")
    e("s_mov_b64 exec, -1")
    lab(lsp)
e(f"s_cmp_eq_u32 s{sX8}, 7")
e("s_cbranch_scc1 L_T")

def line_dma_voff(stride):
    e("v_lshrrev_b32 v4, 3, v1")
    e(f"v_mul_u32_u24 v4, {stride}, v4")
    e("v_bfe_u32 v5, v1, 1, 2")
    e("v_bfe_u32 v6, v1, 4, 2")
    e("v_xor_b32 v5, v5, v6")
    e("v_lshl_add_u32 v4, v5, 5, v4")
    e("v_and_b32 v5, 1, v1")
    e("v_lshl_add_u32 v4, v5, 4, v4")
def tr_line_addr(dst, base_sgpr):
    e("v_lshrrev_b32 v4, 2, v3")
    e("v_lshl_add_u32 v4, v2, 2, v4")
    e("v_bfe_u32 v5, v4, 1, 2")
    e(f"s_and_b32 s{sT1}, s{sWAVE}, 3")
    e(f"v_xor_b32 v5, s{sT1}, v5")
    e("v_lshlrev_b32 v4, 7, v4")
    e("v_lshl_add_u32 v4, v5, 5, v4")
    e("v_and_b32 v5, 3, v1")
    e("v_lshl_add_u32 v4, v5, 3, v4")
    e(f"v_add_u32 v{dst}, s{base_sgpr}, v4")
def mfma16(vaddr):
    def regs(grp, k):
        if grp % 2 == 0: return 8 + 4*k
        return [112, 116, 120, 28][k]
    def rd(grp):
        for k in range(4):
            b_ = regs(grp, k)
            e(f"ds_read_b128 v[{b_}:{b_+3}], v{vaddr} offset:{64*(4*grp+k)}")
    rd(0); rd(1)
    for grp in range(4):
        e(f"s_waitcnt lgkmcnt({4 if grp < 3 else 0})")
        for k in range(4):
            ks = 4*grp + k; b_ = regs(grp, k)
            cin = "0" if ks == 0 else "v[24:27]"
            e(f"v_mfma_f32_16x16x32_bf16 v[24:27], v[{32+4*ks}:{35+4*ks}], v[{b_}:{b_+3}], {cin}")
        if grp + 2 < 4: rd(grp + 2)
    nop(8)
def line_unit(actbase, cnt, stride, rowshift):
    lq8 = uid("Q8"); lq4 = uid("Q4")
    e(f"s_cmp_ge_u32 s{sWAVE}, 8")
    e(f"s_cbranch_scc1 {lq8}")
    line_dma_voff(stride)
    e(f"s_lshl_b32 s{sT1}, s{sWAVE}, 13")
    e(f"s_mul_i32 s{sT2}, s{sWAVE}, {64*stride}")
    e(f"s_add_u32 s{sT2}, s{sT2}, s{sCB0}")
    for k in range(8):
        e(f"s_mov_b32 m0, s{sT1}")
        e(f"s_add_u32 s{sT1}, s{sT1}, 1024")
        e(f"buffer_load_dwordx4 v4, {SC}, s{sT2} offen nt lds")
        e(f"s_add_u32 s{sT2}, s{sT2}, {8*stride}")
    load_tag()
    e("s_waitcnt vmcnt(0)")
    signal(cnt, C_WQ, 8, 9)
    fin_tag()
    e(f"s_cmp_ge_u32 s{sWAVE}, 4")
    e(f"s_cbranch_scc1 {lq4}")
    e(f"s_mov_b32 s{sT2}, 0")
    tr_line_addr(7, sT2)
    e("v_and_b32 v5, 3, v1")
    e("v_mul_u32_u24 v6, 1088, v5")
    e("v_lshl_add_u32 v6, v2, 4, v6")
    e(f"v_add_u32 v6, {actbase}, v6")
    wait_cnt(cnt, C_WQ, 8, 8, 9, sleep=1)
    stamp(1)
    for ks in range(16):
        e(f"ds_read_b64_tr_b16 v[{32+4*ks}:{33+4*ks}], v7 offset:{4096*ks}")
        e(f"ds_read_b64_tr_b16 v[{34+4*ks}:{35+4*ks}], v7 offset:{4096*ks+2048}")
    wait_cnt(cnt, C_ACT, 4, 8, 9, sleep=1)
    stamp(2)
    mfma16(6)
    e("v_cvt_pk_bf16_f32 v28, v24, v25")
    e(f"v_mov_b32 v29, s{sTAG}")
    e("v_cvt_pk_bf16_f32 v30, v26, v27")
    e(f"v_mov_b32 v31, s{sTAG}")
    e(f"s_lshl_b32 s{sT2}, s{sWAVE}, 6")
    e(f"s_add_u32 s{sT1}, s{sCB1}, s{sT2}")
    e(f"v_lshlrev_b32 v8, {rowshift}, v3")
    e("v_lshl_add_u32 v8, v2, 4, v8")
    e("v_cmp_gt_u32 vcc, 4, v3")
    e(f"s_and_saveexec_b64 s[{sM0}:{sM1}], vcc")
    e(f"buffer_store_dwordx4 v[28:31], v8, {WS}, s{sT1} offen sc1")
    e(f"s_mov_b64 exec, s[{sM0}:{sM1}]")
    signal(cnt, C_QD, 8, 9)
    stamp(3)
    e(f"s_branch {lq4}")
    lab(lq8)
    load_tag()
    fin_tag()
    lab(lq4)

c("S role")
e(f"s_lshl_b32 s{sS}, s{sX8}, 5")
e(f"s_add_u32 s{sS}, s{sS}, s{sR}")
e(f"s_mul_i32 s{sT0}, s{sR}, 37")
e(f"s_lshr_b32 s{sT0}, s{sT0}, 8")
e(f"s_mul_i32 s{sT0}, s{sT0}, 7")
e(f"s_sub_u32 s{sT0}, s{sR}, s{sT0}")
e(f"s_add_u32 s{sT1}, s{sX8}, 7")
e(f"s_sub_u32 s{sT1}, s{sT1}, s{sT0}")
e(f"s_sub_u32 s{sT2}, s{sT1}, 7")
e(f"s_cmp_ge_u32 s{sT1}, 7")
e(f"s_cselect_b32 s{sT1}, s{sT2}, s{sT1}")
e(f"s_lshl_b32 s{sUI}, s{sR}, 1")
e(f"s_cmp_eq_u32 s{sT1}, 0")
e(f"s_cselect_b32 s{sQCU}, 1, 0")
e(f"s_cmp_eq_u32 s{sT1}, 3")
e(f"s_cselect_b32 s{sQCU}, 1, s{sQCU}")
e(f"s_cmp_eq_u32 s{sT1}, 1")
e(f"s_cselect_b32 s{sU}, 1, 0")
e(f"s_cmp_eq_u32 s{sT1}, 4")
e(f"s_cselect_b32 s{sU}, 1, s{sU}")
e(f"s_cmp_ge_u32 s{sT1}, 3")
e(f"s_addc_u32 s{sUI}, s{sUI}, 0")
e(f"s_lshr_b32 s{sT2}, 0x36, s{sT1}")
e(f"s_and_b32 s{sLATE}, s{sT2}, 1")
e(f"s_sub_u32 s{sNQ}, s{sT1}, 1")
e(f"s_cmp_ge_u32 s{sT1}, 4")
e(f"s_cselect_b32 s{sT2}, 1, 0")
e(f"s_sub_u32 s{sNQ}, s{sNQ}, s{sT2}")
e(f"s_mov_b32 s{sH}, s{sR}")
e(f"s_cmp_eq_u32 s{sQCU}, 1")
e(f"s_cselect_b32 s{sNT}, 7, 10")
e(f"s_add_u32 s{sT2}, s{sT0}, 3")
e(f"s_sub_u32 s{sT3}, s{sT2}, 7")
e(f"s_cmp_ge_u32 s{sT2}, 7")
e(f"s_cselect_b32 s{sT2}, s{sT3}, s{sT2}")
e(f"s_mul_i32 s{sT3}, s{sX8}, 10")
e(f"s_cmp_lt_u32 s{sT0}, s{sX8}")
e(f"s_cselect_b32 s{sT5}, 3, 0")
e(f"s_sub_u32 s{sT3}, s{sT3}, s{sT5}")
e(f"s_cmp_lt_u32 s{sT2}, s{sX8}")
e(f"s_cselect_b32 s{sT5}, 3, 0")
e(f"s_sub_u32 s{sT3}, s{sT3}, s{sT5}")
e(f"s_lshl_b32 s{sT0}, s{sT3}, 13")
e(f"s_lshl_b32 s{sT1}, s{sR}, 21")
e(f"s_add_u32 s{sKVB}, s{sT0}, s{sT1}")
e(f"s_add_u32 s{sKVB}, s{sKVB}, {6144*256}")

e(f"s_cmp_ge_u32 s{sWAVE}, 12")
e("s_cbranch_scc1 L_S_STREAM")
e(f"s_cmp_ge_u32 s{sWAVE}, 10")
e("s_cbranch_scc1 L_S_JOB")

c("tile waves 0..9")
srd(12, P_K, 4*8*8192*128*2)
e(f"s_lshl_b32 s{sT0}, s{sWAVE}, 13")
e(f"s_add_u32 s{sKV}, s{sKVB}, s{sT0}")
def k_addr():
    e("v_lshrrev_b32 v4, 2, v3")
    e("v_and_b32 v5, 1, v1")
    e("v_lshl_add_u32 v4, v4, 1, v5")
    e("v_lshlrev_b32 v4, 8, v4")
    e("v_bfe_u32 v5, v1, 1, 1")
    e("v_lshl_add_u32 v4, v5, 6, v4")
    e("v_lshl_add_u32 v4, v2, 4, v4")
def k_issue():
    e(f"s_add_u32 s{sT0}, s{sKV}, 4096")
    for kg in range(4):
        so = sKV if kg < 2 else sT0
        for s_ in range(2):
            d = 32 + 8*kg + 4*s_
            e(f"buffer_load_dwordx4 v[{d}:{d+3}], v4, {SA}, s{so} offen offset:{(kg & 1)*2048 + 128*s_} nt")
e(f"s_mov_b32 s{sT6}, 0")
le0 = uid("E0")
e(f"s_cmp_eq_u32 s{sQCU}, 1")
e(f"s_cbranch_scc1 {le0}")
e(f"s_cmp_ge_u32 s{sWAVE}, {min(WK, EK)}")
e(f"s_cbranch_scc1 {le0}")
k_addr()
k_issue()
e(f"s_mov_b32 s{sT6}, 1")
lab(le0)
e(f"s_mov_b32 s{sKDONE}, s{sT6}")
e("s_barrier")
lnq = uid("NOQ")
e(f"s_cmp_eq_u32 s{sQCU}, 0")
e(f"s_cbranch_scc1 {lnq}")
srd(20, P_WQ, 512*4096*2)
e(f"s_lshl_b32 s{sCB0}, s{sUI}, 7")
e(f"s_lshl_b32 s{sCB1}, s{sUI}, 8")
e(f"s_add_u32 s{sCB1}, s{sCB1}, {WS_Q}")
line_unit(S_ACT, S_CNT, 8192, 14)
wait_cnt(S_CNT, C_QD, 4, 8, 9, sleep=1)
lab(lnq)
e("v_and_b32 v8, 3, v1")
e("v_lshl_add_u32 v13, v2, 2, v8")
e("v_lshlrev_b32 v13, 4, v13")
e(f"v_add_u32 v13, {S_PB}, v13")
e(f"s_cmp_ge_u32 s{sWAVE}, s{sNT}")
e("s_cbranch_scc1 L_S_ATT_IDLE")
if "kafter" in OPT: wait_cnt(S_CNT, C_EARLY, 4, 8, 9, sleep=1)
lk = uid("K"); lkd = uid("KD")
e(f"s_cmp_eq_u32 s{sKDONE}, 1")
e(f"s_cbranch_scc1 {lkd}")
e(f"s_cmp_lt_u32 s{sWAVE}, {WK}")
e(f"s_cbranch_scc1 {lk}")
e(f"s_sub_u32 s{sT5}, s{sWAVE}, {WK-1}")
wait_cnt(S_CNT, C_KL, f"s{sT5}", 8, 9, sleep=1)
lab(lk)
k_addr()
k_issue()
lab(lkd)
load_tag()
stamp(11)
e("v_and_b32 v8, 3, v1")
e("v_mul_u32_u24 v10, 320, v8")
e("v_lshl_add_u32 v10, v2, 4, v10")
e("v_bfe_u32 v11, v1, 2, 1")
e("v_lshl_add_u32 v10, v11, 6, v10")
e(f"v_add_u32 v10, {S_QL}, v10")
e("v_lshlrev_b32 v11, 6, v8")
e(f"v_add_u32 v11, {S_MAXB}, v11")
e(f"s_lshl_b32 s{sT0}, s{sWAVE}, 2")
e(f"v_add_u32 v12, s{sT0}, v11")
e(f"s_lshl_b32 s{sT0}, s{sWAVE}, 8")
e(f"v_add_u32 v14, s{sT0}, v13")
e("s_waitcnt vmcnt(0)")
signal(S_CNT, C_KL, 8, 9)
fin_tag()
stamp(12)
wait_cnt(S_CNT, C_Q, 2, 8, 9, sleep=1)
stamp(14)
for s_ in range(2):
    e(f"ds_read_b128 v[{64+4*s_}:{67+4*s_}], v10 offset:{128*s_}")
e("s_waitcnt lgkmcnt(0)")
for s_ in range(2):
    for kg in range(4):
        A = 96 + 4*kg
        cin = "0" if s_ == 0 else f"v[{A}:{A+3}]"
        e(f"v_mfma_f32_16x16x32_bf16 v[{A}:{A+3}], v[{32+8*kg+4*s_}:{35+8*kg+4*s_}], v[{64+4*s_}:{67+4*s_}], {cin}")
e(f"s_mov_b32 s{sT2}, {SCALE:#x}")
e(f"s_mov_b32 s{sT3}, {SCALE:#x}")
e(f"s_mov_b32 s{sT4}, {LOG2E:#x}")
nop(5)
for kg in range(4):
    for e_ in range(2):
        A = 96 + 4*kg
        e(f"v_add_f32_dpp v{80+2*kg+e_}, v{A+2+e_}, v{A+e_} row_shl:4 row_mask:0xf bank_mask:0xf")
for i in range(0, 8, 2):
    rnd2(80+i, 81+i, 16)
for i in range(0, 8, 2):
    e(f"v_pk_mul_f32 v[{80+i}:{81+i}], v[{80+i}:{81+i}], s[{sT2}:{sT3}]")
for i in range(0, 8, 2):
    rnd2(80+i, 81+i, 16)
e("v_max3_f32 v16, v80, v81, v82")
e("v_max3_f32 v16, v16, v83, v84")
e("v_max3_f32 v16, v16, v85, v86")
e("v_max_f32 v16, v16, v87")
for sw in ("v_permlane16_swap_b32", "v_permlane32_swap_b32"):
    e("v_mov_b32 v17, v16")
    nop(2)
    e(f"{sw} v16, v17")
    nop(1)
    e("v_max_f32 v16, v16, v17")
e("v_cmp_gt_u32 vcc, 4, v1")
e(f"s_and_saveexec_b64 s[{sM0}:{sM1}], vcc")
e("ds_write_b32 v12, v16")
e(f"s_mov_b64 exec, s[{sM0}:{sM1}]")
signal(S_CNT, C_MAX, 8, 9)
wait_cnt(S_CNT, C_MAX, f"s{sNT}", 8, 9, sleep=0)
for i in range(3):
    e(f"ds_read_b128 v[{16+4*i}:{19+4*i}], v11 offset:{16*i}")
e("s_waitcnt lgkmcnt(0)")
e("v_max3_f32 v16, v16, v17, v18")
e("v_max3_f32 v19, v19, v20, v21")
e("v_max3_f32 v22, v22, v23, v24")
e("v_max3_f32 v25, v25, v26, v27")
e("v_max3_f32 v16, v16, v19, v22")
e("v_max_f32 v16, v16, v25")
e(f"v_mul_f32 v15, s{sT4}, v16")
for i in range(8):
    e(f"v_fma_f32 v{80+i}, v{80+i}, s{sT4}, -v15")
for i in range(8):
    e(f"v_exp_f32 v{80+i}, v{80+i}")
nop(1)
for i in range(4):
    e(f"v_cvt_pk_bf16_f32 v{16+i}, v{80+2*i}, v{81+2*i}")
e("v_cmp_gt_u32 vcc, 4, v3")
e(f"s_and_saveexec_b64 s[{sM0}:{sM1}], vcc")
e("ds_write_b128 v14, v[16:19]")
e(f"s_mov_b64 exec, s[{sM0}:{sM1}]")
signal(S_CNT, C_P, 8, 9)
stamp(15)
lab("L_S_PVSTART")
e(f"s_cmp_ge_u32 s{sWAVE}, 8")
e("s_cbranch_scc1 L_S_LATE")
e("v_bfe_u32 v9, v1, 3, 1")
e("v_bfe_u32 v10, v1, 2, 1")
e("v_lshl_add_u32 v10, v2, 1, v10")
e("v_lshl_add_u32 v11, v9, 3, v10")
e("v_lshlrev_b32 v9, 2, v9")
e("v_xor_b32 v10, v10, v9")
e(f"v_xor_b32 v10, s{sWAVE}, v10")
e("v_lshlrev_b32 v10, 5, v10")
e("v_lshl_add_u32 v10, v11, 8, v10")
e("v_and_b32 v11, 3, v1")
e("v_lshl_add_u32 v10, v11, 3, v10")
e("v_add_u32 v11, 0x10000, v10")
for i in range(4): e(f"v_mov_b32 v{28+i}, 0x3f803f80")
e(f"s_and_b32 s{sT0}, s{sR}, 7")
e(f"s_lshr_b32 s{sT1}, s{sR}, 3")
e(f"s_mul_i32 s{sT1}, s{sT1}, 7")
e(f"s_add_u32 s{sT1}, s{sT1}, s{sX8}")
e(f"s_mul_i32 s{sT0}, s{sT0}, {4*28}")
e(f"s_add_u32 s{sT0}, s{sT0}, s{sT1}")
e("v_mul_u32_u24 v12, 28, v3")
e(f"v_add_u32 v12, s{sT0}, v12")
e("v_lshlrev_b32 v14, 4, v12")
e("v_lshlrev_b32 v12, 9, v12")
e("v_lshl_add_u32 v12, v2, 4, v12")
e(f"s_lshl_b32 s{sT0}, s{sWAVE}, 6")
e(f"v_add_u32 v12, s{sT0}, v12")
e(f"v_mov_b32 v17, s{sTAG}")
e(f"v_mov_b32 v19, s{sTAG}")
e(f"v_mov_b32 v21, s{sTAG}")
e(f"v_mov_b32 v23, s{sTAG}")
wait_cnt(S_CNT, C_P, f"s{sNT}", 8, 9, sleep=0)
def vbase(a): return (10, a*8192) if a < 8 else (11, (a-8)*8192)
for NTv in (7, 10):
    lnext = uid("NT")
    if NTv == 7:
        e(f"s_cmp_eq_u32 s{sNT}, 7")
        e(f"s_cbranch_scc0 {lnext}")
    for a in range(NTv):
        e(f"ds_read_b128 v[{80+4*a}:{83+4*a}], v13 offset:{256*a}")
    for a in range(NTv):
        e(f"s_waitcnt lgkmcnt({NTv-1-a})")
        cin = "0" if a == 0 else "v[124:127]"
        e(f"v_mfma_f32_16x16x32_bf16 v[124:127], v[28:31], v[{80+4*a}:{83+4*a}], {cin}")
    wait_mask(S_CNT, F_V, (1 << (NTv-1)) - 1, 8, 9, sleep=1)
    stamp(16)
    n = NTv - 1; WIN = 7
    def vread(a):
        vb, off = vbase(a)
        e(f"ds_read_b64_tr_b16 v[{32+4*a}:{33+4*a}], v{vb} offset:{off}")
        e(f"ds_read_b64_tr_b16 v[{34+4*a}:{35+4*a}], v{vb} offset:{off+4096}")
    for a in range(min(WIN, n)): vread(a)
    for a in range(n):
        rem = 2*(min(a + WIN, n) - (a + 1))
        e(f"s_waitcnt lgkmcnt({rem})")
        cin = "0" if a == 0 else "v[120:123]"
        e(f"v_mfma_f32_16x16x32_bf16 v[120:123], v[{32+4*a}:{35+4*a}], v[{80+4*a}:{83+4*a}], {cin}")
        if a + WIN < n: vread(a + WIN)
    e("v_rcp_f32 v24, v124")
    wait_mask(S_CNT, F_V, (1 << NTv) - 1, 8, 9, sleep=0)
    stamp(13)
    a = NTv - 1
    vb, off = vbase(a)
    e(f"ds_read_b64_tr_b16 v[{32+4*a}:{33+4*a}], v{vb} offset:{off}")
    e(f"ds_read_b64_tr_b16 v[{34+4*a}:{35+4*a}], v{vb} offset:{off+4096}")
    e("s_waitcnt lgkmcnt(0)")
    e(f"v_mfma_f32_16x16x32_bf16 v[120:123], v[{32+4*a}:{35+4*a}], v[{80+4*a}:{83+4*a}], v[120:123]")
    if NTv == 7:
        e("s_branch L_S_PVEND")
        lab(lnext)
lab("L_S_PVEND")
signal(S_CNT, C_PVD, 8, 9)
e("v_mov_b32 v20, v15")
e("v_mov_b32 v22, v124")
nop(2)
e("v_pk_mul_f32 v[120:121], v[120:121], v[24:25] op_sel_hi:[1,0]")
e("v_pk_mul_f32 v[122:123], v[122:123], v[24:25] op_sel_hi:[1,0]")
e("v_cvt_pk_bf16_f32 v16, v120, v121")
e("v_cvt_pk_bf16_f32 v18, v122, v123")
e(f"s_mov_b32 s{sT2}, {WS_OD}")
e("v_cmp_gt_u32 vcc, 4, v3")
e(f"s_and_saveexec_b64 s[{sM0}:{sM1}], vcc")
e(f"buffer_store_dwordx4 v[16:19], v12, {WS}, s{sT2} offen sc1")
lml = uid("ML")
e(f"s_cmp_lg_u32 s{sWAVE}, 0")
e(f"s_cbranch_scc1 {lml}")
e("s_mov_b64 exec, 15")
e(f"s_mov_b32 s{sT2}, {WS_OML}")
e(f"buffer_store_dwordx4 v[20:23], v14, {WS}, s{sT2} offen sc1")
lab(lml)
e(f"s_mov_b64 exec, s[{sM0}:{sM1}]")
stamp(7)
e("s_branch L_S_LATE")
lab("L_S_ATT_IDLE")
load_tag()
fin_tag()
e("s_branch L_S_PVSTART")

lab("L_S_JOB")
c("job waves 10,11")
e("s_setprio 3")
def zero_counters(cnt, maxb=None):
    e("v_lshlrev_b32 v4, 2, v1")
    if maxb is not None:
        e(f"v_add_u32 v5, {maxb}, v4")
        e("v_mov_b32 v6, 0xff800000")
        e("ds_write_b32 v5, v6")
    e(f"v_add_u32 v4, {cnt}, v4")
    e("v_mov_b32 v5, 0")
    e("v_cmp_gt_u32 vcc, 16, v1")
    e(f"s_and_saveexec_b64 s[{sM0}:{sM1}], vcc")
    e("ds_write_b32 v4, v5")
    e(f"s_mov_b64 exec, s[{sM0}:{sM1}]")
    e("s_waitcnt lgkmcnt(0)")
zero_counters(S_CNT, S_MAXB)
e("s_barrier")
load_tag()
e(f"s_sub_u32 s{sT4}, s{sWAVE}, 10")
stamp(20)
def gemv_job(ebase, actbase, cnt, act_target):
    e("v_lshrrev_b32 v4, 2, v3")
    e("v_lshl_add_u32 v4, v2, 2, v4")
    e("v_lshlrev_b32 v4, 6, v4")
    e("v_and_b32 v5, 1, v2")
    e(f"v_xor_b32 v5, s{sT4}, v5")
    e("v_lshl_add_u32 v4, v5, 5, v4")
    e("v_and_b32 v5, 3, v1")
    e("v_lshl_add_u32 v4, v5, 3, v4")
    e(f"v_add_u32 v4, {ebase}, v4")
    e("v_mul_u32_u24 v6, 1088, v5")
    e("v_lshl_add_u32 v6, v2, 4, v6")
    e(f"v_add_u32 v6, {actbase}, v6")
    wait_cnt(cnt, C_EARLY, 4, 8, 9, sleep=1)
    stamp(1)
    for ks in range(16):
        e(f"ds_read_b64_tr_b16 v[{32+4*ks}:{33+4*ks}], v4 offset:{2048*ks}")
        e(f"ds_read_b64_tr_b16 v[{34+4*ks}:{35+4*ks}], v4 offset:{2048*ks+1024}")
    wait_cnt(cnt, C_ACT, act_target, 8, 9, sleep=1)
    stamp(2)
    BB = [96, 8]
    def bread(grp):
        base = BB[grp % 2]
        for k in range(4):
            ks = 4*grp + k
            e(f"ds_read_b128 v[{base+4*k}:{base+4*k+3}], v6 offset:{64*ks}")
    bread(0); bread(1)
    for grp in range(4):
        e(f"s_waitcnt lgkmcnt({4 if grp < 3 else 0})")
        base = BB[grp % 2]
        for k in range(4):
            ks = 4*grp + k
            cin = "0" if ks == 0 else "v[24:27]"
            e(f"v_mfma_f32_16x16x32_bf16 v[24:27], v[{32+4*ks}:{35+4*ks}], v[{base+4*k}:{base+4*k+3}], {cin}")
        if grp + 2 < 4: bread(grp + 2)
    nop(8)
fin_tag()
e(f"s_cmp_eq_u32 s{sU}, 0")
e("s_cbranch_scc1 L_S_JOB_Q")
gemv_job(S_E, S_ACT, S_CNT, 4)
e("v_cvt_pk_bf16_f32 v28, v24, v25")
e(f"v_mov_b32 v29, s{sTAG}")
e("v_cvt_pk_bf16_f32 v30, v26, v27")
e(f"v_mov_b32 v31, s{sTAG}")
e(f"s_lshl_b32 s{sT1}, s{sUI}, 7")
e(f"s_add_u32 s{sT1}, s{sT1}, {WS_M}")
e(f"s_lshl_b32 s{sT2}, s{sT4}, 6")
e(f"s_add_u32 s{sT1}, s{sT1}, s{sT2}")
e("v_lshlrev_b32 v8, 13, v3")
e("v_lshl_add_u32 v8, v2, 4, v8")
e("v_cmp_gt_u32 vcc, 4, v3")
e(f"s_and_saveexec_b64 s[{sM0}:{sM1}], vcc")
e(f"buffer_store_dwordx4 v[28:31], v8, {WS}, s{sT1} offen sc1")
e(f"s_mov_b64 exec, s[{sM0}:{sM1}]")
stamp(3)
lab("L_S_JOB_Q")
ljq = uid("JQ")
e(f"s_cmp_eq_u32 s{sQCU}, 0")
e(f"s_cbranch_scc1 {ljq}")
wait_cnt(S_CNT, C_QD, 4, 8, 9, sleep=2)
lab(ljq)
e(f"s_lshr_b32 s{sT0}, s{sR}, 3")
e(f"s_lshl_b32 s{sT0}, s{sT0}, 14")
e(f"s_and_b32 s{sT1}, s{sR}, 7")
e(f"s_lshl_b32 s{sT1}, s{sT1}, 11")
e(f"s_add_u32 s{sT0}, s{sT0}, s{sT1}")
e(f"s_lshl_b32 s{sT1}, s{sT4}, 10")
e(f"s_add_u32 s{sT0}, s{sT0}, s{sT1}")
e(f"s_add_u32 s{sT0}, s{sT0}, {WS_Q}")
e("v_lshlrev_b32 v5, 4, v1")
e(f"v_add_u32 v5, s{sT0}, v5")
e("v_lshrrev_b32 v6, 5, v1")
e(f"s_lshl_b32 s{sT0}, s{sT4}, 1")
e(f"v_add_u32 v6, s{sT0}, v6")
e("v_mul_u32_u24 v6, 320, v6")
e("v_and_b32 v7, 31, v1")
e("v_lshl_add_u32 v6, v7, 3, v6")
e(f"v_add_u32 v6, {S_QL}, v6")
if "nopipe" in OPT:
    poll([(8, 5, 0)], sleep=SSL)
    e("v_mov_b32 v9, v10")
    e("ds_write_b64 v6, v[8:9]")
else:
    R = [100, 104, 108]
    lpl = uid("PP"); lpd = uid("PPD")
    e(f"s_mov_b32 s{sSPIN}, 0")
    for r_ in R:
        e(f"buffer_load_dwordx4 v[{r_}:{r_+3}], v5, {WS}, 0 offen sc1")
        if r_ != R[-1]: e(f"s_sleep {PSL}")
    lab(lpl)
    oks = []
    for r_ in R:
        ok = uid("OK"); oks.append(ok)
        e("s_waitcnt vmcnt(2)")
        e(f"v_cmp_eq_u32 vcc, s{sTAG}, v{r_+1}")
        e(f"v_cmp_eq_u32 s[{sM0}:{sM1}], s{sTAG}, v{r_+3}")
        e(f"s_and_b64 vcc, vcc, s[{sM0}:{sM1}]")
        e("s_cmp_eq_u64 vcc, exec")
        e(f"s_cbranch_scc1 {ok}")
        e(f"s_sleep {PSL}")
        e(f"buffer_load_dwordx4 v[{r_}:{r_+3}], v5, {WS}, 0 offen sc1")
    e(f"s_add_u32 s{sSPIN}, s{sSPIN}, 1")
    e(f"s_cmp_lt_u32 s{sSPIN}, {SPIN_MAX}")
    e(f"s_cbranch_scc1 {lpl}")
    e("s_branch L_END")
    for r_, ok in zip(R, oks):
        lab(ok)
        e(f"v_mov_b32 v8, v{r_}")
        e(f"v_mov_b32 v9, v{r_+2}")
        e(f"s_branch {lpd}")
    lab(lpd)
    e("ds_write_b64 v6, v[8:9]")
signal(S_CNT, C_Q, 24, 25)
stamp(5)
e("s_branch L_S_LATE")

def early_dma(ebase, scb0, scb1, stride):
    e("v_lshrrev_b32 v5, 2, v1")
    e(f"v_mul_u32_u24 v5, {stride}, v5")
    e("v_bfe_u32 v6, v1, 1, 1")
    e("v_bfe_u32 v7, v1, 4, 1")
    e("v_xor_b32 v6, v6, v7")
    e(f"v_mov_b32 v7, s{scb0}")
    e(f"v_mov_b32 v16, s{scb1}")
    e("v_cmp_eq_u32 vcc, 1, v6")
    nop(2)
    e("v_cndmask_b32 v7, v7, v16, vcc")
    e("v_add_u32 v5, v5, v7")
    e("v_and_b32 v6, 1, v1")
    e("v_lshl_add_u32 v5, v6, 4, v5")
    e(f"s_lshl_b32 s{sT1}, s{sT4}, 3")
    e(f"s_mul_i32 s{sT2}, s{sT1}, {16*stride}")
    e(f"s_lshl_b32 s{sT1}, s{sT1}, 10")
    e(f"s_add_u32 s{sT1}, s{sT1}, {ebase}")
    for k in range(8):
        e(f"s_mov_b32 m0, s{sT1}")
        e(f"s_add_u32 s{sT1}, s{sT1}, 1024")
        e(f"buffer_load_dwordx4 v5, {SC}, s{sT2} offen nt lds")
        e(f"s_add_u32 s{sT2}, s{sT2}, {16*stride}")
def silu_to_act(actbase, cnt):
    for i in range(4):
        unpack2(8+i, 16+2*i, 17+2*i)
    for i in range(8):
        silu_inplace(16+i, 24, 25)
    for i in range(4):
        e(f"v_cvt_pk_bf16_f32 v{8+i}, v{16+2*i}, v{17+2*i}")
    e("v_lshrrev_b32 v6, 2, v1")
    e("v_lshlrev_b32 v6, 6, v6")
    e("v_and_b32 v7, 1, v1")
    e("v_lshl_add_u32 v6, v7, 5, v6")
    e("v_bfe_u32 v7, v1, 1, 1")
    e("v_lshl_add_u32 v6, v7, 3, v6")
    e(f"s_mul_i32 s{sT0}, s{sT4}, 1088")
    e(f"s_add_u32 s{sT0}, s{sT0}, {actbase}")
    e(f"v_add_u32 v6, s{sT0}, v6")
    e("ds_write_b64 v6, v[8:9]")
    e("ds_write_b64 v6, v[10:11] offset:16")
    signal(cnt, C_ACT, 24, 25)

lab("L_S_STREAM")
c("streamer waves 12..15")
e("s_setprio 2")
e(f"s_sub_u32 s{sT4}, s{sWAVE}, 12")
lnoe = uid("NOE")
e(f"s_cmp_eq_u32 s{sU}, 0")
e(f"s_cbranch_scc1 {lnoe}")
srd(28, P_C, 4096)
srd(20, P_WM, 512*3072*2)
e(f"s_lshl_b32 s{sT0}, s{sT4}, 10")
e("v_lshlrev_b32 v4, 4, v1")
e(f"buffer_load_dwordx4 v[8:11], v4, {SE}, s{sT0} offen")
e(f"s_lshl_b32 s{sCB0}, s{sUI}, 6")
e(f"s_add_u32 s{sCB0}, s{sCB0}, 2048")
e(f"s_add_u32 s{sCB1}, s{sCB0}, 32")
early_dma(S_E, sCB0, sCB1, 6144)
lab(lnoe)
e("s_barrier")
load_tag()
srd(16, P_V, 4*8*8192*128*2)
srd(24, P_WO, 4096*512*2)
lafter = uid("LAF")
e(f"s_cmp_eq_u32 s{sU}, 0")
e(f"s_cbranch_scc1 {lafter}")
e("s_waitcnt vmcnt(8)")
silu_to_act(S_ACT, S_CNT)
lab(lafter)
lnq2 = uid("NOQ")
e(f"s_cmp_eq_u32 s{sQCU}, 0")
e(f"s_cbranch_scc1 {lnq2}")
srd(32, P_X, 4096)
e(f"s_lshl_b32 s{sT0}, s{sT4}, 10")
e("v_lshlrev_b32 v4, 3, v1")
e(f"buffer_load_dwordx2 v[8:9], v4, {SF}, s{sT0} offen")
e(f"buffer_load_dwordx2 v[10:11], v4, {SF}, s{sT0} offen offset:512")
e(f"s_lshl_b32 s{sT0}, s{sT4}, 12")
e(f"s_add_u32 s{sT0}, s{sT0}, {WS_SC}")
e("v_lshlrev_b32 v5, 4, v1")
e(f"v_add_u32 v5, s{sT0}, v5")
e("v_lshrrev_b32 v6, 3, v1")
e("v_lshlrev_b32 v6, 6, v6")
e("v_and_b32 v7, 3, v1")
e("v_lshl_add_u32 v6, v7, 4, v6")
e("v_bfe_u32 v7, v1, 2, 1")
e("v_lshl_add_u32 v6, v7, 3, v6")
e(f"s_mul_i32 s{sT0}, s{sT4}, 1088")
e(f"s_add_u32 s{sT0}, s{sT0}, {S_ACT}")
e(f"v_add_u32 v6, s{sT0}, v6")
e("s_waitcnt vmcnt(0) lgkmcnt(0)")
e(f"s_add_u32 s{sTAG}, s{sTAG}, 0x9E3779B9")
for i in range(4): unpack2(8+i, 16+2*i, 17+2*i)
layernorm8(16, 24)
wait_cnt(S_CNT, C_WQ, 8, 36, 37, sleep=1)
poll([(40, 5, 0), (44, 5, 1024), (48, 5, 2048), (52, 5, 3072)], sleep=1)
for (src, dst) in ((48, 56), (50, 58), (52, 60), (54, 62)): unpack2(src, dst, dst+1)
for i in range(0, 8, 2): e(f"v_pk_add_f32 v[{56+i}:{57+i}], v[{56+i}:{57+i}], 1.0 op_sel_hi:[1,0]")
for i in range(0, 8, 2): rnd2(56+i, 57+i, 24)
for i in range(0, 8, 2): e(f"v_pk_mul_f32 v[{16+i}:{17+i}], v[{16+i}:{17+i}], v[{56+i}:{57+i}]")
for i in range(0, 8, 2): rnd2(16+i, 17+i, 24)
for (src, dst) in ((40, 56), (42, 58), (44, 60), (46, 62)): unpack2(src, dst, dst+1)
for i in range(0, 8, 2): e(f"v_pk_add_f32 v[{16+i}:{17+i}], v[{16+i}:{17+i}], v[{56+i}:{57+i}]")
for i in range(4): e(f"v_cvt_pk_bf16_f32 v{8+i}, v{16+2*i}, v{17+2*i}")
e("ds_write_b64 v6, v[8:9]")
e("ds_write_b64 v6, v[10:11] offset:512")
signal(S_CNT, C_ACT, 24, 25)
stamp(6)
wait_cnt(S_CNT, C_QD, 4, 24, 25, sleep=1)
e(f"s_sub_u32 s{sTAG}, s{sTAG}, 0x9E3779B9")
lab(lnq2)
e("v_lshrrev_b32 v5, 1, v3")
e("v_xor_b32 v5, v5, v2")
e("v_lshlrev_b32 v5, 5, v5")
e("v_and_b32 v6, 1, v1")
e("v_lshl_add_u32 v5, v6, 4, v5")
e("v_lshl_add_u32 v7, v2, 10, v5")
e("v_lshl_add_u32 v5, v2, 8, v5")
e("v_xor_b32 v6, 128, v5")
e("v_xor_b32 v10, 128, v7")
e("s_waitcnt vmcnt(0)")
signal(S_CNT, C_EARLY, 24, 25)
fin_tag()
stamp(4)
e(f"s_sub_u32 s{sT5}, s{sNT}, {KOV}")
e(f"s_cmp_eq_u32 s{sQCU}, 1")
e(f"s_cselect_b32 s{sT5}, {QKW}, s{sT5}")
wait_cnt(S_CNT, C_KL, f"s{sT5}", 24, 25, sleep=1)
stamp(18)
def v_issue(sa):
    e(f"s_lshl_b32 s{sT1}, s{sa}, 13")
    e(f"s_add_u32 s{sT0}, s{sKVB}, s{sT1}")
    e(f"s_mov_b32 m0, s{sT1}")
    e(f"s_add_u32 s{sT1}, s{sT1}, 4096")
    for i in range(4):
        e(f"buffer_load_dwordx4 v{5 + ((i ^ (i >> 1)) & 1)}, {SB}, s{sT0} offen offset:{1024*i} nt lds")
    e(f"s_mov_b32 m0, s{sT1}")
    e(f"s_add_u32 s{sT0}, s{sT0}, 4096")
    for i in range(4):
        e(f"buffer_load_dwordx4 v{5 + ((i ^ (i >> 1)) & 1)}, {SB}, s{sT0} offen offset:{1024*i} nt lds")
if "vdeep" in OPT:
    ldone = uid("VD"); l2 = uid("V2"); l1 = uid("V1")
    e(f"s_mov_b32 s{sT5}, s{sT4}"); v_issue(sT5)
    e(f"s_add_u32 s{sT5}, s{sT4}, 4")
    e(f"s_cmp_lt_u32 s{sT5}, s{sNT}")
    e(f"s_cbranch_scc0 {l1}")
    v_issue(sT5)
    e(f"s_add_u32 s{sT5}, s{sT4}, 8")
    e(f"s_cmp_lt_u32 s{sT5}, s{sNT}")
    e(f"s_cbranch_scc0 {l2}")
    v_issue(sT5)
    e(f"s_lshl_b32 s{sT2}, 1, s{sT4}")
    for w in (16, 8, 0):
        e(f"s_waitcnt vmcnt({w})")
        signal_or(S_CNT, F_V, sT2, 24, 25)
        if w: e(f"s_lshl_b32 s{sT2}, s{sT2}, 4")
    e(f"s_branch {ldone}")
    lab(l2)
    e(f"s_lshl_b32 s{sT2}, 1, s{sT4}")
    for w in (8, 0):
        e(f"s_waitcnt vmcnt({w})")
        signal_or(S_CNT, F_V, sT2, 24, 25)
        if w: e(f"s_lshl_b32 s{sT2}, s{sT2}, 4")
    e(f"s_branch {ldone}")
    lab(l1)
    e(f"s_lshl_b32 s{sT2}, 1, s{sT4}")
    e("s_waitcnt vmcnt(0)")
    signal_or(S_CNT, F_V, sT2, 24, 25)
    lab(ldone)
else:
    e(f"s_mov_b32 s{sT5}, s{sT4}")
    lv = uid("V"); lvd = uid("VD")
    lab(lv)
    v_issue(sT5)
    e(f"s_lshl_b32 s{sT2}, 1, s{sT5}")
    e("s_waitcnt vmcnt(0)")
    signal_or(S_CNT, F_V, sT2, 24, 25)
    e(f"s_add_u32 s{sT5}, s{sT5}, 4")
    e(f"s_cmp_lt_u32 s{sT5}, s{sNT}")
    e(f"s_cbranch_scc1 {lv}")
stamp(19)
e(f"s_cmp_eq_u32 s{sLATE}, 0")
e("s_cbranch_scc1 L_END")
e(f"s_lshl_b32 s{sT0}, s{sT4}, 3")
e(f"s_lshl_b32 s{sT1}, s{sT0}, 10")
e(f"s_add_u32 s{sT1}, s{sT1}, {S_L}")
e(f"s_lshl_b32 s{sT2}, s{sT0}, 12")
e(f"s_lshl_b32 s{sT3}, s{sH}, 17")
e(f"s_add_u32 s{sT2}, s{sT2}, s{sT3}")
e(f"s_lshl_b32 s{sT3}, s{sNQ}, 8")
e(f"s_add_u32 s{sT2}, s{sT2}, s{sT3}")
for k in range(8):
    e(f"s_mov_b32 m0, s{sT1}")
    e(f"s_add_u32 s{sT1}, s{sT1}, 1024")
    e(f"buffer_load_dwordx4 v{[7, 10][(k >> 1) & 1]}, {SD}, s{sT2} offen nt lds")
    e(f"s_add_u32 s{sT2}, s{sT2}, 4096")
e("s_waitcnt vmcnt(0)")
signal(S_CNT, C_LATE, 24, 25)

lab("L_S_LATE")
e(f"s_cmp_eq_u32 s{sLATE}, 0")
e("s_cbranch_scc1 L_END")
e("s_setprio 0")
e("v_mov_b32 v58, 0")
e(f"s_lshl_b32 s{sT6}, s{sWAVE}, 6"); e(f"v_add_u32 v4, s{sT6}, v1")
e(f"s_mul_i32 s{sT0}, s{sH}, {28*512}")
e(f"s_add_u32 s{sT0}, s{sT0}, {WS_OD}")
e(f"s_mul_i32 s{sT1}, s{sH}, {28*16}")
e(f"s_add_u32 s{sT1}, s{sT1}, {WS_OML - 896*16}")
e(f"s_cmp_lt_u32 s{sWAVE}, 14")
e(f"s_cselect_b32 s{sT0}, s{sT0}, s{sT1}")
e("v_lshlrev_b32 v5, 4, v4")
e(f"v_add_u32 v5, s{sT0}, v5")
e("v_lshrrev_b32 v6, 5, v4")
e(f"s_cmp_lt_u32 s{sWAVE}, 14")
lw = uid("LW"); lw2 = uid("LW")
e(f"s_cbranch_scc1 {lw}")
e("v_mov_b32 v6, v1")
lab(lw)
e("v_mul_u32_u24 v7, 37, v6")
e("v_lshrrev_b32 v7, 8, v7")
e("v_add_u32 v6, v6, v7")
e(f"s_cmp_lt_u32 s{sWAVE}, 14")
e(f"s_cbranch_scc1 {lw2}")
e("v_lshlrev_b32 v6, 3, v6")
e(f"v_add_u32 v6, {S_CML}, v6")
lw3 = uid("LW")
e(f"s_branch {lw3}")
lab(lw2)
e("v_mul_u32_u24 v6, 272, v6")
e("v_and_b32 v7, 31, v4")
e("v_lshl_add_u32 v6, v7, 3, v6")
e(f"v_add_u32 v6, {S_CG}, v6")
lab(lw3)
lnw = uid("LNW")
e(f"s_cmp_ge_u32 s{sWAVE}, 8")
e(f"s_cbranch_scc1 {lnw}")
wait_cnt(S_CNT, C_LATE, 4, 8, 9, sleep=1)
e("v_lshrrev_b32 v12, 2, v3")
e("v_lshl_add_u32 v13, v2, 3, v12")
e("v_and_b32 v14, 1, v2")
e("v_lshl_add_u32 v12, v14, 2, v12")
e(f"v_xor_b32 v12, s{sWAVE}, v12")
e("v_lshlrev_b32 v12, 5, v12")
e("v_lshl_add_u32 v12, v13, 8, v12")
e("v_and_b32 v14, 3, v1")
e("v_lshl_add_u32 v12, v14, 3, v12")
e(f"v_add_u32 v12, {S_L}, v12")
for ks in range(4):
    e(f"ds_read_b64_tr_b16 v[{32+4*ks}:{33+4*ks}], v12 offset:{8192*ks}")
    e(f"ds_read_b64_tr_b16 v[{34+4*ks}:{35+4*ks}], v12 offset:{8192*ks+1024}")
e("v_mul_u32_u24 v56, 272, v3")
e("v_lshl_add_u32 v56, v2, 4, v56")
e(f"v_add_u32 v56, {S_CG}, v56")
e("v_lshlrev_b32 v57, 3, v3")
e(f"v_add_u32 v57, {S_CML}, v57")
e(f"s_lshl_b32 s{sT0}, s{sNQ}, 3")
e(f"s_add_u32 s{sT0}, s{sT0}, s{sWAVE}")
e(f"s_lshl_b32 s{sT0}, s{sT0}, 5")
e(f"s_add_u32 s{sT0}, s{sT0}, s{sH}")
e(f"s_lshl_b32 s{sT0}, s{sT0}, 9")
e(f"s_add_u32 s{sT0}, s{sT0}, {WS_AP}")
e("v_bfe_u32 v58, v1, 3, 1")
e("v_lshlrev_b32 v58, 7, v58")
e("v_lshl_add_u32 v58, v2, 5, v58")
e("v_bfe_u32 v59, v1, 1, 1")
e("v_lshl_add_u32 v58, v59, 8, v58")
e("v_and_b32 v59, 1, v1")
e("v_lshl_add_u32 v58, v59, 4, v58")
e(f"v_add_u32 v58, s{sT0}, v58")
e(f"v_mov_b32 v61, s{sTAG}")
e(f"v_mov_b32 v63, s{sTAG}")
e("v_and_b32 v14, 1, v1")
e("v_cmp_eq_u32 s[96:97], 1, v14")
e("v_bfe_u32 v14, v1, 1, 1")
e("v_cmp_eq_u32 s[88:89], 1, v14")
e("v_and_b32 v14, 4, v1")
e("v_cmp_eq_u32 s[86:87], 0, v14")
lab(lnw)
lz = uid("LZ"); lzd = uid("LZD")
e(f"s_cmp_eq_u32 s{sWAVE}, 15")
e(f"s_cbranch_scc1 {lz}")
e("s_mov_b64 s[98:99], exec")
e(f"s_cmp_lg_u32 s{sWAVE}, 14")
lfull = uid("LF")
e(f"s_cbranch_scc1 {lfull}")
e("s_mov_b32 exec_lo, 0x0fffffff")
e("s_mov_b32 exec_hi, 0")
lab(lfull)
poll([(8, 5, 0)])
stamp(17)
e("v_mov_b32 v9, v10")
wait_cnt(S_CNT, C_PVD, 8, 12, 13, sleep=0)
e("ds_write_b64 v6, v[8:9]")
e("s_mov_b64 exec, s[98:99]")
e(f"s_branch {lzd}")
lab(lz)
wait_cnt(S_CNT, C_PVD, 8, 12, 13, sleep=1)
e("v_lshlrev_b32 v6, 3, v2")
e("v_add_u32 v6, 7, v6")
e("v_mul_u32_u24 v7, 272, v6")
e("v_lshl_add_u32 v7, v3, 4, v7")
e(f"v_add_u32 v7, {S_CG}, v7")
for i in range(4): e(f"v_mov_b32 v{12+i}, 0")
e("ds_write_b128 v7, v[12:15]")
e("v_lshlrev_b32 v6, 3, v6")
e(f"v_add_u32 v6, {S_CML}, v6")
e("v_mov_b32 v12, 0xff800000")
e("ds_write_b64 v6, v[12:13]")
lab(lzd)
e("s_waitcnt lgkmcnt(0)")
e("s_barrier")
e(f"s_cmp_ge_u32 s{sWAVE}, 8")
e("s_cbranch_scc1 L_END")
stamp(9)
e("ds_read_b64 v[8:9], v57")
e("ds_read_b64 v[10:11], v57 offset:128")
for ct in range(2):
    for ks in range(4):
        d = 64 + 16*ct + 4*ks
        e(f"ds_read_b128 v[{d}:{d+3}], v56 offset:{16*272*ct + 64*ks}")
e("s_waitcnt lgkmcnt(8)")
e("v_mov_b32 v12, v8")
e("v_mov_b32 v13, v10")
nop(1)
for ctl in ("quad_perm:[1,0,3,2]", "quad_perm:[2,3,0,1]", "row_half_mirror"):
    e(f"v_max_f32_dpp v12, v12, v12 {ctl} row_mask:0xf bank_mask:0xf")
    e(f"v_max_f32_dpp v13, v13, v13 {ctl} row_mask:0xf bank_mask:0xf")
    nop(1)
e("v_sub_f32 v8, v8, v12")
e("v_sub_f32 v10, v10, v13")
e("v_exp_f32 v8, v8")
e("v_exp_f32 v10, v10")
e("s_waitcnt lgkmcnt(0)")
for ks in range(4):
    for ct in range(2):
        d = 64 + 16*ct + 4*ks
        cin = "0" if ks == 0 else f"v[{16+4*ct}:{19+4*ct}]"
        e(f"v_mfma_f32_16x16x32_bf16 v[{16+4*ct}:{19+4*ct}], v[{32+4*ks}:{35+4*ks}], v[{d}:{d+3}], {cin}")
e("v_mul_f32 v8, v8, v9")
e("v_mul_f32 v10, v10, v11")
e("v_mov_b32 v12, v8")
e("v_mov_b32 v13, v10")
nop(1)
for ctl in ("quad_perm:[1,0,3,2]", "quad_perm:[2,3,0,1]", "row_half_mirror"):
    e(f"v_add_f32_dpp v12, v12, v12 {ctl} row_mask:0xf bank_mask:0xf")
    e(f"v_add_f32_dpp v13, v13, v13 {ctl} row_mask:0xf bank_mask:0xf")
    nop(1)
e("v_rcp_f32 v12, v12")
e("v_rcp_f32 v13, v13")
nop(1)
e("v_mul_f32 v8, v8, v12")
e("v_mul_f32 v10, v10, v13")
nop(1)
e("v_pk_mul_f32 v[16:17], v[16:17], v[8:9] op_sel_hi:[1,0]")
e("v_pk_mul_f32 v[18:19], v[18:19], v[8:9] op_sel_hi:[1,0]")
e("v_pk_mul_f32 v[20:21], v[20:21], v[10:11] op_sel_hi:[1,0]")
e("v_pk_mul_f32 v[22:23], v[22:23], v[10:11] op_sel_hi:[1,0]")
nop(1)
for ctl in ("quad_perm:[1,0,3,2]", "quad_perm:[2,3,0,1]", "row_half_mirror"):
    for i in range(8):
        e(f"v_add_f32_dpp v{16+i}, v{16+i}, v{16+i} {ctl} row_mask:0xf bank_mask:0xf")
e("v_cndmask_b32 v24, v16, v18, s[96:97]")
e("v_cndmask_b32 v25, v20, v22, s[96:97]")
e("v_cndmask_b32 v26, v17, v19, s[96:97]")
e("v_cndmask_b32 v27, v21, v23, s[96:97]")
e("v_cndmask_b32 v60, v24, v25, s[88:89]")
e("v_cndmask_b32 v62, v26, v27, s[88:89]")
e("s_mov_b64 exec, s[86:87]")
e(f"buffer_store_dwordx4 v[60:63], v58, {WS}, 0 offen sc1")
e("s_mov_b64 exec, -1")
stamp(10)
e("s_branch L_END")

lab("L_T")
c("T role: t = sR")
srd(20, P_WM, 512*3072*2)
srd(28, P_C, 4096)
srd(32, P_X, 4096)
srd(24, P_OUT, 4096)
e(f"s_cmp_ge_u32 s{sWAVE}, 12")
e("s_cbranch_scc1 L_T_STREAM")
lt1 = uid("T1")
e(f"s_cmp_lg_u32 s{sWAVE}, 10")
e(f"s_cbranch_scc1 {lt1}")
zero_counters(T_CNT)
lab(lt1)
e("s_barrier")
lt2 = uid("T2")
e(f"s_cmp_ge_u32 s{sR}, 16")
e(f"s_cbranch_scc1 {lt2}")
e(f"s_lshl_b32 s{sCB0}, s{sR}, 7")
e(f"s_lshl_b32 s{sCB1}, s{sR}, 8")
e(f"s_add_u32 s{sCB1}, s{sCB1}, {WS_SC}")
line_unit(T_ACT, T_CNT, 6144, 12)
e("s_branch L_T_AUX")
lab(lt2)
load_tag()
fin_tag()
lab("L_T_AUX")
C_UP, C_UPR, C_G, C_SC = C_KL, C_Q, C_MAX, C_P
C_GO, C_ARM, C_RED, C_XS = F_V, C_PVD, C_LATE, C_HD
e(f"s_cmp_lt_u32 s{sWAVE}, 8")
e("s_cbranch_scc1 L_T_W")
lw9 = uid("W9"); lw8 = uid("W8")
e(f"s_cmp_lg_u32 s{sWAVE}, 9")
e(f"s_cbranch_scc1 {lw9}")
e("v_lshlrev_b32 v5, 8, v1")
e(f"v_add_u32 v5, {WS_SC}, v5")
poll_lanes(16, 8, 5, 4)
signal(T_CNT, C_SC, 10, 11)
if "tq" in OPT:
    e("v_lshlrev_b32 v5, 8, v1")
    e(f"v_add_u32 v5, {WS_Q}, v5")
    poll_lanes(64, 8, 5, 4)
    signal(T_CNT, C_GO, 10, 11)
e("s_branch L_T_MODS")
lab(lw9)
e(f"s_cmp_lg_u32 s{sWAVE}, 8")
e("s_cbranch_scc1 L_T_MODS")
e(f"s_getreg_b32 s{sT0}, hwreg(HW_REG_XCC_ID)")
e(f"s_and_b32 s{sT0}, s{sT0}, 0xf")
e(f"v_mov_b32 v8, s{sT0}")
e(f"v_mov_b32 v9, s{sTAG}")
e(f"s_lshl_b32 s{sT1}, s{sR}, 3")
e(f"s_add_u32 s{sT1}, s{sT1}, {WS_XCC}")
sentinel_store(sT1, 8)
e("s_branch L_T_MODS")
lab("L_T_W")
e(f"s_cmp_ge_u32 s{sR}, 28")
e("s_cbranch_scc1 L_T_WEND")
srd(12, P_WG, 512*1792*2)
srd(16, P_WU, 512*1792*2)
srd(20, P_WD, 1792*512*2)
def gu_dma(srdname, ldsbase):
    line_dma_voff(3584)
    e(f"s_lshl_b32 s{sT0}, s{sWAVE}, 3")
    e(f"s_mul_i32 s{sT2}, s{sT0}, {8*3584}")
    e(f"s_lshl_b32 s{sT3}, s{sR}, 7")
    e(f"s_add_u32 s{sT2}, s{sT2}, s{sT3}")
    e(f"s_lshl_b32 s{sT1}, s{sWAVE}, 13")
    e(f"s_add_u32 s{sT1}, s{sT1}, {ldsbase}")
    for k in range(8):
        e(f"s_mov_b32 m0, s{sT1}")
        e(f"s_add_u32 s{sT1}, s{sT1}, 1024")
        e(f"buffer_load_dwordx4 v4, {srdname}, s{sT2} offen nt lds")
        e(f"s_add_u32 s{sT2}, s{sT2}, {8*3584}")
def gu_frags(ldsbase):
    e(f"s_mov_b32 s{sT0}, {ldsbase}")
    tr_line_addr(4, sT0)
    for ks in range(16):
        e(f"ds_read_b64_tr_b16 v[{32+4*ks}:{33+4*ks}], v4 offset:{4096*ks}")
        e(f"ds_read_b64_tr_b16 v[{34+4*ks}:{35+4*ks}], v4 offset:{4096*ks+2048}")
    e("s_waitcnt lgkmcnt(0)")
wait_cnt(T_CNT, C_SC if ("tearly" in OPT and "tq" not in OPT) else C_GO, 1, 8, 9, sleep=2)
stamp(19)
gu_dma(SB, 65536)
lq = uid("NQD")
e(f"s_cmp_ge_u32 s{sR}, 16")
e(f"s_cbranch_scc1 {lq}")
wait_cnt(T_CNT, C_QD, 4, 8, 9, sleep=1)
lab(lq)
gu_dma(SA, 0)
e("s_waitcnt vmcnt(8)")
signal(T_CNT, C_UP, 8, 9)
lnu = uid("NU")
e(f"s_cmp_lt_u32 s{sWAVE}, 4")
e(f"s_cbranch_scc1 {lnu}")
wait_cnt(T_CNT, C_UP, 8, 8, 9, sleep=1)
gu_frags(65536)
signal(T_CNT, C_UPR, 8, 9)
lab(lnu)
wait_cnt(T_CNT, C_UPR, 4, 8, 9, sleep=1)
stamp(15)
e("v_lshlrev_b32 v4, 4, v1")
e(f"s_lshl_b32 s{sT0}, s{sWAVE}, 13")
e(f"s_add_u32 s{sT1}, s{sT0}, 65536")
e(f"s_lshl_b32 s{sT2}, s{sR}, 16")
e(f"s_add_u32 s{sT2}, s{sT2}, s{sT0}")
for k in range(8):
    e(f"v_xor_b32 v5, {32*k}, v4")
    e(f"s_mov_b32 m0, s{sT1}")
    e(f"s_add_u32 s{sT1}, s{sT1}, 1024")
    e(f"buffer_load_dwordx4 v5, {SC}, s{sT2} offen nt lds")
    e(f"s_add_u32 s{sT2}, s{sT2}, 1024")
e("s_waitcnt vmcnt(8)")
signal(T_CNT, C_G, 8, 9)
lng = uid("NG")
e(f"s_cmp_ge_u32 s{sWAVE}, 4")
e(f"s_cbranch_scc1 {lng}")
wait_cnt(T_CNT, C_G, 8, 8, 9, sleep=1)
gu_frags(0)
lab(lng)
e("s_waitcnt vmcnt(0)")
stamp(1)
lab("L_T_WEND")
def tail_addr():
    e(f"s_lshl_b32 s{sT6}, s{sWAVE}, 10")
    e("v_lshlrev_b32 v126, 4, v1")
    e(f"v_add_u32 v126, s{sT6}, v126")
    e(f"s_mul_i32 s{sT0}, s{sR}, {28*512}")
    e(f"s_add_u32 s{sT0}, s{sT0}, {WS_DP}")
    e(f"v_add_u32 v126, s{sT0}, v126")
    e(f"s_lshl_b32 s{sT0}, s{sWAVE}, 8")
    e("v_and_b32 v127, 31, v1")
    e("v_lshlrev_b32 v127, 3, v127")
    e(f"v_add_u32 v127, s{sT0}, v127")
    e(f"v_add_u32 v127, {T_RED}, v127")
tail_addr()
e("s_branch L_T_H2")
lab("L_T_STREAM")
e(f"s_sub_u32 s{sT4}, s{sWAVE}, 12")
e(f"s_lshl_b32 s{sT0}, s{sT4}, 10")
e("v_lshlrev_b32 v4, 4, v1")
e(f"buffer_load_dwordx4 v[8:11], v4, {SE}, s{sT0} offen")
e("s_barrier")
load_tag()
e("s_waitcnt vmcnt(0)")
silu_to_act(T_ACT, T_CNT)
fin_tag()
lab("L_T_MODS")
lb2 = uid("B2")
C_SC = C_P
wait_cnt(T_CNT, C_SC, 1, 4, 5, sleep=4)
lm1 = uid("LM"); lm2 = uid("LM")
e(f"s_cmp_ge_u32 s{sWAVE}, 12")
e(f"s_cbranch_scc1 {lm1}")
e(f"s_sub_u32 s{sT0}, s{sWAVE}, 8")
e(f"s_lshl_b32 s{sT0}, s{sT0}, 13")
e(f"s_add_u32 s{sT0}, s{sT0}, {WS_M}")
e("v_lshlrev_b32 v4, 4, v1")
e(f"v_add_u32 v4, s{sT0}, v4")
e("v_add_u32 v5, 2048, v4")
e("v_add_u32 v6, 4096, v4")
poll([(32, 5, 0), (36, 5, 1024), (40, 6, 0), (44, 6, 1024)], sleep=2)
for (src, dst) in ((32, 48), (36, 52)):
    unpack2(src, dst, dst+1); unpack2(src+2, dst+2, dst+3)
for (src, dst) in ((40, 56), (44, 60)):
    unpack2(src, dst, dst+1); unpack2(src+2, dst+2, dst+3)
for i in range(8):
    e(f"v_add_f32 v{56+i}, 1.0, v{56+i}")
for i in range(0, 8, 2):
    rnd2(56+i, 57+i, 4)
e(f"s_branch {lb2}")
lab(lm1)
e(f"s_cmp_lg_u32 s{sWAVE}, 12")
e(f"s_cbranch_scc1 {lm2}")
e("v_lshrrev_b32 v4, 2, v1")
e("v_lshlrev_b32 v4, 13, v4")
e("v_and_b32 v5, 3, v1")
e("v_lshl_add_u32 v4, v5, 4, v4")
e(f"s_lshl_b32 s{sT0}, s{sR}, 6")
e(f"s_add_u32 s{sT0}, s{sT0}, {WS_M}")
e(f"v_add_u32 v4, s{sT0}, v4")
e("v_add_u32 v6, 6144, v4")
e("v_lshrrev_b32 v7, 2, v1")
e("v_lshlrev_b32 v7, 10, v7")
e("v_lshl_add_u32 v7, v5, 3, v7")
e(f"s_lshl_b32 s{sT0}, s{sR}, 5")
e("s_mov_b64 s[98:99], exec")
e("s_mov_b64 exec, 0xffff")
e(f"buffer_load_dwordx2 v[44:45], v7, {SF}, s{sT0} offen")
poll([(32, 4, 0), (36, 6, 0)], sleep=2)
e("s_mov_b64 exec, s[98:99]")
unpack2(32, 48, 49); unpack2(34, 50, 51)
unpack2(36, 52, 53); unpack2(38, 54, 55)
unpack2(44, 56, 57); unpack2(45, 58, 59)
e(f"s_branch {lb2}")
lab(lm2)
e(f"s_cmp_lg_u32 s{sWAVE}, 13")
e(f"s_cbranch_scc1 {lb2}")
e("v_lshlrev_b32 v5, 4, v1")
e(f"v_add_u32 v5, {WS_XCC}, v5")
e("s_mov_b64 s[98:99], exec")
e("s_mov_b64 exec, 0xffff")
poll([(8, 5, 0)], sleep=4)
e(f"s_getreg_b32 s{sT0}, hwreg(HW_REG_XCC_ID)")
e(f"s_and_b32 s{sT0}, s{sT0}, 0xf")
e(f"v_cmp_eq_u32 vcc, s{sT0}, v8")
e(f"v_cmp_eq_u32 s[{sM0}:{sM1}], s{sT0}, v10")
e(f"s_and_b64 vcc, vcc, s[{sM0}:{sM1}]")
e("s_cmp_eq_u64 vcc, exec")
e(f"s_cselect_b32 s{sSAME}, 1, 0")
if "forcesc1" in OPT: e(f"s_mov_b32 s{sSAME}, 0")
e("s_mov_b64 exec, s[98:99]")
e(f"v_mov_b32 v8, {T_SAME}")
e(f"v_mov_b32 v9, s{sSAME}")
e("ds_write_b32 v8, v9")
signal(T_CNT, C_XS, 10, 11)
lab(lb2)
def read_same():
    e(f"v_mov_b32 v8, {T_SAME}")
    e("ds_read_b32 v9, v8")
    e("s_waitcnt lgkmcnt(0)")
    e(f"v_readfirstlane_b32 s{sSAME}, v9")
wait_cnt(T_CNT, C_XS, 1, 8, 9, sleep=2)
read_same()
tail_addr()
e(f"s_sub_u32 s{sT4}, s{sWAVE}, 8")
e(f"s_lshl_b32 s{sT6}, s{sT4}, 10")
e("v_lshlrev_b32 v124, 4, v1")
e(f"v_add_u32 v124, s{sT6}, v124")
e(f"s_lshl_b32 s{sT0}, s{sR}, 14")
e(f"s_add_u32 s{sT0}, s{sT0}, {WS_AP}")
e(f"v_add_u32 v124, s{sT0}, v124")
e("v_add_u32 v123, 0x2000, v124")
e("v_subrev_u32 v125, 2048, v127")
e(f"s_lshl_b32 s{sT6}, s{sT4}, 11")
e("v_lshlrev_b32 v4, 4, v1")
e(f"v_add_u32 v4, s{sT6}, v4")
e(f"s_mul_i32 s{sT0}, s{sR}, {28*512}")
e(f"s_add_u32 s{sT0}, s{sT0}, {WS_DP}")
e(f"buffer_load_dwordx4 v[8:11], v4, {WS}, s{sT0} offen nt")
e(f"buffer_load_dwordx4 v[12:15], v4, {WS}, s{sT0} offen offset:1024 nt")
e(f"s_lshl_b32 s{sT0}, s{sR}, 8")
e(f"s_add_u32 s{sT0}, s{sT0}, {WS_X2}")
e("v_lshlrev_b32 v4, 4, v1")
e("s_mov_b64 exec, 0xffff")
e(f"buffer_load_dwordx4 v[16:19], v4, {WS}, s{sT0} offen nt")
e("s_mov_b64 exec, -1")
e("s_waitcnt vmcnt(0)")
stamp(3)
larm = uid("ARM"); lal = uid("AL"); lgo = uid("GO"); lad = uid("AD")
e(f"s_cmp_lg_u32 s{sWAVE}, 8")
e(f"s_cbranch_scc1 {larm}")
e(f"s_mul_i32 s{sT0}, s{sR}, {28*16}")
e(f"s_add_u32 s{sT0}, s{sT0}, {WS_OML}")
e("v_lshlrev_b32 v4, 4, v1")
e(f"v_add_u32 v4, s{sT0}, v4")
e(f"s_mov_b32 s{sT5}, 0")
e(f"s_mov_b32 s{sSPIN}, 0")
e("s_mov_b32 exec_lo, 0x0fffffff")
e("s_mov_b32 exec_hi, 0")
lab(lal)
e(f"buffer_load_dwordx4 v[8:11], v4, {WS}, 0 offen sc1")
e("s_waitcnt vmcnt(0)")
e(f"v_cmp_eq_u32 vcc, s{sTAG}, v9")
e(f"v_cmp_eq_u32 s[{sM0}:{sM1}], s{sTAG}, v11")
e(f"s_and_b64 vcc, vcc, s[{sM0}:{sM1}]")
e("s_cmp_eq_u64 vcc, 0")
e(f"s_cbranch_scc1 {lgo}")
e(f"s_cmp_lg_u32 s{sT5}, 0")
e(f"s_cbranch_scc1 {lgo}")
e(f"s_mov_b32 s{sT5}, 1")
e("s_mov_b64 s[96:97], vcc")
signal(T_CNT, C_GO, 12, 13)
e("s_mov_b64 vcc, s[96:97]")
lab(lgo)
e("s_cmp_eq_u64 vcc, exec")
e(f"s_cbranch_scc1 {lad}")
e("s_sleep 3")
e(f"s_add_u32 s{sSPIN}, s{sSPIN}, 1")
e(f"s_cmp_lt_u32 s{sSPIN}, {SPIN_MAX}")
e(f"s_cbranch_scc1 {lal}")
e("s_branch L_END")
lab(lad)
e("s_mov_b64 exec, -1")
signal(T_CNT, C_ARM, 12, 13)
lab(larm)
wait_cnt(T_CNT, C_ARM, 1, 8, 9, sleep=1)
stamp(17)
poll([(8, 124, 0), (12, 123, 0)])
stamp(9)
def red_write(addr):
    e("v_mov_b32 v12, v8")
    e("v_mov_b32 v13, v10")
    nop(2)
    e("v_permlane32_swap_b32 v8, v12")
    e("v_permlane32_swap_b32 v10, v13")
    nop(1)
    e("v_add_f32 v8, v8, v12")
    e("v_add_f32 v9, v10, v13")
    e("s_mov_b32 exec_hi, 0")
    e(f"ds_write_b64 v{addr}, v[8:9]")
    e("s_mov_b32 exec_hi, -1")
def red_read(nw):
    per = 4 if nw > 8 else 2
    e(f"v_lshlrev_b32 v4, {10 if per == 4 else 9}, v2")
    e("v_lshl_add_u32 v4, v3, 4, v4")
    e(f"v_add_u32 v4, {T_RED}, v4")
    for i in range(per):
        e(f"ds_read_b128 v[{8+4*i}:{11+4*i}], v4 offset:{256*i}")
def red_sum(nw):
    e("s_waitcnt lgkmcnt(0)")
    if nw == 14:
        e("v_cmp_eq_u32 vcc, 3, v2")
        nop(2)
        for i in range(16, 24): e(f"v_cndmask_b32 v{i}, v{i}, v30, vcc")
    e("v_pk_add_f32 v[8:9], v[8:9], v[12:13]")
    e("v_pk_add_f32 v[10:11], v[10:11], v[14:15]")
    if nw > 8:
        e("v_pk_add_f32 v[16:17], v[16:17], v[20:21]")
        e("v_pk_add_f32 v[18:19], v[18:19], v[22:23]")
        e("v_pk_add_f32 v[8:9], v[8:9], v[16:17]")
        e("v_pk_add_f32 v[10:11], v[10:11], v[18:19]")
    for sw in ("v_permlane16_swap_b32", "v_permlane32_swap_b32"):
        for i in range(4): e(f"v_mov_b32 v{12+i}, v{8+i}")
        nop(1)
        for i in range(4): e(f"{sw} v{8+i}, v{12+i}")
        nop(1)
        e("v_pk_add_f32 v[8:9], v[8:9], v[12:13]")
        e("v_pk_add_f32 v[10:11], v[10:11], v[14:15]")
e("v_add_f32 v8, v8, v12")
e("v_add_f32 v10, v10, v14")
red_write(125)
signal(T_CNT, C_RED, 12, 13)
stamp(4)
lw12 = uid("W12")
e(f"s_cmp_lg_u32 s{sWAVE}, 12")
e(f"s_cbranch_scc1 {lw12}")
wait_cnt(T_CNT, C_RED, 8, 8, 9, sleep=0)
red_read(8)
e("v_lshrrev_b32 v4, 2, v1")
e("v_lshlrev_b32 v4, 11, v4")
e("v_and_b32 v5, 3, v1")
e("v_lshl_add_u32 v4, v5, 4, v4")
e(f"s_lshl_b32 s{sT0}, s{sR}, 6")
e(f"s_add_u32 s{sT0}, s{sT0}, {WS_X2}")
red_sum(8)
e(f"v_mov_b32 v17, s{sTAG}")
e(f"v_mov_b32 v19, s{sTAG}")
rnd2(8, 9, 12); rnd2(10, 11, 13)
e("v_pk_mul_f32 v[8:9], v[48:49], v[8:9]")
e("v_pk_mul_f32 v[10:11], v[50:51], v[10:11]")
rnd2(8, 9, 12); rnd2(10, 11, 13)
e("v_pk_add_f32 v[8:9], v[56:57], v[8:9]")
e("v_pk_add_f32 v[10:11], v[58:59], v[10:11]")
e("v_cvt_pk_bf16_f32 v16, v8, v9")
e("v_cvt_pk_bf16_f32 v18, v10, v11")
e("s_mov_b64 exec, 0xffff")
lsc = uid("SC"); lsd = uid("SD")
e(f"s_cmp_eq_u32 s{sSAME}, 1")
e(f"s_cbranch_scc0 {lsc}")
e(f"buffer_store_dwordx4 v[16:19], v4, {WS}, s{sT0} offen")
e(f"s_branch {lsd}")
lab(lsc)
e(f"buffer_store_dwordx4 v[16:19], v4, {WS}, s{sT0} offen sc1")
lab(lsd)
e("s_mov_b64 exec, -1")
unpack2(16, 60, 61); unpack2(18, 62, 63)
stamp(10)
lab(lw12)
lln = uid("LN")
e(f"s_cmp_lt_u32 s{sWAVE}, 8")
e(f"s_cbranch_scc1 {lln}")
e(f"s_cmp_ge_u32 s{sWAVE}, 12")
e(f"s_cbranch_scc1 {lln}")
e(f"s_sub_u32 s{sT4}, s{sWAVE}, 8")
e(f"s_lshl_b32 s{sT0}, s{sT4}, 11")
e(f"s_add_u32 s{sT0}, s{sT0}, {WS_X2}")
e("v_lshlrev_b32 v4, 4, v1")
e(f"v_add_u32 v4, s{sT0}, v4")
e("v_lshrrev_b32 v6, 3, v1")
e("v_lshlrev_b32 v6, 6, v6")
e("v_and_b32 v7, 3, v1")
e("v_lshl_add_u32 v6, v7, 4, v6")
e("v_bfe_u32 v7, v1, 2, 1")
e("v_lshl_add_u32 v6, v7, 3, v6")
e(f"s_mul_i32 s{sT0}, s{sT4}, 1088")
e(f"s_add_u32 s{sT0}, s{sT0}, {T_H2}")
e(f"v_add_u32 v6, s{sT0}, v6")
poll([(8, 4, 0), (12, 4, 1024)], intra=True)
stamp(11)
unpack2(8, 16, 17); unpack2(10, 18, 19); unpack2(12, 20, 21); unpack2(14, 22, 23)
layernorm8(16, 24)
for i in range(0, 8, 2):
    e(f"v_pk_mul_f32 v[{16+i}:{17+i}], v[{16+i}:{17+i}], v[{56+i}:{57+i}]")
for i in range(0, 8, 2):
    rnd2(16+i, 17+i, 24)
for i in range(0, 8, 2):
    e(f"v_pk_add_f32 v[{16+i}:{17+i}], v[{16+i}:{17+i}], v[{48+i}:{49+i}]")
for i in range(4):
    e(f"v_cvt_pk_bf16_f32 v{8+i}, v{16+2*i}, v{17+2*i}")
e("ds_write_b64 v6, v[8:9]")
e("ds_write_b64 v6, v[10:11] offset:512")
stamp(12)
lab(lln)
lab("L_T_H2")
e("v_and_b32 v5, 3, v1")
e("v_mul_u32_u24 v6, 1088, v5")
e("v_lshl_add_u32 v6, v2, 4, v6")
e(f"v_add_u32 v6, {T_H2}, v6")
e("v_lshlrev_b32 v4, 6, v3")
e("v_lshl_add_u32 v4, v2, 4, v4")
e(f"s_lshl_b32 s{sT0}, s{sWAVE}, 8")
e(f"s_add_u32 s{sT0}, s{sT0}, {T_GU}")
e(f"v_add_u32 v4, s{sT0}, v4")
e("s_waitcnt lgkmcnt(0)")
e("s_barrier")
stamp(5)
e(f"v_mov_b32 v8, {T_SAME}")
e("ds_read_b32 v9, v8")
lfin = uid("FIN")
e(f"s_cmp_ge_u32 s{sR}, 28")
lfin0 = uid("FIN0")
e(f"s_cbranch_scc1 {lfin0}")
e("v_lshrrev_b32 v10, 2, v3")
e("v_lshl_add_u32 v10, v2, 2, v10")
e("v_and_b32 v11, 7, v10")
e(f"s_lshl_b32 s{sT0}, s{sWAVE}, 1")
e(f"v_xor_b32 v11, s{sT0}, v11")
e("v_lshlrev_b32 v11, 5, v11")
e("v_lshl_add_u32 v11, v10, 10, v11")
e("v_and_b32 v10, 3, v1")
e("v_lshl_add_u32 v11, v10, 3, v11")
e("v_add_u32 v11, 0x10000, v11")
e("v_xor_b32 v10, 32, v11")
for j in range(2):
    for ks in range(2):
        d = 96 + 8*j + 4*ks
        e(f"ds_read_b64_tr_b16 v[{d}:{d+1}], v{[11,10][j]} offset:{32768*ks}")
        e(f"ds_read_b64_tr_b16 v[{d+2}:{d+3}], v{[11,10][j]} offset:{32768*ks+16384}")
e("s_waitcnt lgkmcnt(8)")
e(f"v_readfirstlane_b32 s{sSAME}, v9")
lg = uid("G")
e(f"s_cmp_ge_u32 s{sWAVE}, 8")
e(f"s_cbranch_scc1 {lg}")
def tbread(grp):
    base = [8, 112][grp % 2]
    for k in range(4):
        ks = 4*grp + k
        e(f"ds_read_b128 v[{base+4*k}:{base+4*k+3}], v6 offset:{64*ks}")
def tb_regs(grp, k):
    if grp % 2 == 0: return 8 + 4*k
    return [112, 116, 120, 28][k]
def tbread2(grp):
    for k in range(4):
        ks = 4*grp + k; b_ = tb_regs(grp, k)
        e(f"ds_read_b128 v[{b_}:{b_+3}], v6 offset:{64*ks}")
tbread2(0); tbread2(1)
for grp in range(4):
    e(f"s_waitcnt lgkmcnt({4 if grp < 3 else 0})")
    for k in range(4):
        ks = 4*grp + k; b_ = tb_regs(grp, k)
        cin = "0" if ks == 0 else "v[24:27]"
        e(f"v_mfma_f32_16x16x32_bf16 v[24:27], v[{32+4*ks}:{35+4*ks}], v[{b_}:{b_+3}], {cin}")
    if grp + 2 < 4: tbread2(grp + 2)
nop(8)
stamp(13)
rnd2(24, 25, 28); rnd2(26, 27, 29)
lup2 = uid("UPW")
e(f"s_cmp_ge_u32 s{sWAVE}, 4")
e(f"s_cbranch_scc1 {lup2}")
for i in range(4): e(f"v_mul_f32 v{16+i}, {NLOG2E:#x}, v{24+i}")
for i in range(4): e(f"v_exp_f32 v{16+i}, v{16+i}")
nop(1)
for i in range(4): e(f"v_add_f32 v{16+i}, 1.0, v{16+i}")
for i in range(4): e(f"v_rcp_f32 v{16+i}, v{16+i}")
nop(1)
e("v_pk_mul_f32 v[24:25], v[24:25], v[16:17]")
e("v_pk_mul_f32 v[26:27], v[26:27], v[18:19]")
rnd2(24, 25, 28); rnd2(26, 27, 29)
e(f"s_branch {lg}")
lab(lup2)
e("v_cmp_gt_u32 vcc, 4, v3")
e(f"s_and_saveexec_b64 s[{sM0}:{sM1}], vcc")
e("ds_write_b128 v4, v[24:27]")
e(f"s_mov_b64 exec, s[{sM0}:{sM1}]")
lab(lg)
e("v_and_b32 v5, 3, v1")
e("v_lshlrev_b32 v4, 6, v5")
e("v_lshl_add_u32 v4, v2, 4, v4")
e(f"s_lshl_b32 s{sT0}, s{sWAVE}, 8")
e(f"s_add_u32 s{sT0}, s{sT0}, {T_GU + 1024}")
e(f"v_add_u32 v4, s{sT0}, v4")
e("v_mul_u32_u24 v7, 192, v5")
e("v_lshl_add_u32 v7, v2, 4, v7")
e(f"s_lshr_b32 s{sT0}, s{sWAVE}, 1")
e(f"s_lshl_b32 s{sT0}, s{sT0}, 6")
e(f"s_and_b32 s{sT1}, s{sWAVE}, 1")
e(f"s_lshl_b32 s{sT1}, s{sT1}, 3")
e(f"s_add_u32 s{sT0}, s{sT0}, s{sT1}")
e(f"s_add_u32 s{sT0}, s{sT0}, {T_ACTL}")
e(f"v_add_u32 v7, s{sT0}, v7")
e("v_mul_u32_u24 v6, 192, v5")
e("v_lshl_add_u32 v6, v2, 4, v6")
e(f"v_add_u32 v6, {T_ACTL}, v6")
e("s_waitcnt lgkmcnt(0)")
e("s_barrier")
la = uid("A")
e(f"s_cmp_ge_u32 s{sWAVE}, 4")
e(f"s_cbranch_scc1 {la}")
e("ds_read_b128 v[12:15], v4")
e("v_cmp_gt_u32 vcc, 4, v3")
e("s_waitcnt lgkmcnt(0)")
e("v_pk_mul_f32 v[24:25], v[24:25], v[12:13]")
e("v_pk_mul_f32 v[26:27], v[26:27], v[14:15]")
e("v_cvt_pk_bf16_f32 v8, v24, v25")
e("v_cvt_pk_bf16_f32 v9, v26, v27")
e(f"s_and_saveexec_b64 s[{sM0}:{sM1}], vcc")
e("ds_write_b64 v7, v[8:9]")
e(f"s_mov_b64 exec, s[{sM0}:{sM1}]")
lab(la)
e("v_lshlrev_b32 v4, 7, v5")
e("v_lshl_add_u32 v4, v2, 5, v4")
e("v_bfe_u32 v7, v1, 2, 1")
e("v_lshl_add_u32 v4, v7, 4, v4")
e(f"v_cmp_eq_u32 s[{sM0}:{sM1}], 1, v7")
e("v_bfe_u32 v7, v1, 3, 1")
e(f"v_mul_u32_u24 v16, {28*512}, v7")
e("v_add_u32 v4, v4, v16")
e(f"v_cmp_eq_u32 s[{sM2}:{sM3}], 1, v7")
e(f"s_lshl_b32 s{sT0}, s{sWAVE}, 1")
e(f"s_mul_i32 s{sT0}, s{sT0}, {28*512}")
e(f"s_lshl_b32 s{sT1}, s{sR}, 9")
e(f"s_add_u32 s{sT0}, s{sT0}, s{sT1}")
e(f"s_add_u32 s{sT0}, s{sT0}, {WS_DP}")
e(f"v_mov_b32 v29, s{sTAG}")
e(f"v_mov_b32 v31, s{sTAG}")
e("s_waitcnt lgkmcnt(0)")
e("s_barrier")
stamp(6)
e("ds_read_b128 v[8:11], v6")
e("ds_read_b128 v[12:15], v6 offset:64")
e("s_waitcnt lgkmcnt(0)")
for ks in range(2):
    for j in range(2):
        d = 96 + 8*j + 4*ks
        cin = "0" if ks == 0 else f"v[{16+4*j}:{19+4*j}]"
        e(f"v_mfma_f32_16x16x32_bf16 v[{16+4*j}:{19+4*j}], v[{d}:{d+3}], v[{8+4*ks}:{11+4*ks}], {cin}")
nop(8)
e(f"v_cndmask_b32 v24, v16, v18, s[{sM0}:{sM1}]")
e(f"v_cndmask_b32 v25, v20, v22, s[{sM0}:{sM1}]")
e(f"v_cndmask_b32 v26, v17, v19, s[{sM0}:{sM1}]")
e(f"v_cndmask_b32 v27, v21, v23, s[{sM0}:{sM1}]")
e(f"v_cndmask_b32 v28, v24, v25, s[{sM2}:{sM3}]")
e(f"v_cndmask_b32 v30, v26, v27, s[{sM2}:{sM3}]")
lsc = uid("SC"); lsd = uid("SD")
e(f"s_cmp_eq_u32 s{sSAME}, 1")
e(f"s_cbranch_scc0 {lsc}")
e(f"buffer_store_dwordx4 v[28:31], v4, {WS}, s{sT0} offen")
e(f"s_branch {lsd}")
lab(lsc)
e(f"buffer_store_dwordx4 v[28:31], v4, {WS}, s{sT0} offen sc1")
lab(lsd)
stamp(7)
e(f"s_branch {lfin}")
lab(lfin0)
e("s_waitcnt lgkmcnt(0)")
e(f"v_readfirstlane_b32 s{sSAME}, v9")
lab(lfin)
lf2 = uid("F2")
e(f"s_cmp_ge_u32 s{sWAVE}, 14")
e(f"s_cbranch_scc1 {lf2}")
poll([(8, 126, 0)], intra=True)
stamp(14)
red_write(127)
lab(lf2)
e("s_waitcnt lgkmcnt(0)")
stamp(16)
e("s_barrier")
e(f"s_cmp_lg_u32 s{sWAVE}, 12")
e("s_cbranch_scc1 L_END")
red_read(14)
e("v_mov_b32 v30, 0")
e("v_lshrrev_b32 v4, 2, v1")
e("v_lshlrev_b32 v4, 10, v4")
e("v_and_b32 v5, 3, v1")
e("v_lshl_add_u32 v4, v5, 3, v4")
e(f"s_lshl_b32 s{sT0}, s{sR}, 5")
red_sum(14)
rnd2(8, 9, 12); rnd2(10, 11, 13)
e("v_pk_mul_f32 v[8:9], v[52:53], v[8:9]")
e("v_pk_mul_f32 v[10:11], v[54:55], v[10:11]")
rnd2(8, 9, 12); rnd2(10, 11, 13)
e("v_pk_add_f32 v[8:9], v[60:61], v[8:9]")
e("v_pk_add_f32 v[10:11], v[62:63], v[10:11]")
e("v_cvt_pk_bf16_f32 v16, v8, v9")
e("v_cvt_pk_bf16_f32 v17, v10, v11")
e("s_mov_b64 exec, 0xffff")
e(f"buffer_store_dwordx2 v[16:17], v4, {SD}, s{sT0} offen")
le = uid("EP")
e(f"s_cmp_lg_u32 s{sR}, 0")
e(f"s_cbranch_scc1 {le}")
e("s_mov_b64 exec, 1")
e(f"v_mov_b32 v8, s{sTAG}")
e(f"s_mov_b32 s{sT0}, {WS_EPOCH}")
e(f"buffer_store_dword v8, off, {WS}, s{sT0} sc1")
lab(le)
if "span" in OPT:
    e(f"s_mov_b32 s28, s{P_DBG}")
    e(f"s_and_b32 s29, s{P_DBG+1}, 0xffff")
    e("s_mov_b32 s30, 256")
    e("s_mov_b32 s31, 0x20000")
    e("s_waitcnt vmcnt(0)")
    e(f"s_memrealtime s[{sST0}:{sST1}]")
    e("s_waitcnt lgkmcnt(0)")
    e(f"v_mov_b32 v8, s{sST0}")
    e("s_mov_b64 exec, 1")
    e("buffer_atomic_umax v8, off, s[28:31], 0 offset:4")
stamp(8)
lab("L_END")
if DIAG:
    e("s_mov_b64 exec, -1")
    stamp(31)
    e("v_lshlrev_b32 v4, 2, v1")
    e("v_cmp_gt_u32 vcc, 32, v1")
    e(f"s_and_saveexec_b64 s[{sM0}:{sM1}], vcc")
    e(f"buffer_store_dword v0, v4, {WS}, s{sSTAMP} offen")
lab("L_EXIT")
e("s_endpgm")

L.append('.section .rodata,"a"')
L.append(".p2align 6")
L.append(f".amdhsa_kernel {NAME}_kernel")
L.append("  .amdhsa_next_free_vgpr 128")
L.append("  .amdhsa_next_free_sgpr 102")
L.append("  .amdhsa_accum_offset 128")
L.append("  .amdhsa_group_segment_fixed_size 0")
L.append("  .amdhsa_kernarg_size 112")
L.append("  .amdhsa_user_sgpr_count 2")
L.append("  .amdhsa_user_sgpr_kernarg_segment_ptr 1")
L.append("  .amdhsa_system_sgpr_workgroup_id_x 1")
L.append("  .amdhsa_float_denorm_mode_32 3")
L.append(".end_amdhsa_kernel")

open(sys.argv[1], "w").write("\n".join(x for x in L if x is not None) + "\n")
```

```python
import sys

DIAG = int(sys.argv[2]) if len(sys.argv) > 2 else 0
import os
OPT = set(os.environ.get("OPT", "").split(","))
NAME = "adaLN_cond__sliding_block_cached__swiglu_ffn__decode"

L = []
def e(s): L.append("    " + s)
def lab(s): L.append(s + ":")
def c(s): L.append("    ; " + s)
def nop(n):
    while n > 0:
        k = min(n, 16); e(f"s_nop {k-1}"); n -= k
_uid = [0]
def uid(p):
    _uid[0] += 1
    return f"{p}_{_uid[0]}"

WS_EPOCH = 0
WS_XCC   = 0x100
WS_HS    = 0x200
WS_QS    = 0x400
WS_MS    = 0xC00
WS_H     = 0x1000
WS_X2    = 0x3000
WS_M     = 0x8000
WS_Q     = 0x10000
WS_OML   = 0x20000
WS_OD    = 0x40000
WS_AP    = 0xC0000
WS_DP    = 0x140000
WS_SC    = 0x1B0000
WS_STAMP = 0x200000
WS_SIZE  = 0x300000

S_V    = 0
S_E    = 81920
S_L    = 114688
S_MISC = 147456
S_ACT  = S_MISC
S_QL   = S_ACT + 4352
S_XN   = S_QL + 1280
S_EXC  = S_XN + 256
S_MAXB = S_EXC + 256
S_PB   = S_MAXB + 256
S_CNT  = S_PB + 2560
S_CG   = S_V
S_CML  = S_V + 8704
LDS_BYTES = 163840
C_EARLY, C_ACT, C_EXC, C_XN, C_KL, C_Q, C_MAX, C_P, F_V, C_PVD, C_LATE, C_HD, C_WQ, C_QD = range(14)

T_W    = 0
T_WQ   = 0
T_HST  = 122880
T_HM   = 155648
T_ACT  = T_HM
T_XN   = T_ACT + 4352
T_EXC  = T_XN + 256
T_CNT  = T_EXC + 256
T_SAME = T_CNT + 64
T_HL   = 131072 + 16384
T_MISC = 131072
T_ACC1 = T_MISC
T_ACC2 = T_ACC1 + 256
T_H2   = T_ACC2 + 256
T_GU   = T_H2 + 4352
T_ACTL = T_GU + 2048
T_RED  = T_ACTL + 768

sWAVE, sTAG, sX8, sR, sS = 3, 4, 5, 6, 7
WS, SA, SB, SC, SD, SE, SF = "s[8:11]", "s[12:15]", "s[16:19]", "s[20:23]", "s[24:27]", "s[28:31]", "s[32:35]"
P_X, P_K, P_V, P_WQ, P_WO, P_BX, P_WG, P_WU, P_WD, P_C, P_WM, P_OUT, P_DBG, P_WS = [36 + 2*i for i in range(14)]
sT0, sT1, sT2, sT3, sT4, sT5, sT6, sT7 = 64, 65, 66, 67, 68, 69, 70, 71
sM0, sM1 = 72, 73
sM2, sM3 = 74, 75
sSTAMP = 76
sKV = 77
sNT = 78
sU = 79
sUI = 80
sLATE = 81
sSPIN = 82
sSTRIDE = 83
sCB0, sCB1 = 84, 85
sP, sJ = 86, 87
sSAME = 88
sST0, sST1 = 90, 91
sH = 92; sNQ = 93; sQCU = 95; sKDONE = 100

SPIN_MAX = 200000
LSPIN_MAX = 4000000

def csel2(dst, a, b):
    e(f"s_mov_b32 s{dst}, {b}")
    e(f"s_cselect_b32 s{dst}, {a}, s{dst}")

def srd(dst0, ptr, nbytes):
    e(f"s_mov_b32 s{dst0}, s{ptr}")
    e(f"s_and_b32 s{dst0+1}, s{ptr+1}, 0xffff")
    e(f"s_mov_b32 s{dst0+2}, {nbytes}")
    e(f"s_mov_b32 s{dst0+3}, 0x20000")

def stamp(k, wave=None):
    if not DIAG: return
    l = None
    if wave is not None:
        l = uid("ST"); e(f"s_cmp_lg_u32 s{sWAVE}, {wave}"); e(f"s_cbranch_scc1 {l}")
    e(f"s_memrealtime s[{sST0}:{sST1}]")
    e("s_waitcnt lgkmcnt(0)")
    e(f"v_writelane_b32 v0, s{sST0}, {k}")
    if l: lab(l)

def signal(cnt_base, k, vt0, vt1):
    e(f"v_mov_b32 v{vt0}, {cnt_base + 4*k}")
    e(f"v_mov_b32 v{vt1}, 1")
    e(f"s_mov_b64 s[{sM2}:{sM3}], exec")
    e("s_mov_b64 exec, 1")
    e(f"ds_add_u32 v{vt0}, v{vt1}")
    e(f"s_mov_b64 exec, s[{sM2}:{sM3}]")

def wait_cnt(cnt_base, k, target, vt0, vt1, sleep=1):
    l = uid("W"); d = uid("WD")
    e(f"v_mov_b32 v{vt0}, {cnt_base + 4*k}")
    e(f"s_mov_b32 s{sSPIN}, 0")
    lab(l)
    e(f"ds_read_b32 v{vt1}, v{vt0}")
    e("s_waitcnt lgkmcnt(0)")
    e(f"v_readfirstlane_b32 s{sT7}, v{vt1}")
    e(f"s_cmp_ge_u32 s{sT7}, {target}")
    e(f"s_cbranch_scc1 {d}")
    if sleep: e(f"s_sleep {sleep}")
    e(f"s_add_u32 s{sSPIN}, s{sSPIN}, 1")
    e(f"s_cmp_lt_u32 s{sSPIN}, {LSPIN_MAX}")
    e(f"s_cbranch_scc1 {l}")
    e("s_branch L_END")
    lab(d)

def wait_mask(cnt_base, k, need, vt0, vt1, sleep=0):
    l = uid("W"); d = uid("WD")
    e(f"v_mov_b32 v{vt0}, {cnt_base + 4*k}")
    e(f"s_mov_b32 s{sSPIN}, 0")
    lab(l)
    e(f"ds_read_b32 v{vt1}, v{vt0}")
    e("s_waitcnt lgkmcnt(0)")
    e(f"v_readfirstlane_b32 s{sT7}, v{vt1}")
    e(f"s_and_b32 s{sT7}, s{sT7}, {need}")
    e(f"s_cmp_eq_u32 s{sT7}, {need}")
    e(f"s_cbranch_scc1 {d}")
    if sleep: e(f"s_sleep {sleep}")
    e(f"s_add_u32 s{sSPIN}, s{sSPIN}, 1")
    e(f"s_cmp_lt_u32 s{sSPIN}, {LSPIN_MAX}")
    e(f"s_cbranch_scc1 {l}")
    e("s_branch L_END")
    lab(d)

def signal_or(cnt_base, k, sbit, vt0, vt1):
    e(f"v_mov_b32 v{vt0}, {cnt_base + 4*k}")
    e(f"v_mov_b32 v{vt1}, s{sbit}")
    e(f"s_mov_b64 s[{sM2}:{sM3}], exec")
    e("s_mov_b64 exec, 1")
    e(f"ds_or_b32 v{vt0}, v{vt1}")
    e(f"s_mov_b64 exec, s[{sM2}:{sM3}]")

def poll(loads, sleep=0, intra=False, pre=0):
    d = uid("PD")
    if pre: e(f"s_sleep {pre}")
    e(f"s_mov_b32 s{sSPIN}, 0")
    flavs = ["sc1"]
    lsc = None
    if intra:
        lsc = uid("PS")
        e(f"s_cmp_eq_u32 s{sSAME}, 1")
        e(f"s_cbranch_scc0 {lsc}")
        flavs = ["nt", "sc1"]
    for fi, fl in enumerate(flavs):
        if intra and fi == 1: lab(lsc)
        l = uid("P")
        lab(l)
        for (dst, voff, imm) in loads:
            e(f"buffer_load_dwordx4 v[{dst}:{dst+3}], v{voff}, {WS}, 0 offen offset:{imm} {fl}")
        e("s_waitcnt vmcnt(0)")
        first = True
        for (dst, voff, imm) in loads:
            if first:
                e(f"v_cmp_eq_u32 vcc, s{sTAG}, v{dst+1}")
                first = False
            else:
                e(f"v_cmp_eq_u32 s[{sM0}:{sM1}], s{sTAG}, v{dst+1}")
                e(f"s_and_b64 vcc, vcc, s[{sM0}:{sM1}]")
            e(f"v_cmp_eq_u32 s[{sM0}:{sM1}], s{sTAG}, v{dst+3}")
            e(f"s_and_b64 vcc, vcc, s[{sM0}:{sM1}]")
        e("s_cmp_eq_u64 vcc, exec")
        e(f"s_cbranch_scc1 {d}")
        if sleep: e(f"s_sleep {sleep}")
        e(f"s_add_u32 s{sSPIN}, s{sSPIN}, 1")
        e(f"s_cmp_lt_u32 s{sSPIN}, {SPIN_MAX}")
        e(f"s_cbranch_scc1 {l}")
        e("s_branch L_END")
    lab(d)

def load_tag():
    e(f"s_load_dword s{sTAG}, s[{P_WS}:{P_WS+1}], {WS_EPOCH}")

def fin_tag():
    e("s_waitcnt lgkmcnt(0)")
    e(f"s_add_u32 s{sTAG}, s{sTAG}, 0x9E3779B9")

def sentinel_store(soff_sgpr, vpair):
    e(f"s_mov_b64 s[{sM2}:{sM3}], exec")
    e("s_mov_b64 exec, 1")
    e(f"buffer_store_dwordx2 v[{vpair}:{vpair+1}], off, {WS}, s{soff_sgpr} sc1")
    e(f"s_mov_b64 exec, s[{sM2}:{sM3}]")

def poll_lanes(nlanes, dst, voff, sleep):
    e("s_mov_b64 s[98:99], exec")
    if nlanes < 64:
        m = (1 << nlanes) - 1
        e(f"s_mov_b32 exec_lo, {m & 0xffffffff:#x}")
        e(f"s_mov_b32 exec_hi, {m >> 32:#x}")
    poll([(dst, voff, 0)], sleep=sleep)
    e("s_mov_b64 exec, s[98:99]")

def allreduce2(va, vb, t0, t1, op="add"):
    ins = f"v_{op}_f32"
    nop(2)
    for ctl in ("quad_perm:[1,0,3,2]", "quad_perm:[2,3,0,1]", "row_half_mirror", "row_mirror"):
        e(f"{ins}_dpp v{va}, v{va}, v{va} {ctl} row_mask:0xf bank_mask:0xf")
        e(f"{ins}_dpp v{vb}, v{vb}, v{vb} {ctl} row_mask:0xf bank_mask:0xf")
        nop(1)
    for sw in ("v_permlane16_swap_b32", "v_permlane32_swap_b32"):
        e(f"v_mov_b32 v{t0}, v{va}")
        e(f"v_mov_b32 v{t1}, v{vb}")
        nop(2)
        e(f"{sw} v{va}, v{t0}")
        e(f"{sw} v{vb}, v{t1}")
        nop(1)
        e(f"{ins} v{va}, v{va}, v{t0}")
        e(f"{ins} v{vb}, v{vb}, v{t1}")

def rnd2(a, b, t):
    e(f"v_cvt_pk_bf16_f32 v{t}, v{a}, v{b}")
    e(f"v_lshlrev_b32 v{a}, 16, v{t}")
    e(f"v_and_b32 v{b}, 0xffff0000, v{t}")

def unpack2(src, lo, hi):
    e(f"v_lshlrev_b32 v{lo}, 16, v{src}")
    e(f"v_and_b32 v{hi}, 0xffff0000, v{src}")

LOG2E = 0x3fb8aa3b
NLOG2E = 0xbfb8aa3b
SCALE = 0x3db504f3
EPS = 0x3727c5ac
INV512 = 0x3b000000

def layernorm8(x0, t):
    d = t + 4
    a, b, t0, t1 = t, t+1, t+2, t+3
    e(f"v_readfirstlane_b32 s{sT0}, v{x0}")
    e(f"v_readfirstlane_b32 s{sT1}, v{x0}")
    nop(2)
    for i in range(0, 8, 2):
        e(f"v_pk_add_f32 v[{d+i}:{d+i+1}], v[{x0+i}:{x0+i+1}], s[{sT0}:{sT1}] neg_lo:[0,1] neg_hi:[0,1]")
    e(f"v_pk_add_f32 v[{t0}:{t1}], v[{d}:{d+1}], v[{d+2}:{d+3}]")
    e(f"v_pk_mul_f32 v[{a}:{b}], v[{d}:{d+1}], v[{d}:{d+1}]")
    e(f"v_pk_add_f32 v[{t0}:{t1}], v[{t0}:{t1}], v[{d+4}:{d+5}]")
    e(f"v_pk_fma_f32 v[{a}:{b}], v[{d+2}:{d+3}], v[{d+2}:{d+3}], v[{a}:{b}]")
    e(f"v_pk_add_f32 v[{t0}:{t1}], v[{t0}:{t1}], v[{d+6}:{d+7}]")
    e(f"v_pk_fma_f32 v[{a}:{b}], v[{d+4}:{d+5}], v[{d+4}:{d+5}], v[{a}:{b}]")
    e(f"v_pk_fma_f32 v[{a}:{b}], v[{d+6}:{d+7}], v[{d+6}:{d+7}], v[{a}:{b}]")
    e(f"v_add_f32 v{b}, v{a}, v{b}")
    e(f"v_add_f32 v{a}, v{t0}, v{t1}")
    allreduce2(a, b, t0, t1)
    e(f"v_mul_f32 v{a}, {INV512:#x}, v{a}")
    e(f"v_mul_f32 v{b}, {INV512:#x}, v{b}")
    e(f"v_fma_f32 v{b}, -v{a}, v{a}, v{b}")
    e(f"v_add_f32 v{a}, s{sT0}, v{a}")
    e(f"v_max_f32 v{b}, 0, v{b}")
    rnd2(a, b, t0)
    e(f"v_add_f32 v{b}, {EPS:#x}, v{b}")
    e(f"v_cvt_pk_bf16_f32 v{t0}, v{b}, v{b}")
    e(f"v_lshlrev_b32 v{b}, 16, v{t0}")
    e(f"v_sqrt_f32 v{b}, v{b}")
    nop(1)
    for i in range(0, 8, 2):
        e(f"v_pk_add_f32 v[{x0+i}:{x0+i+1}], v[{x0+i}:{x0+i+1}], v[{a}:{b}] op_sel_hi:[1,0] neg_lo:[0,1] neg_hi:[0,1]")
    e(f"v_cvt_pk_bf16_f32 v{t0}, v{b}, v{b}")
    e(f"v_lshlrev_b32 v{b}, 16, v{t0}")
    e(f"v_rcp_f32 v{t0}, v{b}")
    for i in range(0, 8, 2):
        rnd2(x0+i, x0+i+1, d)
    for i in range(0, 8, 2):
        e(f"v_pk_mul_f32 v[{x0+i}:{x0+i+1}], v[{x0+i}:{x0+i+1}], v[{t0}:{t1}] op_sel_hi:[1,0]")
    for i in range(0, 8, 2):
        rnd2(x0+i, x0+i+1, d)

def silu_inplace(x, t0, t1):
    e(f"v_mul_f32 v{t0}, {NLOG2E:#x}, v{x}")
    e(f"v_exp_f32 v{t0}, v{t0}")
    nop(1)
    e(f"v_add_f32 v{t0}, 1.0, v{t0}")
    e(f"v_rcp_f32 v{t1}, v{t0}")
    nop(1)
    e(f"v_mul_f32 v{x}, v{x}, v{t1}")


SSL = int(os.environ.get("SSL", "2"))
TSL = int(os.environ.get("TSL", "4"))
ENT = "" if "Enont" in OPT else " nt"
EK = int(os.environ.get("EK", "3"))
PSL = int(os.environ.get("PSL", "8"))
QKW = int(os.environ.get("QKW", "0"))
WK = int(os.environ.get("WK", "4"))
KOV = int(os.environ.get("KOV", "2"))
hdr = open("cdna_kernels/" + NAME + ".s.ref").read().split("\n")
for ln in hdr:
    if ln.startswith("; Override") or ln.startswith("; grid=") or ln.startswith("; @launch"): continue
    if ln.startswith(";"): L.append(ln)
    else: break
L.append(f"; @launch grid=(256,1,1) block=(1024,1,1) lds={LDS_BYTES}")
L.append('.amdgcn_target "amdgcn-amd-amdhsa--gfx950"')
L.append(".text")
L.append(f".globl {NAME}_kernel")
L.append(".p2align 8")
L.append(f".type {NAME}_kernel,@function")
lab(f"{NAME}_kernel")

sKVB = 94
sEX0, sEX1 = 96, 97

e("s_cmp_ge_u32 s2, 256")
e("s_cbranch_scc1 L_EXIT")
e("s_load_dwordx16 s[36:51], s[0:1], 0")
e("s_load_dwordx8 s[52:59], s[0:1], 64")
e("s_load_dwordx4 s[60:63], s[0:1], 96")
e("v_lshrrev_b32 v2, 6, v0")
e("v_and_b32 v1, 63, v0")
e(f"v_readfirstlane_b32 s{sWAVE}, v2")
e(f"s_and_b32 s{sX8}, s2, 7")
e(f"s_lshr_b32 s{sR}, s2, 3")
e("v_lshrrev_b32 v2, 4, v1")
e("v_and_b32 v3, 15, v1")
e(f"s_lshl_b32 s{sSTAMP}, s2, 4")
e(f"s_add_u32 s{sSTAMP}, s{sSTAMP}, s{sWAVE}")
e(f"s_lshl_b32 s{sSTAMP}, s{sSTAMP}, 7")
e(f"s_add_u32 s{sSTAMP}, s{sSTAMP}, {WS_STAMP}")
if DIAG: e("v_mov_b32 v0, 0")
stamp(0)
e("s_waitcnt lgkmcnt(0)")
srd(8, P_WS, WS_SIZE)
if "span" in OPT:
    lsp = uid("SP")
    e(f"s_cmp_lg_u32 s{sWAVE}, 0")
    e(f"s_cbranch_scc1 {lsp}")
    e(f"s_mov_b32 s28, s{P_DBG}")
    e(f"s_and_b32 s29, s{P_DBG+1}, 0xffff")
    e("s_mov_b32 s30, 256")
    e("s_mov_b32 s31, 0x20000")
    e(f"s_memrealtime s[{sST0}:{sST1}]")
    e("s_waitcnt lgkmcnt(0)")
    e(f"s_not_b32 s{sST0}, s{sST0}")
    e(f"v_mov_b32 v8, s{sST0}")
    e("s_mov_b64 exec, 1")
    e("buffer_atomic_umax v8, off, s[28:31], 0")
    e("s_mov_b64 exec, -1")
    lab(lsp)
e(f"s_cmp_eq_u32 s{sX8}, 7")
e("s_cbranch_scc1 L_T")

def line_dma_voff(stride):
    e("v_lshrrev_b32 v4, 3, v1")
    e(f"v_mul_u32_u24 v4, {stride}, v4")
    e("v_bfe_u32 v5, v1, 1, 2")
    e("v_bfe_u32 v6, v1, 4, 2")
    e("v_xor_b32 v5, v5, v6")
    e("v_lshl_add_u32 v4, v5, 5, v4")
    e("v_and_b32 v5, 1, v1")
    e("v_lshl_add_u32 v4, v5, 4, v4")
def tr_line_addr(dst, base_sgpr):
    e("v_lshrrev_b32 v4, 2, v3")
    e("v_lshl_add_u32 v4, v2, 2, v4")
    e("v_bfe_u32 v5, v4, 1, 2")
    e(f"s_and_b32 s{sT1}, s{sWAVE}, 3")
    e(f"v_xor_b32 v5, s{sT1}, v5")
    e("v_lshlrev_b32 v4, 7, v4")
    e("v_lshl_add_u32 v4, v5, 5, v4")
    e("v_and_b32 v5, 3, v1")
    e("v_lshl_add_u32 v4, v5, 3, v4")
    e(f"v_add_u32 v{dst}, s{base_sgpr}, v4")
def mfma16(vaddr):
    def regs(grp, k):
        if grp % 2 == 0: return 8 + 4*k
        return [112, 116, 120, 28][k]
    def rd(grp):
        for k in range(4):
            b_ = regs(grp, k)
            e(f"ds_read_b128 v[{b_}:{b_+3}], v{vaddr} offset:{64*(4*grp+k)}")
    rd(0); rd(1)
    for grp in range(4):
        e(f"s_waitcnt lgkmcnt({4 if grp < 3 else 0})")
        for k in range(4):
            ks = 4*grp + k; b_ = regs(grp, k)
            cin = "0" if ks == 0 else "v[24:27]"
            e(f"v_mfma_f32_16x16x32_bf16 v[24:27], v[{32+4*ks}:{35+4*ks}], v[{b_}:{b_+3}], {cin}")
        if grp + 2 < 4: rd(grp + 2)
    nop(8)
def line_unit(actbase, cnt, stride, rowshift):
    lq8 = uid("Q8"); lq4 = uid("Q4")
    e(f"s_cmp_ge_u32 s{sWAVE}, 8")
    e(f"s_cbranch_scc1 {lq8}")
    line_dma_voff(stride)
    e(f"s_lshl_b32 s{sT1}, s{sWAVE}, 13")
    e(f"s_mul_i32 s{sT2}, s{sWAVE}, {64*stride}")
    e(f"s_add_u32 s{sT2}, s{sT2}, s{sCB0}")
    for k in range(8):
        e(f"s_mov_b32 m0, s{sT1}")
        e(f"s_add_u32 s{sT1}, s{sT1}, 1024")
        e(f"buffer_load_dwordx4 v4, {SC}, s{sT2} offen nt lds")
        e(f"s_add_u32 s{sT2}, s{sT2}, {8*stride}")
    load_tag()
    e("s_waitcnt vmcnt(0)")
    signal(cnt, C_WQ, 8, 9)
    fin_tag()
    e(f"s_cmp_ge_u32 s{sWAVE}, 4")
    e(f"s_cbranch_scc1 {lq4}")
    e(f"s_mov_b32 s{sT2}, 0")
    tr_line_addr(7, sT2)
    e("v_and_b32 v5, 3, v1")
    e("v_mul_u32_u24 v6, 1088, v5")
    e("v_lshl_add_u32 v6, v2, 4, v6")
    e(f"v_add_u32 v6, {actbase}, v6")
    wait_cnt(cnt, C_WQ, 8, 8, 9, sleep=1)
    stamp(1)
    for ks in range(16):
        e(f"ds_read_b64_tr_b16 v[{32+4*ks}:{33+4*ks}], v7 offset:{4096*ks}")
        e(f"ds_read_b64_tr_b16 v[{34+4*ks}:{35+4*ks}], v7 offset:{4096*ks+2048}")
    wait_cnt(cnt, C_ACT, 4, 8, 9, sleep=1)
    stamp(2)
    mfma16(6)
    e("v_cvt_pk_bf16_f32 v28, v24, v25")
    e(f"v_mov_b32 v29, s{sTAG}")
    e("v_cvt_pk_bf16_f32 v30, v26, v27")
    e(f"v_mov_b32 v31, s{sTAG}")
    e(f"s_lshl_b32 s{sT2}, s{sWAVE}, 6")
    e(f"s_add_u32 s{sT1}, s{sCB1}, s{sT2}")
    e(f"v_lshlrev_b32 v8, {rowshift}, v3")
    e("v_lshl_add_u32 v8, v2, 4, v8")
    e("v_cmp_gt_u32 vcc, 4, v3")
    e(f"s_and_saveexec_b64 s[{sM0}:{sM1}], vcc")
    e(f"buffer_store_dwordx4 v[28:31], v8, {WS}, s{sT1} offen sc1")
    e(f"s_mov_b64 exec, s[{sM0}:{sM1}]")
    signal(cnt, C_QD, 8, 9)
    stamp(3)
    e(f"s_branch {lq4}")
    lab(lq8)
    load_tag()
    fin_tag()
    lab(lq4)

c("S role")
e(f"s_lshl_b32 s{sS}, s{sX8}, 5")
e(f"s_add_u32 s{sS}, s{sS}, s{sR}")
e(f"s_mul_i32 s{sT0}, s{sR}, 37")
e(f"s_lshr_b32 s{sT0}, s{sT0}, 8")
e(f"s_mul_i32 s{sT0}, s{sT0}, 7")
e(f"s_sub_u32 s{sT0}, s{sR}, s{sT0}")
e(f"s_add_u32 s{sT1}, s{sX8}, 7")
e(f"s_sub_u32 s{sT1}, s{sT1}, s{sT0}")
e(f"s_sub_u32 s{sT2}, s{sT1}, 7")
e(f"s_cmp_ge_u32 s{sT1}, 7")
e(f"s_cselect_b32 s{sT1}, s{sT2}, s{sT1}")
e(f"s_lshl_b32 s{sUI}, s{sR}, 1")
e(f"s_cmp_eq_u32 s{sT1}, 0")
e(f"s_cselect_b32 s{sQCU}, 1, 0")
e(f"s_cmp_eq_u32 s{sT1}, 3")
e(f"s_cselect_b32 s{sQCU}, 1, s{sQCU}")
e(f"s_cmp_eq_u32 s{sT1}, 1")
e(f"s_cselect_b32 s{sU}, 1, 0")
e(f"s_cmp_eq_u32 s{sT1}, 4")
e(f"s_cselect_b32 s{sU}, 1, s{sU}")
e(f"s_cmp_ge_u32 s{sT1}, 3")
e(f"s_addc_u32 s{sUI}, s{sUI}, 0")
e(f"s_lshr_b32 s{sT2}, 0x36, s{sT1}")
e(f"s_and_b32 s{sLATE}, s{sT2}, 1")
e(f"s_sub_u32 s{sNQ}, s{sT1}, 1")
e(f"s_cmp_ge_u32 s{sT1}, 4")
e(f"s_cselect_b32 s{sT2}, 1, 0")
e(f"s_sub_u32 s{sNQ}, s{sNQ}, s{sT2}")
e(f"s_mov_b32 s{sH}, s{sR}")
e(f"s_cmp_eq_u32 s{sQCU}, 1")
e(f"s_cselect_b32 s{sNT}, 7, 10")
e(f"s_add_u32 s{sT2}, s{sT0}, 3")
e(f"s_sub_u32 s{sT3}, s{sT2}, 7")
e(f"s_cmp_ge_u32 s{sT2}, 7")
e(f"s_cselect_b32 s{sT2}, s{sT3}, s{sT2}")
e(f"s_mul_i32 s{sT3}, s{sX8}, 10")
e(f"s_cmp_lt_u32 s{sT0}, s{sX8}")
e(f"s_cselect_b32 s{sT5}, 3, 0")
e(f"s_sub_u32 s{sT3}, s{sT3}, s{sT5}")
e(f"s_cmp_lt_u32 s{sT2}, s{sX8}")
e(f"s_cselect_b32 s{sT5}, 3, 0")
e(f"s_sub_u32 s{sT3}, s{sT3}, s{sT5}")
e(f"s_lshl_b32 s{sT0}, s{sT3}, 13")
e(f"s_lshl_b32 s{sT1}, s{sR}, 21")
e(f"s_add_u32 s{sKVB}, s{sT0}, s{sT1}")
e(f"s_add_u32 s{sKVB}, s{sKVB}, {6144*256}")

e(f"s_cmp_ge_u32 s{sWAVE}, 12")
e("s_cbranch_scc1 L_S_STREAM")
e(f"s_cmp_ge_u32 s{sWAVE}, 10")
e("s_cbranch_scc1 L_S_JOB")

c("tile waves 0..9")
srd(12, P_K, 4*8*8192*128*2)
e(f"s_lshl_b32 s{sT0}, s{sWAVE}, 13")
e(f"s_add_u32 s{sKV}, s{sKVB}, s{sT0}")
def k_addr():
    e("v_lshrrev_b32 v4, 2, v3")
    e("v_and_b32 v5, 1, v1")
    e("v_lshl_add_u32 v4, v4, 1, v5")
    e("v_lshlrev_b32 v4, 8, v4")
    e("v_bfe_u32 v5, v1, 1, 1")
    e("v_lshl_add_u32 v4, v5, 6, v4")
    e("v_lshl_add_u32 v4, v2, 4, v4")
def k_issue():
    e(f"s_add_u32 s{sT0}, s{sKV}, 4096")
    for kg in range(4):
        so = sKV if kg < 2 else sT0
        for s_ in range(2):
            d = 32 + 8*kg + 4*s_
            e(f"buffer_load_dwordx4 v[{d}:{d+3}], v4, {SA}, s{so} offen offset:{(kg & 1)*2048 + 128*s_} nt")
e(f"s_mov_b32 s{sT6}, 0")
le0 = uid("E0")
e(f"s_cmp_eq_u32 s{sQCU}, 1")
e(f"s_cbranch_scc1 {le0}")
e(f"s_cmp_ge_u32 s{sWAVE}, {min(WK, EK)}")
e(f"s_cbranch_scc1 {le0}")
k_addr()
k_issue()
e(f"s_mov_b32 s{sT6}, 1")
lab(le0)
e(f"s_mov_b32 s{sKDONE}, s{sT6}")
e("s_barrier")
lnq = uid("NOQ")
e(f"s_cmp_eq_u32 s{sQCU}, 0")
e(f"s_cbranch_scc1 {lnq}")
srd(20, P_WQ, 512*4096*2)
e(f"s_lshl_b32 s{sCB0}, s{sUI}, 7")
e(f"s_lshl_b32 s{sCB1}, s{sUI}, 8")
e(f"s_add_u32 s{sCB1}, s{sCB1}, {WS_Q}")
line_unit(S_ACT, S_CNT, 8192, 14)
wait_cnt(S_CNT, C_QD, 4, 8, 9, sleep=1)
lab(lnq)
e("v_and_b32 v8, 3, v1")
e("v_lshl_add_u32 v13, v2, 2, v8")
e("v_lshlrev_b32 v13, 4, v13")
e(f"v_add_u32 v13, {S_PB}, v13")
e(f"s_cmp_ge_u32 s{sWAVE}, s{sNT}")
e("s_cbranch_scc1 L_S_ATT_IDLE")
if "kafter" in OPT: wait_cnt(S_CNT, C_EARLY, 4, 8, 9, sleep=1)
lk = uid("K"); lkd = uid("KD")
e(f"s_cmp_eq_u32 s{sKDONE}, 1")
e(f"s_cbranch_scc1 {lkd}")
e(f"s_cmp_lt_u32 s{sWAVE}, {WK}")
e(f"s_cbranch_scc1 {lk}")
e(f"s_sub_u32 s{sT5}, s{sWAVE}, {WK-1}")
wait_cnt(S_CNT, C_KL, f"s{sT5}", 8, 9, sleep=1)
lab(lk)
k_addr()
k_issue()
lab(lkd)
load_tag()
stamp(11)
e("v_and_b32 v8, 3, v1")
e("v_mul_u32_u24 v10, 320, v8")
e("v_lshl_add_u32 v10, v2, 4, v10")
e("v_bfe_u32 v11, v1, 2, 1")
e("v_lshl_add_u32 v10, v11, 6, v10")
e(f"v_add_u32 v10, {S_QL}, v10")
e("v_lshlrev_b32 v11, 6, v8")
e(f"v_add_u32 v11, {S_MAXB}, v11")
e(f"s_lshl_b32 s{sT0}, s{sWAVE}, 2")
e(f"v_add_u32 v12, s{sT0}, v11")
e(f"s_lshl_b32 s{sT0}, s{sWAVE}, 8")
e(f"v_add_u32 v14, s{sT0}, v13")
e("s_waitcnt vmcnt(0)")
signal(S_CNT, C_KL, 8, 9)
fin_tag()
stamp(12)
wait_cnt(S_CNT, C_Q, 2, 8, 9, sleep=1)
stamp(14)
for s_ in range(2):
    e(f"ds_read_b128 v[{64+4*s_}:{67+4*s_}], v10 offset:{128*s_}")
e("s_waitcnt lgkmcnt(0)")
for s_ in range(2):
    for kg in range(4):
        A = 96 + 4*kg
        cin = "0" if s_ == 0 else f"v[{A}:{A+3}]"
        e(f"v_mfma_f32_16x16x32_bf16 v[{A}:{A+3}], v[{32+8*kg+4*s_}:{35+8*kg+4*s_}], v[{64+4*s_}:{67+4*s_}], {cin}")
e(f"s_mov_b32 s{sT2}, {SCALE:#x}")
e(f"s_mov_b32 s{sT3}, {SCALE:#x}")
e(f"s_mov_b32 s{sT4}, {LOG2E:#x}")
nop(5)
for kg in range(4):
    for e_ in range(2):
        A = 96 + 4*kg
        e(f"v_add_f32_dpp v{80+2*kg+e_}, v{A+2+e_}, v{A+e_} row_shl:4 row_mask:0xf bank_mask:0xf")
for i in range(0, 8, 2):
    rnd2(80+i, 81+i, 16)
for i in range(0, 8, 2):
    e(f"v_pk_mul_f32 v[{80+i}:{81+i}], v[{80+i}:{81+i}], s[{sT2}:{sT3}]")
for i in range(0, 8, 2):
    rnd2(80+i, 81+i, 16)
e("v_max3_f32 v16, v80, v81, v82")
e("v_max3_f32 v16, v16, v83, v84")
e("v_max3_f32 v16, v16, v85, v86")
e("v_max_f32 v16, v16, v87")
for sw in ("v_permlane16_swap_b32", "v_permlane32_swap_b32"):
    e("v_mov_b32 v17, v16")
    nop(2)
    e(f"{sw} v16, v17")
    nop(1)
    e("v_max_f32 v16, v16, v17")
e("v_cmp_gt_u32 vcc, 4, v1")
e(f"s_and_saveexec_b64 s[{sM0}:{sM1}], vcc")
e("ds_write_b32 v12, v16")
e(f"s_mov_b64 exec, s[{sM0}:{sM1}]")
signal(S_CNT, C_MAX, 8, 9)
wait_cnt(S_CNT, C_MAX, f"s{sNT}", 8, 9, sleep=0)
for i in range(3):
    e(f"ds_read_b128 v[{16+4*i}:{19+4*i}], v11 offset:{16*i}")
e("s_waitcnt lgkmcnt(0)")
e("v_max3_f32 v16, v16, v17, v18")
e("v_max3_f32 v19, v19, v20, v21")
e("v_max3_f32 v22, v22, v23, v24")
e("v_max3_f32 v25, v25, v26, v27")
e("v_max3_f32 v16, v16, v19, v22")
e("v_max_f32 v16, v16, v25")
e(f"v_mul_f32 v15, s{sT4}, v16")
for i in range(8):
    e(f"v_fma_f32 v{80+i}, v{80+i}, s{sT4}, -v15")
for i in range(8):
    e(f"v_exp_f32 v{80+i}, v{80+i}")
nop(1)
for i in range(4):
    e(f"v_cvt_pk_bf16_f32 v{16+i}, v{80+2*i}, v{81+2*i}")
e("v_cmp_gt_u32 vcc, 4, v3")
e(f"s_and_saveexec_b64 s[{sM0}:{sM1}], vcc")
e("ds_write_b128 v14, v[16:19]")
e(f"s_mov_b64 exec, s[{sM0}:{sM1}]")
signal(S_CNT, C_P, 8, 9)
stamp(15)
lab("L_S_PVSTART")
e(f"s_cmp_ge_u32 s{sWAVE}, 8")
e("s_cbranch_scc1 L_S_LATE")
e("v_bfe_u32 v9, v1, 3, 1")
e("v_bfe_u32 v10, v1, 2, 1")
e("v_lshl_add_u32 v10, v2, 1, v10")
e("v_lshl_add_u32 v11, v9, 3, v10")
e("v_lshlrev_b32 v9, 2, v9")
e("v_xor_b32 v10, v10, v9")
e(f"v_xor_b32 v10, s{sWAVE}, v10")
e("v_lshlrev_b32 v10, 5, v10")
e("v_lshl_add_u32 v10, v11, 8, v10")
e("v_and_b32 v11, 3, v1")
e("v_lshl_add_u32 v10, v11, 3, v10")
e("v_add_u32 v11, 0x10000, v10")
for i in range(4): e(f"v_mov_b32 v{28+i}, 0x3f803f80")
e(f"s_and_b32 s{sT0}, s{sR}, 7")
e(f"s_lshr_b32 s{sT1}, s{sR}, 3")
e(f"s_mul_i32 s{sT1}, s{sT1}, 7")
e(f"s_add_u32 s{sT1}, s{sT1}, s{sX8}")
e(f"s_mul_i32 s{sT0}, s{sT0}, {4*28}")
e(f"s_add_u32 s{sT0}, s{sT0}, s{sT1}")
e("v_mul_u32_u24 v12, 28, v3")
e(f"v_add_u32 v12, s{sT0}, v12")
e("v_lshlrev_b32 v14, 4, v12")
e("v_lshlrev_b32 v12, 9, v12")
e("v_lshl_add_u32 v12, v2, 4, v12")
e(f"s_lshl_b32 s{sT0}, s{sWAVE}, 6")
e(f"v_add_u32 v12, s{sT0}, v12")
e(f"v_mov_b32 v17, s{sTAG}")
e(f"v_mov_b32 v19, s{sTAG}")
e(f"v_mov_b32 v21, s{sTAG}")
e(f"v_mov_b32 v23, s{sTAG}")
wait_cnt(S_CNT, C_P, f"s{sNT}", 8, 9, sleep=0)
def vbase(a): return (10, a*8192) if a < 8 else (11, (a-8)*8192)
for NTv in (7, 10):
    lnext = uid("NT")
    if NTv == 7:
        e(f"s_cmp_eq_u32 s{sNT}, 7")
        e(f"s_cbranch_scc0 {lnext}")
    for a in range(NTv):
        e(f"ds_read_b128 v[{80+4*a}:{83+4*a}], v13 offset:{256*a}")
    for a in range(NTv):
        e(f"s_waitcnt lgkmcnt({NTv-1-a})")
        cin = "0" if a == 0 else "v[124:127]"
        e(f"v_mfma_f32_16x16x32_bf16 v[124:127], v[28:31], v[{80+4*a}:{83+4*a}], {cin}")
    wait_mask(S_CNT, F_V, (1 << (NTv-1)) - 1, 8, 9, sleep=1)
    stamp(16)
    n = NTv - 1; WIN = 7
    def vread(a):
        vb, off = vbase(a)
        e(f"ds_read_b64_tr_b16 v[{32+4*a}:{33+4*a}], v{vb} offset:{off}")
        e(f"ds_read_b64_tr_b16 v[{34+4*a}:{35+4*a}], v{vb} offset:{off+4096}")
    for a in range(min(WIN, n)): vread(a)
    for a in range(n):
        rem = 2*(min(a + WIN, n) - (a + 1))
        e(f"s_waitcnt lgkmcnt({rem})")
        cin = "0" if a == 0 else "v[120:123]"
        e(f"v_mfma_f32_16x16x32_bf16 v[120:123], v[{32+4*a}:{35+4*a}], v[{80+4*a}:{83+4*a}], {cin}")
        if a + WIN < n: vread(a + WIN)
    e("v_rcp_f32 v24, v124")
    wait_mask(S_CNT, F_V, (1 << NTv) - 1, 8, 9, sleep=0)
    stamp(13)
    a = NTv - 1
    vb, off = vbase(a)
    e(f"ds_read_b64_tr_b16 v[{32+4*a}:{33+4*a}], v{vb} offset:{off}")
    e(f"ds_read_b64_tr_b16 v[{34+4*a}:{35+4*a}], v{vb} offset:{off+4096}")
    e("s_waitcnt lgkmcnt(0)")
    e(f"v_mfma_f32_16x16x32_bf16 v[120:123], v[{32+4*a}:{35+4*a}], v[{80+4*a}:{83+4*a}], v[120:123]")
    if NTv == 7:
        e("s_branch L_S_PVEND")
        lab(lnext)
lab("L_S_PVEND")
signal(S_CNT, C_PVD, 8, 9)
e("v_mov_b32 v20, v15")
e("v_mov_b32 v22, v124")
nop(2)
e("v_pk_mul_f32 v[120:121], v[120:121], v[24:25] op_sel_hi:[1,0]")
e("v_pk_mul_f32 v[122:123], v[122:123], v[24:25] op_sel_hi:[1,0]")
e("v_cvt_pk_bf16_f32 v16, v120, v121")
e("v_cvt_pk_bf16_f32 v18, v122, v123")
e(f"s_mov_b32 s{sT2}, {WS_OD}")
e("v_cmp_gt_u32 vcc, 4, v3")
e(f"s_and_saveexec_b64 s[{sM0}:{sM1}], vcc")
e(f"buffer_store_dwordx4 v[16:19], v12, {WS}, s{sT2} offen sc1")
lml = uid("ML")
e(f"s_cmp_lg_u32 s{sWAVE}, 0")
e(f"s_cbranch_scc1 {lml}")
e("s_mov_b64 exec, 15")
e(f"s_mov_b32 s{sT2}, {WS_OML}")
e(f"buffer_store_dwordx4 v[20:23], v14, {WS}, s{sT2} offen sc1")
lab(lml)
e(f"s_mov_b64 exec, s[{sM0}:{sM1}]")
stamp(7)
e("s_branch L_S_LATE")
lab("L_S_ATT_IDLE")
load_tag()
fin_tag()
e("s_branch L_S_PVSTART")

lab("L_S_JOB")
c("job waves 10,11")
e("s_setprio 3")
def zero_counters(cnt, maxb=None):
    e("v_lshlrev_b32 v4, 2, v1")
    if maxb is not None:
        e(f"v_add_u32 v5, {maxb}, v4")
        e("v_mov_b32 v6, 0xff800000")
        e("ds_write_b32 v5, v6")
    e(f"v_add_u32 v4, {cnt}, v4")
    e("v_mov_b32 v5, 0")
    e("v_cmp_gt_u32 vcc, 16, v1")
    e(f"s_and_saveexec_b64 s[{sM0}:{sM1}], vcc")
    e("ds_write_b32 v4, v5")
    e(f"s_mov_b64 exec, s[{sM0}:{sM1}]")
    e("s_waitcnt lgkmcnt(0)")
zero_counters(S_CNT, S_MAXB)
e("s_barrier")
load_tag()
e(f"s_sub_u32 s{sT4}, s{sWAVE}, 10")
stamp(20)
def gemv_job(ebase, actbase, cnt, act_target):
    e("v_lshrrev_b32 v4, 2, v3")
    e("v_lshl_add_u32 v4, v2, 2, v4")
    e("v_lshlrev_b32 v4, 6, v4")
    e("v_and_b32 v5, 1, v2")
    e(f"v_xor_b32 v5, s{sT4}, v5")
    e("v_lshl_add_u32 v4, v5, 5, v4")
    e("v_and_b32 v5, 3, v1")
    e("v_lshl_add_u32 v4, v5, 3, v4")
    e(f"v_add_u32 v4, {ebase}, v4")
    e("v_mul_u32_u24 v6, 1088, v5")
    e("v_lshl_add_u32 v6, v2, 4, v6")
    e(f"v_add_u32 v6, {actbase}, v6")
    wait_cnt(cnt, C_EARLY, 4, 8, 9, sleep=1)
    stamp(1)
    for ks in range(16):
        e(f"ds_read_b64_tr_b16 v[{32+4*ks}:{33+4*ks}], v4 offset:{2048*ks}")
        e(f"ds_read_b64_tr_b16 v[{34+4*ks}:{35+4*ks}], v4 offset:{2048*ks+1024}")
    wait_cnt(cnt, C_ACT, act_target, 8, 9, sleep=1)
    stamp(2)
    BB = [96, 8]
    def bread(grp):
        base = BB[grp % 2]
        for k in range(4):
            ks = 4*grp + k
            e(f"ds_read_b128 v[{base+4*k}:{base+4*k+3}], v6 offset:{64*ks}")
    bread(0); bread(1)
    for grp in range(4):
        e(f"s_waitcnt lgkmcnt({4 if grp < 3 else 0})")
        base = BB[grp % 2]
        for k in range(4):
            ks = 4*grp + k
            cin = "0" if ks == 0 else "v[24:27]"
            e(f"v_mfma_f32_16x16x32_bf16 v[24:27], v[{32+4*ks}:{35+4*ks}], v[{base+4*k}:{base+4*k+3}], {cin}")
        if grp + 2 < 4: bread(grp + 2)
    nop(8)
fin_tag()
e(f"s_cmp_eq_u32 s{sU}, 0")
e("s_cbranch_scc1 L_S_JOB_Q")
gemv_job(S_E, S_ACT, S_CNT, 4)
e("v_cvt_pk_bf16_f32 v28, v24, v25")
e(f"v_mov_b32 v29, s{sTAG}")
e("v_cvt_pk_bf16_f32 v30, v26, v27")
e(f"v_mov_b32 v31, s{sTAG}")
e(f"s_lshl_b32 s{sT1}, s{sUI}, 7")
e(f"s_add_u32 s{sT1}, s{sT1}, {WS_M}")
e(f"s_lshl_b32 s{sT2}, s{sT4}, 6")
e(f"s_add_u32 s{sT1}, s{sT1}, s{sT2}")
e("v_lshlrev_b32 v8, 13, v3")
e("v_lshl_add_u32 v8, v2, 4, v8")
e("v_cmp_gt_u32 vcc, 4, v3")
e(f"s_and_saveexec_b64 s[{sM0}:{sM1}], vcc")
e(f"buffer_store_dwordx4 v[28:31], v8, {WS}, s{sT1} offen sc1")
e(f"s_mov_b64 exec, s[{sM0}:{sM1}]")
stamp(3)
lab("L_S_JOB_Q")
ljq = uid("JQ")
e(f"s_cmp_eq_u32 s{sQCU}, 0")
e(f"s_cbranch_scc1 {ljq}")
wait_cnt(S_CNT, C_QD, 4, 8, 9, sleep=2)
lab(ljq)
e(f"s_lshr_b32 s{sT0}, s{sR}, 3")
e(f"s_lshl_b32 s{sT0}, s{sT0}, 14")
e(f"s_and_b32 s{sT1}, s{sR}, 7")
e(f"s_lshl_b32 s{sT1}, s{sT1}, 11")
e(f"s_add_u32 s{sT0}, s{sT0}, s{sT1}")
e(f"s_lshl_b32 s{sT1}, s{sT4}, 10")
e(f"s_add_u32 s{sT0}, s{sT0}, s{sT1}")
e(f"s_add_u32 s{sT0}, s{sT0}, {WS_Q}")
e("v_lshlrev_b32 v5, 4, v1")
e(f"v_add_u32 v5, s{sT0}, v5")
e("v_lshrrev_b32 v6, 5, v1")
e(f"s_lshl_b32 s{sT0}, s{sT4}, 1")
e(f"v_add_u32 v6, s{sT0}, v6")
e("v_mul_u32_u24 v6, 320, v6")
e("v_and_b32 v7, 31, v1")
e("v_lshl_add_u32 v6, v7, 3, v6")
e(f"v_add_u32 v6, {S_QL}, v6")
if "nopipe" in OPT:
    poll([(8, 5, 0)], sleep=SSL)
    e("v_mov_b32 v9, v10")
    e("ds_write_b64 v6, v[8:9]")
else:
    R = [100, 104, 108]
    lpl = uid("PP"); lpd = uid("PPD")
    e(f"s_mov_b32 s{sSPIN}, 0")
    for r_ in R:
        e(f"buffer_load_dwordx4 v[{r_}:{r_+3}], v5, {WS}, 0 offen sc1")
        if r_ != R[-1]: e(f"s_sleep {PSL}")
    lab(lpl)
    oks = []
    for r_ in R:
        ok = uid("OK"); oks.append(ok)
        e("s_waitcnt vmcnt(2)")
        e(f"v_cmp_eq_u32 vcc, s{sTAG}, v{r_+1}")
        e(f"v_cmp_eq_u32 s[{sM0}:{sM1}], s{sTAG}, v{r_+3}")
        e(f"s_and_b64 vcc, vcc, s[{sM0}:{sM1}]")
        e("s_cmp_eq_u64 vcc, exec")
        e(f"s_cbranch_scc1 {ok}")
        e(f"s_sleep {PSL}")
        e(f"buffer_load_dwordx4 v[{r_}:{r_+3}], v5, {WS}, 0 offen sc1")
    e(f"s_add_u32 s{sSPIN}, s{sSPIN}, 1")
    e(f"s_cmp_lt_u32 s{sSPIN}, {SPIN_MAX}")
    e(f"s_cbranch_scc1 {lpl}")
    e("s_branch L_END")
    for r_, ok in zip(R, oks):
        lab(ok)
        e(f"v_mov_b32 v8, v{r_}")
        e(f"v_mov_b32 v9, v{r_+2}")
        e(f"s_branch {lpd}")
    lab(lpd)
    e("ds_write_b64 v6, v[8:9]")
signal(S_CNT, C_Q, 24, 25)
stamp(5)
e("s_branch L_S_LATE")

def early_dma(ebase, scb0, scb1, stride):
    e("v_lshrrev_b32 v5, 2, v1")
    e(f"v_mul_u32_u24 v5, {stride}, v5")
    e("v_bfe_u32 v6, v1, 1, 1")
    e("v_bfe_u32 v7, v1, 4, 1")
    e("v_xor_b32 v6, v6, v7")
    e(f"v_mov_b32 v7, s{scb0}")
    e(f"v_mov_b32 v16, s{scb1}")
    e("v_cmp_eq_u32 vcc, 1, v6")
    nop(2)
    e("v_cndmask_b32 v7, v7, v16, vcc")
    e("v_add_u32 v5, v5, v7")
    e("v_and_b32 v6, 1, v1")
    e("v_lshl_add_u32 v5, v6, 4, v5")
    e(f"s_lshl_b32 s{sT1}, s{sT4}, 3")
    e(f"s_mul_i32 s{sT2}, s{sT1}, {16*stride}")
    e(f"s_lshl_b32 s{sT1}, s{sT1}, 10")
    e(f"s_add_u32 s{sT1}, s{sT1}, {ebase}")
    for k in range(8):
        e(f"s_mov_b32 m0, s{sT1}")
        e(f"s_add_u32 s{sT1}, s{sT1}, 1024")
        e(f"buffer_load_dwordx4 v5, {SC}, s{sT2} offen nt lds")
        e(f"s_add_u32 s{sT2}, s{sT2}, {16*stride}")
def silu_to_act(actbase, cnt):
    for i in range(4):
        unpack2(8+i, 16+2*i, 17+2*i)
    for i in range(8):
        silu_inplace(16+i, 24, 25)
    for i in range(4):
        e(f"v_cvt_pk_bf16_f32 v{8+i}, v{16+2*i}, v{17+2*i}")
    e("v_lshrrev_b32 v6, 2, v1")
    e("v_lshlrev_b32 v6, 6, v6")
    e("v_and_b32 v7, 1, v1")
    e("v_lshl_add_u32 v6, v7, 5, v6")
    e("v_bfe_u32 v7, v1, 1, 1")
    e("v_lshl_add_u32 v6, v7, 3, v6")
    e(f"s_mul_i32 s{sT0}, s{sT4}, 1088")
    e(f"s_add_u32 s{sT0}, s{sT0}, {actbase}")
    e(f"v_add_u32 v6, s{sT0}, v6")
    e("ds_write_b64 v6, v[8:9]")
    e("ds_write_b64 v6, v[10:11] offset:16")
    signal(cnt, C_ACT, 24, 25)

lab("L_S_STREAM")
c("streamer waves 12..15")
e("s_setprio 2")
e(f"s_sub_u32 s{sT4}, s{sWAVE}, 12")
lnoe = uid("NOE")
e(f"s_cmp_eq_u32 s{sU}, 0")
e(f"s_cbranch_scc1 {lnoe}")
srd(28, P_C, 4096)
srd(20, P_WM, 512*3072*2)
e(f"s_lshl_b32 s{sT0}, s{sT4}, 10")
e("v_lshlrev_b32 v4, 4, v1")
e(f"buffer_load_dwordx4 v[8:11], v4, {SE}, s{sT0} offen")
e(f"s_lshl_b32 s{sCB0}, s{sUI}, 6")
e(f"s_add_u32 s{sCB0}, s{sCB0}, 2048")
e(f"s_add_u32 s{sCB1}, s{sCB0}, 32")
early_dma(S_E, sCB0, sCB1, 6144)
lab(lnoe)
e("s_barrier")
load_tag()
srd(16, P_V, 4*8*8192*128*2)
srd(24, P_WO, 4096*512*2)
lafter = uid("LAF")
e(f"s_cmp_eq_u32 s{sU}, 0")
e(f"s_cbranch_scc1 {lafter}")
e("s_waitcnt vmcnt(8)")
silu_to_act(S_ACT, S_CNT)
lab(lafter)
lnq2 = uid("NOQ")
e(f"s_cmp_eq_u32 s{sQCU}, 0")
e(f"s_cbranch_scc1 {lnq2}")
srd(32, P_X, 4096)
e(f"s_lshl_b32 s{sT0}, s{sT4}, 10")
e("v_lshlrev_b32 v4, 3, v1")
e(f"buffer_load_dwordx2 v[8:9], v4, {SF}, s{sT0} offen")
e(f"buffer_load_dwordx2 v[10:11], v4, {SF}, s{sT0} offen offset:512")
e(f"s_lshl_b32 s{sT0}, s{sT4}, 12")
e(f"s_add_u32 s{sT0}, s{sT0}, {WS_SC}")
e("v_lshlrev_b32 v5, 4, v1")
e(f"v_add_u32 v5, s{sT0}, v5")
e("v_lshrrev_b32 v6, 3, v1")
e("v_lshlrev_b32 v6, 6, v6")
e("v_and_b32 v7, 3, v1")
e("v_lshl_add_u32 v6, v7, 4, v6")
e("v_bfe_u32 v7, v1, 2, 1")
e("v_lshl_add_u32 v6, v7, 3, v6")
e(f"s_mul_i32 s{sT0}, s{sT4}, 1088")
e(f"s_add_u32 s{sT0}, s{sT0}, {S_ACT}")
e(f"v_add_u32 v6, s{sT0}, v6")
e("s_waitcnt vmcnt(0) lgkmcnt(0)")
e(f"s_add_u32 s{sTAG}, s{sTAG}, 0x9E3779B9")
for i in range(4): unpack2(8+i, 16+2*i, 17+2*i)
layernorm8(16, 24)
wait_cnt(S_CNT, C_WQ, 8, 36, 37, sleep=1)
poll([(40, 5, 0), (44, 5, 1024), (48, 5, 2048), (52, 5, 3072)], sleep=1)
for (src, dst) in ((48, 56), (50, 58), (52, 60), (54, 62)): unpack2(src, dst, dst+1)
for i in range(0, 8, 2): e(f"v_pk_add_f32 v[{56+i}:{57+i}], v[{56+i}:{57+i}], 1.0 op_sel_hi:[1,0]")
for i in range(0, 8, 2): rnd2(56+i, 57+i, 24)
for i in range(0, 8, 2): e(f"v_pk_mul_f32 v[{16+i}:{17+i}], v[{16+i}:{17+i}], v[{56+i}:{57+i}]")
for i in range(0, 8, 2): rnd2(16+i, 17+i, 24)
for (src, dst) in ((40, 56), (42, 58), (44, 60), (46, 62)): unpack2(src, dst, dst+1)
for i in range(0, 8, 2): e(f"v_pk_add_f32 v[{16+i}:{17+i}], v[{16+i}:{17+i}], v[{56+i}:{57+i}]")
for i in range(4): e(f"v_cvt_pk_bf16_f32 v{8+i}, v{16+2*i}, v{17+2*i}")
e("ds_write_b64 v6, v[8:9]")
e("ds_write_b64 v6, v[10:11] offset:512")
signal(S_CNT, C_ACT, 24, 25)
stamp(6)
wait_cnt(S_CNT, C_QD, 4, 24, 25, sleep=1)
e(f"s_sub_u32 s{sTAG}, s{sTAG}, 0x9E3779B9")
lab(lnq2)
e("v_lshrrev_b32 v5, 1, v3")
e("v_xor_b32 v5, v5, v2")
e("v_lshlrev_b32 v5, 5, v5")
e("v_and_b32 v6, 1, v1")
e("v_lshl_add_u32 v5, v6, 4, v5")
e("v_lshl_add_u32 v7, v2, 10, v5")
e("v_lshl_add_u32 v5, v2, 8, v5")
e("v_xor_b32 v6, 128, v5")
e("v_xor_b32 v10, 128, v7")
e("s_waitcnt vmcnt(0)")
signal(S_CNT, C_EARLY, 24, 25)
fin_tag()
stamp(4)
e(f"s_sub_u32 s{sT5}, s{sNT}, {KOV}")
e(f"s_cmp_eq_u32 s{sQCU}, 1")
e(f"s_cselect_b32 s{sT5}, {QKW}, s{sT5}")
wait_cnt(S_CNT, C_KL, f"s{sT5}", 24, 25, sleep=1)
stamp(18)
def v_issue(sa):
    e(f"s_lshl_b32 s{sT1}, s{sa}, 13")
    e(f"s_add_u32 s{sT0}, s{sKVB}, s{sT1}")
    e(f"s_mov_b32 m0, s{sT1}")
    e(f"s_add_u32 s{sT1}, s{sT1}, 4096")
    for i in range(4):
        e(f"buffer_load_dwordx4 v{5 + ((i ^ (i >> 1)) & 1)}, {SB}, s{sT0} offen offset:{1024*i} nt lds")
    e(f"s_mov_b32 m0, s{sT1}")
    e(f"s_add_u32 s{sT0}, s{sT0}, 4096")
    for i in range(4):
        e(f"buffer_load_dwordx4 v{5 + ((i ^ (i >> 1)) & 1)}, {SB}, s{sT0} offen offset:{1024*i} nt lds")
if "vdeep" in OPT:
    ldone = uid("VD"); l2 = uid("V2"); l1 = uid("V1")
    e(f"s_mov_b32 s{sT5}, s{sT4}"); v_issue(sT5)
    e(f"s_add_u32 s{sT5}, s{sT4}, 4")
    e(f"s_cmp_lt_u32 s{sT5}, s{sNT}")
    e(f"s_cbranch_scc0 {l1}")
    v_issue(sT5)
    e(f"s_add_u32 s{sT5}, s{sT4}, 8")
    e(f"s_cmp_lt_u32 s{sT5}, s{sNT}")
    e(f"s_cbranch_scc0 {l2}")
    v_issue(sT5)
    e(f"s_lshl_b32 s{sT2}, 1, s{sT4}")
    for w in (16, 8, 0):
        e(f"s_waitcnt vmcnt({w})")
        signal_or(S_CNT, F_V, sT2, 24, 25)
        if w: e(f"s_lshl_b32 s{sT2}, s{sT2}, 4")
    e(f"s_branch {ldone}")
    lab(l2)
    e(f"s_lshl_b32 s{sT2}, 1, s{sT4}")
    for w in (8, 0):
        e(f"s_waitcnt vmcnt({w})")
        signal_or(S_CNT, F_V, sT2, 24, 25)
        if w: e(f"s_lshl_b32 s{sT2}, s{sT2}, 4")
    e(f"s_branch {ldone}")
    lab(l1)
    e(f"s_lshl_b32 s{sT2}, 1, s{sT4}")
    e("s_waitcnt vmcnt(0)")
    signal_or(S_CNT, F_V, sT2, 24, 25)
    lab(ldone)
else:
    e(f"s_mov_b32 s{sT5}, s{sT4}")
    lv = uid("V"); lvd = uid("VD")
    lab(lv)
    v_issue(sT5)
    e(f"s_lshl_b32 s{sT2}, 1, s{sT5}")
    e("s_waitcnt vmcnt(0)")
    signal_or(S_CNT, F_V, sT2, 24, 25)
    e(f"s_add_u32 s{sT5}, s{sT5}, 4")
    e(f"s_cmp_lt_u32 s{sT5}, s{sNT}")
    e(f"s_cbranch_scc1 {lv}")
stamp(19)
e(f"s_cmp_eq_u32 s{sLATE}, 0")
e("s_cbranch_scc1 L_END")
e(f"s_lshl_b32 s{sT0}, s{sT4}, 3")
e(f"s_lshl_b32 s{sT1}, s{sT0}, 10")
e(f"s_add_u32 s{sT1}, s{sT1}, {S_L}")
e(f"s_lshl_b32 s{sT2}, s{sT0}, 12")
e(f"s_lshl_b32 s{sT3}, s{sH}, 17")
e(f"s_add_u32 s{sT2}, s{sT2}, s{sT3}")
e(f"s_lshl_b32 s{sT3}, s{sNQ}, 8")
e(f"s_add_u32 s{sT2}, s{sT2}, s{sT3}")
for k in range(8):
    e(f"s_mov_b32 m0, s{sT1}")
    e(f"s_add_u32 s{sT1}, s{sT1}, 1024")
    e(f"buffer_load_dwordx4 v{[7, 10][(k >> 1) & 1]}, {SD}, s{sT2} offen nt lds")
    e(f"s_add_u32 s{sT2}, s{sT2}, 4096")
e("s_waitcnt vmcnt(0)")
signal(S_CNT, C_LATE, 24, 25)

lab("L_S_LATE")
e(f"s_cmp_eq_u32 s{sLATE}, 0")
e("s_cbranch_scc1 L_END")
e("s_setprio 0")
e("v_mov_b32 v58, 0")
e(f"s_lshl_b32 s{sT6}, s{sWAVE}, 6"); e(f"v_add_u32 v4, s{sT6}, v1")
e(f"s_mul_i32 s{sT0}, s{sH}, {28*512}")
e(f"s_add_u32 s{sT0}, s{sT0}, {WS_OD}")
e(f"s_mul_i32 s{sT1}, s{sH}, {28*16}")
e(f"s_add_u32 s{sT1}, s{sT1}, {WS_OML - 896*16}")
e(f"s_cmp_lt_u32 s{sWAVE}, 14")
e(f"s_cselect_b32 s{sT0}, s{sT0}, s{sT1}")
e("v_lshlrev_b32 v5, 4, v4")
e(f"v_add_u32 v5, s{sT0}, v5")
e("v_lshrrev_b32 v6, 5, v4")
e(f"s_cmp_lt_u32 s{sWAVE}, 14")
lw = uid("LW"); lw2 = uid("LW")
e(f"s_cbranch_scc1 {lw}")
e("v_mov_b32 v6, v1")
lab(lw)
e("v_mul_u32_u24 v7, 37, v6")
e("v_lshrrev_b32 v7, 8, v7")
e("v_add_u32 v6, v6, v7")
e(f"s_cmp_lt_u32 s{sWAVE}, 14")
e(f"s_cbranch_scc1 {lw2}")
e("v_lshlrev_b32 v6, 3, v6")
e(f"v_add_u32 v6, {S_CML}, v6")
lw3 = uid("LW")
e(f"s_branch {lw3}")
lab(lw2)
e("v_mul_u32_u24 v6, 272, v6")
e("v_and_b32 v7, 31, v4")
e("v_lshl_add_u32 v6, v7, 3, v6")
e(f"v_add_u32 v6, {S_CG}, v6")
lab(lw3)
lnw = uid("LNW")
e(f"s_cmp_ge_u32 s{sWAVE}, 8")
e(f"s_cbranch_scc1 {lnw}")
wait_cnt(S_CNT, C_LATE, 4, 8, 9, sleep=1)
e("v_lshrrev_b32 v12, 2, v3")
e("v_lshl_add_u32 v13, v2, 3, v12")
e("v_and_b32 v14, 1, v2")
e("v_lshl_add_u32 v12, v14, 2, v12")
e(f"v_xor_b32 v12, s{sWAVE}, v12")
e("v_lshlrev_b32 v12, 5, v12")
e("v_lshl_add_u32 v12, v13, 8, v12")
e("v_and_b32 v14, 3, v1")
e("v_lshl_add_u32 v12, v14, 3, v12")
e(f"v_add_u32 v12, {S_L}, v12")
for ks in range(4):
    e(f"ds_read_b64_tr_b16 v[{32+4*ks}:{33+4*ks}], v12 offset:{8192*ks}")
    e(f"ds_read_b64_tr_b16 v[{34+4*ks}:{35+4*ks}], v12 offset:{8192*ks+1024}")
e("v_mul_u32_u24 v56, 272, v3")
e("v_lshl_add_u32 v56, v2, 4, v56")
e(f"v_add_u32 v56, {S_CG}, v56")
e("v_lshlrev_b32 v57, 3, v3")
e(f"v_add_u32 v57, {S_CML}, v57")
e(f"s_lshl_b32 s{sT0}, s{sNQ}, 3")
e(f"s_add_u32 s{sT0}, s{sT0}, s{sWAVE}")
e(f"s_lshl_b32 s{sT0}, s{sT0}, 5")
e(f"s_add_u32 s{sT0}, s{sT0}, s{sH}")
e(f"s_lshl_b32 s{sT0}, s{sT0}, 8")
e(f"s_add_u32 s{sT0}, s{sT0}, {WS_AP}")
e("v_bfe_u32 v58, v1, 3, 1")
e("v_lshlrev_b32 v58, 6, v58")
e("v_lshl_add_u32 v58, v2, 4, v58")
e("v_and_b32 v59, 1, v1")
e("v_lshl_add_u32 v58, v59, 7, v58")
e(f"v_add_u32 v58, s{sT0}, v58")
e(f"v_mov_b32 v61, s{sTAG}")
e(f"v_mov_b32 v63, s{sTAG}")
e("v_cmp_eq_u32 s[88:89], 1, v59")
e("v_and_b32 v14, 6, v1")
e("v_cmp_eq_u32 s[86:87], 0, v14")
lab(lnw)
lz = uid("LZ"); lzd = uid("LZD")
e(f"s_cmp_eq_u32 s{sWAVE}, 15")
e(f"s_cbranch_scc1 {lz}")
e("s_mov_b64 s[98:99], exec")
e(f"s_cmp_lg_u32 s{sWAVE}, 14")
lfull = uid("LF")
e(f"s_cbranch_scc1 {lfull}")
e("s_mov_b32 exec_lo, 0x0fffffff")
e("s_mov_b32 exec_hi, 0")
lab(lfull)
poll([(8, 5, 0)])
stamp(17)
e("v_mov_b32 v9, v10")
wait_cnt(S_CNT, C_PVD, 8, 12, 13, sleep=0)
e("ds_write_b64 v6, v[8:9]")
e("s_mov_b64 exec, s[98:99]")
e(f"s_branch {lzd}")
lab(lz)
wait_cnt(S_CNT, C_PVD, 8, 12, 13, sleep=1)
e("v_lshlrev_b32 v6, 3, v2")
e("v_add_u32 v6, 7, v6")
e("v_mul_u32_u24 v7, 272, v6")
e("v_lshl_add_u32 v7, v3, 4, v7")
e(f"v_add_u32 v7, {S_CG}, v7")
for i in range(4): e(f"v_mov_b32 v{12+i}, 0")
e("ds_write_b128 v7, v[12:15]")
e("v_lshlrev_b32 v6, 3, v6")
e(f"v_add_u32 v6, {S_CML}, v6")
e("v_mov_b32 v12, 0xff800000")
e("ds_write_b64 v6, v[12:13]")
lab(lzd)
e("s_waitcnt lgkmcnt(0)")
e("s_barrier")
e(f"s_cmp_ge_u32 s{sWAVE}, 8")
e("s_cbranch_scc1 L_END")
stamp(9)
e("ds_read_b64 v[8:9], v57")
e("ds_read_b64 v[10:11], v57 offset:128")
for ct in range(2):
    for ks in range(4):
        d = 64 + 16*ct + 4*ks
        e(f"ds_read_b128 v[{d}:{d+3}], v56 offset:{16*272*ct + 64*ks}")
e("s_waitcnt lgkmcnt(8)")
e("v_mov_b32 v12, v8")
e("v_mov_b32 v13, v10")
nop(1)
for ctl in ("quad_perm:[1,0,3,2]", "quad_perm:[2,3,0,1]", "row_half_mirror"):
    e(f"v_max_f32_dpp v12, v12, v12 {ctl} row_mask:0xf bank_mask:0xf")
    e(f"v_max_f32_dpp v13, v13, v13 {ctl} row_mask:0xf bank_mask:0xf")
    nop(1)
e("v_sub_f32 v8, v8, v12")
e("v_sub_f32 v10, v10, v13")
e("v_exp_f32 v8, v8")
e("v_exp_f32 v10, v10")
e("s_waitcnt lgkmcnt(0)")
for ks in range(4):
    for ct in range(2):
        d = 64 + 16*ct + 4*ks
        cin = "0" if ks == 0 else f"v[{16+4*ct}:{19+4*ct}]"
        e(f"v_mfma_f32_16x16x32_bf16 v[{16+4*ct}:{19+4*ct}], v[{32+4*ks}:{35+4*ks}], v[{d}:{d+3}], {cin}")
e("v_mul_f32 v8, v8, v9")
e("v_mul_f32 v10, v10, v11")
e("v_mov_b32 v12, v8")
e("v_mov_b32 v13, v10")
nop(1)
for ctl in ("quad_perm:[1,0,3,2]", "quad_perm:[2,3,0,1]", "row_half_mirror"):
    e(f"v_add_f32_dpp v12, v12, v12 {ctl} row_mask:0xf bank_mask:0xf")
    e(f"v_add_f32_dpp v13, v13, v13 {ctl} row_mask:0xf bank_mask:0xf")
    nop(1)
e("v_rcp_f32 v12, v12")
e("v_rcp_f32 v13, v13")
nop(1)
e("v_mul_f32 v8, v8, v12")
e("v_mul_f32 v10, v10, v13")
nop(1)
e("v_pk_mul_f32 v[16:17], v[16:17], v[8:9] op_sel_hi:[1,0]")
e("v_pk_mul_f32 v[18:19], v[18:19], v[8:9] op_sel_hi:[1,0]")
e("v_pk_mul_f32 v[20:21], v[20:21], v[10:11] op_sel_hi:[1,0]")
e("v_pk_mul_f32 v[22:23], v[22:23], v[10:11] op_sel_hi:[1,0]")
nop(1)
for ctl in ("quad_perm:[1,0,3,2]", "quad_perm:[2,3,0,1]", "row_half_mirror"):
    for i in range(8):
        e(f"v_add_f32_dpp v{16+i}, v{16+i}, v{16+i} {ctl} row_mask:0xf bank_mask:0xf")
for i in range(4): e(f"v_cndmask_b32 v{24+i}, v{16+i}, v{20+i}, s[88:89]")
e("v_cvt_pk_bf16_f32 v60, v24, v25")
e("v_cvt_pk_bf16_f32 v62, v26, v27")
e("s_mov_b64 exec, s[86:87]")
e(f"buffer_store_dwordx4 v[60:63], v58, {WS}, 0 offen sc1")
e("s_mov_b64 exec, -1")
stamp(10)
e("s_branch L_END")

lab("L_T")
c("T role: t = sR")
srd(20, P_WM, 512*3072*2)
srd(28, P_C, 4096)
srd(32, P_X, 4096)
srd(24, P_OUT, 4096)
e(f"s_cmp_ge_u32 s{sWAVE}, 12")
e("s_cbranch_scc1 L_T_STREAM")
lt1 = uid("T1")
e(f"s_cmp_lg_u32 s{sWAVE}, 10")
e(f"s_cbranch_scc1 {lt1}")
zero_counters(T_CNT)
lab(lt1)
e("s_barrier")
lt2 = uid("T2")
e(f"s_cmp_ge_u32 s{sR}, 16")
e(f"s_cbranch_scc1 {lt2}")
e(f"s_lshl_b32 s{sCB0}, s{sR}, 7")
e(f"s_lshl_b32 s{sCB1}, s{sR}, 8")
e(f"s_add_u32 s{sCB1}, s{sCB1}, {WS_SC}")
line_unit(T_ACT, T_CNT, 6144, 12)
e("s_branch L_T_AUX")
lab(lt2)
load_tag()
fin_tag()
lab("L_T_AUX")
C_UP, C_UPR, C_G, C_SC = C_KL, C_Q, C_MAX, C_P
C_GO, C_ARM, C_RED, C_XS = F_V, C_PVD, C_LATE, C_HD
C_DL = C_EXC
e(f"s_cmp_lt_u32 s{sWAVE}, 8")
e("s_cbranch_scc1 L_T_W")
lw9 = uid("W9"); lw8 = uid("W8")
e(f"s_cmp_lg_u32 s{sWAVE}, 9")
e(f"s_cbranch_scc1 {lw9}")
e("v_lshlrev_b32 v5, 8, v1")
e(f"v_add_u32 v5, {WS_SC}, v5")
poll_lanes(16, 8, 5, 4)
signal(T_CNT, C_SC, 10, 11)
if "tq" in OPT:
    e("v_lshlrev_b32 v5, 8, v1")
    e(f"v_add_u32 v5, {WS_Q}, v5")
    poll_lanes(64, 8, 5, 4)
    signal(T_CNT, C_GO, 10, 11)
e("s_branch L_T_MODS")
lab(lw9)
e(f"s_cmp_lg_u32 s{sWAVE}, 8")
e("s_cbranch_scc1 L_T_MODS")
e(f"s_getreg_b32 s{sT0}, hwreg(HW_REG_XCC_ID)")
e(f"s_and_b32 s{sT0}, s{sT0}, 0xf")
e(f"v_mov_b32 v8, s{sT0}")
e(f"v_mov_b32 v9, s{sTAG}")
e(f"s_lshl_b32 s{sT1}, s{sR}, 3")
e(f"s_add_u32 s{sT1}, s{sT1}, {WS_XCC}")
sentinel_store(sT1, 8)
e("s_branch L_T_MODS")
lab("L_T_W")
e(f"s_cmp_ge_u32 s{sR}, 28")
e("s_cbranch_scc1 L_T_WEND")
srd(12, P_WG, 512*1792*2)
srd(16, P_WU, 512*1792*2)
srd(20, P_WD, 1792*512*2)
def gu_dma(srdname, ldsbase):
    line_dma_voff(3584)
    e(f"s_lshl_b32 s{sT0}, s{sWAVE}, 3")
    e(f"s_mul_i32 s{sT2}, s{sT0}, {8*3584}")
    e(f"s_lshl_b32 s{sT3}, s{sR}, 7")
    e(f"s_add_u32 s{sT2}, s{sT2}, s{sT3}")
    e(f"s_lshl_b32 s{sT1}, s{sWAVE}, 13")
    e(f"s_add_u32 s{sT1}, s{sT1}, {ldsbase}")
    for k in range(8):
        e(f"s_mov_b32 m0, s{sT1}")
        e(f"s_add_u32 s{sT1}, s{sT1}, 1024")
        e(f"buffer_load_dwordx4 v4, {srdname}, s{sT2} offen nt lds")
        e(f"s_add_u32 s{sT2}, s{sT2}, {8*3584}")
def gu_frags(ldsbase):
    e(f"s_mov_b32 s{sT0}, {ldsbase}")
    tr_line_addr(4, sT0)
    for ks in range(16):
        e(f"ds_read_b64_tr_b16 v[{32+4*ks}:{33+4*ks}], v4 offset:{4096*ks}")
        e(f"ds_read_b64_tr_b16 v[{34+4*ks}:{35+4*ks}], v4 offset:{4096*ks+2048}")
    e("s_waitcnt lgkmcnt(0)")
wait_cnt(T_CNT, C_SC if ("tearly" in OPT and "tq" not in OPT) else C_GO, 1, 8, 9, sleep=2)
stamp(19)
gu_dma(SB, 65536)
lq = uid("NQD")
e(f"s_cmp_ge_u32 s{sR}, 16")
e(f"s_cbranch_scc1 {lq}")
wait_cnt(T_CNT, C_QD, 4, 8, 9, sleep=1)
lab(lq)
gu_dma(SA, 0)
e("s_waitcnt vmcnt(8)")
signal(T_CNT, C_UP, 8, 9)
lnu = uid("NU")
e(f"s_cmp_lt_u32 s{sWAVE}, 4")
e(f"s_cbranch_scc1 {lnu}")
wait_cnt(T_CNT, C_UP, 8, 8, 9, sleep=1)
gu_frags(65536)
signal(T_CNT, C_UPR, 8, 9)
lab(lnu)
wait_cnt(T_CNT, C_UPR, 4, 8, 9, sleep=1)
stamp(15)
e("v_lshlrev_b32 v4, 4, v1")
e(f"s_lshl_b32 s{sT0}, s{sWAVE}, 13")
e(f"s_add_u32 s{sT1}, s{sT0}, 65536")
e(f"s_lshl_b32 s{sT2}, s{sR}, 16")
e(f"s_add_u32 s{sT2}, s{sT2}, s{sT0}")
for k in range(8):
    e(f"v_xor_b32 v5, {32*k}, v4")
    e(f"s_mov_b32 m0, s{sT1}")
    e(f"s_add_u32 s{sT1}, s{sT1}, 1024")
    e(f"buffer_load_dwordx4 v5, {SC}, s{sT2} offen nt lds")
    e(f"s_add_u32 s{sT2}, s{sT2}, 1024")
e("s_waitcnt vmcnt(8)")
signal(T_CNT, C_G, 8, 9)
lng = uid("NG")
e(f"s_cmp_ge_u32 s{sWAVE}, 4")
e(f"s_cbranch_scc1 {lng}")
wait_cnt(T_CNT, C_G, 8, 8, 9, sleep=1)
gu_frags(0)
lab(lng)
e("s_waitcnt vmcnt(0)")
signal(T_CNT, C_DL, 8, 9)
stamp(1)
lab("L_T_WEND")
def down_frags():
    lsk = uid("DF")
    e(f"s_cmp_ge_u32 s{sR}, 28")
    e(f"s_cbranch_scc1 {lsk}")
    wait_cnt(T_CNT, C_DL, 8, 8, 9, sleep=1)
    e("v_lshrrev_b32 v10, 2, v3")
    e("v_lshl_add_u32 v10, v2, 2, v10")
    e("v_and_b32 v11, 7, v10")
    e(f"s_lshl_b32 s{sT0}, s{sWAVE}, 1")
    e(f"v_xor_b32 v11, s{sT0}, v11")
    e("v_lshlrev_b32 v11, 5, v11")
    e("v_lshl_add_u32 v11, v10, 10, v11")
    e("v_and_b32 v10, 3, v1")
    e("v_lshl_add_u32 v11, v10, 3, v11")
    e("v_add_u32 v11, 0x10000, v11")
    e("v_xor_b32 v10, 32, v11")
    for j in range(2):
        for ks in range(2):
            d = 96 + 8*j + 4*ks
            e(f"ds_read_b64_tr_b16 v[{d}:{d+1}], v{[11,10][j]} offset:{32768*ks}")
            e(f"ds_read_b64_tr_b16 v[{d+2}:{d+3}], v{[11,10][j]} offset:{32768*ks+16384}")
    e("s_waitcnt lgkmcnt(0)")
    lab(lsk)
wait_cnt(T_CNT, C_XS, 1, 8, 9, sleep=2)
e(f"v_mov_b32 v8, {T_SAME}")
e("ds_read_b32 v9, v8")
e("s_waitcnt lgkmcnt(0)")
e(f"v_readfirstlane_b32 s{sSAME}, v9")
down_frags()
def tail_addr():
    e(f"s_lshl_b32 s{sT6}, s{sWAVE}, 10")
    e("v_lshlrev_b32 v126, 4, v1")
    e(f"v_add_u32 v126, s{sT6}, v126")
    e(f"s_mul_i32 s{sT0}, s{sR}, {28*256}")
    e(f"s_add_u32 s{sT0}, s{sT0}, {WS_DP}")
    e(f"v_add_u32 v126, s{sT0}, v126")
    e(f"s_lshl_b32 s{sT0}, s{sWAVE}, 8")
    e("v_and_b32 v127, 31, v1")
    e("v_lshlrev_b32 v127, 3, v127")
    e(f"v_add_u32 v127, s{sT0}, v127")
    e(f"v_add_u32 v127, {T_RED}, v127")
tail_addr()
e("s_branch L_T_H2")
lab("L_T_STREAM")
e(f"s_sub_u32 s{sT4}, s{sWAVE}, 12")
e(f"s_lshl_b32 s{sT0}, s{sT4}, 10")
e("v_lshlrev_b32 v4, 4, v1")
e(f"buffer_load_dwordx4 v[8:11], v4, {SE}, s{sT0} offen")
e("s_barrier")
load_tag()
e("s_waitcnt vmcnt(0)")
silu_to_act(T_ACT, T_CNT)
fin_tag()
lab("L_T_MODS")
lb2 = uid("B2")
C_SC = C_P
wait_cnt(T_CNT, C_SC, 1, 4, 5, sleep=4)
lm1 = uid("LM"); lm2 = uid("LM")
e(f"s_cmp_ge_u32 s{sWAVE}, 12")
e(f"s_cbranch_scc1 {lm1}")
e(f"s_sub_u32 s{sT0}, s{sWAVE}, 8")
e(f"s_lshl_b32 s{sT0}, s{sT0}, 13")
e(f"s_add_u32 s{sT0}, s{sT0}, {WS_M}")
e("v_lshlrev_b32 v4, 4, v1")
e(f"v_add_u32 v4, s{sT0}, v4")
e("v_add_u32 v5, 2048, v4")
e("v_add_u32 v6, 4096, v4")
poll([(32, 5, 0), (36, 5, 1024), (40, 6, 0), (44, 6, 1024)], sleep=2)
for (src, dst) in ((32, 48), (36, 52)):
    unpack2(src, dst, dst+1); unpack2(src+2, dst+2, dst+3)
for (src, dst) in ((40, 56), (44, 60)):
    unpack2(src, dst, dst+1); unpack2(src+2, dst+2, dst+3)
for i in range(8):
    e(f"v_add_f32 v{56+i}, 1.0, v{56+i}")
for i in range(0, 8, 2):
    rnd2(56+i, 57+i, 4)
e(f"s_branch {lb2}")
lab(lm1)
e(f"s_cmp_lg_u32 s{sWAVE}, 12")
e(f"s_cbranch_scc1 {lm2}")
e("v_lshrrev_b32 v4, 2, v1")
e("v_lshlrev_b32 v4, 13, v4")
e("v_and_b32 v5, 3, v1")
e("v_lshl_add_u32 v4, v5, 4, v4")
e(f"s_lshl_b32 s{sT0}, s{sR}, 6")
e(f"s_add_u32 s{sT0}, s{sT0}, {WS_M}")
e(f"v_add_u32 v4, s{sT0}, v4")
e("v_add_u32 v6, 6144, v4")
e("v_lshrrev_b32 v7, 2, v1")
e("v_lshlrev_b32 v7, 10, v7")
e("v_lshl_add_u32 v7, v5, 3, v7")
e(f"s_lshl_b32 s{sT0}, s{sR}, 5")
e("s_mov_b64 s[98:99], exec")
e("s_mov_b64 exec, 0xffff")
e(f"buffer_load_dwordx2 v[44:45], v7, {SF}, s{sT0} offen")
poll([(32, 4, 0), (36, 6, 0)], sleep=2)
e("s_mov_b64 exec, s[98:99]")
unpack2(32, 48, 49); unpack2(34, 50, 51)
unpack2(36, 52, 53); unpack2(38, 54, 55)
unpack2(44, 56, 57); unpack2(45, 58, 59)
e(f"s_branch {lb2}")
lab(lm2)
e(f"s_cmp_lg_u32 s{sWAVE}, 13")
e(f"s_cbranch_scc1 {lb2}")
e("v_lshlrev_b32 v5, 4, v1")
e(f"v_add_u32 v5, {WS_XCC}, v5")
e("s_mov_b64 s[98:99], exec")
e("s_mov_b64 exec, 0xffff")
poll([(8, 5, 0)], sleep=4)
e(f"s_getreg_b32 s{sT0}, hwreg(HW_REG_XCC_ID)")
e(f"s_and_b32 s{sT0}, s{sT0}, 0xf")
e(f"v_cmp_eq_u32 vcc, s{sT0}, v8")
e(f"v_cmp_eq_u32 s[{sM0}:{sM1}], s{sT0}, v10")
e(f"s_and_b64 vcc, vcc, s[{sM0}:{sM1}]")
e("s_cmp_eq_u64 vcc, exec")
e(f"s_cselect_b32 s{sSAME}, 1, 0")
if "forcesc1" in OPT: e(f"s_mov_b32 s{sSAME}, 0")
e("s_mov_b64 exec, s[98:99]")
e(f"v_mov_b32 v8, {T_SAME}")
e(f"v_mov_b32 v9, s{sSAME}")
e("ds_write_b32 v8, v9")
signal(T_CNT, C_XS, 10, 11)
lab(lb2)
def read_same():
    e(f"v_mov_b32 v8, {T_SAME}")
    e("ds_read_b32 v9, v8")
    e("s_waitcnt lgkmcnt(0)")
    e(f"v_readfirstlane_b32 s{sSAME}, v9")
wait_cnt(T_CNT, C_XS, 1, 8, 9, sleep=2)
read_same()
tail_addr()
e(f"s_sub_u32 s{sT4}, s{sWAVE}, 8")
e(f"s_lshl_b32 s{sT6}, s{sT4}, 10")
e("v_lshlrev_b32 v124, 4, v1")
e(f"v_add_u32 v124, s{sT6}, v124")
e(f"s_lshl_b32 s{sT0}, s{sR}, 13")
e(f"s_add_u32 s{sT0}, s{sT0}, {WS_AP}")
e(f"v_add_u32 v124, s{sT0}, v124")
e(f"s_lshl_b32 s{sT0}, s{sT4}, 8")
e("v_lshlrev_b32 v125, 4, v3")
e(f"v_add_u32 v125, s{sT0}, v125")
e(f"v_add_u32 v125, {T_RED}, v125")
e(f"s_lshl_b32 s{sT6}, s{sT4}, 10")
e("v_lshlrev_b32 v4, 4, v1")
e(f"v_add_u32 v4, s{sT6}, v4")
e(f"s_mul_i32 s{sT0}, s{sR}, {28*256}")
e(f"s_add_u32 s{sT0}, s{sT0}, {WS_DP}")
e(f"buffer_load_dwordx4 v[8:11], v4, {WS}, s{sT0} offen nt")
e(f"s_lshl_b32 s{sT0}, s{sR}, 8")
e(f"s_add_u32 s{sT0}, s{sT0}, {WS_X2}")
e("v_lshlrev_b32 v4, 4, v1")
e("s_mov_b64 exec, 0xffff")
e(f"buffer_load_dwordx4 v[16:19], v4, {WS}, s{sT0} offen nt")
e("s_mov_b64 exec, -1")
e("s_waitcnt vmcnt(0)")
stamp(3)
larm = uid("ARM"); lal = uid("AL"); lgo = uid("GO"); lad = uid("AD")
e(f"s_cmp_lg_u32 s{sWAVE}, 8")
e(f"s_cbranch_scc1 {larm}")
e(f"s_mul_i32 s{sT0}, s{sR}, {28*16}")
e(f"s_add_u32 s{sT0}, s{sT0}, {WS_OML}")
e("v_lshlrev_b32 v4, 4, v1")
e(f"v_add_u32 v4, s{sT0}, v4")
e(f"s_mov_b32 s{sT5}, 0")
e(f"s_mov_b32 s{sSPIN}, 0")
e("s_mov_b32 exec_lo, 0x0fffffff")
e("s_mov_b32 exec_hi, 0")
lab(lal)
e(f"buffer_load_dwordx4 v[8:11], v4, {WS}, 0 offen sc1")
e("s_waitcnt vmcnt(0)")
e(f"v_cmp_eq_u32 vcc, s{sTAG}, v9")
e(f"v_cmp_eq_u32 s[{sM0}:{sM1}], s{sTAG}, v11")
e(f"s_and_b64 vcc, vcc, s[{sM0}:{sM1}]")
e("s_cmp_eq_u64 vcc, 0")
e(f"s_cbranch_scc1 {lgo}")
e(f"s_cmp_lg_u32 s{sT5}, 0")
e(f"s_cbranch_scc1 {lgo}")
e(f"s_mov_b32 s{sT5}, 1")
e("s_mov_b64 s[96:97], vcc")
signal(T_CNT, C_GO, 12, 13)
e("s_mov_b64 vcc, s[96:97]")
lab(lgo)
e("s_cmp_eq_u64 vcc, exec")
e(f"s_cbranch_scc1 {lad}")
e("s_sleep 3")
e(f"s_add_u32 s{sSPIN}, s{sSPIN}, 1")
e(f"s_cmp_lt_u32 s{sSPIN}, {SPIN_MAX}")
e(f"s_cbranch_scc1 {lal}")
e("s_branch L_END")
lab(lad)
e("s_mov_b64 exec, -1")
signal(T_CNT, C_ARM, 12, 13)
lab(larm)
wait_cnt(T_CNT, C_ARM, 1, 8, 9, sleep=1)
stamp(17)
poll([(8, 124, 0)])
stamp(9)
def red_write(addr):
    e("v_mov_b32 v12, v8")
    e("v_mov_b32 v13, v10")
    nop(2)
    e("v_permlane32_swap_b32 v8, v12")
    e("v_permlane32_swap_b32 v10, v13")
    nop(1)
    e("v_add_f32 v8, v8, v12")
    e("v_add_f32 v9, v10, v13")
    e("s_mov_b32 exec_hi, 0")
    e(f"ds_write_b64 v{addr}, v[8:9]")
    e("s_mov_b32 exec_hi, -1")
def red_read(nw):
    per = 4 if nw > 8 else 2
    e(f"v_lshlrev_b32 v4, {10 if per == 4 else 9}, v2")
    e("v_lshl_add_u32 v4, v3, 4, v4")
    e(f"v_add_u32 v4, {T_RED}, v4")
    for i in range(per):
        e(f"ds_read_b128 v[{8+4*i}:{11+4*i}], v4 offset:{256*i}")
def red_sum(nw):
    e("s_waitcnt lgkmcnt(0)")
    if nw == 7:
        e("v_cmp_eq_u32 vcc, 3, v2")
        nop(2)
        for i in range(12, 16): e(f"v_cndmask_b32 v{i}, v{i}, v30, vcc")
    e("v_pk_add_f32 v[8:9], v[8:9], v[12:13]")
    e("v_pk_add_f32 v[10:11], v[10:11], v[14:15]")
    if nw > 8:
        e("v_pk_add_f32 v[16:17], v[16:17], v[20:21]")
        e("v_pk_add_f32 v[18:19], v[18:19], v[22:23]")
        e("v_pk_add_f32 v[8:9], v[8:9], v[16:17]")
        e("v_pk_add_f32 v[10:11], v[10:11], v[18:19]")
    for sw in ("v_permlane16_swap_b32", "v_permlane32_swap_b32"):
        for i in range(4): e(f"v_mov_b32 v{12+i}, v{8+i}")
        nop(1)
        for i in range(4): e(f"{sw} v{8+i}, v{12+i}")
        nop(1)
        e("v_pk_add_f32 v[8:9], v[8:9], v[12:13]")
        e("v_pk_add_f32 v[10:11], v[10:11], v[14:15]")
def quad_reduce_write(addr):
    unpack2(8, 12, 13); unpack2(10, 14, 15)
    for sw in ("v_permlane16_swap_b32", "v_permlane32_swap_b32"):
        for i in range(4): e(f"v_mov_b32 v{16+i}, v{12+i}")
        nop(1)
        for i in range(4): e(f"{sw} v{12+i}, v{16+i}")
        nop(1)
        e("v_pk_add_f32 v[12:13], v[12:13], v[16:17]")
        e("v_pk_add_f32 v[14:15], v[14:15], v[18:19]")
    e("s_mov_b64 exec, 0xffff")
    e(f"ds_write_b128 v{addr}, v[12:15]")
    e("s_mov_b64 exec, -1")
quad_reduce_write(125)
signal(T_CNT, C_RED, 12, 13)
stamp(4)
lw12 = uid("W12"); lw12b = uid("W12B")
e(f"s_cmp_eq_u32 s{sWAVE}, 12")
e(f"s_cbranch_scc1 {lw12b}")
down_frags()
e(f"s_branch {lw12}")
lab(lw12b)
wait_cnt(T_CNT, C_RED, 8, 8, 9, sleep=0)
red_read(8)
e("v_lshrrev_b32 v4, 2, v1")
e("v_lshlrev_b32 v4, 11, v4")
e("v_and_b32 v5, 3, v1")
e("v_lshl_add_u32 v4, v5, 4, v4")
e(f"s_lshl_b32 s{sT0}, s{sR}, 6")
e(f"s_add_u32 s{sT0}, s{sT0}, {WS_X2}")
red_sum(8)
e(f"v_mov_b32 v17, s{sTAG}")
e(f"v_mov_b32 v19, s{sTAG}")
rnd2(8, 9, 12); rnd2(10, 11, 13)
e("v_pk_mul_f32 v[8:9], v[48:49], v[8:9]")
e("v_pk_mul_f32 v[10:11], v[50:51], v[10:11]")
rnd2(8, 9, 12); rnd2(10, 11, 13)
e("v_pk_add_f32 v[8:9], v[56:57], v[8:9]")
e("v_pk_add_f32 v[10:11], v[58:59], v[10:11]")
e("v_cvt_pk_bf16_f32 v16, v8, v9")
e("v_cvt_pk_bf16_f32 v18, v10, v11")
e("s_mov_b64 exec, 0xffff")
lsc = uid("SC"); lsd = uid("SD")
e(f"s_cmp_eq_u32 s{sSAME}, 1")
e(f"s_cbranch_scc0 {lsc}")
e(f"buffer_store_dwordx4 v[16:19], v4, {WS}, s{sT0} offen")
e(f"s_branch {lsd}")
lab(lsc)
e(f"buffer_store_dwordx4 v[16:19], v4, {WS}, s{sT0} offen sc1")
lab(lsd)
e("s_mov_b64 exec, -1")
unpack2(16, 60, 61); unpack2(18, 62, 63)
stamp(10)
down_frags()
lab(lw12)
lln = uid("LN")
e(f"s_cmp_lt_u32 s{sWAVE}, 8")
e(f"s_cbranch_scc1 {lln}")
e(f"s_cmp_ge_u32 s{sWAVE}, 12")
e(f"s_cbranch_scc1 {lln}")
e(f"s_sub_u32 s{sT4}, s{sWAVE}, 8")
e(f"s_lshl_b32 s{sT0}, s{sT4}, 11")
e(f"s_add_u32 s{sT0}, s{sT0}, {WS_X2}")
e("v_lshlrev_b32 v4, 4, v1")
e(f"v_add_u32 v4, s{sT0}, v4")
e("v_lshrrev_b32 v6, 3, v1")
e("v_lshlrev_b32 v6, 6, v6")
e("v_and_b32 v7, 3, v1")
e("v_lshl_add_u32 v6, v7, 4, v6")
e("v_bfe_u32 v7, v1, 2, 1")
e("v_lshl_add_u32 v6, v7, 3, v6")
e(f"s_mul_i32 s{sT0}, s{sT4}, 1088")
e(f"s_add_u32 s{sT0}, s{sT0}, {T_H2}")
e(f"v_add_u32 v6, s{sT0}, v6")
poll([(8, 4, 0), (12, 4, 1024)], intra=True)
stamp(11)
unpack2(8, 16, 17); unpack2(10, 18, 19); unpack2(12, 20, 21); unpack2(14, 22, 23)
layernorm8(16, 24)
for i in range(0, 8, 2):
    e(f"v_pk_mul_f32 v[{16+i}:{17+i}], v[{16+i}:{17+i}], v[{56+i}:{57+i}]")
for i in range(0, 8, 2):
    rnd2(16+i, 17+i, 24)
for i in range(0, 8, 2):
    e(f"v_pk_add_f32 v[{16+i}:{17+i}], v[{16+i}:{17+i}], v[{48+i}:{49+i}]")
for i in range(4):
    e(f"v_cvt_pk_bf16_f32 v{8+i}, v{16+2*i}, v{17+2*i}")
e("ds_write_b64 v6, v[8:9]")
e("ds_write_b64 v6, v[10:11] offset:512")
stamp(12)
lab(lln)
lab("L_T_H2")
e("v_and_b32 v5, 3, v1")
e("v_mul_u32_u24 v6, 1088, v5")
e("v_lshl_add_u32 v6, v2, 4, v6")
e(f"v_add_u32 v6, {T_H2}, v6")
e("v_lshlrev_b32 v4, 6, v3")
e("v_lshlrev_b32 v7, 6, v5")
e(f"s_cmp_lt_u32 s{sWAVE}, 4")
e(f"s_cselect_b32 s{sT1}, 1024, 0")
lgu = uid("GU")
e(f"s_cbranch_scc0 {lgu}")
e("v_mov_b32 v4, v7")
lab(lgu)
e("v_lshl_add_u32 v4, v2, 4, v4")
e(f"s_lshl_b32 s{sT0}, s{sWAVE}, 8")
e(f"s_add_u32 s{sT0}, s{sT0}, s{sT1}")
e(f"s_add_u32 s{sT0}, s{sT0}, {T_GU}")
e(f"v_add_u32 v4, s{sT0}, v4")
e("v_mul_u32_u24 v7, 192, v5")
e("v_lshl_add_u32 v7, v2, 4, v7")
e(f"v_add_u32 v124, {T_ACTL}, v7")
e(f"s_lshr_b32 s{sT0}, s{sWAVE}, 1")
e(f"s_lshl_b32 s{sT0}, s{sT0}, 6")
e(f"s_and_b32 s{sT1}, s{sWAVE}, 1")
e(f"s_lshl_b32 s{sT1}, s{sT1}, 3")
e(f"s_add_u32 s{sT0}, s{sT0}, s{sT1}")
e(f"s_add_u32 s{sT0}, s{sT0}, {T_ACTL}")
e(f"v_add_u32 v7, s{sT0}, v7")
e("v_lshlrev_b32 v125, 6, v5")
e("v_lshl_add_u32 v125, v2, 4, v125")
e("v_bfe_u32 v8, v1, 2, 1")
e("v_cmp_eq_u32 s[86:87], 1, v8")
e(f"v_mul_u32_u24 v9, {28*256}, v8")
e("v_add_u32 v125, v125, v9")
e("v_bfe_u32 v8, v1, 3, 1")
e("v_cmp_eq_u32 s[96:97], 0, v8")
e(f"s_lshl_b32 s{sT0}, s{sWAVE}, 1")
e(f"s_mul_i32 s{sT0}, s{sT0}, {28*256}")
e(f"s_lshl_b32 s{sT1}, s{sR}, 8")
e(f"s_add_u32 s{sT0}, s{sT0}, s{sT1}")
e(f"s_add_u32 s{sT0}, s{sT0}, {WS_DP}")
e(f"v_add_u32 v125, s{sT0}, v125")
e("s_waitcnt lgkmcnt(0)")
e("s_barrier")
stamp(5)
lfin = uid("FIN")
e(f"s_cmp_ge_u32 s{sR}, 28")
e(f"s_cbranch_scc1 {lfin}")
lg = uid("G")
e(f"s_cmp_ge_u32 s{sWAVE}, 8")
e(f"s_cbranch_scc1 {lg}")
def tbread(grp):
    base = [8, 112][grp % 2]
    for k in range(4):
        ks = 4*grp + k
        e(f"ds_read_b128 v[{base+4*k}:{base+4*k+3}], v6 offset:{64*ks}")
def tb_regs(grp, k):
    if grp % 2 == 0: return 8 + 4*k
    return [112, 116, 120, 28][k]
def tbread2(grp):
    for k in range(4):
        ks = 4*grp + k; b_ = tb_regs(grp, k)
        e(f"ds_read_b128 v[{b_}:{b_+3}], v6 offset:{64*ks}")
tbread2(0); tbread2(1)
for grp in range(4):
    e(f"s_waitcnt lgkmcnt({4 if grp < 3 else 0})")
    for k in range(4):
        ks = 4*grp + k; b_ = tb_regs(grp, k)
        cin = "0" if ks == 0 else "v[24:27]"
        e(f"v_mfma_f32_16x16x32_bf16 v[24:27], v[{32+4*ks}:{35+4*ks}], v[{b_}:{b_+3}], {cin}")
    if grp + 2 < 4: tbread2(grp + 2)
nop(8)
stamp(13)
rnd2(24, 25, 28); rnd2(26, 27, 29)
lup2 = uid("UPW")
e(f"s_cmp_ge_u32 s{sWAVE}, 4")
e(f"s_cbranch_scc1 {lup2}")
for i in range(4): e(f"v_mul_f32 v{16+i}, {NLOG2E:#x}, v{24+i}")
for i in range(4): e(f"v_exp_f32 v{16+i}, v{16+i}")
nop(1)
for i in range(4): e(f"v_add_f32 v{16+i}, 1.0, v{16+i}")
for i in range(4): e(f"v_rcp_f32 v{16+i}, v{16+i}")
nop(1)
e("v_pk_mul_f32 v[24:25], v[24:25], v[16:17]")
e("v_pk_mul_f32 v[26:27], v[26:27], v[18:19]")
rnd2(24, 25, 28); rnd2(26, 27, 29)
e(f"s_branch {lg}")
lab(lup2)
e("v_cmp_gt_u32 vcc, 4, v3")
e(f"s_and_saveexec_b64 s[{sM0}:{sM1}], vcc")
e("ds_write_b128 v4, v[24:27]")
e(f"s_mov_b64 exec, s[{sM0}:{sM1}]")
lab(lg)
e("s_waitcnt lgkmcnt(0)")
e("s_barrier")
la = uid("A")
e(f"s_cmp_ge_u32 s{sWAVE}, 4")
e(f"s_cbranch_scc1 {la}")
e("ds_read_b128 v[12:15], v4")
e("v_cmp_gt_u32 vcc, 4, v3")
e("s_waitcnt lgkmcnt(0)")
e("v_pk_mul_f32 v[24:25], v[24:25], v[12:13]")
e("v_pk_mul_f32 v[26:27], v[26:27], v[14:15]")
e("v_cvt_pk_bf16_f32 v8, v24, v25")
e("v_cvt_pk_bf16_f32 v9, v26, v27")
e(f"s_and_saveexec_b64 s[{sM0}:{sM1}], vcc")
e("ds_write_b64 v7, v[8:9]")
e(f"s_mov_b64 exec, s[{sM0}:{sM1}]")
lab(la)
e(f"v_mov_b32 v29, s{sTAG}")
e(f"v_mov_b32 v31, s{sTAG}")
e("s_waitcnt lgkmcnt(0)")
e("s_barrier")
stamp(6)
e("ds_read_b128 v[8:11], v124")
e("ds_read_b128 v[12:15], v124 offset:64")
e("s_waitcnt lgkmcnt(0)")
for ks in range(2):
    for j in range(2):
        d = 96 + 8*j + 4*ks
        cin = "0" if ks == 0 else f"v[{16+4*j}:{19+4*j}]"
        e(f"v_mfma_f32_16x16x32_bf16 v[{16+4*j}:{19+4*j}], v[{d}:{d+3}], v[{8+4*ks}:{11+4*ks}], {cin}")
nop(8)
for i in range(4): e(f"v_cndmask_b32 v{24+i}, v{16+i}, v{20+i}, s[86:87]")
e("v_cvt_pk_bf16_f32 v28, v24, v25")
e("v_cvt_pk_bf16_f32 v30, v26, v27")
e("s_mov_b64 exec, s[96:97]")
lsc = uid("SC"); lsd = uid("SD")
e(f"s_cmp_eq_u32 s{sSAME}, 1")
e(f"s_cbranch_scc0 {lsc}")
e(f"buffer_store_dwordx4 v[28:31], v125, {WS}, 0 offen")
e(f"s_branch {lsd}")
lab(lsc)
e(f"buffer_store_dwordx4 v[28:31], v125, {WS}, 0 offen sc1")
lab(lsd)
e("s_mov_b64 exec, -1")
stamp(7)
lab(lfin)
lf2 = uid("F2")
e(f"s_cmp_ge_u32 s{sWAVE}, 7")
e(f"s_cbranch_scc1 {lf2}")
e(f"s_lshl_b32 s{sT0}, s{sWAVE}, 8")
e("v_lshlrev_b32 v127, 4, v3")
e(f"v_add_u32 v127, s{sT0}, v127")
e(f"v_add_u32 v127, {T_RED}, v127")
poll([(8, 126, 0)], intra=True)
stamp(14)
unpack2(8, 12, 13); unpack2(10, 14, 15)
for sw in ("v_permlane16_swap_b32", "v_permlane32_swap_b32"):
    for i in range(4): e(f"v_mov_b32 v{16+i}, v{12+i}")
    nop(1)
    for i in range(4): e(f"{sw} v{12+i}, v{16+i}")
    nop(1)
    e("v_pk_add_f32 v[12:13], v[12:13], v[16:17]")
    e("v_pk_add_f32 v[14:15], v[14:15], v[18:19]")
e("s_mov_b64 exec, 0xffff")
e("ds_write_b128 v127, v[12:15]")
e("s_mov_b64 exec, -1")
lab(lf2)
e("s_waitcnt lgkmcnt(0)")
stamp(16)
e("s_barrier")
e(f"s_cmp_lg_u32 s{sWAVE}, 12")
e("s_cbranch_scc1 L_END")
red_read(8)
e("v_mov_b32 v30, 0")
e("v_lshrrev_b32 v4, 2, v1")
e("v_lshlrev_b32 v4, 10, v4")
e("v_and_b32 v5, 3, v1")
e("v_lshl_add_u32 v4, v5, 3, v4")
e(f"s_lshl_b32 s{sT0}, s{sR}, 5")
red_sum(7)
rnd2(8, 9, 12); rnd2(10, 11, 13)
e("v_pk_mul_f32 v[8:9], v[52:53], v[8:9]")
e("v_pk_mul_f32 v[10:11], v[54:55], v[10:11]")
rnd2(8, 9, 12); rnd2(10, 11, 13)
e("v_pk_add_f32 v[8:9], v[60:61], v[8:9]")
e("v_pk_add_f32 v[10:11], v[62:63], v[10:11]")
e("v_cvt_pk_bf16_f32 v16, v8, v9")
e("v_cvt_pk_bf16_f32 v17, v10, v11")
e("s_mov_b64 exec, 0xffff")
e(f"buffer_store_dwordx2 v[16:17], v4, {SD}, s{sT0} offen")
le = uid("EP")
e(f"s_cmp_lg_u32 s{sR}, 0")
e(f"s_cbranch_scc1 {le}")
e("s_mov_b64 exec, 1")
e(f"v_mov_b32 v8, s{sTAG}")
e(f"s_mov_b32 s{sT0}, {WS_EPOCH}")
e(f"buffer_store_dword v8, off, {WS}, s{sT0} sc1")
lab(le)
if "span" in OPT:
    e(f"s_mov_b32 s28, s{P_DBG}")
    e(f"s_and_b32 s29, s{P_DBG+1}, 0xffff")
    e("s_mov_b32 s30, 256")
    e("s_mov_b32 s31, 0x20000")
    e("s_waitcnt vmcnt(0)")
    e(f"s_memrealtime s[{sST0}:{sST1}]")
    e("s_waitcnt lgkmcnt(0)")
    e(f"v_mov_b32 v8, s{sST0}")
    e("s_mov_b64 exec, 1")
    e("buffer_atomic_umax v8, off, s[28:31], 0 offset:4")
stamp(8)
lab("L_END")
if DIAG:
    e("s_mov_b64 exec, -1")
    stamp(31)
    e("v_lshlrev_b32 v4, 2, v1")
    e("v_cmp_gt_u32 vcc, 32, v1")
    e(f"s_and_saveexec_b64 s[{sM0}:{sM1}], vcc")
    e(f"buffer_store_dword v0, v4, {WS}, s{sSTAMP} offen")
lab("L_EXIT")
e("s_endpgm")

L.append('.section .rodata,"a"')
L.append(".p2align 6")
L.append(f".amdhsa_kernel {NAME}_kernel")
L.append("  .amdhsa_next_free_vgpr 128")
L.append("  .amdhsa_next_free_sgpr 102")
L.append("  .amdhsa_accum_offset 128")
L.append("  .amdhsa_group_segment_fixed_size 0")
L.append("  .amdhsa_kernarg_size 112")
L.append("  .amdhsa_user_sgpr_count 2")
L.append("  .amdhsa_user_sgpr_kernarg_segment_ptr 1")
L.append("  .amdhsa_system_sgpr_workgroup_id_x 1")
L.append("  .amdhsa_float_denorm_mode_32 3")
L.append(".end_amdhsa_kernel")

open(sys.argv[1], "w").write("\n".join(x for x in L if x is not None) + "\n")
```

```python
import sys

DIAG = int(sys.argv[2]) if len(sys.argv) > 2 else 0
import os
OPT = set(os.environ.get("OPT", "").split(","))
NAME = "adaLN_cond__sliding_block_cached__swiglu_ffn__decode"

L = []
def e(s): L.append("    " + s)
def lab(s): L.append(s + ":")
def c(s): L.append("    ; " + s)
def nop(n):
    while n > 0:
        k = min(n, 16); e(f"s_nop {k-1}"); n -= k
_uid = [0]
def uid(p):
    _uid[0] += 1
    return f"{p}_{_uid[0]}"

WS_EPOCH = 0
WS_XCC   = 0x100
WS_HS    = 0x200
WS_QS    = 0x400
WS_MS    = 0xC00
WS_H     = 0x1000
WS_X2    = 0x3000
WS_M     = 0x8000
WS_Q     = 0x10000
WS_OML   = 0x20000
WS_OD    = 0x40000
WS_AP    = 0xC0000
WS_DP    = 0x140000
WS_SC    = 0x1B0000
WS_STAMP = 0x200000
WS_SIZE  = 0x300000

S_V    = 0
S_E    = 81920
S_L    = 114688
S_MISC = 147456
S_ACT  = S_MISC
S_QL   = S_ACT + 4352
S_XN   = S_QL + 1280
S_EXC  = S_XN + 256
S_MAXB = S_EXC + 256
S_PB   = S_MAXB + 256
S_CNT  = S_PB + 2560
S_CG   = S_V
S_CML  = S_V + 8704
LDS_BYTES = 163840
C_EARLY, C_ACT, C_EXC, C_XN, C_KL, C_Q, C_MAX, C_P, F_V, C_PVD, C_LATE, C_HD, C_WQ, C_QD = range(14)

T_W    = 0
T_WQ   = 0
T_HST  = 122880
T_HM   = 155648
T_ACT  = T_HM
T_XN   = T_ACT + 4352
T_EXC  = T_XN + 256
T_CNT  = T_EXC + 256
T_SAME = T_CNT + 64
T_HL   = 131072 + 16384
T_MISC = 131072
T_ACC1 = T_MISC
T_ACC2 = T_ACC1 + 256
T_H2   = T_ACC2 + 256
T_GU   = T_H2 + 4352
T_ACTL = T_GU + 2048
T_RED  = T_ACTL + 768

sWAVE, sTAG, sX8, sR, sS = 3, 4, 5, 6, 7
WS, SA, SB, SC, SD, SE, SF = "s[8:11]", "s[12:15]", "s[16:19]", "s[20:23]", "s[24:27]", "s[28:31]", "s[32:35]"
P_X, P_K, P_V, P_WQ, P_WO, P_BX, P_WG, P_WU, P_WD, P_C, P_WM, P_OUT, P_DBG, P_WS = [36 + 2*i for i in range(14)]
sT0, sT1, sT2, sT3, sT4, sT5, sT6, sT7 = 64, 65, 66, 67, 68, 69, 70, 71
sM0, sM1 = 72, 73
sM2, sM3 = 74, 75
sSTAMP = 76
sKV = 77
sNT = 78
sU = 79
sUI = 80
sLATE = 81
sSPIN = 82
sSTRIDE = 83
sCB0, sCB1 = 84, 85
sP, sJ = 86, 87
sSAME = 88
sST0, sST1 = 90, 91
sH = 92; sNQ = 93; sQCU = 95; sKDONE = 100

SPIN_MAX = 200000
LSPIN_MAX = 4000000

def csel2(dst, a, b):
    e(f"s_mov_b32 s{dst}, {b}")
    e(f"s_cselect_b32 s{dst}, {a}, s{dst}")

def srd(dst0, ptr, nbytes):
    e(f"s_mov_b32 s{dst0}, s{ptr}")
    e(f"s_and_b32 s{dst0+1}, s{ptr+1}, 0xffff")
    e(f"s_mov_b32 s{dst0+2}, {nbytes}")
    e(f"s_mov_b32 s{dst0+3}, 0x20000")

def stamp(k, wave=None):
    if not DIAG: return
    l = None
    if wave is not None:
        l = uid("ST"); e(f"s_cmp_lg_u32 s{sWAVE}, {wave}"); e(f"s_cbranch_scc1 {l}")
    e(f"s_memrealtime s[{sST0}:{sST1}]")
    e("s_waitcnt lgkmcnt(0)")
    e(f"v_writelane_b32 v0, s{sST0}, {k}")
    if l: lab(l)

def signal(cnt_base, k, vt0, vt1):
    e(f"v_mov_b32 v{vt0}, {cnt_base + 4*k}")
    e(f"v_mov_b32 v{vt1}, 1")
    e(f"s_mov_b64 s[{sM2}:{sM3}], exec")
    e("s_mov_b64 exec, 1")
    e(f"ds_add_u32 v{vt0}, v{vt1}")
    e(f"s_mov_b64 exec, s[{sM2}:{sM3}]")

def wait_cnt(cnt_base, k, target, vt0, vt1, sleep=1):
    l = uid("W"); d = uid("WD")
    e(f"v_mov_b32 v{vt0}, {cnt_base + 4*k}")
    e(f"s_mov_b32 s{sSPIN}, 0")
    lab(l)
    e(f"ds_read_b32 v{vt1}, v{vt0}")
    e("s_waitcnt lgkmcnt(0)")
    e(f"v_readfirstlane_b32 s{sT7}, v{vt1}")
    e(f"s_cmp_ge_u32 s{sT7}, {target}")
    e(f"s_cbranch_scc1 {d}")
    if sleep: e(f"s_sleep {sleep}")
    e(f"s_add_u32 s{sSPIN}, s{sSPIN}, 1")
    e(f"s_cmp_lt_u32 s{sSPIN}, {LSPIN_MAX}")
    e(f"s_cbranch_scc1 {l}")
    e("s_branch L_END")
    lab(d)

def wait_mask(cnt_base, k, need, vt0, vt1, sleep=0):
    l = uid("W"); d = uid("WD")
    e(f"v_mov_b32 v{vt0}, {cnt_base + 4*k}")
    e(f"s_mov_b32 s{sSPIN}, 0")
    lab(l)
    e(f"ds_read_b32 v{vt1}, v{vt0}")
    e("s_waitcnt lgkmcnt(0)")
    e(f"v_readfirstlane_b32 s{sT7}, v{vt1}")
    e(f"s_and_b32 s{sT7}, s{sT7}, {need}")
    e(f"s_cmp_eq_u32 s{sT7}, {need}")
    e(f"s_cbranch_scc1 {d}")
    if sleep: e(f"s_sleep {sleep}")
    e(f"s_add_u32 s{sSPIN}, s{sSPIN}, 1")
    e(f"s_cmp_lt_u32 s{sSPIN}, {LSPIN_MAX}")
    e(f"s_cbranch_scc1 {l}")
    e("s_branch L_END")
    lab(d)

def signal_or(cnt_base, k, sbit, vt0, vt1):
    e(f"v_mov_b32 v{vt0}, {cnt_base + 4*k}")
    e(f"v_mov_b32 v{vt1}, s{sbit}")
    e(f"s_mov_b64 s[{sM2}:{sM3}], exec")
    e("s_mov_b64 exec, 1")
    e(f"ds_or_b32 v{vt0}, v{vt1}")
    e(f"s_mov_b64 exec, s[{sM2}:{sM3}]")

def poll(loads, sleep=0, intra=False, pre=0):
    d = uid("PD")
    if pre: e(f"s_sleep {pre}")
    e(f"s_mov_b32 s{sSPIN}, 0")
    flavs = ["sc1"]
    lsc = None
    if intra:
        lsc = uid("PS")
        e(f"s_cmp_eq_u32 s{sSAME}, 1")
        e(f"s_cbranch_scc0 {lsc}")
        flavs = ["nt", "sc1"]
    for fi, fl in enumerate(flavs):
        if intra and fi == 1: lab(lsc)
        l = uid("P")
        lab(l)
        for (dst, voff, imm) in loads:
            e(f"buffer_load_dwordx4 v[{dst}:{dst+3}], v{voff}, {WS}, 0 offen offset:{imm} {fl}")
        e("s_waitcnt vmcnt(0)")
        first = True
        for (dst, voff, imm) in loads:
            if first:
                e(f"v_cmp_eq_u32 vcc, s{sTAG}, v{dst+1}")
                first = False
            else:
                e(f"v_cmp_eq_u32 s[{sM0}:{sM1}], s{sTAG}, v{dst+1}")
                e(f"s_and_b64 vcc, vcc, s[{sM0}:{sM1}]")
            e(f"v_cmp_eq_u32 s[{sM0}:{sM1}], s{sTAG}, v{dst+3}")
            e(f"s_and_b64 vcc, vcc, s[{sM0}:{sM1}]")
        e("s_cmp_eq_u64 vcc, exec")
        e(f"s_cbranch_scc1 {d}")
        if sleep: e(f"s_sleep {sleep}")
        e(f"s_add_u32 s{sSPIN}, s{sSPIN}, 1")
        e(f"s_cmp_lt_u32 s{sSPIN}, {SPIN_MAX}")
        e(f"s_cbranch_scc1 {l}")
        e("s_branch L_END")
    lab(d)

def load_tag():
    e(f"s_load_dword s{sTAG}, s[{P_WS}:{P_WS+1}], {WS_EPOCH}")

def fin_tag():
    e("s_waitcnt lgkmcnt(0)")
    e(f"s_add_u32 s{sTAG}, s{sTAG}, 0x9E3779B9")

def sentinel_store(soff_sgpr, vpair):
    e(f"s_mov_b64 s[{sM2}:{sM3}], exec")
    e("s_mov_b64 exec, 1")
    e(f"buffer_store_dwordx2 v[{vpair}:{vpair+1}], off, {WS}, s{soff_sgpr} sc1")
    e(f"s_mov_b64 exec, s[{sM2}:{sM3}]")

def poll_lanes(nlanes, dst, voff, sleep):
    e("s_mov_b64 s[98:99], exec")
    if nlanes < 64:
        m = (1 << nlanes) - 1
        e(f"s_mov_b32 exec_lo, {m & 0xffffffff:#x}")
        e(f"s_mov_b32 exec_hi, {m >> 32:#x}")
    poll([(dst, voff, 0)], sleep=sleep)
    e("s_mov_b64 exec, s[98:99]")

def allreduce2(va, vb, t0, t1, op="add"):
    ins = f"v_{op}_f32"
    nop(2)
    for ctl in ("quad_perm:[1,0,3,2]", "quad_perm:[2,3,0,1]", "row_half_mirror", "row_mirror"):
        e(f"{ins}_dpp v{va}, v{va}, v{va} {ctl} row_mask:0xf bank_mask:0xf")
        e(f"{ins}_dpp v{vb}, v{vb}, v{vb} {ctl} row_mask:0xf bank_mask:0xf")
        nop(1)
    for sw in ("v_permlane16_swap_b32", "v_permlane32_swap_b32"):
        e(f"v_mov_b32 v{t0}, v{va}")
        e(f"v_mov_b32 v{t1}, v{vb}")
        nop(2)
        e(f"{sw} v{va}, v{t0}")
        e(f"{sw} v{vb}, v{t1}")
        nop(1)
        e(f"{ins} v{va}, v{va}, v{t0}")
        e(f"{ins} v{vb}, v{vb}, v{t1}")

def rnd2(a, b, t):
    e(f"v_cvt_pk_bf16_f32 v{t}, v{a}, v{b}")
    e(f"v_lshlrev_b32 v{a}, 16, v{t}")
    e(f"v_and_b32 v{b}, 0xffff0000, v{t}")

def unpack2(src, lo, hi):
    e(f"v_lshlrev_b32 v{lo}, 16, v{src}")
    e(f"v_and_b32 v{hi}, 0xffff0000, v{src}")

LOG2E = 0x3fb8aa3b
NLOG2E = 0xbfb8aa3b
SCALE = 0x3db504f3
EPS = 0x3727c5ac
INV512 = 0x3b000000

def layernorm8(x0, t):
    d = t + 4
    a, b, t0, t1 = t, t+1, t+2, t+3
    e(f"v_readfirstlane_b32 s{sT0}, v{x0}")
    e(f"v_readfirstlane_b32 s{sT1}, v{x0}")
    nop(2)
    for i in range(0, 8, 2):
        e(f"v_pk_add_f32 v[{d+i}:{d+i+1}], v[{x0+i}:{x0+i+1}], s[{sT0}:{sT1}] neg_lo:[0,1] neg_hi:[0,1]")
    e(f"v_pk_add_f32 v[{t0}:{t1}], v[{d}:{d+1}], v[{d+2}:{d+3}]")
    e(f"v_pk_mul_f32 v[{a}:{b}], v[{d}:{d+1}], v[{d}:{d+1}]")
    e(f"v_pk_add_f32 v[{t0}:{t1}], v[{t0}:{t1}], v[{d+4}:{d+5}]")
    e(f"v_pk_fma_f32 v[{a}:{b}], v[{d+2}:{d+3}], v[{d+2}:{d+3}], v[{a}:{b}]")
    e(f"v_pk_add_f32 v[{t0}:{t1}], v[{t0}:{t1}], v[{d+6}:{d+7}]")
    e(f"v_pk_fma_f32 v[{a}:{b}], v[{d+4}:{d+5}], v[{d+4}:{d+5}], v[{a}:{b}]")
    e(f"v_pk_fma_f32 v[{a}:{b}], v[{d+6}:{d+7}], v[{d+6}:{d+7}], v[{a}:{b}]")
    e(f"v_add_f32 v{b}, v{a}, v{b}")
    e(f"v_add_f32 v{a}, v{t0}, v{t1}")
    allreduce2(a, b, t0, t1)
    e(f"v_mul_f32 v{a}, {INV512:#x}, v{a}")
    e(f"v_mul_f32 v{b}, {INV512:#x}, v{b}")
    e(f"v_fma_f32 v{b}, -v{a}, v{a}, v{b}")
    e(f"v_add_f32 v{a}, s{sT0}, v{a}")
    e(f"v_max_f32 v{b}, 0, v{b}")
    rnd2(a, b, t0)
    e(f"v_add_f32 v{b}, {EPS:#x}, v{b}")
    e(f"v_cvt_pk_bf16_f32 v{t0}, v{b}, v{b}")
    e(f"v_lshlrev_b32 v{b}, 16, v{t0}")
    e(f"v_sqrt_f32 v{b}, v{b}")
    nop(1)
    for i in range(0, 8, 2):
        e(f"v_pk_add_f32 v[{x0+i}:{x0+i+1}], v[{x0+i}:{x0+i+1}], v[{a}:{b}] op_sel_hi:[1,0] neg_lo:[0,1] neg_hi:[0,1]")
    e(f"v_cvt_pk_bf16_f32 v{t0}, v{b}, v{b}")
    e(f"v_lshlrev_b32 v{b}, 16, v{t0}")
    e(f"v_rcp_f32 v{t0}, v{b}")
    for i in range(0, 8, 2):
        rnd2(x0+i, x0+i+1, d)
    for i in range(0, 8, 2):
        e(f"v_pk_mul_f32 v[{x0+i}:{x0+i+1}], v[{x0+i}:{x0+i+1}], v[{t0}:{t1}] op_sel_hi:[1,0]")
    for i in range(0, 8, 2):
        rnd2(x0+i, x0+i+1, d)

def silu_inplace(x, t0, t1):
    e(f"v_mul_f32 v{t0}, {NLOG2E:#x}, v{x}")
    e(f"v_exp_f32 v{t0}, v{t0}")
    nop(1)
    e(f"v_add_f32 v{t0}, 1.0, v{t0}")
    e(f"v_rcp_f32 v{t1}, v{t0}")
    nop(1)
    e(f"v_mul_f32 v{x}, v{x}, v{t1}")


SSL = int(os.environ.get("SSL", "2"))
TSL = int(os.environ.get("TSL", "4"))
ENT = "" if "Enont" in OPT else " nt"
SCS = int(os.environ.get("SCS", "1"))
EK = int(os.environ.get("EK", "3"))
PSL = int(os.environ.get("PSL", "8"))
QKW = int(os.environ.get("QKW", "0"))
WK = int(os.environ.get("WK", "4"))
KOV = int(os.environ.get("KOV", "2"))
hdr = open("cdna_kernels/" + NAME + ".s.ref").read().split("\n")
for ln in hdr:
    if ln.startswith("; Override") or ln.startswith("; grid=") or ln.startswith("; @launch"): continue
    if ln.startswith(";"): L.append(ln)
    else: break
L.append(f"; @launch grid=(256,1,1) block=(1024,1,1) lds={LDS_BYTES}")
L.append('.amdgcn_target "amdgcn-amd-amdhsa--gfx950"')
L.append(".text")
L.append(f".globl {NAME}_kernel")
L.append(".p2align 8")
L.append(f".type {NAME}_kernel,@function")
lab(f"{NAME}_kernel")

sKVB = 94
sEX0, sEX1 = 96, 97

e("s_cmp_ge_u32 s2, 256")
e("s_cbranch_scc1 L_EXIT")
e("s_load_dwordx16 s[36:51], s[0:1], 0")
e("s_load_dwordx8 s[52:59], s[0:1], 64")
e("s_load_dwordx4 s[60:63], s[0:1], 96")
e("v_lshrrev_b32 v2, 6, v0")
e("v_and_b32 v1, 63, v0")
e(f"v_readfirstlane_b32 s{sWAVE}, v2")
e(f"s_and_b32 s{sX8}, s2, 7")
e(f"s_lshr_b32 s{sR}, s2, 3")
e("v_lshrrev_b32 v2, 4, v1")
e("v_and_b32 v3, 15, v1")
e(f"s_lshl_b32 s{sSTAMP}, s2, 4")
e(f"s_add_u32 s{sSTAMP}, s{sSTAMP}, s{sWAVE}")
e(f"s_lshl_b32 s{sSTAMP}, s{sSTAMP}, 7")
e(f"s_add_u32 s{sSTAMP}, s{sSTAMP}, {WS_STAMP}")
if DIAG: e("v_mov_b32 v0, 0")
stamp(0)
e("s_waitcnt lgkmcnt(0)")
srd(8, P_WS, WS_SIZE)
if "span" in OPT:
    lsp = uid("SP")
    e(f"s_cmp_lg_u32 s{sWAVE}, 0")
    e(f"s_cbranch_scc1 {lsp}")
    e(f"s_mov_b32 s28, s{P_DBG}")
    e(f"s_and_b32 s29, s{P_DBG+1}, 0xffff")
    e("s_mov_b32 s30, 256")
    e("s_mov_b32 s31, 0x20000")
    e(f"s_memrealtime s[{sST0}:{sST1}]")
    e("s_waitcnt lgkmcnt(0)")
    e(f"s_not_b32 s{sST0}, s{sST0}")
    e(f"v_mov_b32 v8, s{sST0}")
    e("s_mov_b64 exec, 1")
    e("buffer_atomic_umax v8, off, s[28:31], 0")
    e("s_mov_b64 exec, -1")
    lab(lsp)
e(f"s_cmp_eq_u32 s{sX8}, 7")
e("s_cbranch_scc1 L_T")

def line_dma_voff(stride):
    e("v_lshrrev_b32 v4, 3, v1")
    e(f"v_mul_u32_u24 v4, {stride}, v4")
    e("v_bfe_u32 v5, v1, 1, 2")
    e("v_bfe_u32 v6, v1, 4, 2")
    e("v_xor_b32 v5, v5, v6")
    e("v_lshl_add_u32 v4, v5, 5, v4")
    e("v_and_b32 v5, 1, v1")
    e("v_lshl_add_u32 v4, v5, 4, v4")
def tr_line_addr(dst, base_sgpr):
    e("v_lshrrev_b32 v4, 2, v3")
    e("v_lshl_add_u32 v4, v2, 2, v4")
    e("v_bfe_u32 v5, v4, 1, 2")
    e(f"s_and_b32 s{sT1}, s{sWAVE}, 3")
    e(f"v_xor_b32 v5, s{sT1}, v5")
    e("v_lshlrev_b32 v4, 7, v4")
    e("v_lshl_add_u32 v4, v5, 5, v4")
    e("v_and_b32 v5, 3, v1")
    e("v_lshl_add_u32 v4, v5, 3, v4")
    e(f"v_add_u32 v{dst}, s{base_sgpr}, v4")
def mfma16(vaddr):
    def regs(grp, k):
        if grp % 2 == 0: return 8 + 4*k
        return [112, 116, 120, 28][k]
    def rd(grp):
        for k in range(4):
            b_ = regs(grp, k)
            e(f"ds_read_b128 v[{b_}:{b_+3}], v{vaddr} offset:{64*(4*grp+k)}")
    rd(0); rd(1)
    for grp in range(4):
        e(f"s_waitcnt lgkmcnt({4 if grp < 3 else 0})")
        for k in range(4):
            ks = 4*grp + k; b_ = regs(grp, k)
            cin = "0" if ks == 0 else "v[24:27]"
            e(f"v_mfma_f32_16x16x32_bf16 v[24:27], v[{32+4*ks}:{35+4*ks}], v[{b_}:{b_+3}], {cin}")
        if grp + 2 < 4: rd(grp + 2)
    nop(8)
def line_unit(actbase, cnt, stride, rowshift):
    lq8 = uid("Q8"); lq4 = uid("Q4")
    e(f"s_cmp_ge_u32 s{sWAVE}, 8")
    e(f"s_cbranch_scc1 {lq8}")
    line_dma_voff(stride)
    e(f"s_lshl_b32 s{sT1}, s{sWAVE}, 13")
    e(f"s_mul_i32 s{sT2}, s{sWAVE}, {64*stride}")
    e(f"s_add_u32 s{sT2}, s{sT2}, s{sCB0}")
    for k in range(8):
        e(f"s_mov_b32 m0, s{sT1}")
        e(f"s_add_u32 s{sT1}, s{sT1}, 1024")
        e(f"buffer_load_dwordx4 v4, {SC}, s{sT2} offen nt lds")
        e(f"s_add_u32 s{sT2}, s{sT2}, {8*stride}")
    load_tag()
    e("s_waitcnt vmcnt(0)")
    signal(cnt, C_WQ, 8, 9)
    fin_tag()
    e(f"s_cmp_ge_u32 s{sWAVE}, 4")
    e(f"s_cbranch_scc1 {lq4}")
    e(f"s_mov_b32 s{sT2}, 0")
    tr_line_addr(7, sT2)
    e("v_and_b32 v5, 3, v1")
    e("v_mul_u32_u24 v6, 1088, v5")
    e("v_lshl_add_u32 v6, v2, 4, v6")
    e(f"v_add_u32 v6, {actbase}, v6")
    wait_cnt(cnt, C_WQ, 8, 8, 9, sleep=1)
    stamp(1)
    for ks in range(16):
        e(f"ds_read_b64_tr_b16 v[{32+4*ks}:{33+4*ks}], v7 offset:{4096*ks}")
        e(f"ds_read_b64_tr_b16 v[{34+4*ks}:{35+4*ks}], v7 offset:{4096*ks+2048}")
    wait_cnt(cnt, C_ACT, 4, 8, 9, sleep=1)
    stamp(2)
    mfma16(6)
    e("v_cvt_pk_bf16_f32 v28, v24, v25")
    e(f"v_mov_b32 v29, s{sTAG}")
    e("v_cvt_pk_bf16_f32 v30, v26, v27")
    e(f"v_mov_b32 v31, s{sTAG}")
    e(f"s_lshl_b32 s{sT2}, s{sWAVE}, 6")
    e(f"s_add_u32 s{sT1}, s{sCB1}, s{sT2}")
    e(f"v_lshlrev_b32 v8, {rowshift}, v3")
    e("v_lshl_add_u32 v8, v2, 4, v8")
    e("v_cmp_gt_u32 vcc, 4, v3")
    e(f"s_and_saveexec_b64 s[{sM0}:{sM1}], vcc")
    e(f"buffer_store_dwordx4 v[28:31], v8, {WS}, s{sT1} offen sc1")
    e(f"s_mov_b64 exec, s[{sM0}:{sM1}]")
    signal(cnt, C_QD, 8, 9)
    stamp(3)
    e(f"s_branch {lq4}")
    lab(lq8)
    load_tag()
    fin_tag()
    lab(lq4)

c("S role")
e(f"s_lshl_b32 s{sS}, s{sX8}, 5")
e(f"s_add_u32 s{sS}, s{sS}, s{sR}")
e(f"s_mul_i32 s{sT0}, s{sR}, 37")
e(f"s_lshr_b32 s{sT0}, s{sT0}, 8")
e(f"s_mul_i32 s{sT0}, s{sT0}, 7")
e(f"s_sub_u32 s{sT0}, s{sR}, s{sT0}")
e(f"s_add_u32 s{sT1}, s{sX8}, 7")
e(f"s_sub_u32 s{sT1}, s{sT1}, s{sT0}")
e(f"s_sub_u32 s{sT2}, s{sT1}, 7")
e(f"s_cmp_ge_u32 s{sT1}, 7")
e(f"s_cselect_b32 s{sT1}, s{sT2}, s{sT1}")
e(f"s_lshl_b32 s{sUI}, s{sR}, 1")
e(f"s_cmp_eq_u32 s{sT1}, 0")
e(f"s_cselect_b32 s{sQCU}, 1, 0")
e(f"s_cmp_eq_u32 s{sT1}, 3")
e(f"s_cselect_b32 s{sQCU}, 1, s{sQCU}")
e(f"s_cmp_eq_u32 s{sT1}, 1")
e(f"s_cselect_b32 s{sU}, 1, 0")
e(f"s_cmp_eq_u32 s{sT1}, 4")
e(f"s_cselect_b32 s{sU}, 1, s{sU}")
e(f"s_cmp_ge_u32 s{sT1}, 3")
e(f"s_addc_u32 s{sUI}, s{sUI}, 0")
if "modpair" in OPT:
    e(f"s_sub_u32 s{sT2}, s{sR}, 4")
    e(f"s_and_b32 s{sT2}, s{sT2}, 31")
    e(f"s_lshl_b32 s{sT2}, s{sT2}, 1")
    e(f"s_add_u32 s{sT2}, s{sT2}, 1")
    e(f"s_cmp_eq_u32 s{sT1}, 4")
    e(f"s_cselect_b32 s{sUI}, s{sT2}, s{sUI}")
e(f"s_lshr_b32 s{sT2}, 0x36, s{sT1}")
e(f"s_and_b32 s{sLATE}, s{sT2}, 1")
e(f"s_sub_u32 s{sNQ}, s{sT1}, 1")
e(f"s_cmp_ge_u32 s{sT1}, 4")
e(f"s_cselect_b32 s{sT2}, 1, 0")
e(f"s_sub_u32 s{sNQ}, s{sNQ}, s{sT2}")
e(f"s_mov_b32 s{sH}, s{sR}")
e(f"s_cmp_eq_u32 s{sQCU}, 1")
e(f"s_cselect_b32 s{sNT}, 7, 10")
e(f"s_add_u32 s{sT2}, s{sT0}, 3")
e(f"s_sub_u32 s{sT3}, s{sT2}, 7")
e(f"s_cmp_ge_u32 s{sT2}, 7")
e(f"s_cselect_b32 s{sT2}, s{sT3}, s{sT2}")
e(f"s_mul_i32 s{sT3}, s{sX8}, 10")
e(f"s_cmp_lt_u32 s{sT0}, s{sX8}")
e(f"s_cselect_b32 s{sT5}, 3, 0")
e(f"s_sub_u32 s{sT3}, s{sT3}, s{sT5}")
e(f"s_cmp_lt_u32 s{sT2}, s{sX8}")
e(f"s_cselect_b32 s{sT5}, 3, 0")
e(f"s_sub_u32 s{sT3}, s{sT3}, s{sT5}")
e(f"s_lshl_b32 s{sT0}, s{sT3}, 13")
e(f"s_lshl_b32 s{sT1}, s{sR}, 21")
e(f"s_add_u32 s{sKVB}, s{sT0}, s{sT1}")
e(f"s_add_u32 s{sKVB}, s{sKVB}, {6144*256}")

e(f"s_cmp_ge_u32 s{sWAVE}, 12")
e("s_cbranch_scc1 L_S_STREAM")
e(f"s_cmp_ge_u32 s{sWAVE}, 10")
e("s_cbranch_scc1 L_S_JOB")

c("tile waves 0..9")
srd(12, P_K, 4*8*8192*128*2)
e(f"s_lshl_b32 s{sT0}, s{sWAVE}, 13")
e(f"s_add_u32 s{sKV}, s{sKVB}, s{sT0}")
def k_addr():
    e("v_lshrrev_b32 v4, 2, v3")
    e("v_and_b32 v5, 1, v1")
    e("v_lshl_add_u32 v4, v4, 1, v5")
    e("v_lshlrev_b32 v4, 8, v4")
    e("v_bfe_u32 v5, v1, 1, 1")
    e("v_lshl_add_u32 v4, v5, 6, v4")
    e("v_lshl_add_u32 v4, v2, 4, v4")
def k_issue():
    e(f"s_add_u32 s{sT0}, s{sKV}, 4096")
    for kg in range(4):
        so = sKV if kg < 2 else sT0
        for s_ in range(2):
            d = 32 + 8*kg + 4*s_
            e(f"buffer_load_dwordx4 v[{d}:{d+3}], v4, {SA}, s{so} offen offset:{(kg & 1)*2048 + 128*s_} nt")
e(f"s_mov_b32 s{sT6}, 0")
le0 = uid("E0")
e(f"s_cmp_eq_u32 s{sQCU}, 1")
e(f"s_cbranch_scc1 {le0}")
e(f"s_cmp_ge_u32 s{sWAVE}, {min(WK, EK)}")
e(f"s_cbranch_scc1 {le0}")
k_addr()
k_issue()
e(f"s_mov_b32 s{sT6}, 1")
lab(le0)
e(f"s_mov_b32 s{sKDONE}, s{sT6}")
e("s_barrier")
lnq = uid("NOQ")
e(f"s_cmp_eq_u32 s{sQCU}, 0")
e(f"s_cbranch_scc1 {lnq}")
srd(20, P_WQ, 512*4096*2)
e(f"s_lshl_b32 s{sCB0}, s{sUI}, 7")
e(f"s_lshl_b32 s{sCB1}, s{sUI}, 8")
e(f"s_add_u32 s{sCB1}, s{sCB1}, {WS_Q}")
line_unit(S_ACT, S_CNT, 8192, 14)
wait_cnt(S_CNT, C_QD, 4, 8, 9, sleep=1)
lab(lnq)
e("v_and_b32 v8, 3, v1")
e("v_lshl_add_u32 v13, v2, 2, v8")
e("v_lshlrev_b32 v13, 4, v13")
e(f"v_add_u32 v13, {S_PB}, v13")
e(f"s_cmp_ge_u32 s{sWAVE}, s{sNT}")
e("s_cbranch_scc1 L_S_ATT_IDLE")
if "kafter" in OPT: wait_cnt(S_CNT, C_EARLY, 4, 8, 9, sleep=1)
lk = uid("K"); lkd = uid("KD")
e(f"s_cmp_eq_u32 s{sKDONE}, 1")
e(f"s_cbranch_scc1 {lkd}")
e(f"s_cmp_lt_u32 s{sWAVE}, {WK}")
e(f"s_cbranch_scc1 {lk}")
e(f"s_sub_u32 s{sT5}, s{sWAVE}, {WK-1}")
wait_cnt(S_CNT, C_KL, f"s{sT5}", 8, 9, sleep=1)
lab(lk)
k_addr()
k_issue()
lab(lkd)
load_tag()
stamp(11)
e("v_and_b32 v8, 3, v1")
e("v_mul_u32_u24 v10, 320, v8")
e("v_lshl_add_u32 v10, v2, 4, v10")
e("v_bfe_u32 v11, v1, 2, 1")
e("v_lshl_add_u32 v10, v11, 6, v10")
e(f"v_add_u32 v10, {S_QL}, v10")
e("v_lshlrev_b32 v11, 6, v8")
e(f"v_add_u32 v11, {S_MAXB}, v11")
e(f"s_lshl_b32 s{sT0}, s{sWAVE}, 2")
e(f"v_add_u32 v12, s{sT0}, v11")
e(f"s_lshl_b32 s{sT0}, s{sWAVE}, 8")
e(f"v_add_u32 v14, s{sT0}, v13")
e("s_waitcnt vmcnt(0)")
signal(S_CNT, C_KL, 8, 9)
fin_tag()
stamp(12)
wait_cnt(S_CNT, C_Q, 2, 8, 9, sleep=1)
stamp(14)
for s_ in range(2):
    e(f"ds_read_b128 v[{64+4*s_}:{67+4*s_}], v10 offset:{128*s_}")
e("s_waitcnt lgkmcnt(0)")
for s_ in range(2):
    for kg in range(4):
        A = 96 + 4*kg
        cin = "0" if s_ == 0 else f"v[{A}:{A+3}]"
        e(f"v_mfma_f32_16x16x32_bf16 v[{A}:{A+3}], v[{32+8*kg+4*s_}:{35+8*kg+4*s_}], v[{64+4*s_}:{67+4*s_}], {cin}")
e(f"s_mov_b32 s{sT2}, {SCALE:#x}")
e(f"s_mov_b32 s{sT3}, {SCALE:#x}")
e(f"s_mov_b32 s{sT4}, {LOG2E:#x}")
nop(5)
for kg in range(4):
    for e_ in range(2):
        A = 96 + 4*kg
        e(f"v_add_f32_dpp v{80+2*kg+e_}, v{A+2+e_}, v{A+e_} row_shl:4 row_mask:0xf bank_mask:0xf")
for i in range(0, 8, 2):
    rnd2(80+i, 81+i, 16)
for i in range(0, 8, 2):
    e(f"v_pk_mul_f32 v[{80+i}:{81+i}], v[{80+i}:{81+i}], s[{sT2}:{sT3}]")
for i in range(0, 8, 2):
    rnd2(80+i, 81+i, 16)
e("v_max3_f32 v16, v80, v81, v82")
e("v_max3_f32 v16, v16, v83, v84")
e("v_max3_f32 v16, v16, v85, v86")
e("v_max_f32 v16, v16, v87")
for sw in ("v_permlane16_swap_b32", "v_permlane32_swap_b32"):
    e("v_mov_b32 v17, v16")
    nop(2)
    e(f"{sw} v16, v17")
    nop(1)
    e("v_max_f32 v16, v16, v17")
e("v_cmp_gt_u32 vcc, 4, v1")
e(f"s_and_saveexec_b64 s[{sM0}:{sM1}], vcc")
e("ds_write_b32 v12, v16")
e(f"s_mov_b64 exec, s[{sM0}:{sM1}]")
signal(S_CNT, C_MAX, 8, 9)
wait_cnt(S_CNT, C_MAX, f"s{sNT}", 8, 9, sleep=0)
for i in range(3):
    e(f"ds_read_b128 v[{16+4*i}:{19+4*i}], v11 offset:{16*i}")
e("s_waitcnt lgkmcnt(0)")
e("v_max3_f32 v16, v16, v17, v18")
e("v_max3_f32 v19, v19, v20, v21")
e("v_max3_f32 v22, v22, v23, v24")
e("v_max3_f32 v25, v25, v26, v27")
e("v_max3_f32 v16, v16, v19, v22")
e("v_max_f32 v16, v16, v25")
e(f"v_mul_f32 v15, s{sT4}, v16")
for i in range(8):
    e(f"v_fma_f32 v{80+i}, v{80+i}, s{sT4}, -v15")
for i in range(8):
    e(f"v_exp_f32 v{80+i}, v{80+i}")
nop(1)
for i in range(4):
    e(f"v_cvt_pk_bf16_f32 v{16+i}, v{80+2*i}, v{81+2*i}")
e("v_cmp_gt_u32 vcc, 4, v3")
e(f"s_and_saveexec_b64 s[{sM0}:{sM1}], vcc")
e("ds_write_b128 v14, v[16:19]")
e(f"s_mov_b64 exec, s[{sM0}:{sM1}]")
signal(S_CNT, C_P, 8, 9)
stamp(15)
lab("L_S_PVSTART")
e(f"s_cmp_ge_u32 s{sWAVE}, 8")
e("s_cbranch_scc1 L_S_LATE")
e("v_bfe_u32 v9, v1, 3, 1")
e("v_bfe_u32 v10, v1, 2, 1")
e("v_lshl_add_u32 v10, v2, 1, v10")
e("v_lshl_add_u32 v11, v9, 3, v10")
e("v_lshlrev_b32 v9, 2, v9")
e("v_xor_b32 v10, v10, v9")
e(f"v_xor_b32 v10, s{sWAVE}, v10")
e("v_lshlrev_b32 v10, 5, v10")
e("v_lshl_add_u32 v10, v11, 8, v10")
e("v_and_b32 v11, 3, v1")
e("v_lshl_add_u32 v10, v11, 3, v10")
e("v_add_u32 v11, 0x10000, v10")
for i in range(4): e(f"v_mov_b32 v{28+i}, 0x3f803f80")
e(f"s_and_b32 s{sT0}, s{sR}, 7")
e(f"s_lshr_b32 s{sT1}, s{sR}, 3")
e(f"s_mul_i32 s{sT1}, s{sT1}, 7")
e(f"s_add_u32 s{sT1}, s{sT1}, s{sX8}")
e(f"s_mul_i32 s{sT0}, s{sT0}, {4*28}")
e(f"s_add_u32 s{sT0}, s{sT0}, s{sT1}")
e("v_mul_u32_u24 v12, 28, v3")
e(f"v_add_u32 v12, s{sT0}, v12")
e("v_lshlrev_b32 v14, 4, v12")
e("v_lshlrev_b32 v12, 9, v12")
e("v_lshl_add_u32 v12, v2, 4, v12")
e(f"s_lshl_b32 s{sT0}, s{sWAVE}, 6")
e(f"v_add_u32 v12, s{sT0}, v12")
e(f"v_mov_b32 v17, s{sTAG}")
e(f"v_mov_b32 v19, s{sTAG}")
e(f"v_mov_b32 v21, s{sTAG}")
e(f"v_mov_b32 v23, s{sTAG}")
wait_cnt(S_CNT, C_P, f"s{sNT}", 8, 9, sleep=0)
def vbase(a): return (10, a*8192) if a < 8 else (11, (a-8)*8192)
for NTv in (7, 10):
    lnext = uid("NT")
    if NTv == 7:
        e(f"s_cmp_eq_u32 s{sNT}, 7")
        e(f"s_cbranch_scc0 {lnext}")
    for a in range(NTv):
        e(f"ds_read_b128 v[{80+4*a}:{83+4*a}], v13 offset:{256*a}")
    for a in range(NTv):
        e(f"s_waitcnt lgkmcnt({NTv-1-a})")
        cin = "0" if a == 0 else "v[124:127]"
        e(f"v_mfma_f32_16x16x32_bf16 v[124:127], v[28:31], v[{80+4*a}:{83+4*a}], {cin}")
    wait_mask(S_CNT, F_V, (1 << (NTv-1)) - 1, 8, 9, sleep=1)
    stamp(16)
    n = NTv - 1; WIN = 7
    def vread(a):
        vb, off = vbase(a)
        e(f"ds_read_b64_tr_b16 v[{32+4*a}:{33+4*a}], v{vb} offset:{off}")
        e(f"ds_read_b64_tr_b16 v[{34+4*a}:{35+4*a}], v{vb} offset:{off+4096}")
    for a in range(min(WIN, n)): vread(a)
    for a in range(n):
        rem = 2*(min(a + WIN, n) - (a + 1))
        e(f"s_waitcnt lgkmcnt({rem})")
        cin = "0" if a == 0 else "v[120:123]"
        e(f"v_mfma_f32_16x16x32_bf16 v[120:123], v[{32+4*a}:{35+4*a}], v[{80+4*a}:{83+4*a}], {cin}")
        if a + WIN < n: vread(a + WIN)
    e("v_rcp_f32 v24, v124")
    wait_mask(S_CNT, F_V, (1 << NTv) - 1, 8, 9, sleep=0)
    stamp(13)
    a = NTv - 1
    vb, off = vbase(a)
    e(f"ds_read_b64_tr_b16 v[{32+4*a}:{33+4*a}], v{vb} offset:{off}")
    e(f"ds_read_b64_tr_b16 v[{34+4*a}:{35+4*a}], v{vb} offset:{off+4096}")
    e("s_waitcnt lgkmcnt(0)")
    e(f"v_mfma_f32_16x16x32_bf16 v[120:123], v[{32+4*a}:{35+4*a}], v[{80+4*a}:{83+4*a}], v[120:123]")
    if NTv == 7:
        e("s_branch L_S_PVEND")
        lab(lnext)
lab("L_S_PVEND")
signal(S_CNT, C_PVD, 8, 9)
e("v_mov_b32 v20, v15")
e("v_mov_b32 v22, v124")
nop(2)
e("v_pk_mul_f32 v[120:121], v[120:121], v[24:25] op_sel_hi:[1,0]")
e("v_pk_mul_f32 v[122:123], v[122:123], v[24:25] op_sel_hi:[1,0]")
e("v_cvt_pk_bf16_f32 v16, v120, v121")
e("v_cvt_pk_bf16_f32 v18, v122, v123")
e(f"s_mov_b32 s{sT2}, {WS_OD}")
e("v_cmp_gt_u32 vcc, 4, v3")
e(f"s_and_saveexec_b64 s[{sM0}:{sM1}], vcc")
e(f"buffer_store_dwordx4 v[16:19], v12, {WS}, s{sT2} offen sc1")
lml = uid("ML")
e(f"s_cmp_lg_u32 s{sWAVE}, 0")
e(f"s_cbranch_scc1 {lml}")
e("s_mov_b64 exec, 15")
e(f"s_mov_b32 s{sT2}, {WS_OML}")
e(f"buffer_store_dwordx4 v[20:23], v14, {WS}, s{sT2} offen sc1")
lab(lml)
e(f"s_mov_b64 exec, s[{sM0}:{sM1}]")
stamp(7)
e("s_branch L_S_LATE")
lab("L_S_ATT_IDLE")
load_tag()
fin_tag()
e("s_branch L_S_PVSTART")

lab("L_S_JOB")
c("job waves 10,11")
e("s_setprio 3")
def zero_counters(cnt, maxb=None):
    e("v_lshlrev_b32 v4, 2, v1")
    if maxb is not None:
        e(f"v_add_u32 v5, {maxb}, v4")
        e("v_mov_b32 v6, 0xff800000")
        e("ds_write_b32 v5, v6")
    e(f"v_add_u32 v4, {cnt}, v4")
    e("v_mov_b32 v5, 0")
    e("v_cmp_gt_u32 vcc, 16, v1")
    e(f"s_and_saveexec_b64 s[{sM0}:{sM1}], vcc")
    e("ds_write_b32 v4, v5")
    e(f"s_mov_b64 exec, s[{sM0}:{sM1}]")
    e("s_waitcnt lgkmcnt(0)")
zero_counters(S_CNT, S_MAXB)
e("s_barrier")
load_tag()
e(f"s_sub_u32 s{sT4}, s{sWAVE}, 10")
stamp(20)
def gemv_job(ebase, actbase, cnt, act_target):
    e("v_lshrrev_b32 v4, 2, v3")
    e("v_lshl_add_u32 v4, v2, 2, v4")
    e("v_lshlrev_b32 v4, 6, v4")
    e("v_and_b32 v5, 1, v2")
    e(f"v_xor_b32 v5, s{sT4}, v5")
    e("v_lshl_add_u32 v4, v5, 5, v4")
    e("v_and_b32 v5, 3, v1")
    e("v_lshl_add_u32 v4, v5, 3, v4")
    e(f"v_add_u32 v4, {ebase}, v4")
    e("v_mul_u32_u24 v6, 1088, v5")
    e("v_lshl_add_u32 v6, v2, 4, v6")
    e(f"v_add_u32 v6, {actbase}, v6")
    wait_cnt(cnt, C_EARLY, 4, 8, 9, sleep=1)
    stamp(1)
    for ks in range(16):
        e(f"ds_read_b64_tr_b16 v[{32+4*ks}:{33+4*ks}], v4 offset:{2048*ks}")
        e(f"ds_read_b64_tr_b16 v[{34+4*ks}:{35+4*ks}], v4 offset:{2048*ks+1024}")
    wait_cnt(cnt, C_ACT, act_target, 8, 9, sleep=1)
    stamp(2)
    BB = [96, 8]
    def bread(grp):
        base = BB[grp % 2]
        for k in range(4):
            ks = 4*grp + k
            e(f"ds_read_b128 v[{base+4*k}:{base+4*k+3}], v6 offset:{64*ks}")
    bread(0); bread(1)
    for grp in range(4):
        e(f"s_waitcnt lgkmcnt({4 if grp < 3 else 0})")
        base = BB[grp % 2]
        for k in range(4):
            ks = 4*grp + k
            cin = "0" if ks == 0 else "v[24:27]"
            e(f"v_mfma_f32_16x16x32_bf16 v[24:27], v[{32+4*ks}:{35+4*ks}], v[{base+4*k}:{base+4*k+3}], {cin}")
        if grp + 2 < 4: bread(grp + 2)
    nop(8)
fin_tag()
e(f"s_cmp_eq_u32 s{sU}, 0")
e("s_cbranch_scc1 L_S_JOB_Q")
gemv_job(S_E, S_ACT, S_CNT, 4)
e("v_cvt_pk_bf16_f32 v28, v24, v25")
e(f"v_mov_b32 v29, s{sTAG}")
e("v_cvt_pk_bf16_f32 v30, v26, v27")
e(f"v_mov_b32 v31, s{sTAG}")
e(f"s_lshl_b32 s{sT1}, s{sUI}, 7")
e(f"s_add_u32 s{sT1}, s{sT1}, {WS_M}")
e(f"s_lshl_b32 s{sT2}, s{sT4}, 6")
e(f"s_add_u32 s{sT1}, s{sT1}, s{sT2}")
e("v_lshlrev_b32 v8, 13, v3")
e("v_lshl_add_u32 v8, v2, 4, v8")
e("v_cmp_gt_u32 vcc, 4, v3")
e(f"s_and_saveexec_b64 s[{sM0}:{sM1}], vcc")
e(f"buffer_store_dwordx4 v[28:31], v8, {WS}, s{sT1} offen sc1")
e(f"s_mov_b64 exec, s[{sM0}:{sM1}]")
stamp(3)
lab("L_S_JOB_Q")
ljq = uid("JQ")
e(f"s_cmp_eq_u32 s{sQCU}, 0")
e(f"s_cbranch_scc1 {ljq}")
wait_cnt(S_CNT, C_QD, 4, 8, 9, sleep=2)
lab(ljq)
if "bafterk" in OPT:
    e(f"s_sub_u32 s{sT5}, s{sNT}, 2")
    e(f"s_cmp_eq_u32 s{sQCU}, 1")
    e(f"s_cselect_b32 s{sT5}, 0, s{sT5}")
    wait_cnt(S_CNT, C_KL, f"s{sT5}", 8, 9, sleep=2)
e(f"s_lshr_b32 s{sT0}, s{sR}, 3")
e(f"s_lshl_b32 s{sT0}, s{sT0}, 14")
e(f"s_and_b32 s{sT1}, s{sR}, 7")
e(f"s_lshl_b32 s{sT1}, s{sT1}, 11")
e(f"s_add_u32 s{sT0}, s{sT0}, s{sT1}")
e(f"s_lshl_b32 s{sT1}, s{sT4}, 10")
e(f"s_add_u32 s{sT0}, s{sT0}, s{sT1}")
e(f"s_add_u32 s{sT0}, s{sT0}, {WS_Q}")
e("v_lshlrev_b32 v5, 4, v1")
e(f"v_add_u32 v5, s{sT0}, v5")
e("v_lshrrev_b32 v6, 5, v1")
e(f"s_lshl_b32 s{sT0}, s{sT4}, 1")
e(f"v_add_u32 v6, s{sT0}, v6")
e("v_mul_u32_u24 v6, 320, v6")
e("v_and_b32 v7, 31, v1")
e("v_lshl_add_u32 v6, v7, 3, v6")
e(f"v_add_u32 v6, {S_QL}, v6")
if "nopipe" in OPT:
    poll([(8, 5, 0)], sleep=SSL)
    e("v_mov_b32 v9, v10")
    e("ds_write_b64 v6, v[8:9]")
else:
    R = [100, 104, 108]
    lpl = uid("PP"); lpd = uid("PPD")
    e(f"s_mov_b32 s{sSPIN}, 0")
    for r_ in R:
        e(f"buffer_load_dwordx4 v[{r_}:{r_+3}], v5, {WS}, 0 offen sc1")
        if r_ != R[-1]: e(f"s_sleep {PSL}")
    lab(lpl)
    oks = []
    for r_ in R:
        ok = uid("OK"); oks.append(ok)
        e("s_waitcnt vmcnt(2)")
        e(f"v_cmp_eq_u32 vcc, s{sTAG}, v{r_+1}")
        e(f"v_cmp_eq_u32 s[{sM0}:{sM1}], s{sTAG}, v{r_+3}")
        e(f"s_and_b64 vcc, vcc, s[{sM0}:{sM1}]")
        e("s_cmp_eq_u64 vcc, exec")
        e(f"s_cbranch_scc1 {ok}")
        e(f"s_sleep {PSL}")
        e(f"buffer_load_dwordx4 v[{r_}:{r_+3}], v5, {WS}, 0 offen sc1")
    e(f"s_add_u32 s{sSPIN}, s{sSPIN}, 1")
    e(f"s_cmp_lt_u32 s{sSPIN}, {SPIN_MAX}")
    e(f"s_cbranch_scc1 {lpl}")
    e("s_branch L_END")
    for r_, ok in zip(R, oks):
        lab(ok)
        e(f"v_mov_b32 v8, v{r_}")
        e(f"v_mov_b32 v9, v{r_+2}")
        e(f"s_branch {lpd}")
    lab(lpd)
    e("ds_write_b64 v6, v[8:9]")
signal(S_CNT, C_Q, 24, 25)
stamp(5)
e("s_branch L_S_LATE")

def early_dma(ebase, scb0, scb1, stride):
    e("v_lshrrev_b32 v5, 2, v1")
    e(f"v_mul_u32_u24 v5, {stride}, v5")
    e("v_bfe_u32 v6, v1, 1, 1")
    e("v_bfe_u32 v7, v1, 4, 1")
    e("v_xor_b32 v6, v6, v7")
    e(f"v_mov_b32 v7, s{scb0}")
    e(f"v_mov_b32 v16, s{scb1}")
    e("v_cmp_eq_u32 vcc, 1, v6")
    nop(2)
    e("v_cndmask_b32 v7, v7, v16, vcc")
    e("v_add_u32 v5, v5, v7")
    e("v_and_b32 v6, 1, v1")
    e("v_lshl_add_u32 v5, v6, 4, v5")
    e(f"s_lshl_b32 s{sT1}, s{sT4}, 3")
    e(f"s_mul_i32 s{sT2}, s{sT1}, {16*stride}")
    e(f"s_lshl_b32 s{sT1}, s{sT1}, 10")
    e(f"s_add_u32 s{sT1}, s{sT1}, {ebase}")
    for k in range(8):
        e(f"s_mov_b32 m0, s{sT1}")
        e(f"s_add_u32 s{sT1}, s{sT1}, 1024")
        e(f"buffer_load_dwordx4 v5, {SC}, s{sT2} offen nt lds")
        e(f"s_add_u32 s{sT2}, s{sT2}, {16*stride}")
def silu_to_act(actbase, cnt):
    for i in range(4):
        unpack2(8+i, 16+2*i, 17+2*i)
    for i in range(8):
        silu_inplace(16+i, 24, 25)
    for i in range(4):
        e(f"v_cvt_pk_bf16_f32 v{8+i}, v{16+2*i}, v{17+2*i}")
    e("v_lshrrev_b32 v6, 2, v1")
    e("v_lshlrev_b32 v6, 6, v6")
    e("v_and_b32 v7, 1, v1")
    e("v_lshl_add_u32 v6, v7, 5, v6")
    e("v_bfe_u32 v7, v1, 1, 1")
    e("v_lshl_add_u32 v6, v7, 3, v6")
    e(f"s_mul_i32 s{sT0}, s{sT4}, 1088")
    e(f"s_add_u32 s{sT0}, s{sT0}, {actbase}")
    e(f"v_add_u32 v6, s{sT0}, v6")
    e("ds_write_b64 v6, v[8:9]")
    e("ds_write_b64 v6, v[10:11] offset:16")
    signal(cnt, C_ACT, 24, 25)

lab("L_S_STREAM")
c("streamer waves 12..15")
e("s_setprio 2")
e(f"s_sub_u32 s{sT4}, s{sWAVE}, 12")
lnoe = uid("NOE")
e(f"s_cmp_eq_u32 s{sU}, 0")
e(f"s_cbranch_scc1 {lnoe}")
srd(28, P_C, 4096)
srd(20, P_WM, 512*3072*2)
e(f"s_lshl_b32 s{sT0}, s{sT4}, 10")
e("v_lshlrev_b32 v4, 4, v1")
e(f"buffer_load_dwordx4 v[8:11], v4, {SE}, s{sT0} offen")
e(f"s_lshl_b32 s{sCB0}, s{sUI}, 6")
e(f"s_add_u32 s{sCB0}, s{sCB0}, 2048")
e(f"s_add_u32 s{sCB1}, s{sCB0}, 32")
early_dma(S_E, sCB0, sCB1, 6144)
lab(lnoe)
e("s_barrier")
load_tag()
srd(16, P_V, 4*8*8192*128*2)
srd(24, P_WO, 4096*512*2)
lafter = uid("LAF")
e(f"s_cmp_eq_u32 s{sU}, 0")
e(f"s_cbranch_scc1 {lafter}")
e("s_waitcnt vmcnt(8)")
silu_to_act(S_ACT, S_CNT)
lab(lafter)
lnq2 = uid("NOQ")
e(f"s_cmp_eq_u32 s{sQCU}, 0")
e(f"s_cbranch_scc1 {lnq2}")
srd(32, P_X, 4096)
e(f"s_lshl_b32 s{sT0}, s{sT4}, 10")
e("v_lshlrev_b32 v4, 3, v1")
e(f"buffer_load_dwordx2 v[8:9], v4, {SF}, s{sT0} offen")
e(f"buffer_load_dwordx2 v[10:11], v4, {SF}, s{sT0} offen offset:512")
e(f"s_lshl_b32 s{sT0}, s{sT4}, 12")
e(f"s_add_u32 s{sT0}, s{sT0}, {WS_SC}")
e("v_lshlrev_b32 v5, 4, v1")
e(f"v_add_u32 v5, s{sT0}, v5")
e("v_lshrrev_b32 v6, 3, v1")
e("v_lshlrev_b32 v6, 6, v6")
e("v_and_b32 v7, 3, v1")
e("v_lshl_add_u32 v6, v7, 4, v6")
e("v_bfe_u32 v7, v1, 2, 1")
e("v_lshl_add_u32 v6, v7, 3, v6")
e(f"s_mul_i32 s{sT0}, s{sT4}, 1088")
e(f"s_add_u32 s{sT0}, s{sT0}, {S_ACT}")
e(f"v_add_u32 v6, s{sT0}, v6")
e("s_waitcnt vmcnt(0) lgkmcnt(0)")
e(f"s_add_u32 s{sTAG}, s{sTAG}, 0x9E3779B9")
for i in range(4): unpack2(8+i, 16+2*i, 17+2*i)
layernorm8(16, 24)
wait_cnt(S_CNT, C_WQ, 8, 36, 37, sleep=1)
poll([(40, 5, 0), (44, 5, 1024), (48, 5, 2048), (52, 5, 3072)], sleep=SCS)
for (src, dst) in ((48, 56), (50, 58), (52, 60), (54, 62)): unpack2(src, dst, dst+1)
for i in range(0, 8, 2): e(f"v_pk_add_f32 v[{56+i}:{57+i}], v[{56+i}:{57+i}], 1.0 op_sel_hi:[1,0]")
for i in range(0, 8, 2): rnd2(56+i, 57+i, 24)
for i in range(0, 8, 2): e(f"v_pk_mul_f32 v[{16+i}:{17+i}], v[{16+i}:{17+i}], v[{56+i}:{57+i}]")
for i in range(0, 8, 2): rnd2(16+i, 17+i, 24)
for (src, dst) in ((40, 56), (42, 58), (44, 60), (46, 62)): unpack2(src, dst, dst+1)
for i in range(0, 8, 2): e(f"v_pk_add_f32 v[{16+i}:{17+i}], v[{16+i}:{17+i}], v[{56+i}:{57+i}]")
for i in range(4): e(f"v_cvt_pk_bf16_f32 v{8+i}, v{16+2*i}, v{17+2*i}")
e("ds_write_b64 v6, v[8:9]")
e("ds_write_b64 v6, v[10:11] offset:512")
signal(S_CNT, C_ACT, 24, 25)
stamp(6)
wait_cnt(S_CNT, C_QD, 4, 24, 25, sleep=1)
e(f"s_sub_u32 s{sTAG}, s{sTAG}, 0x9E3779B9")
lab(lnq2)
e("v_lshrrev_b32 v5, 1, v3")
e("v_xor_b32 v5, v5, v2")
e("v_lshlrev_b32 v5, 5, v5")
e("v_and_b32 v6, 1, v1")
e("v_lshl_add_u32 v5, v6, 4, v5")
e("v_lshl_add_u32 v7, v2, 10, v5")
e("v_lshl_add_u32 v5, v2, 8, v5")
e("v_xor_b32 v6, 128, v5")
e("v_xor_b32 v10, 128, v7")
e("s_waitcnt vmcnt(0)")
signal(S_CNT, C_EARLY, 24, 25)
fin_tag()
stamp(4)
e(f"s_sub_u32 s{sT5}, s{sNT}, {KOV}")
e(f"s_cmp_eq_u32 s{sQCU}, 1")
e(f"s_cselect_b32 s{sT5}, {QKW}, s{sT5}")
wait_cnt(S_CNT, C_KL, f"s{sT5}", 24, 25, sleep=1)
stamp(18)
def v_issue(sa):
    e(f"s_lshl_b32 s{sT1}, s{sa}, 13")
    e(f"s_add_u32 s{sT0}, s{sKVB}, s{sT1}")
    e(f"s_mov_b32 m0, s{sT1}")
    e(f"s_add_u32 s{sT1}, s{sT1}, 4096")
    for i in range(4):
        e(f"buffer_load_dwordx4 v{5 + ((i ^ (i >> 1)) & 1)}, {SB}, s{sT0} offen offset:{1024*i} nt lds")
    e(f"s_mov_b32 m0, s{sT1}")
    e(f"s_add_u32 s{sT0}, s{sT0}, 4096")
    for i in range(4):
        e(f"buffer_load_dwordx4 v{5 + ((i ^ (i >> 1)) & 1)}, {SB}, s{sT0} offen offset:{1024*i} nt lds")
if "vdeep" in OPT:
    ldone = uid("VD"); l2 = uid("V2"); l1 = uid("V1")
    e(f"s_mov_b32 s{sT5}, s{sT4}"); v_issue(sT5)
    e(f"s_add_u32 s{sT5}, s{sT4}, 4")
    e(f"s_cmp_lt_u32 s{sT5}, s{sNT}")
    e(f"s_cbranch_scc0 {l1}")
    v_issue(sT5)
    e(f"s_add_u32 s{sT5}, s{sT4}, 8")
    e(f"s_cmp_lt_u32 s{sT5}, s{sNT}")
    e(f"s_cbranch_scc0 {l2}")
    v_issue(sT5)
    e(f"s_lshl_b32 s{sT2}, 1, s{sT4}")
    for w in (16, 8, 0):
        e(f"s_waitcnt vmcnt({w})")
        signal_or(S_CNT, F_V, sT2, 24, 25)
        if w: e(f"s_lshl_b32 s{sT2}, s{sT2}, 4")
    e(f"s_branch {ldone}")
    lab(l2)
    e(f"s_lshl_b32 s{sT2}, 1, s{sT4}")
    for w in (8, 0):
        e(f"s_waitcnt vmcnt({w})")
        signal_or(S_CNT, F_V, sT2, 24, 25)
        if w: e(f"s_lshl_b32 s{sT2}, s{sT2}, 4")
    e(f"s_branch {ldone}")
    lab(l1)
    e(f"s_lshl_b32 s{sT2}, 1, s{sT4}")
    e("s_waitcnt vmcnt(0)")
    signal_or(S_CNT, F_V, sT2, 24, 25)
    lab(ldone)
else:
    e(f"s_mov_b32 s{sT5}, s{sT4}")
    lv = uid("V"); lvd = uid("VD")
    lab(lv)
    v_issue(sT5)
    e(f"s_lshl_b32 s{sT2}, 1, s{sT5}")
    e("s_waitcnt vmcnt(0)")
    signal_or(S_CNT, F_V, sT2, 24, 25)
    e(f"s_add_u32 s{sT5}, s{sT5}, 4")
    e(f"s_cmp_lt_u32 s{sT5}, s{sNT}")
    e(f"s_cbranch_scc1 {lv}")
stamp(19)
e(f"s_cmp_eq_u32 s{sLATE}, 0")
e("s_cbranch_scc1 L_END")
if "latepv" in OPT: wait_cnt(S_CNT, C_PVD, 8, 24, 25, sleep=2)
if "latep" in OPT: wait_cnt(S_CNT, C_P, f"s{sNT}", 24, 25, sleep=2)
e(f"s_lshl_b32 s{sT0}, s{sT4}, 3")
e(f"s_lshl_b32 s{sT1}, s{sT0}, 10")
e(f"s_add_u32 s{sT1}, s{sT1}, {S_L}")
e(f"s_lshl_b32 s{sT2}, s{sT0}, 12")
e(f"s_lshl_b32 s{sT3}, s{sH}, 17")
e(f"s_add_u32 s{sT2}, s{sT2}, s{sT3}")
e(f"s_lshl_b32 s{sT3}, s{sNQ}, 8")
e(f"s_add_u32 s{sT2}, s{sT2}, s{sT3}")
for k in range(8):
    e(f"s_mov_b32 m0, s{sT1}")
    e(f"s_add_u32 s{sT1}, s{sT1}, 1024")
    e(f"buffer_load_dwordx4 v{[7, 10][(k >> 1) & 1]}, {SD}, s{sT2} offen nt lds")
    e(f"s_add_u32 s{sT2}, s{sT2}, 4096")
e("s_waitcnt vmcnt(0)")
signal(S_CNT, C_LATE, 24, 25)

lab("L_S_LATE")
e(f"s_cmp_eq_u32 s{sLATE}, 0")
e("s_cbranch_scc1 L_END")
e("s_setprio 0")
e("v_mov_b32 v58, 0")
e(f"s_lshl_b32 s{sT6}, s{sWAVE}, 6"); e(f"v_add_u32 v4, s{sT6}, v1")
e(f"s_mul_i32 s{sT0}, s{sH}, {28*512}")
e(f"s_add_u32 s{sT0}, s{sT0}, {WS_OD}")
e(f"s_mul_i32 s{sT1}, s{sH}, {28*16}")
e(f"s_add_u32 s{sT1}, s{sT1}, {WS_OML - 896*16}")
e(f"s_cmp_lt_u32 s{sWAVE}, 14")
e(f"s_cselect_b32 s{sT0}, s{sT0}, s{sT1}")
e("v_lshlrev_b32 v5, 4, v4")
e(f"v_add_u32 v5, s{sT0}, v5")
e("v_lshrrev_b32 v6, 5, v4")
e(f"s_cmp_lt_u32 s{sWAVE}, 14")
lw = uid("LW"); lw2 = uid("LW")
e(f"s_cbranch_scc1 {lw}")
e("v_mov_b32 v6, v1")
lab(lw)
e("v_mul_u32_u24 v7, 37, v6")
e("v_lshrrev_b32 v7, 8, v7")
e("v_add_u32 v6, v6, v7")
e(f"s_cmp_lt_u32 s{sWAVE}, 14")
e(f"s_cbranch_scc1 {lw2}")
e("v_lshlrev_b32 v6, 3, v6")
e(f"v_add_u32 v6, {S_CML}, v6")
lw3 = uid("LW")
e(f"s_branch {lw3}")
lab(lw2)
e("v_mul_u32_u24 v6, 272, v6")
e("v_and_b32 v7, 31, v4")
e("v_lshl_add_u32 v6, v7, 3, v6")
e(f"v_add_u32 v6, {S_CG}, v6")
lab(lw3)
lnw = uid("LNW")
e(f"s_cmp_ge_u32 s{sWAVE}, 8")
e(f"s_cbranch_scc1 {lnw}")
wait_cnt(S_CNT, C_LATE, 4, 8, 9, sleep=1)
e("v_lshrrev_b32 v12, 2, v3")
e("v_lshl_add_u32 v13, v2, 3, v12")
e("v_and_b32 v14, 1, v2")
e("v_lshl_add_u32 v12, v14, 2, v12")
e(f"v_xor_b32 v12, s{sWAVE}, v12")
e("v_lshlrev_b32 v12, 5, v12")
e("v_lshl_add_u32 v12, v13, 8, v12")
e("v_and_b32 v14, 3, v1")
e("v_lshl_add_u32 v12, v14, 3, v12")
e(f"v_add_u32 v12, {S_L}, v12")
for ks in range(4):
    e(f"ds_read_b64_tr_b16 v[{32+4*ks}:{33+4*ks}], v12 offset:{8192*ks}")
    e(f"ds_read_b64_tr_b16 v[{34+4*ks}:{35+4*ks}], v12 offset:{8192*ks+1024}")
e("v_mul_u32_u24 v56, 272, v3")
e("v_lshl_add_u32 v56, v2, 4, v56")
e(f"v_add_u32 v56, {S_CG}, v56")
e("v_lshlrev_b32 v57, 3, v3")
e(f"v_add_u32 v57, {S_CML}, v57")
e(f"s_lshl_b32 s{sT0}, s{sNQ}, 3")
e(f"s_add_u32 s{sT0}, s{sT0}, s{sWAVE}")
e(f"s_lshl_b32 s{sT0}, s{sT0}, 5")
e(f"s_add_u32 s{sT0}, s{sT0}, s{sH}")
e(f"s_lshl_b32 s{sT0}, s{sT0}, 8")
e(f"s_add_u32 s{sT0}, s{sT0}, {WS_AP}")
e("v_bfe_u32 v58, v1, 3, 1")
e("v_lshlrev_b32 v58, 6, v58")
e("v_lshl_add_u32 v58, v2, 4, v58")
e("v_and_b32 v59, 1, v1")
e("v_lshl_add_u32 v58, v59, 7, v58")
e(f"v_add_u32 v58, s{sT0}, v58")
e(f"v_mov_b32 v61, s{sTAG}")
e(f"v_mov_b32 v63, s{sTAG}")
e("v_cmp_eq_u32 s[88:89], 1, v59")
e("v_and_b32 v14, 6, v1")
e("v_cmp_eq_u32 s[86:87], 0, v14")
lab(lnw)
lz = uid("LZ"); lzd = uid("LZD")
e(f"s_cmp_eq_u32 s{sWAVE}, 15")
e(f"s_cbranch_scc1 {lz}")
e("s_mov_b64 s[98:99], exec")
e(f"s_cmp_lg_u32 s{sWAVE}, 14")
lfull = uid("LF")
e(f"s_cbranch_scc1 {lfull}")
e("s_mov_b32 exec_lo, 0x0fffffff")
e("s_mov_b32 exec_hi, 0")
lab(lfull)
poll([(8, 5, 0)])
stamp(17)
e("v_mov_b32 v9, v10")
wait_cnt(S_CNT, C_PVD, 8, 12, 13, sleep=0)
e("ds_write_b64 v6, v[8:9]")
e("s_mov_b64 exec, s[98:99]")
e(f"s_branch {lzd}")
lab(lz)
wait_cnt(S_CNT, C_PVD, 8, 12, 13, sleep=1)
e("v_lshlrev_b32 v6, 3, v2")
e("v_add_u32 v6, 7, v6")
e("v_mul_u32_u24 v7, 272, v6")
e("v_lshl_add_u32 v7, v3, 4, v7")
e(f"v_add_u32 v7, {S_CG}, v7")
for i in range(4): e(f"v_mov_b32 v{12+i}, 0")
e("ds_write_b128 v7, v[12:15]")
e("v_lshlrev_b32 v6, 3, v6")
e(f"v_add_u32 v6, {S_CML}, v6")
e("v_mov_b32 v12, 0xff800000")
e("ds_write_b64 v6, v[12:13]")
lab(lzd)
e("s_waitcnt lgkmcnt(0)")
e("s_barrier")
e(f"s_cmp_ge_u32 s{sWAVE}, 8")
e("s_cbranch_scc1 L_END")
stamp(9)
e("ds_read_b64 v[8:9], v57")
e("ds_read_b64 v[10:11], v57 offset:128")
for ct in range(2):
    for ks in range(4):
        d = 64 + 16*ct + 4*ks
        e(f"ds_read_b128 v[{d}:{d+3}], v56 offset:{16*272*ct + 64*ks}")
e("s_waitcnt lgkmcnt(8)")
e("v_mov_b32 v12, v8")
e("v_mov_b32 v13, v10")
nop(1)
for ctl in ("quad_perm:[1,0,3,2]", "quad_perm:[2,3,0,1]", "row_half_mirror"):
    e(f"v_max_f32_dpp v12, v12, v12 {ctl} row_mask:0xf bank_mask:0xf")
    e(f"v_max_f32_dpp v13, v13, v13 {ctl} row_mask:0xf bank_mask:0xf")
    nop(1)
e("v_sub_f32 v8, v8, v12")
e("v_sub_f32 v10, v10, v13")
e("v_exp_f32 v8, v8")
e("v_exp_f32 v10, v10")
e("s_waitcnt lgkmcnt(0)")
for ks in range(4):
    for ct in range(2):
        d = 64 + 16*ct + 4*ks
        cin = "0" if ks == 0 else f"v[{16+4*ct}:{19+4*ct}]"
        e(f"v_mfma_f32_16x16x32_bf16 v[{16+4*ct}:{19+4*ct}], v[{32+4*ks}:{35+4*ks}], v[{d}:{d+3}], {cin}")
e("v_mul_f32 v8, v8, v9")
e("v_mul_f32 v10, v10, v11")
e("v_mov_b32 v12, v8")
e("v_mov_b32 v13, v10")
nop(1)
for ctl in ("quad_perm:[1,0,3,2]", "quad_perm:[2,3,0,1]", "row_half_mirror"):
    e(f"v_add_f32_dpp v12, v12, v12 {ctl} row_mask:0xf bank_mask:0xf")
    e(f"v_add_f32_dpp v13, v13, v13 {ctl} row_mask:0xf bank_mask:0xf")
    nop(1)
e("v_rcp_f32 v12, v12")
e("v_rcp_f32 v13, v13")
nop(1)
e("v_mul_f32 v8, v8, v12")
e("v_mul_f32 v10, v10, v13")
nop(1)
e("v_pk_mul_f32 v[16:17], v[16:17], v[8:9] op_sel_hi:[1,0]")
e("v_pk_mul_f32 v[18:19], v[18:19], v[8:9] op_sel_hi:[1,0]")
e("v_pk_mul_f32 v[20:21], v[20:21], v[10:11] op_sel_hi:[1,0]")
e("v_pk_mul_f32 v[22:23], v[22:23], v[10:11] op_sel_hi:[1,0]")
nop(1)
for ctl in ("quad_perm:[1,0,3,2]", "quad_perm:[2,3,0,1]", "row_half_mirror"):
    for i in range(8):
        e(f"v_add_f32_dpp v{16+i}, v{16+i}, v{16+i} {ctl} row_mask:0xf bank_mask:0xf")
for i in range(4): e(f"v_cndmask_b32 v{24+i}, v{16+i}, v{20+i}, s[88:89]")
e("v_cvt_pk_bf16_f32 v60, v24, v25")
e("v_cvt_pk_bf16_f32 v62, v26, v27")
e("s_mov_b64 exec, s[86:87]")
e(f"buffer_store_dwordx4 v[60:63], v58, {WS}, 0 offen sc1")
e("s_mov_b64 exec, -1")
stamp(10)
e("s_branch L_END")

lab("L_T")
c("T role: t = sR")
srd(20, P_WM, 512*3072*2)
srd(28, P_C, 4096)
srd(32, P_X, 4096)
srd(24, P_OUT, 4096)
e(f"s_cmp_ge_u32 s{sWAVE}, 12")
e("s_cbranch_scc1 L_T_STREAM")
lt1 = uid("T1")
e(f"s_cmp_lg_u32 s{sWAVE}, 10")
e(f"s_cbranch_scc1 {lt1}")
zero_counters(T_CNT)
lab(lt1)
e("s_barrier")
lt2 = uid("T2")
e(f"s_cmp_ge_u32 s{sR}, 16")
e(f"s_cbranch_scc1 {lt2}")
e(f"s_lshl_b32 s{sCB0}, s{sR}, 7")
e(f"s_lshl_b32 s{sCB1}, s{sR}, 8")
e(f"s_add_u32 s{sCB1}, s{sCB1}, {WS_SC}")
line_unit(T_ACT, T_CNT, 6144, 12)
e("s_branch L_T_AUX")
lab(lt2)
load_tag()
fin_tag()
lab("L_T_AUX")
C_UP, C_UPR, C_G, C_SC = C_KL, C_Q, C_MAX, C_P
C_GO, C_ARM, C_RED, C_XS = F_V, C_PVD, C_LATE, C_HD
C_DL = C_EXC
e(f"s_cmp_lt_u32 s{sWAVE}, 8")
e("s_cbranch_scc1 L_T_W")
lw9 = uid("W9"); lw8 = uid("W8")
e(f"s_cmp_lg_u32 s{sWAVE}, 9")
e(f"s_cbranch_scc1 {lw9}")
e("v_lshlrev_b32 v5, 8, v1")
e(f"v_add_u32 v5, {WS_SC}, v5")
poll_lanes(16, 8, 5, 4)
signal(T_CNT, C_SC, 10, 11)
if "tq" in OPT:
    e("v_lshlrev_b32 v5, 8, v1")
    e(f"v_add_u32 v5, {WS_Q}, v5")
    poll_lanes(64, 8, 5, 4)
    signal(T_CNT, C_GO, 10, 11)
e("s_branch L_T_MODS")
lab(lw9)
e(f"s_cmp_lg_u32 s{sWAVE}, 8")
e("s_cbranch_scc1 L_T_MODS")
e(f"s_getreg_b32 s{sT0}, hwreg(HW_REG_XCC_ID)")
e(f"s_and_b32 s{sT0}, s{sT0}, 0xf")
e(f"v_mov_b32 v8, s{sT0}")
e(f"v_mov_b32 v9, s{sTAG}")
e(f"s_lshl_b32 s{sT1}, s{sR}, 3")
e(f"s_add_u32 s{sT1}, s{sT1}, {WS_XCC}")
sentinel_store(sT1, 8)
e("s_branch L_T_MODS")
lab("L_T_W")
e(f"s_cmp_ge_u32 s{sR}, 28")
e("s_cbranch_scc1 L_T_WEND")
srd(12, P_WG, 512*1792*2)
srd(16, P_WU, 512*1792*2)
srd(20, P_WD, 1792*512*2)
def gu_dma(srdname, ldsbase):
    line_dma_voff(3584)
    e(f"s_lshl_b32 s{sT0}, s{sWAVE}, 3")
    e(f"s_mul_i32 s{sT2}, s{sT0}, {8*3584}")
    e(f"s_lshl_b32 s{sT3}, s{sR}, 7")
    e(f"s_add_u32 s{sT2}, s{sT2}, s{sT3}")
    e(f"s_lshl_b32 s{sT1}, s{sWAVE}, 13")
    e(f"s_add_u32 s{sT1}, s{sT1}, {ldsbase}")
    for k in range(8):
        e(f"s_mov_b32 m0, s{sT1}")
        e(f"s_add_u32 s{sT1}, s{sT1}, 1024")
        e(f"buffer_load_dwordx4 v4, {srdname}, s{sT2} offen nt lds")
        e(f"s_add_u32 s{sT2}, s{sT2}, {8*3584}")
def gu_frags(ldsbase):
    e(f"s_mov_b32 s{sT0}, {ldsbase}")
    tr_line_addr(4, sT0)
    for ks in range(16):
        e(f"ds_read_b64_tr_b16 v[{32+4*ks}:{33+4*ks}], v4 offset:{4096*ks}")
        e(f"ds_read_b64_tr_b16 v[{34+4*ks}:{35+4*ks}], v4 offset:{4096*ks+2048}")
    e("s_waitcnt lgkmcnt(0)")
wait_cnt(T_CNT, C_SC if ("tearly" in OPT and "tq" not in OPT) else C_GO, 1, 8, 9, sleep=2)
stamp(19)
gu_dma(SB, 65536)
lq = uid("NQD")
e(f"s_cmp_ge_u32 s{sR}, 16")
e(f"s_cbranch_scc1 {lq}")
wait_cnt(T_CNT, C_QD, 4, 8, 9, sleep=1)
lab(lq)
gu_dma(SA, 0)
e("s_waitcnt vmcnt(8)")
signal(T_CNT, C_UP, 8, 9)
lnu = uid("NU")
e(f"s_cmp_lt_u32 s{sWAVE}, 4")
e(f"s_cbranch_scc1 {lnu}")
wait_cnt(T_CNT, C_UP, 8, 8, 9, sleep=1)
gu_frags(65536)
signal(T_CNT, C_UPR, 8, 9)
lab(lnu)
wait_cnt(T_CNT, C_UPR, 4, 8, 9, sleep=1)
stamp(15)
e("v_lshlrev_b32 v4, 4, v1")
e(f"s_lshl_b32 s{sT0}, s{sWAVE}, 13")
e(f"s_add_u32 s{sT1}, s{sT0}, 65536")
e(f"s_lshl_b32 s{sT2}, s{sR}, 16")
e(f"s_add_u32 s{sT2}, s{sT2}, s{sT0}")
for k in range(8):
    e(f"v_xor_b32 v5, {32*k}, v4")
    e(f"s_mov_b32 m0, s{sT1}")
    e(f"s_add_u32 s{sT1}, s{sT1}, 1024")
    e(f"buffer_load_dwordx4 v5, {SC}, s{sT2} offen nt lds")
    e(f"s_add_u32 s{sT2}, s{sT2}, 1024")
e("s_waitcnt vmcnt(8)")
signal(T_CNT, C_G, 8, 9)
lng = uid("NG")
e(f"s_cmp_ge_u32 s{sWAVE}, 4")
e(f"s_cbranch_scc1 {lng}")
wait_cnt(T_CNT, C_G, 8, 8, 9, sleep=1)
gu_frags(0)
lab(lng)
e("s_waitcnt vmcnt(0)")
signal(T_CNT, C_DL, 8, 9)
stamp(1)
lab("L_T_WEND")
def down_frags():
    lsk = uid("DF")
    e(f"s_cmp_ge_u32 s{sR}, 28")
    e(f"s_cbranch_scc1 {lsk}")
    wait_cnt(T_CNT, C_DL, 8, 8, 9, sleep=1)
    e("v_lshrrev_b32 v10, 2, v3")
    e("v_lshl_add_u32 v10, v2, 2, v10")
    e("v_and_b32 v11, 7, v10")
    e(f"s_lshl_b32 s{sT0}, s{sWAVE}, 1")
    e(f"v_xor_b32 v11, s{sT0}, v11")
    e("v_lshlrev_b32 v11, 5, v11")
    e("v_lshl_add_u32 v11, v10, 10, v11")
    e("v_and_b32 v10, 3, v1")
    e("v_lshl_add_u32 v11, v10, 3, v11")
    e("v_add_u32 v11, 0x10000, v11")
    e("v_xor_b32 v10, 32, v11")
    for j in range(2):
        for ks in range(2):
            d = 96 + 8*j + 4*ks
            e(f"ds_read_b64_tr_b16 v[{d}:{d+1}], v{[11,10][j]} offset:{32768*ks}")
            e(f"ds_read_b64_tr_b16 v[{d+2}:{d+3}], v{[11,10][j]} offset:{32768*ks+16384}")
    e("s_waitcnt lgkmcnt(0)")
    lab(lsk)
wait_cnt(T_CNT, C_XS, 1, 8, 9, sleep=2)
e(f"v_mov_b32 v8, {T_SAME}")
e("ds_read_b32 v9, v8")
e("s_waitcnt lgkmcnt(0)")
e(f"v_readfirstlane_b32 s{sSAME}, v9")
down_frags()
def tail_addr():
    e(f"s_lshl_b32 s{sT6}, s{sWAVE}, 10")
    e("v_lshlrev_b32 v126, 4, v1")
    e(f"v_add_u32 v126, s{sT6}, v126")
    e(f"s_mul_i32 s{sT0}, s{sR}, {28*256}")
    e(f"s_add_u32 s{sT0}, s{sT0}, {WS_DP}")
    e(f"v_add_u32 v126, s{sT0}, v126")
    e(f"s_lshl_b32 s{sT0}, s{sWAVE}, 8")
    e("v_and_b32 v127, 31, v1")
    e("v_lshlrev_b32 v127, 3, v127")
    e(f"v_add_u32 v127, s{sT0}, v127")
    e(f"v_add_u32 v127, {T_RED}, v127")
tail_addr()
e("s_branch L_T_H2")
lab("L_T_STREAM")
e(f"s_sub_u32 s{sT4}, s{sWAVE}, 12")
e(f"s_lshl_b32 s{sT0}, s{sT4}, 10")
e("v_lshlrev_b32 v4, 4, v1")
e(f"buffer_load_dwordx4 v[8:11], v4, {SE}, s{sT0} offen")
e("s_barrier")
load_tag()
e("s_waitcnt vmcnt(0)")
silu_to_act(T_ACT, T_CNT)
fin_tag()
lab("L_T_MODS")
lb2 = uid("B2")
C_SC = C_P
wait_cnt(T_CNT, C_SC, 1, 4, 5, sleep=4)
lm1 = uid("LM"); lm2 = uid("LM")
e(f"s_cmp_ge_u32 s{sWAVE}, 12")
e(f"s_cbranch_scc1 {lm1}")
e(f"s_sub_u32 s{sT0}, s{sWAVE}, 8")
e(f"s_lshl_b32 s{sT0}, s{sT0}, 13")
e(f"s_add_u32 s{sT0}, s{sT0}, {WS_M}")
e("v_lshlrev_b32 v4, 4, v1")
e(f"v_add_u32 v4, s{sT0}, v4")
e("v_add_u32 v5, 2048, v4")
e("v_add_u32 v6, 4096, v4")
poll([(32, 5, 0), (36, 5, 1024), (40, 6, 0), (44, 6, 1024)], sleep=2)
for (src, dst) in ((32, 48), (36, 52)):
    unpack2(src, dst, dst+1); unpack2(src+2, dst+2, dst+3)
for (src, dst) in ((40, 56), (44, 60)):
    unpack2(src, dst, dst+1); unpack2(src+2, dst+2, dst+3)
for i in range(8):
    e(f"v_add_f32 v{56+i}, 1.0, v{56+i}")
for i in range(0, 8, 2):
    rnd2(56+i, 57+i, 4)
e(f"s_branch {lb2}")
lab(lm1)
e(f"s_cmp_lg_u32 s{sWAVE}, 12")
e(f"s_cbranch_scc1 {lm2}")
e("v_lshrrev_b32 v4, 2, v1")
e("v_lshlrev_b32 v4, 13, v4")
e("v_and_b32 v5, 3, v1")
e("v_lshl_add_u32 v4, v5, 4, v4")
e(f"s_lshl_b32 s{sT0}, s{sR}, 6")
e(f"s_add_u32 s{sT0}, s{sT0}, {WS_M}")
e(f"v_add_u32 v4, s{sT0}, v4")
e("v_add_u32 v6, 6144, v4")
e("v_lshrrev_b32 v7, 2, v1")
e("v_lshlrev_b32 v7, 10, v7")
e("v_lshl_add_u32 v7, v5, 3, v7")
e(f"s_lshl_b32 s{sT0}, s{sR}, 5")
e("s_mov_b64 s[98:99], exec")
e("s_mov_b64 exec, 0xffff")
e(f"buffer_load_dwordx2 v[44:45], v7, {SF}, s{sT0} offen")
poll([(32, 4, 0), (36, 6, 0)], sleep=2)
e("s_mov_b64 exec, s[98:99]")
unpack2(32, 48, 49); unpack2(34, 50, 51)
unpack2(36, 52, 53); unpack2(38, 54, 55)
unpack2(44, 56, 57); unpack2(45, 58, 59)
e(f"s_branch {lb2}")
lab(lm2)
e(f"s_cmp_lg_u32 s{sWAVE}, 13")
e(f"s_cbranch_scc1 {lb2}")
e("v_lshlrev_b32 v5, 4, v1")
e(f"v_add_u32 v5, {WS_XCC}, v5")
e("s_mov_b64 s[98:99], exec")
e("s_mov_b64 exec, 0xffff")
poll([(8, 5, 0)], sleep=4)
e(f"s_getreg_b32 s{sT0}, hwreg(HW_REG_XCC_ID)")
e(f"s_and_b32 s{sT0}, s{sT0}, 0xf")
e(f"v_cmp_eq_u32 vcc, s{sT0}, v8")
e(f"v_cmp_eq_u32 s[{sM0}:{sM1}], s{sT0}, v10")
e(f"s_and_b64 vcc, vcc, s[{sM0}:{sM1}]")
e("s_cmp_eq_u64 vcc, exec")
e(f"s_cselect_b32 s{sSAME}, 1, 0")
if "forcesc1" in OPT: e(f"s_mov_b32 s{sSAME}, 0")
e("s_mov_b64 exec, s[98:99]")
e(f"v_mov_b32 v8, {T_SAME}")
e(f"v_mov_b32 v9, s{sSAME}")
e("ds_write_b32 v8, v9")
signal(T_CNT, C_XS, 10, 11)
lab(lb2)
def read_same():
    e(f"v_mov_b32 v8, {T_SAME}")
    e("ds_read_b32 v9, v8")
    e("s_waitcnt lgkmcnt(0)")
    e(f"v_readfirstlane_b32 s{sSAME}, v9")
wait_cnt(T_CNT, C_XS, 1, 8, 9, sleep=2)
read_same()
tail_addr()
e(f"s_sub_u32 s{sT4}, s{sWAVE}, 8")
e(f"s_lshl_b32 s{sT6}, s{sT4}, 10")
e("v_lshlrev_b32 v124, 4, v1")
e(f"v_add_u32 v124, s{sT6}, v124")
e(f"s_lshl_b32 s{sT0}, s{sR}, 13")
e(f"s_add_u32 s{sT0}, s{sT0}, {WS_AP}")
e(f"v_add_u32 v124, s{sT0}, v124")
e(f"s_lshl_b32 s{sT0}, s{sT4}, 8")
e("v_lshlrev_b32 v125, 4, v3")
e(f"v_add_u32 v125, s{sT0}, v125")
e(f"v_add_u32 v125, {T_RED}, v125")
e(f"s_lshl_b32 s{sT6}, s{sT4}, 10")
e("v_lshlrev_b32 v4, 4, v1")
e(f"v_add_u32 v4, s{sT6}, v4")
e(f"s_mul_i32 s{sT0}, s{sR}, {28*256}")
e(f"s_add_u32 s{sT0}, s{sT0}, {WS_DP}")
e(f"buffer_load_dwordx4 v[8:11], v4, {WS}, s{sT0} offen nt")
e(f"s_lshl_b32 s{sT0}, s{sR}, 8")
e(f"s_add_u32 s{sT0}, s{sT0}, {WS_X2}")
e("v_lshlrev_b32 v4, 4, v1")
e("s_mov_b64 exec, 0xffff")
e(f"buffer_load_dwordx4 v[16:19], v4, {WS}, s{sT0} offen nt")
e("s_mov_b64 exec, -1")
e("s_waitcnt vmcnt(0)")
stamp(3)
larm = uid("ARM"); lal = uid("AL"); lgo = uid("GO"); lad = uid("AD")
e(f"s_cmp_lg_u32 s{sWAVE}, 8")
e(f"s_cbranch_scc1 {larm}")
e(f"s_mul_i32 s{sT0}, s{sR}, {28*16}")
e(f"s_add_u32 s{sT0}, s{sT0}, {WS_OML}")
e("v_lshlrev_b32 v4, 4, v1")
e(f"v_add_u32 v4, s{sT0}, v4")
e(f"s_mov_b32 s{sT5}, 0")
e(f"s_mov_b32 s{sSPIN}, 0")
e("s_mov_b32 exec_lo, 0x0fffffff")
e("s_mov_b32 exec_hi, 0")
lab(lal)
e(f"buffer_load_dwordx4 v[8:11], v4, {WS}, 0 offen sc1")
e("s_waitcnt vmcnt(0)")
e(f"v_cmp_eq_u32 vcc, s{sTAG}, v9")
e(f"v_cmp_eq_u32 s[{sM0}:{sM1}], s{sTAG}, v11")
e(f"s_and_b64 vcc, vcc, s[{sM0}:{sM1}]")
e("s_cmp_eq_u64 vcc, 0")
e(f"s_cbranch_scc1 {lgo}")
e(f"s_cmp_lg_u32 s{sT5}, 0")
e(f"s_cbranch_scc1 {lgo}")
e(f"s_mov_b32 s{sT5}, 1")
e("s_mov_b64 s[96:97], vcc")
signal(T_CNT, C_GO, 12, 13)
e("s_mov_b64 vcc, s[96:97]")
lab(lgo)
e("s_cmp_eq_u64 vcc, exec")
e(f"s_cbranch_scc1 {lad}")
e("s_sleep 3")
e(f"s_add_u32 s{sSPIN}, s{sSPIN}, 1")
e(f"s_cmp_lt_u32 s{sSPIN}, {SPIN_MAX}")
e(f"s_cbranch_scc1 {lal}")
e("s_branch L_END")
lab(lad)
e("s_mov_b64 exec, -1")
signal(T_CNT, C_ARM, 12, 13)
lab(larm)
wait_cnt(T_CNT, C_ARM, 1, 8, 9, sleep=1)
stamp(17)
poll([(8, 124, 0)])
stamp(9)
def red_write(addr):
    e("v_mov_b32 v12, v8")
    e("v_mov_b32 v13, v10")
    nop(2)
    e("v_permlane32_swap_b32 v8, v12")
    e("v_permlane32_swap_b32 v10, v13")
    nop(1)
    e("v_add_f32 v8, v8, v12")
    e("v_add_f32 v9, v10, v13")
    e("s_mov_b32 exec_hi, 0")
    e(f"ds_write_b64 v{addr}, v[8:9]")
    e("s_mov_b32 exec_hi, -1")
def red_read(nw):
    per = 4 if nw > 8 else 2
    e(f"v_lshlrev_b32 v4, {10 if per == 4 else 9}, v2")
    e("v_lshl_add_u32 v4, v3, 4, v4")
    e(f"v_add_u32 v4, {T_RED}, v4")
    for i in range(per):
        e(f"ds_read_b128 v[{8+4*i}:{11+4*i}], v4 offset:{256*i}")
def red_sum(nw):
    e("s_waitcnt lgkmcnt(0)")
    if nw == 7:
        e("v_cmp_eq_u32 vcc, 3, v2")
        nop(2)
        for i in range(12, 16): e(f"v_cndmask_b32 v{i}, v{i}, v30, vcc")
    e("v_pk_add_f32 v[8:9], v[8:9], v[12:13]")
    e("v_pk_add_f32 v[10:11], v[10:11], v[14:15]")
    if nw > 8:
        e("v_pk_add_f32 v[16:17], v[16:17], v[20:21]")
        e("v_pk_add_f32 v[18:19], v[18:19], v[22:23]")
        e("v_pk_add_f32 v[8:9], v[8:9], v[16:17]")
        e("v_pk_add_f32 v[10:11], v[10:11], v[18:19]")
    for sw in ("v_permlane16_swap_b32", "v_permlane32_swap_b32"):
        for i in range(4): e(f"v_mov_b32 v{12+i}, v{8+i}")
        nop(1)
        for i in range(4): e(f"{sw} v{8+i}, v{12+i}")
        nop(1)
        e("v_pk_add_f32 v[8:9], v[8:9], v[12:13]")
        e("v_pk_add_f32 v[10:11], v[10:11], v[14:15]")
def quad_reduce_write(addr):
    unpack2(8, 12, 13); unpack2(10, 14, 15)
    for sw in ("v_permlane16_swap_b32", "v_permlane32_swap_b32"):
        for i in range(4): e(f"v_mov_b32 v{16+i}, v{12+i}")
        nop(1)
        for i in range(4): e(f"{sw} v{12+i}, v{16+i}")
        nop(1)
        e("v_pk_add_f32 v[12:13], v[12:13], v[16:17]")
        e("v_pk_add_f32 v[14:15], v[14:15], v[18:19]")
    e("s_mov_b64 exec, 0xffff")
    e(f"ds_write_b128 v{addr}, v[12:15]")
    e("s_mov_b64 exec, -1")
quad_reduce_write(125)
signal(T_CNT, C_RED, 12, 13)
stamp(4)
lw12 = uid("W12"); lw12b = uid("W12B")
e(f"s_cmp_eq_u32 s{sWAVE}, 12")
e(f"s_cbranch_scc1 {lw12b}")
down_frags()
e(f"s_branch {lw12}")
lab(lw12b)
wait_cnt(T_CNT, C_RED, 8, 8, 9, sleep=0)
red_read(8)
e("v_lshrrev_b32 v4, 2, v1")
e("v_lshlrev_b32 v4, 11, v4")
e("v_and_b32 v5, 3, v1")
e("v_lshl_add_u32 v4, v5, 4, v4")
e(f"s_lshl_b32 s{sT0}, s{sR}, 6")
e(f"s_add_u32 s{sT0}, s{sT0}, {WS_X2}")
red_sum(8)
e(f"v_mov_b32 v17, s{sTAG}")
e(f"v_mov_b32 v19, s{sTAG}")
rnd2(8, 9, 12); rnd2(10, 11, 13)
e("v_pk_mul_f32 v[8:9], v[48:49], v[8:9]")
e("v_pk_mul_f32 v[10:11], v[50:51], v[10:11]")
rnd2(8, 9, 12); rnd2(10, 11, 13)
e("v_pk_add_f32 v[8:9], v[56:57], v[8:9]")
e("v_pk_add_f32 v[10:11], v[58:59], v[10:11]")
e("v_cvt_pk_bf16_f32 v16, v8, v9")
e("v_cvt_pk_bf16_f32 v18, v10, v11")
e("s_mov_b64 exec, 0xffff")
lsc = uid("SC"); lsd = uid("SD")
e(f"s_cmp_eq_u32 s{sSAME}, 1")
e(f"s_cbranch_scc0 {lsc}")
e(f"buffer_store_dwordx4 v[16:19], v4, {WS}, s{sT0} offen")
e(f"s_branch {lsd}")
lab(lsc)
e(f"buffer_store_dwordx4 v[16:19], v4, {WS}, s{sT0} offen sc1")
lab(lsd)
e("s_mov_b64 exec, -1")
unpack2(16, 60, 61); unpack2(18, 62, 63)
stamp(10)
down_frags()
lab(lw12)
lln = uid("LN")
e(f"s_cmp_lt_u32 s{sWAVE}, 8")
e(f"s_cbranch_scc1 {lln}")
e(f"s_cmp_ge_u32 s{sWAVE}, 12")
e(f"s_cbranch_scc1 {lln}")
e(f"s_sub_u32 s{sT4}, s{sWAVE}, 8")
e(f"s_lshl_b32 s{sT0}, s{sT4}, 11")
e(f"s_add_u32 s{sT0}, s{sT0}, {WS_X2}")
e("v_lshlrev_b32 v4, 4, v1")
e(f"v_add_u32 v4, s{sT0}, v4")
e("v_lshrrev_b32 v6, 3, v1")
e("v_lshlrev_b32 v6, 6, v6")
e("v_and_b32 v7, 3, v1")
e("v_lshl_add_u32 v6, v7, 4, v6")
e("v_bfe_u32 v7, v1, 2, 1")
e("v_lshl_add_u32 v6, v7, 3, v6")
e(f"s_mul_i32 s{sT0}, s{sT4}, 1088")
e(f"s_add_u32 s{sT0}, s{sT0}, {T_H2}")
e(f"v_add_u32 v6, s{sT0}, v6")
poll([(8, 4, 0), (12, 4, 1024)], intra=True)
stamp(11)
unpack2(8, 16, 17); unpack2(10, 18, 19); unpack2(12, 20, 21); unpack2(14, 22, 23)
layernorm8(16, 24)
for i in range(0, 8, 2):
    e(f"v_pk_mul_f32 v[{16+i}:{17+i}], v[{16+i}:{17+i}], v[{56+i}:{57+i}]")
for i in range(0, 8, 2):
    rnd2(16+i, 17+i, 24)
for i in range(0, 8, 2):
    e(f"v_pk_add_f32 v[{16+i}:{17+i}], v[{16+i}:{17+i}], v[{48+i}:{49+i}]")
for i in range(4):
    e(f"v_cvt_pk_bf16_f32 v{8+i}, v{16+2*i}, v{17+2*i}")
e("ds_write_b64 v6, v[8:9]")
e("ds_write_b64 v6, v[10:11] offset:512")
stamp(12)
lab(lln)
lab("L_T_H2")
e("v_and_b32 v5, 3, v1")
e("v_mul_u32_u24 v6, 1088, v5")
e("v_lshl_add_u32 v6, v2, 4, v6")
e(f"v_add_u32 v6, {T_H2}, v6")
e("v_lshlrev_b32 v4, 6, v3")
e("v_lshlrev_b32 v7, 6, v5")
e(f"s_cmp_lt_u32 s{sWAVE}, 4")
e(f"s_cselect_b32 s{sT1}, 1024, 0")
lgu = uid("GU")
e(f"s_cbranch_scc0 {lgu}")
e("v_mov_b32 v4, v7")
lab(lgu)
e("v_lshl_add_u32 v4, v2, 4, v4")
e(f"s_lshl_b32 s{sT0}, s{sWAVE}, 8")
e(f"s_add_u32 s{sT0}, s{sT0}, s{sT1}")
e(f"s_add_u32 s{sT0}, s{sT0}, {T_GU}")
e(f"v_add_u32 v4, s{sT0}, v4")
e("v_mul_u32_u24 v7, 192, v5")
e("v_lshl_add_u32 v7, v2, 4, v7")
e(f"v_add_u32 v124, {T_ACTL}, v7")
e(f"s_lshr_b32 s{sT0}, s{sWAVE}, 1")
e(f"s_lshl_b32 s{sT0}, s{sT0}, 6")
e(f"s_and_b32 s{sT1}, s{sWAVE}, 1")
e(f"s_lshl_b32 s{sT1}, s{sT1}, 3")
e(f"s_add_u32 s{sT0}, s{sT0}, s{sT1}")
e(f"s_add_u32 s{sT0}, s{sT0}, {T_ACTL}")
e(f"v_add_u32 v7, s{sT0}, v7")
e("v_lshlrev_b32 v125, 6, v5")
e("v_lshl_add_u32 v125, v2, 4, v125")
e("v_bfe_u32 v8, v1, 2, 1")
e("v_cmp_eq_u32 s[86:87], 1, v8")
e(f"v_mul_u32_u24 v9, {28*256}, v8")
e("v_add_u32 v125, v125, v9")
e("v_bfe_u32 v8, v1, 3, 1")
e("v_cmp_eq_u32 s[96:97], 0, v8")
e(f"s_lshl_b32 s{sT0}, s{sWAVE}, 1")
e(f"s_mul_i32 s{sT0}, s{sT0}, {28*256}")
e(f"s_lshl_b32 s{sT1}, s{sR}, 8")
e(f"s_add_u32 s{sT0}, s{sT0}, s{sT1}")
e(f"s_add_u32 s{sT0}, s{sT0}, {WS_DP}")
e(f"v_add_u32 v125, s{sT0}, v125")
e("s_waitcnt lgkmcnt(0)")
e("s_barrier")
stamp(5)
lfin = uid("FIN")
e(f"s_cmp_ge_u32 s{sR}, 28")
e(f"s_cbranch_scc1 {lfin}")
lg = uid("G")
e(f"s_cmp_ge_u32 s{sWAVE}, 8")
e(f"s_cbranch_scc1 {lg}")
def tbread(grp):
    base = [8, 112][grp % 2]
    for k in range(4):
        ks = 4*grp + k
        e(f"ds_read_b128 v[{base+4*k}:{base+4*k+3}], v6 offset:{64*ks}")
def tb_regs(grp, k):
    if grp % 2 == 0: return 8 + 4*k
    return [112, 116, 120, 28][k]
def tbread2(grp):
    for k in range(4):
        ks = 4*grp + k; b_ = tb_regs(grp, k)
        e(f"ds_read_b128 v[{b_}:{b_+3}], v6 offset:{64*ks}")
tbread2(0); tbread2(1)
for grp in range(4):
    e(f"s_waitcnt lgkmcnt({4 if grp < 3 else 0})")
    for k in range(4):
        ks = 4*grp + k; b_ = tb_regs(grp, k)
        cin = "0" if ks == 0 else "v[24:27]"
        e(f"v_mfma_f32_16x16x32_bf16 v[24:27], v[{32+4*ks}:{35+4*ks}], v[{b_}:{b_+3}], {cin}")
    if grp + 2 < 4: tbread2(grp + 2)
nop(8)
stamp(13)
rnd2(24, 25, 28); rnd2(26, 27, 29)
lup2 = uid("UPW")
e(f"s_cmp_ge_u32 s{sWAVE}, 4")
e(f"s_cbranch_scc1 {lup2}")
for i in range(4): e(f"v_mul_f32 v{16+i}, {NLOG2E:#x}, v{24+i}")
for i in range(4): e(f"v_exp_f32 v{16+i}, v{16+i}")
nop(1)
for i in range(4): e(f"v_add_f32 v{16+i}, 1.0, v{16+i}")
for i in range(4): e(f"v_rcp_f32 v{16+i}, v{16+i}")
nop(1)
e("v_pk_mul_f32 v[24:25], v[24:25], v[16:17]")
e("v_pk_mul_f32 v[26:27], v[26:27], v[18:19]")
rnd2(24, 25, 28); rnd2(26, 27, 29)
e(f"s_branch {lg}")
lab(lup2)
e("v_cmp_gt_u32 vcc, 4, v3")
e(f"s_and_saveexec_b64 s[{sM0}:{sM1}], vcc")
e("ds_write_b128 v4, v[24:27]")
e(f"s_mov_b64 exec, s[{sM0}:{sM1}]")
lab(lg)
e("s_waitcnt lgkmcnt(0)")
e("s_barrier")
la = uid("A")
e(f"s_cmp_ge_u32 s{sWAVE}, 4")
e(f"s_cbranch_scc1 {la}")
e("ds_read_b128 v[12:15], v4")
e("v_cmp_gt_u32 vcc, 4, v3")
e("s_waitcnt lgkmcnt(0)")
e("v_pk_mul_f32 v[24:25], v[24:25], v[12:13]")
e("v_pk_mul_f32 v[26:27], v[26:27], v[14:15]")
e("v_cvt_pk_bf16_f32 v8, v24, v25")
e("v_cvt_pk_bf16_f32 v9, v26, v27")
e(f"s_and_saveexec_b64 s[{sM0}:{sM1}], vcc")
e("ds_write_b64 v7, v[8:9]")
e(f"s_mov_b64 exec, s[{sM0}:{sM1}]")
lab(la)
e(f"v_mov_b32 v29, s{sTAG}")
e(f"v_mov_b32 v31, s{sTAG}")
e("s_waitcnt lgkmcnt(0)")
e("s_barrier")
stamp(6)
e("ds_read_b128 v[8:11], v124")
e("ds_read_b128 v[12:15], v124 offset:64")
e("s_waitcnt lgkmcnt(0)")
for ks in range(2):
    for j in range(2):
        d = 96 + 8*j + 4*ks
        cin = "0" if ks == 0 else f"v[{16+4*j}:{19+4*j}]"
        e(f"v_mfma_f32_16x16x32_bf16 v[{16+4*j}:{19+4*j}], v[{d}:{d+3}], v[{8+4*ks}:{11+4*ks}], {cin}")
nop(8)
for i in range(4): e(f"v_cndmask_b32 v{24+i}, v{16+i}, v{20+i}, s[86:87]")
e("v_cvt_pk_bf16_f32 v28, v24, v25")
e("v_cvt_pk_bf16_f32 v30, v26, v27")
e("s_mov_b64 exec, s[96:97]")
lsc = uid("SC"); lsd = uid("SD")
e(f"s_cmp_eq_u32 s{sSAME}, 1")
e(f"s_cbranch_scc0 {lsc}")
e(f"buffer_store_dwordx4 v[28:31], v125, {WS}, 0 offen")
e(f"s_branch {lsd}")
lab(lsc)
e(f"buffer_store_dwordx4 v[28:31], v125, {WS}, 0 offen sc1")
lab(lsd)
e("s_mov_b64 exec, -1")
stamp(7)
lab(lfin)
lf2 = uid("F2")
e(f"s_cmp_ge_u32 s{sWAVE}, 7")
e(f"s_cbranch_scc1 {lf2}")
e(f"s_lshl_b32 s{sT0}, s{sWAVE}, 8")
e("v_lshlrev_b32 v127, 4, v3")
e(f"v_add_u32 v127, s{sT0}, v127")
e(f"v_add_u32 v127, {T_RED}, v127")
poll([(8, 126, 0)], intra=True)
stamp(14)
unpack2(8, 12, 13); unpack2(10, 14, 15)
for sw in ("v_permlane16_swap_b32", "v_permlane32_swap_b32"):
    for i in range(4): e(f"v_mov_b32 v{16+i}, v{12+i}")
    nop(1)
    for i in range(4): e(f"{sw} v{12+i}, v{16+i}")
    nop(1)
    e("v_pk_add_f32 v[12:13], v[12:13], v[16:17]")
    e("v_pk_add_f32 v[14:15], v[14:15], v[18:19]")
e("s_mov_b64 exec, 0xffff")
e("ds_write_b128 v127, v[12:15]")
e("s_mov_b64 exec, -1")
lab(lf2)
e("s_waitcnt lgkmcnt(0)")
stamp(16)
e("s_barrier")
e(f"s_cmp_lg_u32 s{sWAVE}, 12")
e("s_cbranch_scc1 L_END")
red_read(8)
e("v_mov_b32 v30, 0")
e("v_lshrrev_b32 v4, 2, v1")
e("v_lshlrev_b32 v4, 10, v4")
e("v_and_b32 v5, 3, v1")
e("v_lshl_add_u32 v4, v5, 3, v4")
e(f"s_lshl_b32 s{sT0}, s{sR}, 5")
red_sum(7)
rnd2(8, 9, 12); rnd2(10, 11, 13)
e("v_pk_mul_f32 v[8:9], v[52:53], v[8:9]")
e("v_pk_mul_f32 v[10:11], v[54:55], v[10:11]")
rnd2(8, 9, 12); rnd2(10, 11, 13)
e("v_pk_add_f32 v[8:9], v[60:61], v[8:9]")
e("v_pk_add_f32 v[10:11], v[62:63], v[10:11]")
e("v_cvt_pk_bf16_f32 v16, v8, v9")
e("v_cvt_pk_bf16_f32 v17, v10, v11")
e("s_mov_b64 exec, 0xffff")
e(f"buffer_store_dwordx2 v[16:17], v4, {SD}, s{sT0} offen")
le = uid("EP")
e(f"s_cmp_lg_u32 s{sR}, 0")
e(f"s_cbranch_scc1 {le}")
e("s_mov_b64 exec, 1")
e(f"v_mov_b32 v8, s{sTAG}")
e(f"s_mov_b32 s{sT0}, {WS_EPOCH}")
e(f"buffer_store_dword v8, off, {WS}, s{sT0} sc1")
lab(le)
if "span" in OPT:
    e(f"s_mov_b32 s28, s{P_DBG}")
    e(f"s_and_b32 s29, s{P_DBG+1}, 0xffff")
    e("s_mov_b32 s30, 256")
    e("s_mov_b32 s31, 0x20000")
    e("s_waitcnt vmcnt(0)")
    e(f"s_memrealtime s[{sST0}:{sST1}]")
    e("s_waitcnt lgkmcnt(0)")
    e(f"v_mov_b32 v8, s{sST0}")
    e("s_mov_b64 exec, 1")
    e("buffer_atomic_umax v8, off, s[28:31], 0 offset:4")
stamp(8)
lab("L_END")
if DIAG:
    e("s_mov_b64 exec, -1")
    stamp(31)
    e("v_lshlrev_b32 v4, 2, v1")
    e("v_cmp_gt_u32 vcc, 32, v1")
    e(f"s_and_saveexec_b64 s[{sM0}:{sM1}], vcc")
    e(f"buffer_store_dword v0, v4, {WS}, s{sSTAMP} offen")
lab("L_EXIT")
e("s_endpgm")

L.append('.section .rodata,"a"')
L.append(".p2align 6")
L.append(f".amdhsa_kernel {NAME}_kernel")
L.append("  .amdhsa_next_free_vgpr 128")
L.append("  .amdhsa_next_free_sgpr 102")
L.append("  .amdhsa_accum_offset 128")
L.append("  .amdhsa_group_segment_fixed_size 0")
L.append("  .amdhsa_kernarg_size 112")
L.append("  .amdhsa_user_sgpr_count 2")
L.append("  .amdhsa_user_sgpr_kernarg_segment_ptr 1")
L.append("  .amdhsa_system_sgpr_workgroup_id_x 1")
L.append("  .amdhsa_float_denorm_mode_32 3")
L.append(".end_amdhsa_kernel")

open(sys.argv[1], "w").write("\n".join(x for x in L if x is not None) + "\n")
```

```python
import sys

DIAG = int(sys.argv[2]) if len(sys.argv) > 2 else 0
import os
OPT = set(os.environ.get("OPT", "").split(","))
NAME = "adaLN_cond__sliding_block_cached__swiglu_ffn__decode"

L = []
def e(s): L.append("    " + s)
def lab(s): L.append(s + ":")
def c(s): L.append("    ; " + s)
def nop(n):
    while n > 0:
        k = min(n, 16); e(f"s_nop {k-1}"); n -= k
_uid = [0]
def uid(p):
    _uid[0] += 1
    return f"{p}_{_uid[0]}"

WS_EPOCH = 0
WS_XCC   = 0x100
WS_HS    = 0x200
WS_QS    = 0x400
WS_MS    = 0xC00
WS_H     = 0x1000
WS_X2    = 0x3000
WS_M     = 0x8000
WS_Q     = 0x10000
WS_OML   = 0x20000
WS_OD    = 0x40000
WS_AP    = 0xC0000
WS_DP    = 0x140000
WS_SC    = 0x1B0000
WS_STAMP = 0x200000
WS_SIZE  = 0x300000

S_V    = 0
S_E    = 81920
S_L    = 114688
S_MISC = 147456
S_ACT  = S_MISC
S_QL   = S_ACT + 4352
S_XN   = S_QL + 1280
S_EXC  = S_XN + 256
S_MAXB = S_EXC + 256
S_PB   = S_MAXB + 256
S_CNT  = S_PB + 2560
S_CG   = S_V
S_CML  = S_V + 8704
LDS_BYTES = 163840
C_EARLY, C_ACT, C_EXC, C_XN, C_KL, C_Q, C_MAX, C_P, F_V, C_PVD, C_LATE, C_HD, C_WQ, C_QD = range(14)

T_W    = 0
T_WQ   = 0
T_HST  = 122880
T_HM   = 155648
T_ACT  = T_HM
T_XN   = T_ACT + 4352
T_EXC  = T_XN + 256
T_CNT  = T_EXC + 256
T_SAME = T_CNT + 64
T_HL   = 131072 + 16384
T_MISC = 131072
T_ACC1 = T_MISC
T_ACC2 = T_ACC1 + 256
T_H2   = T_ACC2 + 256
T_GU   = T_H2 + 4352
T_ACTL = T_GU + 2048
T_RED  = T_ACTL + 768

sWAVE, sTAG, sX8, sR, sS = 3, 4, 5, 6, 7
WS, SA, SB, SC, SD, SE, SF = "s[8:11]", "s[12:15]", "s[16:19]", "s[20:23]", "s[24:27]", "s[28:31]", "s[32:35]"
P_X, P_K, P_V, P_WQ, P_WO, P_BX, P_WG, P_WU, P_WD, P_C, P_WM, P_OUT, P_DBG, P_WS = [36 + 2*i for i in range(14)]
sT0, sT1, sT2, sT3, sT4, sT5, sT6, sT7 = 64, 65, 66, 67, 68, 69, 70, 71
sM0, sM1 = 72, 73
sM2, sM3 = 74, 75
sSTAMP = 76
sKV = 77
sNT = 78
sU = 79
sUI = 80
sLATE = 81
sSPIN = 82
sSTRIDE = 83
sCB0, sCB1 = 84, 85
sP, sJ = 86, 87
sSAME = 88
sST0, sST1 = 90, 91
sH = 92; sNQ = 93; sQCU = 95; sKDONE = 100

SPIN_MAX = 200000
LSPIN_MAX = 4000000

def csel2(dst, a, b):
    e(f"s_mov_b32 s{dst}, {b}")
    e(f"s_cselect_b32 s{dst}, {a}, s{dst}")

def srd(dst0, ptr, nbytes):
    e(f"s_mov_b32 s{dst0}, s{ptr}")
    e(f"s_and_b32 s{dst0+1}, s{ptr+1}, 0xffff")
    e(f"s_mov_b32 s{dst0+2}, {nbytes}")
    e(f"s_mov_b32 s{dst0+3}, 0x20000")

def stamp(k, wave=None):
    if not DIAG: return
    l = None
    if wave is not None:
        l = uid("ST"); e(f"s_cmp_lg_u32 s{sWAVE}, {wave}"); e(f"s_cbranch_scc1 {l}")
    e(f"s_memrealtime s[{sST0}:{sST1}]")
    e("s_waitcnt lgkmcnt(0)")
    e(f"v_writelane_b32 v0, s{sST0}, {k}")
    if l: lab(l)

def signal(cnt_base, k, vt0, vt1):
    e(f"v_mov_b32 v{vt0}, {cnt_base + 4*k}")
    e(f"v_mov_b32 v{vt1}, 1")
    e(f"s_mov_b64 s[{sM2}:{sM3}], exec")
    e("s_mov_b64 exec, 1")
    e(f"ds_add_u32 v{vt0}, v{vt1}")
    e(f"s_mov_b64 exec, s[{sM2}:{sM3}]")

def wait_cnt(cnt_base, k, target, vt0, vt1, sleep=1):
    l = uid("W"); d = uid("WD")
    e(f"v_mov_b32 v{vt0}, {cnt_base + 4*k}")
    e(f"s_mov_b32 s{sSPIN}, 0")
    lab(l)
    e(f"ds_read_b32 v{vt1}, v{vt0}")
    e("s_waitcnt lgkmcnt(0)")
    e(f"v_readfirstlane_b32 s{sT7}, v{vt1}")
    e(f"s_cmp_ge_u32 s{sT7}, {target}")
    e(f"s_cbranch_scc1 {d}")
    if sleep: e(f"s_sleep {sleep}")
    e(f"s_add_u32 s{sSPIN}, s{sSPIN}, 1")
    e(f"s_cmp_lt_u32 s{sSPIN}, {LSPIN_MAX}")
    e(f"s_cbranch_scc1 {l}")
    e("s_branch L_END")
    lab(d)

def wait_mask(cnt_base, k, need, vt0, vt1, sleep=0):
    l = uid("W"); d = uid("WD")
    e(f"v_mov_b32 v{vt0}, {cnt_base + 4*k}")
    e(f"s_mov_b32 s{sSPIN}, 0")
    lab(l)
    e(f"ds_read_b32 v{vt1}, v{vt0}")
    e("s_waitcnt lgkmcnt(0)")
    e(f"v_readfirstlane_b32 s{sT7}, v{vt1}")
    e(f"s_and_b32 s{sT7}, s{sT7}, {need}")
    e(f"s_cmp_eq_u32 s{sT7}, {need}")
    e(f"s_cbranch_scc1 {d}")
    if sleep: e(f"s_sleep {sleep}")
    e(f"s_add_u32 s{sSPIN}, s{sSPIN}, 1")
    e(f"s_cmp_lt_u32 s{sSPIN}, {LSPIN_MAX}")
    e(f"s_cbranch_scc1 {l}")
    e("s_branch L_END")
    lab(d)

def signal_or(cnt_base, k, sbit, vt0, vt1):
    e(f"v_mov_b32 v{vt0}, {cnt_base + 4*k}")
    e(f"v_mov_b32 v{vt1}, s{sbit}")
    e(f"s_mov_b64 s[{sM2}:{sM3}], exec")
    e("s_mov_b64 exec, 1")
    e(f"ds_or_b32 v{vt0}, v{vt1}")
    e(f"s_mov_b64 exec, s[{sM2}:{sM3}]")

def poll(loads, sleep=0, intra=False, pre=0):
    d = uid("PD")
    if pre: e(f"s_sleep {pre}")
    e(f"s_mov_b32 s{sSPIN}, 0")
    flavs = ["sc1"]
    lsc = None
    if intra:
        lsc = uid("PS")
        e(f"s_cmp_eq_u32 s{sSAME}, 1")
        e(f"s_cbranch_scc0 {lsc}")
        flavs = ["nt", "sc1"]
    for fi, fl in enumerate(flavs):
        if intra and fi == 1: lab(lsc)
        l = uid("P")
        lab(l)
        for (dst, voff, imm) in loads:
            e(f"buffer_load_dwordx4 v[{dst}:{dst+3}], v{voff}, {WS}, 0 offen offset:{imm} {fl}")
        e("s_waitcnt vmcnt(0)")
        first = True
        for (dst, voff, imm) in loads:
            if first:
                e(f"v_cmp_eq_u32 vcc, s{sTAG}, v{dst+1}")
                first = False
            else:
                e(f"v_cmp_eq_u32 s[{sM0}:{sM1}], s{sTAG}, v{dst+1}")
                e(f"s_and_b64 vcc, vcc, s[{sM0}:{sM1}]")
            e(f"v_cmp_eq_u32 s[{sM0}:{sM1}], s{sTAG}, v{dst+3}")
            e(f"s_and_b64 vcc, vcc, s[{sM0}:{sM1}]")
        e("s_cmp_eq_u64 vcc, exec")
        e(f"s_cbranch_scc1 {d}")
        if sleep: e(f"s_sleep {sleep}")
        e(f"s_add_u32 s{sSPIN}, s{sSPIN}, 1")
        e(f"s_cmp_lt_u32 s{sSPIN}, {SPIN_MAX}")
        e(f"s_cbranch_scc1 {l}")
        e("s_branch L_END")
    lab(d)

def load_tag():
    e(f"s_load_dword s{sTAG}, s[{P_WS}:{P_WS+1}], {WS_EPOCH}")

def fin_tag():
    e("s_waitcnt lgkmcnt(0)")
    e(f"s_add_u32 s{sTAG}, s{sTAG}, 0x9E3779B9")

def sentinel_store(soff_sgpr, vpair):
    e(f"s_mov_b64 s[{sM2}:{sM3}], exec")
    e("s_mov_b64 exec, 1")
    e(f"buffer_store_dwordx2 v[{vpair}:{vpair+1}], off, {WS}, s{soff_sgpr} sc1")
    e(f"s_mov_b64 exec, s[{sM2}:{sM3}]")

def poll_lanes(nlanes, dst, voff, sleep):
    e("s_mov_b64 s[98:99], exec")
    if nlanes < 64:
        m = (1 << nlanes) - 1
        e(f"s_mov_b32 exec_lo, {m & 0xffffffff:#x}")
        e(f"s_mov_b32 exec_hi, {m >> 32:#x}")
    poll([(dst, voff, 0)], sleep=sleep)
    e("s_mov_b64 exec, s[98:99]")

def allreduce2(va, vb, t0, t1, op="add"):
    ins = f"v_{op}_f32"
    nop(2)
    for ctl in ("quad_perm:[1,0,3,2]", "quad_perm:[2,3,0,1]", "row_half_mirror", "row_mirror"):
        e(f"{ins}_dpp v{va}, v{va}, v{va} {ctl} row_mask:0xf bank_mask:0xf")
        e(f"{ins}_dpp v{vb}, v{vb}, v{vb} {ctl} row_mask:0xf bank_mask:0xf")
        nop(1)
    for sw in ("v_permlane16_swap_b32", "v_permlane32_swap_b32"):
        e(f"v_mov_b32 v{t0}, v{va}")
        e(f"v_mov_b32 v{t1}, v{vb}")
        nop(2)
        e(f"{sw} v{va}, v{t0}")
        e(f"{sw} v{vb}, v{t1}")
        nop(1)
        e(f"{ins} v{va}, v{va}, v{t0}")
        e(f"{ins} v{vb}, v{vb}, v{t1}")

def rnd2(a, b, t):
    e(f"v_cvt_pk_bf16_f32 v{t}, v{a}, v{b}")
    e(f"v_lshlrev_b32 v{a}, 16, v{t}")
    e(f"v_and_b32 v{b}, 0xffff0000, v{t}")

def unpack2(src, lo, hi):
    e(f"v_lshlrev_b32 v{lo}, 16, v{src}")
    e(f"v_and_b32 v{hi}, 0xffff0000, v{src}")

LOG2E = 0x3fb8aa3b
NLOG2E = 0xbfb8aa3b
SCALE = 0x3db504f3
EPS = 0x3727c5ac
INV512 = 0x3b000000

def layernorm8(x0, t):
    d = t + 4
    a, b, t0, t1 = t, t+1, t+2, t+3
    e(f"v_readfirstlane_b32 s{sT0}, v{x0}")
    e(f"v_readfirstlane_b32 s{sT1}, v{x0}")
    nop(2)
    for i in range(0, 8, 2):
        e(f"v_pk_add_f32 v[{d+i}:{d+i+1}], v[{x0+i}:{x0+i+1}], s[{sT0}:{sT1}] neg_lo:[0,1] neg_hi:[0,1]")
    e(f"v_pk_add_f32 v[{t0}:{t1}], v[{d}:{d+1}], v[{d+2}:{d+3}]")
    e(f"v_pk_mul_f32 v[{a}:{b}], v[{d}:{d+1}], v[{d}:{d+1}]")
    e(f"v_pk_add_f32 v[{t0}:{t1}], v[{t0}:{t1}], v[{d+4}:{d+5}]")
    e(f"v_pk_fma_f32 v[{a}:{b}], v[{d+2}:{d+3}], v[{d+2}:{d+3}], v[{a}:{b}]")
    e(f"v_pk_add_f32 v[{t0}:{t1}], v[{t0}:{t1}], v[{d+6}:{d+7}]")
    e(f"v_pk_fma_f32 v[{a}:{b}], v[{d+4}:{d+5}], v[{d+4}:{d+5}], v[{a}:{b}]")
    e(f"v_pk_fma_f32 v[{a}:{b}], v[{d+6}:{d+7}], v[{d+6}:{d+7}], v[{a}:{b}]")
    e(f"v_add_f32 v{b}, v{a}, v{b}")
    e(f"v_add_f32 v{a}, v{t0}, v{t1}")
    allreduce2(a, b, t0, t1)
    e(f"v_mul_f32 v{a}, {INV512:#x}, v{a}")
    e(f"v_mul_f32 v{b}, {INV512:#x}, v{b}")
    e(f"v_fma_f32 v{b}, -v{a}, v{a}, v{b}")
    e(f"v_add_f32 v{a}, s{sT0}, v{a}")
    e(f"v_max_f32 v{b}, 0, v{b}")
    rnd2(a, b, t0)
    e(f"v_add_f32 v{b}, {EPS:#x}, v{b}")
    e(f"v_cvt_pk_bf16_f32 v{t0}, v{b}, v{b}")
    e(f"v_lshlrev_b32 v{b}, 16, v{t0}")
    e(f"v_sqrt_f32 v{b}, v{b}")
    nop(1)
    for i in range(0, 8, 2):
        e(f"v_pk_add_f32 v[{x0+i}:{x0+i+1}], v[{x0+i}:{x0+i+1}], v[{a}:{b}] op_sel_hi:[1,0] neg_lo:[0,1] neg_hi:[0,1]")
    e(f"v_cvt_pk_bf16_f32 v{t0}, v{b}, v{b}")
    e(f"v_lshlrev_b32 v{b}, 16, v{t0}")
    e(f"v_rcp_f32 v{t0}, v{b}")
    for i in range(0, 8, 2):
        rnd2(x0+i, x0+i+1, d)
    for i in range(0, 8, 2):
        e(f"v_pk_mul_f32 v[{x0+i}:{x0+i+1}], v[{x0+i}:{x0+i+1}], v[{t0}:{t1}] op_sel_hi:[1,0]")
    for i in range(0, 8, 2):
        rnd2(x0+i, x0+i+1, d)

def silu_inplace(x, t0, t1):
    e(f"v_mul_f32 v{t0}, {NLOG2E:#x}, v{x}")
    e(f"v_exp_f32 v{t0}, v{t0}")
    nop(1)
    e(f"v_add_f32 v{t0}, 1.0, v{t0}")
    e(f"v_rcp_f32 v{t1}, v{t0}")
    nop(1)
    e(f"v_mul_f32 v{x}, v{x}, v{t1}")


SSL = int(os.environ.get("SSL", "2"))
TSL = int(os.environ.get("TSL", "4"))
ENT = "" if "Enont" in OPT else " nt"
SCS = int(os.environ.get("SCS", "1"))
EK = int(os.environ.get("EK", "3"))
PSL = int(os.environ.get("PSL", "8"))
QKW = int(os.environ.get("QKW", "0"))
WK = int(os.environ.get("WK", "4"))
KOV = int(os.environ.get("KOV", "2"))
hdr = open("cdna_kernels/" + NAME + ".s.ref").read().split("\n")
for ln in hdr:
    if ln.startswith("; Override") or ln.startswith("; grid=") or ln.startswith("; @launch"): continue
    if ln.startswith(";"): L.append(ln)
    else: break
L.append(f"; @launch grid=(256,1,1) block=(1024,1,1) lds={LDS_BYTES}")
L.append('.amdgcn_target "amdgcn-amd-amdhsa--gfx950"')
L.append(".text")
L.append(f".globl {NAME}_kernel")
L.append(".p2align 8")
L.append(f".type {NAME}_kernel,@function")
lab(f"{NAME}_kernel")

sKVB = 94
sEX0, sEX1 = 96, 97

e("s_cmp_ge_u32 s2, 256")
e("s_cbranch_scc1 L_EXIT")
e("s_load_dwordx16 s[36:51], s[0:1], 0")
e("s_load_dwordx8 s[52:59], s[0:1], 64")
e("s_load_dwordx4 s[60:63], s[0:1], 96")
e("v_lshrrev_b32 v2, 6, v0")
e("v_and_b32 v1, 63, v0")
e(f"v_readfirstlane_b32 s{sWAVE}, v2")
e(f"s_and_b32 s{sX8}, s2, 7")
e(f"s_lshr_b32 s{sR}, s2, 3")
e("v_lshrrev_b32 v2, 4, v1")
e("v_and_b32 v3, 15, v1")
e(f"s_lshl_b32 s{sSTAMP}, s2, 4")
e(f"s_add_u32 s{sSTAMP}, s{sSTAMP}, s{sWAVE}")
e(f"s_lshl_b32 s{sSTAMP}, s{sSTAMP}, 7")
e(f"s_add_u32 s{sSTAMP}, s{sSTAMP}, {WS_STAMP}")
if DIAG: e("v_mov_b32 v0, 0")
stamp(0)
e("s_waitcnt lgkmcnt(0)")
srd(8, P_WS, WS_SIZE)
if "span" in OPT:
    lsp = uid("SP")
    e(f"s_cmp_lg_u32 s{sWAVE}, 0")
    e(f"s_cbranch_scc1 {lsp}")
    e(f"s_mov_b32 s28, s{P_DBG}")
    e(f"s_and_b32 s29, s{P_DBG+1}, 0xffff")
    e("s_mov_b32 s30, 256")
    e("s_mov_b32 s31, 0x20000")
    e(f"s_memrealtime s[{sST0}:{sST1}]")
    e("s_waitcnt lgkmcnt(0)")
    e(f"s_not_b32 s{sST0}, s{sST0}")
    e(f"v_mov_b32 v8, s{sST0}")
    e("s_mov_b64 exec, 1")
    e("buffer_atomic_umax v8, off, s[28:31], 0")
    e("s_mov_b64 exec, -1")
    lab(lsp)
e(f"s_cmp_eq_u32 s{sX8}, 7")
e("s_cbranch_scc1 L_T")

def line_dma_voff(stride):
    e("v_lshrrev_b32 v4, 3, v1")
    e(f"v_mul_u32_u24 v4, {stride}, v4")
    e("v_bfe_u32 v5, v1, 1, 2")
    e("v_bfe_u32 v6, v1, 4, 2")
    e("v_xor_b32 v5, v5, v6")
    e("v_lshl_add_u32 v4, v5, 5, v4")
    e("v_and_b32 v5, 1, v1")
    e("v_lshl_add_u32 v4, v5, 4, v4")
def tr_line_addr(dst, base_sgpr):
    e("v_lshrrev_b32 v4, 2, v3")
    e("v_lshl_add_u32 v4, v2, 2, v4")
    e("v_bfe_u32 v5, v4, 1, 2")
    e(f"s_and_b32 s{sT1}, s{sWAVE}, 3")
    e(f"v_xor_b32 v5, s{sT1}, v5")
    e("v_lshlrev_b32 v4, 7, v4")
    e("v_lshl_add_u32 v4, v5, 5, v4")
    e("v_and_b32 v5, 3, v1")
    e("v_lshl_add_u32 v4, v5, 3, v4")
    e(f"v_add_u32 v{dst}, s{base_sgpr}, v4")
def mfma16(vaddr):
    def regs(grp, k):
        if grp % 2 == 0: return 8 + 4*k
        return [112, 116, 120, 28][k]
    def rd(grp):
        for k in range(4):
            b_ = regs(grp, k)
            e(f"ds_read_b128 v[{b_}:{b_+3}], v{vaddr} offset:{64*(4*grp+k)}")
    rd(0); rd(1)
    for grp in range(4):
        e(f"s_waitcnt lgkmcnt({4 if grp < 3 else 0})")
        for k in range(4):
            ks = 4*grp + k; b_ = regs(grp, k)
            cin = "0" if ks == 0 else "v[24:27]"
            e(f"v_mfma_f32_16x16x32_bf16 v[24:27], v[{32+4*ks}:{35+4*ks}], v[{b_}:{b_+3}], {cin}")
        if grp + 2 < 4: rd(grp + 2)
    nop(8)
def line_dma(stride):
    line_dma_voff(stride)
    e(f"s_lshl_b32 s{sT1}, s{sWAVE}, 13")
    e(f"s_mul_i32 s{sT2}, s{sWAVE}, {64*stride}")
    e(f"s_add_u32 s{sT2}, s{sT2}, s{sCB0}")
    for k in range(8):
        e(f"s_mov_b32 m0, s{sT1}")
        e(f"s_add_u32 s{sT1}, s{sT1}, 1024")
        e(f"buffer_load_dwordx4 v4, {SC}, s{sT2} offen nt lds")
        e(f"s_add_u32 s{sT2}, s{sT2}, {8*stride}")
def line_mfma(actbase, cnt, rowshift):
    e(f"s_mov_b32 s{sT2}, 0")
    tr_line_addr(7, sT2)
    e("v_and_b32 v5, 3, v1")
    e("v_mul_u32_u24 v6, 1088, v5")
    e("v_lshl_add_u32 v6, v2, 4, v6")
    e(f"v_add_u32 v6, {actbase}, v6")
    wait_cnt(cnt, C_WQ, 8, 8, 9, sleep=1)
    stamp(1)
    for ks in range(16):
        e(f"ds_read_b64_tr_b16 v[{32+4*ks}:{33+4*ks}], v7 offset:{4096*ks}")
        e(f"ds_read_b64_tr_b16 v[{34+4*ks}:{35+4*ks}], v7 offset:{4096*ks+2048}")
    wait_cnt(cnt, C_ACT, 4, 8, 9, sleep=1)
    stamp(2)
    mfma16(6)
    e("v_cvt_pk_bf16_f32 v28, v24, v25")
    e(f"v_mov_b32 v29, s{sTAG}")
    e("v_cvt_pk_bf16_f32 v30, v26, v27")
    e(f"v_mov_b32 v31, s{sTAG}")
    e(f"s_and_b32 s{sT2}, s{sWAVE}, 3")
    e(f"s_lshl_b32 s{sT2}, s{sT2}, 6")
    e(f"s_add_u32 s{sT1}, s{sCB1}, s{sT2}")
    e(f"v_lshlrev_b32 v8, {rowshift}, v3")
    e("v_lshl_add_u32 v8, v2, 4, v8")
    e("v_cmp_gt_u32 vcc, 4, v3")
    e(f"s_and_saveexec_b64 s[{sM0}:{sM1}], vcc")
    e(f"buffer_store_dwordx4 v[28:31], v8, {WS}, s{sT1} offen sc1")
    e(f"s_mov_b64 exec, s[{sM0}:{sM1}]")
    signal(cnt, C_QD, 8, 9)
    stamp(3)
def line_unit(actbase, cnt, stride, rowshift):
    lq8 = uid("Q8"); lq4 = uid("Q4")
    e(f"s_cmp_ge_u32 s{sWAVE}, 8")
    e(f"s_cbranch_scc1 {lq8}")
    line_dma(stride)
    load_tag()
    e("s_waitcnt vmcnt(0)")
    signal(cnt, C_WQ, 8, 9)
    fin_tag()
    e(f"s_cmp_ge_u32 s{sWAVE}, 4")
    e(f"s_cbranch_scc1 {lq4}")
    line_mfma(actbase, cnt, rowshift)
    e(f"s_branch {lq4}")
    lab(lq8)
    load_tag()
    fin_tag()
    lab(lq4)
def q_params():
    e(f"s_lshl_b32 s{sCB0}, s{sUI}, 7")
    e(f"s_lshl_b32 s{sCB1}, s{sUI}, 8")
    e(f"s_add_u32 s{sCB1}, s{sCB1}, {WS_Q}")

c("S role")
e(f"s_lshl_b32 s{sS}, s{sX8}, 5")
e(f"s_add_u32 s{sS}, s{sS}, s{sR}")
e(f"s_mul_i32 s{sT0}, s{sR}, 37")
e(f"s_lshr_b32 s{sT0}, s{sT0}, 8")
e(f"s_mul_i32 s{sT0}, s{sT0}, 7")
e(f"s_sub_u32 s{sT0}, s{sR}, s{sT0}")
e(f"s_add_u32 s{sT1}, s{sX8}, 7")
e(f"s_sub_u32 s{sT1}, s{sT1}, s{sT0}")
e(f"s_sub_u32 s{sT2}, s{sT1}, 7")
e(f"s_cmp_ge_u32 s{sT1}, 7")
e(f"s_cselect_b32 s{sT1}, s{sT2}, s{sT1}")
e(f"s_lshl_b32 s{sUI}, s{sR}, 1")
e(f"s_cmp_eq_u32 s{sT1}, 0")
e(f"s_cselect_b32 s{sQCU}, 1, 0")
e(f"s_cmp_eq_u32 s{sT1}, 3")
e(f"s_cselect_b32 s{sQCU}, 1, s{sQCU}")
e(f"s_cmp_eq_u32 s{sT1}, 1")
e(f"s_cselect_b32 s{sU}, 1, 0")
e(f"s_cmp_eq_u32 s{sT1}, 4")
e(f"s_cselect_b32 s{sU}, 1, s{sU}")
e(f"s_cmp_ge_u32 s{sT1}, 3")
e(f"s_addc_u32 s{sUI}, s{sUI}, 0")
if "modpair" in OPT:
    e(f"s_sub_u32 s{sT2}, s{sR}, 4")
    e(f"s_and_b32 s{sT2}, s{sT2}, 31")
    e(f"s_lshl_b32 s{sT2}, s{sT2}, 1")
    e(f"s_add_u32 s{sT2}, s{sT2}, 1")
    e(f"s_cmp_eq_u32 s{sT1}, 4")
    e(f"s_cselect_b32 s{sUI}, s{sT2}, s{sUI}")
e(f"s_lshr_b32 s{sT2}, 0x36, s{sT1}")
e(f"s_and_b32 s{sLATE}, s{sT2}, 1")
e(f"s_sub_u32 s{sNQ}, s{sT1}, 1")
e(f"s_cmp_ge_u32 s{sT1}, 4")
e(f"s_cselect_b32 s{sT2}, 1, 0")
e(f"s_sub_u32 s{sNQ}, s{sNQ}, s{sT2}")
e(f"s_mov_b32 s{sH}, s{sR}")
e(f"s_cmp_eq_u32 s{sQCU}, 1")
e(f"s_cselect_b32 s{sNT}, 7, 10")
e(f"s_add_u32 s{sT2}, s{sT0}, 3")
e(f"s_sub_u32 s{sT3}, s{sT2}, 7")
e(f"s_cmp_ge_u32 s{sT2}, 7")
e(f"s_cselect_b32 s{sT2}, s{sT3}, s{sT2}")
e(f"s_mul_i32 s{sT3}, s{sX8}, 10")
e(f"s_cmp_lt_u32 s{sT0}, s{sX8}")
e(f"s_cselect_b32 s{sT5}, 3, 0")
e(f"s_sub_u32 s{sT3}, s{sT3}, s{sT5}")
e(f"s_cmp_lt_u32 s{sT2}, s{sX8}")
e(f"s_cselect_b32 s{sT5}, 3, 0")
e(f"s_sub_u32 s{sT3}, s{sT3}, s{sT5}")
e(f"s_lshl_b32 s{sT0}, s{sT3}, 13")
e(f"s_lshl_b32 s{sT1}, s{sR}, 21")
e(f"s_add_u32 s{sKVB}, s{sT0}, s{sT1}")
e(f"s_add_u32 s{sKVB}, s{sKVB}, {6144*256}")

e(f"s_cmp_ge_u32 s{sWAVE}, 12")
e("s_cbranch_scc1 L_S_STREAM")
e(f"s_cmp_ge_u32 s{sWAVE}, 10")
e("s_cbranch_scc1 L_S_JOB")

c("tile waves 0..9")
srd(12, P_K, 4*8*8192*128*2)
e(f"s_lshl_b32 s{sT0}, s{sWAVE}, 13")
e(f"s_add_u32 s{sKV}, s{sKVB}, s{sT0}")
def k_addr():
    e("v_lshrrev_b32 v4, 2, v3")
    e("v_and_b32 v5, 1, v1")
    e("v_lshl_add_u32 v4, v4, 1, v5")
    e("v_lshlrev_b32 v4, 8, v4")
    e("v_bfe_u32 v5, v1, 1, 1")
    e("v_lshl_add_u32 v4, v5, 6, v4")
    e("v_lshl_add_u32 v4, v2, 4, v4")
def k_issue():
    e(f"s_add_u32 s{sT0}, s{sKV}, 4096")
    for kg in range(4):
        so = sKV if kg < 2 else sT0
        for s_ in range(2):
            d = 32 + 8*kg + 4*s_
            e(f"buffer_load_dwordx4 v[{d}:{d+3}], v4, {SA}, s{so} offen offset:{(kg & 1)*2048 + 128*s_} nt")
e(f"s_mov_b32 s{sT6}, 0")
le0 = uid("E0")
e(f"s_cmp_eq_u32 s{sQCU}, 1")
e(f"s_cbranch_scc1 {le0}")
e(f"s_cmp_ge_u32 s{sWAVE}, {min(WK, EK)}")
e(f"s_cbranch_scc1 {le0}")
k_addr()
k_issue()
e(f"s_mov_b32 s{sT6}, 1")
lab(le0)
e(f"s_mov_b32 s{sKDONE}, s{sT6}")
e("s_barrier")
lnq = uid("NOQ")
e(f"s_cmp_eq_u32 s{sQCU}, 0")
e(f"s_cbranch_scc1 {lnq}")
q_params()
lq8 = uid("Q8"); lq7 = uid("Q7")
e(f"s_cmp_ge_u32 s{sWAVE}, 8")
e(f"s_cbranch_scc1 {lq8}")
srd(20, P_WQ, 512*4096*2)
line_dma(8192)
if "kq_landed" in OPT:
    e("s_waitcnt vmcnt(0)")
    signal(S_CNT, C_WQ, 8, 9)
    wait_cnt(S_CNT, C_WQ, 8, 8, 9, sleep=1)
    e(f"s_branch {lnq}")
signal(S_CNT, C_XN, 8, 9)
wait_cnt(S_CNT, C_XN, 8, 8, 9, sleep=0)
e(f"s_cmp_ge_u32 s{sWAVE}, 7")
e(f"s_cbranch_scc1 {lq7}")
k_addr()
k_issue()
e(f"s_mov_b32 s{sKDONE}, 1")
e("s_waitcnt vmcnt(8)")
signal(S_CNT, C_WQ, 8, 9)
e(f"s_branch {lnq}")
lab(lq7)
e("s_waitcnt vmcnt(0)")
signal(S_CNT, C_WQ, 8, 9)
e(f"s_branch {lnq}")
lab(lq8)
load_tag()
fin_tag()
line_mfma(S_ACT, S_CNT, 14)
lab(lnq)
e("v_and_b32 v8, 3, v1")
e("v_lshl_add_u32 v13, v2, 2, v8")
e("v_lshlrev_b32 v13, 4, v13")
e(f"v_add_u32 v13, {S_PB}, v13")
e(f"s_cmp_ge_u32 s{sWAVE}, s{sNT}")
e("s_cbranch_scc1 L_S_ATT_IDLE")
if "kafter" in OPT: wait_cnt(S_CNT, C_EARLY, 4, 8, 9, sleep=1)
lk = uid("K"); lkd = uid("KD")
e(f"s_cmp_eq_u32 s{sKDONE}, 1")
e(f"s_cbranch_scc1 {lkd}")
e(f"s_cmp_lt_u32 s{sWAVE}, {WK}")
e(f"s_cbranch_scc1 {lk}")
e(f"s_sub_u32 s{sT5}, s{sWAVE}, {WK-1}")
wait_cnt(S_CNT, C_KL, f"s{sT5}", 8, 9, sleep=1)
lab(lk)
k_addr()
k_issue()
lab(lkd)
load_tag()
stamp(11)
e("v_and_b32 v8, 3, v1")
e("v_mul_u32_u24 v10, 320, v8")
e("v_lshl_add_u32 v10, v2, 4, v10")
e("v_bfe_u32 v11, v1, 2, 1")
e("v_lshl_add_u32 v10, v11, 6, v10")
e(f"v_add_u32 v10, {S_QL}, v10")
e("v_lshlrev_b32 v11, 6, v8")
e(f"v_add_u32 v11, {S_MAXB}, v11")
e(f"s_lshl_b32 s{sT0}, s{sWAVE}, 2")
e(f"v_add_u32 v12, s{sT0}, v11")
e(f"s_lshl_b32 s{sT0}, s{sWAVE}, 8")
e(f"v_add_u32 v14, s{sT0}, v13")
e("s_waitcnt vmcnt(0)")
signal(S_CNT, C_KL, 8, 9)
fin_tag()
stamp(12)
wait_cnt(S_CNT, C_Q, 2, 8, 9, sleep=1)
stamp(14)
for s_ in range(2):
    e(f"ds_read_b128 v[{64+4*s_}:{67+4*s_}], v10 offset:{128*s_}")
e("s_waitcnt lgkmcnt(0)")
for s_ in range(2):
    for kg in range(4):
        A = 96 + 4*kg
        cin = "0" if s_ == 0 else f"v[{A}:{A+3}]"
        e(f"v_mfma_f32_16x16x32_bf16 v[{A}:{A+3}], v[{32+8*kg+4*s_}:{35+8*kg+4*s_}], v[{64+4*s_}:{67+4*s_}], {cin}")
e(f"s_mov_b32 s{sT2}, {SCALE:#x}")
e(f"s_mov_b32 s{sT3}, {SCALE:#x}")
e(f"s_mov_b32 s{sT4}, {LOG2E:#x}")
nop(5)
for kg in range(4):
    for e_ in range(2):
        A = 96 + 4*kg
        e(f"v_add_f32_dpp v{80+2*kg+e_}, v{A+2+e_}, v{A+e_} row_shl:4 row_mask:0xf bank_mask:0xf")
for i in range(0, 8, 2):
    rnd2(80+i, 81+i, 16)
for i in range(0, 8, 2):
    e(f"v_pk_mul_f32 v[{80+i}:{81+i}], v[{80+i}:{81+i}], s[{sT2}:{sT3}]")
for i in range(0, 8, 2):
    rnd2(80+i, 81+i, 16)
e("v_max3_f32 v16, v80, v81, v82")
e("v_max3_f32 v16, v16, v83, v84")
e("v_max3_f32 v16, v16, v85, v86")
e("v_max_f32 v16, v16, v87")
for sw in ("v_permlane16_swap_b32", "v_permlane32_swap_b32"):
    e("v_mov_b32 v17, v16")
    nop(2)
    e(f"{sw} v16, v17")
    nop(1)
    e("v_max_f32 v16, v16, v17")
e("v_cmp_gt_u32 vcc, 4, v1")
e(f"s_and_saveexec_b64 s[{sM0}:{sM1}], vcc")
e("ds_write_b32 v12, v16")
e(f"s_mov_b64 exec, s[{sM0}:{sM1}]")
signal(S_CNT, C_MAX, 8, 9)
wait_cnt(S_CNT, C_MAX, f"s{sNT}", 8, 9, sleep=0)
for i in range(3):
    e(f"ds_read_b128 v[{16+4*i}:{19+4*i}], v11 offset:{16*i}")
e("s_waitcnt lgkmcnt(0)")
e("v_max3_f32 v16, v16, v17, v18")
e("v_max3_f32 v19, v19, v20, v21")
e("v_max3_f32 v22, v22, v23, v24")
e("v_max3_f32 v25, v25, v26, v27")
e("v_max3_f32 v16, v16, v19, v22")
e("v_max_f32 v16, v16, v25")
e(f"v_mul_f32 v15, s{sT4}, v16")
for i in range(8):
    e(f"v_fma_f32 v{80+i}, v{80+i}, s{sT4}, -v15")
for i in range(8):
    e(f"v_exp_f32 v{80+i}, v{80+i}")
nop(1)
for i in range(4):
    e(f"v_cvt_pk_bf16_f32 v{16+i}, v{80+2*i}, v{81+2*i}")
e("v_cmp_gt_u32 vcc, 4, v3")
e(f"s_and_saveexec_b64 s[{sM0}:{sM1}], vcc")
e("ds_write_b128 v14, v[16:19]")
e(f"s_mov_b64 exec, s[{sM0}:{sM1}]")
signal(S_CNT, C_P, 8, 9)
stamp(15)
lab("L_S_PVSTART")
e(f"s_cmp_ge_u32 s{sWAVE}, 8")
e("s_cbranch_scc1 L_S_LATE")
e("v_bfe_u32 v9, v1, 3, 1")
e("v_bfe_u32 v10, v1, 2, 1")
e("v_lshl_add_u32 v10, v2, 1, v10")
e("v_lshl_add_u32 v11, v9, 3, v10")
e("v_lshlrev_b32 v9, 2, v9")
e("v_xor_b32 v10, v10, v9")
e(f"v_xor_b32 v10, s{sWAVE}, v10")
e("v_lshlrev_b32 v10, 5, v10")
e("v_lshl_add_u32 v10, v11, 8, v10")
e("v_and_b32 v11, 3, v1")
e("v_lshl_add_u32 v10, v11, 3, v10")
e("v_add_u32 v11, 0x10000, v10")
for i in range(4): e(f"v_mov_b32 v{28+i}, 0x3f803f80")
e(f"s_and_b32 s{sT0}, s{sR}, 7")
e(f"s_lshr_b32 s{sT1}, s{sR}, 3")
e(f"s_mul_i32 s{sT1}, s{sT1}, 7")
e(f"s_add_u32 s{sT1}, s{sT1}, s{sX8}")
e(f"s_mul_i32 s{sT0}, s{sT0}, {4*28}")
e(f"s_add_u32 s{sT0}, s{sT0}, s{sT1}")
e("v_mul_u32_u24 v12, 28, v3")
e(f"v_add_u32 v12, s{sT0}, v12")
e("v_lshlrev_b32 v14, 4, v12")
e("v_lshlrev_b32 v12, 9, v12")
e("v_lshl_add_u32 v12, v2, 4, v12")
e(f"s_lshl_b32 s{sT0}, s{sWAVE}, 6")
e(f"v_add_u32 v12, s{sT0}, v12")
e(f"v_mov_b32 v17, s{sTAG}")
e(f"v_mov_b32 v19, s{sTAG}")
e(f"v_mov_b32 v21, s{sTAG}")
e(f"v_mov_b32 v23, s{sTAG}")
wait_cnt(S_CNT, C_P, f"s{sNT}", 8, 9, sleep=0)
def vbase(a): return (10, a*8192) if a < 8 else (11, (a-8)*8192)
for NTv in (7, 10):
    lnext = uid("NT")
    if NTv == 7:
        e(f"s_cmp_eq_u32 s{sNT}, 7")
        e(f"s_cbranch_scc0 {lnext}")
    for a in range(NTv):
        e(f"ds_read_b128 v[{80+4*a}:{83+4*a}], v13 offset:{256*a}")
    for a in range(NTv):
        e(f"s_waitcnt lgkmcnt({NTv-1-a})")
        cin = "0" if a == 0 else "v[124:127]"
        e(f"v_mfma_f32_16x16x32_bf16 v[124:127], v[28:31], v[{80+4*a}:{83+4*a}], {cin}")
    wait_mask(S_CNT, F_V, (1 << (NTv-1)) - 1, 8, 9, sleep=1)
    stamp(16)
    n = NTv - 1; WIN = 7
    def vread(a):
        vb, off = vbase(a)
        e(f"ds_read_b64_tr_b16 v[{32+4*a}:{33+4*a}], v{vb} offset:{off}")
        e(f"ds_read_b64_tr_b16 v[{34+4*a}:{35+4*a}], v{vb} offset:{off+4096}")
    for a in range(min(WIN, n)): vread(a)
    for a in range(n):
        rem = 2*(min(a + WIN, n) - (a + 1))
        e(f"s_waitcnt lgkmcnt({rem})")
        cin = "0" if a == 0 else "v[120:123]"
        e(f"v_mfma_f32_16x16x32_bf16 v[120:123], v[{32+4*a}:{35+4*a}], v[{80+4*a}:{83+4*a}], {cin}")
        if a + WIN < n: vread(a + WIN)
    e("v_rcp_f32 v24, v124")
    wait_mask(S_CNT, F_V, (1 << NTv) - 1, 8, 9, sleep=0)
    stamp(13)
    a = NTv - 1
    vb, off = vbase(a)
    e(f"ds_read_b64_tr_b16 v[{32+4*a}:{33+4*a}], v{vb} offset:{off}")
    e(f"ds_read_b64_tr_b16 v[{34+4*a}:{35+4*a}], v{vb} offset:{off+4096}")
    e("s_waitcnt lgkmcnt(0)")
    e(f"v_mfma_f32_16x16x32_bf16 v[120:123], v[{32+4*a}:{35+4*a}], v[{80+4*a}:{83+4*a}], v[120:123]")
    if NTv == 7:
        e("s_branch L_S_PVEND")
        lab(lnext)
lab("L_S_PVEND")
signal(S_CNT, C_PVD, 8, 9)
e("v_mov_b32 v20, v15")
e("v_mov_b32 v22, v124")
nop(2)
e("v_pk_mul_f32 v[120:121], v[120:121], v[24:25] op_sel_hi:[1,0]")
e("v_pk_mul_f32 v[122:123], v[122:123], v[24:25] op_sel_hi:[1,0]")
e("v_cvt_pk_bf16_f32 v16, v120, v121")
e("v_cvt_pk_bf16_f32 v18, v122, v123")
e(f"s_mov_b32 s{sT2}, {WS_OD}")
e("v_cmp_gt_u32 vcc, 4, v3")
e(f"s_and_saveexec_b64 s[{sM0}:{sM1}], vcc")
e(f"buffer_store_dwordx4 v[16:19], v12, {WS}, s{sT2} offen sc1")
lml = uid("ML")
e(f"s_cmp_lg_u32 s{sWAVE}, 0")
e(f"s_cbranch_scc1 {lml}")
e("s_mov_b64 exec, 15")
e(f"s_mov_b32 s{sT2}, {WS_OML}")
e(f"buffer_store_dwordx4 v[20:23], v14, {WS}, s{sT2} offen sc1")
lab(lml)
e(f"s_mov_b64 exec, s[{sM0}:{sM1}]")
stamp(7)
e("s_branch L_S_LATE")
lab("L_S_ATT_IDLE")
load_tag()
fin_tag()
e("s_branch L_S_PVSTART")

lab("L_S_JOB")
c("job waves 10,11")
e("s_setprio 3")
def zero_counters(cnt, maxb=None):
    e("v_lshlrev_b32 v4, 2, v1")
    if maxb is not None:
        e(f"v_add_u32 v5, {maxb}, v4")
        e("v_mov_b32 v6, 0xff800000")
        e("ds_write_b32 v5, v6")
    e(f"v_add_u32 v4, {cnt}, v4")
    e("v_mov_b32 v5, 0")
    e("v_cmp_gt_u32 vcc, 16, v1")
    e(f"s_and_saveexec_b64 s[{sM0}:{sM1}], vcc")
    e("ds_write_b32 v4, v5")
    e(f"s_mov_b64 exec, s[{sM0}:{sM1}]")
    e("s_waitcnt lgkmcnt(0)")
zero_counters(S_CNT, S_MAXB)
e("s_barrier")
load_tag()
e(f"s_sub_u32 s{sT4}, s{sWAVE}, 10")
stamp(20)
def gemv_job(ebase, actbase, cnt, act_target):
    e("v_lshrrev_b32 v4, 2, v3")
    e("v_lshl_add_u32 v4, v2, 2, v4")
    e("v_lshlrev_b32 v4, 6, v4")
    e("v_and_b32 v5, 1, v2")
    e(f"v_xor_b32 v5, s{sT4}, v5")
    e("v_lshl_add_u32 v4, v5, 5, v4")
    e("v_and_b32 v5, 3, v1")
    e("v_lshl_add_u32 v4, v5, 3, v4")
    e(f"v_add_u32 v4, {ebase}, v4")
    e("v_mul_u32_u24 v6, 1088, v5")
    e("v_lshl_add_u32 v6, v2, 4, v6")
    e(f"v_add_u32 v6, {actbase}, v6")
    wait_cnt(cnt, C_EARLY, 4, 8, 9, sleep=1)
    stamp(1)
    for ks in range(16):
        e(f"ds_read_b64_tr_b16 v[{32+4*ks}:{33+4*ks}], v4 offset:{2048*ks}")
        e(f"ds_read_b64_tr_b16 v[{34+4*ks}:{35+4*ks}], v4 offset:{2048*ks+1024}")
    wait_cnt(cnt, C_ACT, act_target, 8, 9, sleep=1)
    stamp(2)
    BB = [96, 8]
    def bread(grp):
        base = BB[grp % 2]
        for k in range(4):
            ks = 4*grp + k
            e(f"ds_read_b128 v[{base+4*k}:{base+4*k+3}], v6 offset:{64*ks}")
    bread(0); bread(1)
    for grp in range(4):
        e(f"s_waitcnt lgkmcnt({4 if grp < 3 else 0})")
        base = BB[grp % 2]
        for k in range(4):
            ks = 4*grp + k
            cin = "0" if ks == 0 else "v[24:27]"
            e(f"v_mfma_f32_16x16x32_bf16 v[24:27], v[{32+4*ks}:{35+4*ks}], v[{base+4*k}:{base+4*k+3}], {cin}")
        if grp + 2 < 4: bread(grp + 2)
    nop(8)
fin_tag()
e(f"s_cmp_eq_u32 s{sU}, 0")
e("s_cbranch_scc1 L_S_JOB_Q")
gemv_job(S_E, S_ACT, S_CNT, 4)
e("v_cvt_pk_bf16_f32 v28, v24, v25")
e(f"v_mov_b32 v29, s{sTAG}")
e("v_cvt_pk_bf16_f32 v30, v26, v27")
e(f"v_mov_b32 v31, s{sTAG}")
e(f"s_lshl_b32 s{sT1}, s{sUI}, 7")
e(f"s_add_u32 s{sT1}, s{sT1}, {WS_M}")
e(f"s_lshl_b32 s{sT2}, s{sT4}, 6")
e(f"s_add_u32 s{sT1}, s{sT1}, s{sT2}")
e("v_lshlrev_b32 v8, 13, v3")
e("v_lshl_add_u32 v8, v2, 4, v8")
e("v_cmp_gt_u32 vcc, 4, v3")
e(f"s_and_saveexec_b64 s[{sM0}:{sM1}], vcc")
e(f"buffer_store_dwordx4 v[28:31], v8, {WS}, s{sT1} offen sc1")
e(f"s_mov_b64 exec, s[{sM0}:{sM1}]")
stamp(3)
lab("L_S_JOB_Q")
ljq = uid("JQ")
e(f"s_cmp_eq_u32 s{sQCU}, 0")
e(f"s_cbranch_scc1 {ljq}")
q_params()
line_mfma(S_ACT, S_CNT, 14)
e(f"s_sub_u32 s{sT4}, s{sWAVE}, 10")
wait_cnt(S_CNT, C_QD, 4, 8, 9, sleep=2)
lab(ljq)
if "bafterk" in OPT:
    e(f"s_sub_u32 s{sT5}, s{sNT}, 2")
    e(f"s_cmp_eq_u32 s{sQCU}, 1")
    e(f"s_cselect_b32 s{sT5}, 0, s{sT5}")
    wait_cnt(S_CNT, C_KL, f"s{sT5}", 8, 9, sleep=2)
e(f"s_lshr_b32 s{sT0}, s{sR}, 3")
e(f"s_lshl_b32 s{sT0}, s{sT0}, 14")
e(f"s_and_b32 s{sT1}, s{sR}, 7")
e(f"s_lshl_b32 s{sT1}, s{sT1}, 11")
e(f"s_add_u32 s{sT0}, s{sT0}, s{sT1}")
e(f"s_lshl_b32 s{sT1}, s{sT4}, 10")
e(f"s_add_u32 s{sT0}, s{sT0}, s{sT1}")
e(f"s_add_u32 s{sT0}, s{sT0}, {WS_Q}")
e("v_lshlrev_b32 v5, 4, v1")
e(f"v_add_u32 v5, s{sT0}, v5")
e("v_lshrrev_b32 v6, 5, v1")
e(f"s_lshl_b32 s{sT0}, s{sT4}, 1")
e(f"v_add_u32 v6, s{sT0}, v6")
e("v_mul_u32_u24 v6, 320, v6")
e("v_and_b32 v7, 31, v1")
e("v_lshl_add_u32 v6, v7, 3, v6")
e(f"v_add_u32 v6, {S_QL}, v6")
if "nopipe" in OPT:
    poll([(8, 5, 0)], sleep=SSL)
    e("v_mov_b32 v9, v10")
    e("ds_write_b64 v6, v[8:9]")
else:
    R = [100, 104, 108]
    lpl = uid("PP"); lpd = uid("PPD")
    e(f"s_mov_b32 s{sSPIN}, 0")
    for r_ in R:
        e(f"buffer_load_dwordx4 v[{r_}:{r_+3}], v5, {WS}, 0 offen sc1")
        if r_ != R[-1]: e(f"s_sleep {PSL}")
    lab(lpl)
    oks = []
    for r_ in R:
        ok = uid("OK"); oks.append(ok)
        e("s_waitcnt vmcnt(2)")
        e(f"v_cmp_eq_u32 vcc, s{sTAG}, v{r_+1}")
        e(f"v_cmp_eq_u32 s[{sM0}:{sM1}], s{sTAG}, v{r_+3}")
        e(f"s_and_b64 vcc, vcc, s[{sM0}:{sM1}]")
        e("s_cmp_eq_u64 vcc, exec")
        e(f"s_cbranch_scc1 {ok}")
        e(f"s_sleep {PSL}")
        e(f"buffer_load_dwordx4 v[{r_}:{r_+3}], v5, {WS}, 0 offen sc1")
    e(f"s_add_u32 s{sSPIN}, s{sSPIN}, 1")
    e(f"s_cmp_lt_u32 s{sSPIN}, {SPIN_MAX}")
    e(f"s_cbranch_scc1 {lpl}")
    e("s_branch L_END")
    for r_, ok in zip(R, oks):
        lab(ok)
        e(f"v_mov_b32 v8, v{r_}")
        e(f"v_mov_b32 v9, v{r_+2}")
        e(f"s_branch {lpd}")
    lab(lpd)
    e("ds_write_b64 v6, v[8:9]")
signal(S_CNT, C_Q, 24, 25)
stamp(5)
e("s_branch L_S_LATE")

def early_dma(ebase, scb0, scb1, stride):
    e("v_lshrrev_b32 v5, 2, v1")
    e(f"v_mul_u32_u24 v5, {stride}, v5")
    e("v_bfe_u32 v6, v1, 1, 1")
    e("v_bfe_u32 v7, v1, 4, 1")
    e("v_xor_b32 v6, v6, v7")
    e(f"v_mov_b32 v7, s{scb0}")
    e(f"v_mov_b32 v16, s{scb1}")
    e("v_cmp_eq_u32 vcc, 1, v6")
    nop(2)
    e("v_cndmask_b32 v7, v7, v16, vcc")
    e("v_add_u32 v5, v5, v7")
    e("v_and_b32 v6, 1, v1")
    e("v_lshl_add_u32 v5, v6, 4, v5")
    e(f"s_lshl_b32 s{sT1}, s{sT4}, 3")
    e(f"s_mul_i32 s{sT2}, s{sT1}, {16*stride}")
    e(f"s_lshl_b32 s{sT1}, s{sT1}, 10")
    e(f"s_add_u32 s{sT1}, s{sT1}, {ebase}")
    for k in range(8):
        e(f"s_mov_b32 m0, s{sT1}")
        e(f"s_add_u32 s{sT1}, s{sT1}, 1024")
        e(f"buffer_load_dwordx4 v5, {SC}, s{sT2} offen nt lds")
        e(f"s_add_u32 s{sT2}, s{sT2}, {16*stride}")
def silu_to_act(actbase, cnt):
    for i in range(4):
        unpack2(8+i, 16+2*i, 17+2*i)
    for i in range(8):
        silu_inplace(16+i, 24, 25)
    for i in range(4):
        e(f"v_cvt_pk_bf16_f32 v{8+i}, v{16+2*i}, v{17+2*i}")
    e("v_lshrrev_b32 v6, 2, v1")
    e("v_lshlrev_b32 v6, 6, v6")
    e("v_and_b32 v7, 1, v1")
    e("v_lshl_add_u32 v6, v7, 5, v6")
    e("v_bfe_u32 v7, v1, 1, 1")
    e("v_lshl_add_u32 v6, v7, 3, v6")
    e(f"s_mul_i32 s{sT0}, s{sT4}, 1088")
    e(f"s_add_u32 s{sT0}, s{sT0}, {actbase}")
    e(f"v_add_u32 v6, s{sT0}, v6")
    e("ds_write_b64 v6, v[8:9]")
    e("ds_write_b64 v6, v[10:11] offset:16")
    signal(cnt, C_ACT, 24, 25)

lab("L_S_STREAM")
c("streamer waves 12..15")
e("s_setprio 2")
e(f"s_sub_u32 s{sT4}, s{sWAVE}, 12")
if "bfirst" in OPT: e("s_barrier")
lnoe = uid("NOE")
e(f"s_cmp_eq_u32 s{sU}, 0")
e(f"s_cbranch_scc1 {lnoe}")
srd(28, P_C, 4096)
srd(20, P_WM, 512*3072*2)
e(f"s_lshl_b32 s{sT0}, s{sT4}, 10")
e("v_lshlrev_b32 v4, 4, v1")
e(f"buffer_load_dwordx4 v[8:11], v4, {SE}, s{sT0} offen")
e(f"s_lshl_b32 s{sCB0}, s{sUI}, 6")
e(f"s_add_u32 s{sCB0}, s{sCB0}, 2048")
e(f"s_add_u32 s{sCB1}, s{sCB0}, 32")
early_dma(S_E, sCB0, sCB1, 6144)
lab(lnoe)
if "bfirst" not in OPT: e("s_barrier")
load_tag()
srd(16, P_V, 4*8*8192*128*2)
srd(24, P_WO, 4096*512*2)
lafter = uid("LAF")
e(f"s_cmp_eq_u32 s{sU}, 0")
e(f"s_cbranch_scc1 {lafter}")
e("s_waitcnt vmcnt(8)")
silu_to_act(S_ACT, S_CNT)
lab(lafter)
lnq2 = uid("NOQ")
e(f"s_cmp_eq_u32 s{sQCU}, 0")
e(f"s_cbranch_scc1 {lnq2}")
srd(32, P_X, 4096)
e(f"s_lshl_b32 s{sT0}, s{sT4}, 10")
e("v_lshlrev_b32 v4, 3, v1")
e(f"buffer_load_dwordx2 v[8:9], v4, {SF}, s{sT0} offen")
e(f"buffer_load_dwordx2 v[10:11], v4, {SF}, s{sT0} offen offset:512")
e(f"s_lshl_b32 s{sT0}, s{sT4}, 12")
e(f"s_add_u32 s{sT0}, s{sT0}, {WS_SC}")
e("v_lshlrev_b32 v5, 4, v1")
e(f"v_add_u32 v5, s{sT0}, v5")
e("v_lshrrev_b32 v6, 3, v1")
e("v_lshlrev_b32 v6, 6, v6")
e("v_and_b32 v7, 3, v1")
e("v_lshl_add_u32 v6, v7, 4, v6")
e("v_bfe_u32 v7, v1, 2, 1")
e("v_lshl_add_u32 v6, v7, 3, v6")
e(f"s_mul_i32 s{sT0}, s{sT4}, 1088")
e(f"s_add_u32 s{sT0}, s{sT0}, {S_ACT}")
e(f"v_add_u32 v6, s{sT0}, v6")
e("s_waitcnt vmcnt(0) lgkmcnt(0)")
e(f"s_add_u32 s{sTAG}, s{sTAG}, 0x9E3779B9")
for i in range(4): unpack2(8+i, 16+2*i, 17+2*i)
layernorm8(16, 24)
wait_cnt(S_CNT, C_WQ, 8, 36, 37, sleep=1)
poll([(40, 5, 0), (44, 5, 1024), (48, 5, 2048), (52, 5, 3072)], sleep=SCS)
for (src, dst) in ((48, 56), (50, 58), (52, 60), (54, 62)): unpack2(src, dst, dst+1)
for i in range(0, 8, 2): e(f"v_pk_add_f32 v[{56+i}:{57+i}], v[{56+i}:{57+i}], 1.0 op_sel_hi:[1,0]")
for i in range(0, 8, 2): rnd2(56+i, 57+i, 24)
for i in range(0, 8, 2): e(f"v_pk_mul_f32 v[{16+i}:{17+i}], v[{16+i}:{17+i}], v[{56+i}:{57+i}]")
for i in range(0, 8, 2): rnd2(16+i, 17+i, 24)
for (src, dst) in ((40, 56), (42, 58), (44, 60), (46, 62)): unpack2(src, dst, dst+1)
for i in range(0, 8, 2): e(f"v_pk_add_f32 v[{16+i}:{17+i}], v[{16+i}:{17+i}], v[{56+i}:{57+i}]")
for i in range(4): e(f"v_cvt_pk_bf16_f32 v{8+i}, v{16+2*i}, v{17+2*i}")
e("ds_write_b64 v6, v[8:9]")
e("ds_write_b64 v6, v[10:11] offset:512")
signal(S_CNT, C_ACT, 24, 25)
stamp(6)
wait_cnt(S_CNT, C_QD, 4, 24, 25, sleep=1)
e(f"s_sub_u32 s{sTAG}, s{sTAG}, 0x9E3779B9")
lab(lnq2)
e("v_lshrrev_b32 v5, 1, v3")
e("v_xor_b32 v5, v5, v2")
e("v_lshlrev_b32 v5, 5, v5")
e("v_and_b32 v6, 1, v1")
e("v_lshl_add_u32 v5, v6, 4, v5")
e("v_lshl_add_u32 v7, v2, 10, v5")
e("v_lshl_add_u32 v5, v2, 8, v5")
e("v_xor_b32 v6, 128, v5")
e("v_xor_b32 v10, 128, v7")
e("s_waitcnt vmcnt(0)")
signal(S_CNT, C_EARLY, 24, 25)
fin_tag()
stamp(4)
e(f"s_sub_u32 s{sT5}, s{sNT}, {KOV}")
e(f"s_cmp_eq_u32 s{sQCU}, 1")
e(f"s_cselect_b32 s{sT5}, {QKW}, s{sT5}")
wait_cnt(S_CNT, C_KL, f"s{sT5}", 24, 25, sleep=1)
stamp(18)
def v_issue(sa):
    e(f"s_lshl_b32 s{sT1}, s{sa}, 13")
    e(f"s_add_u32 s{sT0}, s{sKVB}, s{sT1}")
    e(f"s_mov_b32 m0, s{sT1}")
    e(f"s_add_u32 s{sT1}, s{sT1}, 4096")
    for i in range(4):
        e(f"buffer_load_dwordx4 v{5 + ((i ^ (i >> 1)) & 1)}, {SB}, s{sT0} offen offset:{1024*i} nt lds")
    e(f"s_mov_b32 m0, s{sT1}")
    e(f"s_add_u32 s{sT0}, s{sT0}, 4096")
    for i in range(4):
        e(f"buffer_load_dwordx4 v{5 + ((i ^ (i >> 1)) & 1)}, {SB}, s{sT0} offen offset:{1024*i} nt lds")
if "vdeep" in OPT:
    ldone = uid("VD"); l2 = uid("V2"); l1 = uid("V1")
    e(f"s_mov_b32 s{sT5}, s{sT4}"); v_issue(sT5)
    e(f"s_add_u32 s{sT5}, s{sT4}, 4")
    e(f"s_cmp_lt_u32 s{sT5}, s{sNT}")
    e(f"s_cbranch_scc0 {l1}")
    v_issue(sT5)
    e(f"s_add_u32 s{sT5}, s{sT4}, 8")
    e(f"s_cmp_lt_u32 s{sT5}, s{sNT}")
    e(f"s_cbranch_scc0 {l2}")
    v_issue(sT5)
    e(f"s_lshl_b32 s{sT2}, 1, s{sT4}")
    for w in (16, 8, 0):
        e(f"s_waitcnt vmcnt({w})")
        signal_or(S_CNT, F_V, sT2, 24, 25)
        if w: e(f"s_lshl_b32 s{sT2}, s{sT2}, 4")
    e(f"s_branch {ldone}")
    lab(l2)
    e(f"s_lshl_b32 s{sT2}, 1, s{sT4}")
    for w in (8, 0):
        e(f"s_waitcnt vmcnt({w})")
        signal_or(S_CNT, F_V, sT2, 24, 25)
        if w: e(f"s_lshl_b32 s{sT2}, s{sT2}, 4")
    e(f"s_branch {ldone}")
    lab(l1)
    e(f"s_lshl_b32 s{sT2}, 1, s{sT4}")
    e("s_waitcnt vmcnt(0)")
    signal_or(S_CNT, F_V, sT2, 24, 25)
    lab(ldone)
else:
    e(f"s_mov_b32 s{sT5}, s{sT4}")
    lv = uid("V"); lvd = uid("VD")
    lab(lv)
    v_issue(sT5)
    e(f"s_lshl_b32 s{sT2}, 1, s{sT5}")
    e("s_waitcnt vmcnt(0)")
    signal_or(S_CNT, F_V, sT2, 24, 25)
    e(f"s_add_u32 s{sT5}, s{sT5}, 4")
    e(f"s_cmp_lt_u32 s{sT5}, s{sNT}")
    e(f"s_cbranch_scc1 {lv}")
stamp(19)
e(f"s_cmp_eq_u32 s{sLATE}, 0")
e("s_cbranch_scc1 L_END")
if "latepv" in OPT: wait_cnt(S_CNT, C_PVD, 8, 24, 25, sleep=2)
if "latep" in OPT: wait_cnt(S_CNT, C_P, f"s{sNT}", 24, 25, sleep=2)
e(f"s_lshl_b32 s{sT0}, s{sT4}, 3")
e(f"s_lshl_b32 s{sT1}, s{sT0}, 10")
e(f"s_add_u32 s{sT1}, s{sT1}, {S_L}")
e(f"s_lshl_b32 s{sT2}, s{sT0}, 12")
e(f"s_lshl_b32 s{sT3}, s{sH}, 17")
e(f"s_add_u32 s{sT2}, s{sT2}, s{sT3}")
e(f"s_lshl_b32 s{sT3}, s{sNQ}, 8")
e(f"s_add_u32 s{sT2}, s{sT2}, s{sT3}")
for k in range(8):
    e(f"s_mov_b32 m0, s{sT1}")
    e(f"s_add_u32 s{sT1}, s{sT1}, 1024")
    e(f"buffer_load_dwordx4 v{[7, 10][(k >> 1) & 1]}, {SD}, s{sT2} offen nt lds")
    e(f"s_add_u32 s{sT2}, s{sT2}, 4096")
e("s_waitcnt vmcnt(0)")
signal(S_CNT, C_LATE, 24, 25)

lab("L_S_LATE")
e(f"s_cmp_eq_u32 s{sLATE}, 0")
e("s_cbranch_scc1 L_END")
e("s_setprio 0")
e("v_mov_b32 v58, 0")
e(f"s_lshl_b32 s{sT6}, s{sWAVE}, 6"); e(f"v_add_u32 v4, s{sT6}, v1")
e(f"s_mul_i32 s{sT0}, s{sH}, {28*512}")
e(f"s_add_u32 s{sT0}, s{sT0}, {WS_OD}")
e(f"s_mul_i32 s{sT1}, s{sH}, {28*16}")
e(f"s_add_u32 s{sT1}, s{sT1}, {WS_OML - 896*16}")
e(f"s_cmp_lt_u32 s{sWAVE}, 14")
e(f"s_cselect_b32 s{sT0}, s{sT0}, s{sT1}")
e("v_lshlrev_b32 v5, 4, v4")
e(f"v_add_u32 v5, s{sT0}, v5")
e("v_lshrrev_b32 v6, 5, v4")
e(f"s_cmp_lt_u32 s{sWAVE}, 14")
lw = uid("LW"); lw2 = uid("LW")
e(f"s_cbranch_scc1 {lw}")
e("v_mov_b32 v6, v1")
lab(lw)
e("v_mul_u32_u24 v7, 37, v6")
e("v_lshrrev_b32 v7, 8, v7")
e("v_add_u32 v6, v6, v7")
e(f"s_cmp_lt_u32 s{sWAVE}, 14")
e(f"s_cbranch_scc1 {lw2}")
e("v_lshlrev_b32 v6, 3, v6")
e(f"v_add_u32 v6, {S_CML}, v6")
lw3 = uid("LW")
e(f"s_branch {lw3}")
lab(lw2)
e("v_mul_u32_u24 v6, 272, v6")
e("v_and_b32 v7, 31, v4")
e("v_lshl_add_u32 v6, v7, 3, v6")
e(f"v_add_u32 v6, {S_CG}, v6")
lab(lw3)
lnw = uid("LNW")
e(f"s_cmp_ge_u32 s{sWAVE}, 8")
e(f"s_cbranch_scc1 {lnw}")
wait_cnt(S_CNT, C_LATE, 4, 8, 9, sleep=1)
e("v_lshrrev_b32 v12, 2, v3")
e("v_lshl_add_u32 v13, v2, 3, v12")
e("v_and_b32 v14, 1, v2")
e("v_lshl_add_u32 v12, v14, 2, v12")
e(f"v_xor_b32 v12, s{sWAVE}, v12")
e("v_lshlrev_b32 v12, 5, v12")
e("v_lshl_add_u32 v12, v13, 8, v12")
e("v_and_b32 v14, 3, v1")
e("v_lshl_add_u32 v12, v14, 3, v12")
e(f"v_add_u32 v12, {S_L}, v12")
for ks in range(4):
    e(f"ds_read_b64_tr_b16 v[{32+4*ks}:{33+4*ks}], v12 offset:{8192*ks}")
    e(f"ds_read_b64_tr_b16 v[{34+4*ks}:{35+4*ks}], v12 offset:{8192*ks+1024}")
e("v_mul_u32_u24 v56, 272, v3")
e("v_lshl_add_u32 v56, v2, 4, v56")
e(f"v_add_u32 v56, {S_CG}, v56")
e("v_lshlrev_b32 v57, 3, v3")
e(f"v_add_u32 v57, {S_CML}, v57")
e(f"s_lshl_b32 s{sT0}, s{sNQ}, 3")
e(f"s_add_u32 s{sT0}, s{sT0}, s{sWAVE}")
e(f"s_lshl_b32 s{sT0}, s{sT0}, 5")
e(f"s_add_u32 s{sT0}, s{sT0}, s{sH}")
e(f"s_lshl_b32 s{sT0}, s{sT0}, 8")
e(f"s_add_u32 s{sT0}, s{sT0}, {WS_AP}")
e("v_bfe_u32 v58, v1, 3, 1")
e("v_lshlrev_b32 v58, 6, v58")
e("v_lshl_add_u32 v58, v2, 4, v58")
e("v_and_b32 v59, 1, v1")
e("v_lshl_add_u32 v58, v59, 7, v58")
e(f"v_add_u32 v58, s{sT0}, v58")
e(f"v_mov_b32 v61, s{sTAG}")
e(f"v_mov_b32 v63, s{sTAG}")
e("v_cmp_eq_u32 s[88:89], 1, v59")
e("v_and_b32 v14, 6, v1")
e("v_cmp_eq_u32 s[86:87], 0, v14")
lab(lnw)
lz = uid("LZ"); lzd = uid("LZD")
e(f"s_cmp_eq_u32 s{sWAVE}, 15")
e(f"s_cbranch_scc1 {lz}")
e("s_mov_b64 s[98:99], exec")
e(f"s_cmp_lg_u32 s{sWAVE}, 14")
lfull = uid("LF")
e(f"s_cbranch_scc1 {lfull}")
e("s_mov_b32 exec_lo, 0x0fffffff")
e("s_mov_b32 exec_hi, 0")
lab(lfull)
poll([(8, 5, 0)])
stamp(17)
e("v_mov_b32 v9, v10")
wait_cnt(S_CNT, C_PVD, 8, 12, 13, sleep=0)
e("ds_write_b64 v6, v[8:9]")
e("s_mov_b64 exec, s[98:99]")
e(f"s_branch {lzd}")
lab(lz)
wait_cnt(S_CNT, C_PVD, 8, 12, 13, sleep=1)
e("v_lshlrev_b32 v6, 3, v2")
e("v_add_u32 v6, 7, v6")
e("v_mul_u32_u24 v7, 272, v6")
e("v_lshl_add_u32 v7, v3, 4, v7")
e(f"v_add_u32 v7, {S_CG}, v7")
for i in range(4): e(f"v_mov_b32 v{12+i}, 0")
e("ds_write_b128 v7, v[12:15]")
e("v_lshlrev_b32 v6, 3, v6")
e(f"v_add_u32 v6, {S_CML}, v6")
e("v_mov_b32 v12, 0xff800000")
e("ds_write_b64 v6, v[12:13]")
lab(lzd)
e("s_waitcnt lgkmcnt(0)")
e("s_barrier")
e(f"s_cmp_ge_u32 s{sWAVE}, 8")
e("s_cbranch_scc1 L_END")
stamp(9)
e("ds_read_b64 v[8:9], v57")
e("ds_read_b64 v[10:11], v57 offset:128")
for ct in range(2):
    for ks in range(4):
        d = 64 + 16*ct + 4*ks
        e(f"ds_read_b128 v[{d}:{d+3}], v56 offset:{16*272*ct + 64*ks}")
e("s_waitcnt lgkmcnt(8)")
e("v_mov_b32 v12, v8")
e("v_mov_b32 v13, v10")
nop(1)
for ctl in ("quad_perm:[1,0,3,2]", "quad_perm:[2,3,0,1]", "row_half_mirror"):
    e(f"v_max_f32_dpp v12, v12, v12 {ctl} row_mask:0xf bank_mask:0xf")
    e(f"v_max_f32_dpp v13, v13, v13 {ctl} row_mask:0xf bank_mask:0xf")
    nop(1)
e("v_sub_f32 v8, v8, v12")
e("v_sub_f32 v10, v10, v13")
e("v_exp_f32 v8, v8")
e("v_exp_f32 v10, v10")
e("s_waitcnt lgkmcnt(0)")
for ks in range(4):
    for ct in range(2):
        d = 64 + 16*ct + 4*ks
        cin = "0" if ks == 0 else f"v[{16+4*ct}:{19+4*ct}]"
        e(f"v_mfma_f32_16x16x32_bf16 v[{16+4*ct}:{19+4*ct}], v[{32+4*ks}:{35+4*ks}], v[{d}:{d+3}], {cin}")
e("v_mul_f32 v8, v8, v9")
e("v_mul_f32 v10, v10, v11")
e("v_mov_b32 v12, v8")
e("v_mov_b32 v13, v10")
nop(1)
for ctl in ("quad_perm:[1,0,3,2]", "quad_perm:[2,3,0,1]", "row_half_mirror"):
    e(f"v_add_f32_dpp v12, v12, v12 {ctl} row_mask:0xf bank_mask:0xf")
    e(f"v_add_f32_dpp v13, v13, v13 {ctl} row_mask:0xf bank_mask:0xf")
    nop(1)
e("v_rcp_f32 v12, v12")
e("v_rcp_f32 v13, v13")
nop(1)
e("v_mul_f32 v8, v8, v12")
e("v_mul_f32 v10, v10, v13")
nop(1)
e("v_pk_mul_f32 v[16:17], v[16:17], v[8:9] op_sel_hi:[1,0]")
e("v_pk_mul_f32 v[18:19], v[18:19], v[8:9] op_sel_hi:[1,0]")
e("v_pk_mul_f32 v[20:21], v[20:21], v[10:11] op_sel_hi:[1,0]")
e("v_pk_mul_f32 v[22:23], v[22:23], v[10:11] op_sel_hi:[1,0]")
nop(1)
for ctl in ("quad_perm:[1,0,3,2]", "quad_perm:[2,3,0,1]", "row_half_mirror"):
    for i in range(8):
        e(f"v_add_f32_dpp v{16+i}, v{16+i}, v{16+i} {ctl} row_mask:0xf bank_mask:0xf")
for i in range(4): e(f"v_cndmask_b32 v{24+i}, v{16+i}, v{20+i}, s[88:89]")
e("v_cvt_pk_bf16_f32 v60, v24, v25")
e("v_cvt_pk_bf16_f32 v62, v26, v27")
e("s_mov_b64 exec, s[86:87]")
e(f"buffer_store_dwordx4 v[60:63], v58, {WS}, 0 offen sc1")
e("s_mov_b64 exec, -1")
stamp(10)
e("s_branch L_END")

lab("L_T")
c("T role: t = sR")
srd(20, P_WM, 512*3072*2)
srd(28, P_C, 4096)
srd(32, P_X, 4096)
srd(24, P_OUT, 4096)
e(f"s_cmp_ge_u32 s{sWAVE}, 12")
e("s_cbranch_scc1 L_T_STREAM")
lt1 = uid("T1")
e(f"s_cmp_lg_u32 s{sWAVE}, 10")
e(f"s_cbranch_scc1 {lt1}")
zero_counters(T_CNT)
lab(lt1)
e("s_barrier")
lt2 = uid("T2")
e(f"s_cmp_ge_u32 s{sR}, 16")
e(f"s_cbranch_scc1 {lt2}")
e(f"s_lshl_b32 s{sCB0}, s{sR}, 7")
e(f"s_lshl_b32 s{sCB1}, s{sR}, 8")
e(f"s_add_u32 s{sCB1}, s{sCB1}, {WS_SC}")
line_unit(T_ACT, T_CNT, 6144, 12)
e("s_branch L_T_AUX")
lab(lt2)
load_tag()
fin_tag()
lab("L_T_AUX")
C_UP, C_UPR, C_G, C_SC = C_KL, C_Q, C_MAX, C_P
C_GO, C_ARM, C_RED, C_XS = F_V, C_PVD, C_LATE, C_HD
C_DL = C_EXC
e(f"s_cmp_lt_u32 s{sWAVE}, 8")
e("s_cbranch_scc1 L_T_W")
lw9 = uid("W9"); lw8 = uid("W8")
e(f"s_cmp_lg_u32 s{sWAVE}, 9")
e(f"s_cbranch_scc1 {lw9}")
e("v_lshlrev_b32 v5, 8, v1")
e(f"v_add_u32 v5, {WS_SC}, v5")
poll_lanes(16, 8, 5, 4)
signal(T_CNT, C_SC, 10, 11)
if "tq" in OPT:
    e("v_lshlrev_b32 v5, 8, v1")
    e(f"v_add_u32 v5, {WS_Q}, v5")
    poll_lanes(64, 8, 5, 4)
    signal(T_CNT, C_GO, 10, 11)
e("s_branch L_T_MODS")
lab(lw9)
e(f"s_cmp_lg_u32 s{sWAVE}, 8")
e("s_cbranch_scc1 L_T_MODS")
e(f"s_getreg_b32 s{sT0}, hwreg(HW_REG_XCC_ID)")
e(f"s_and_b32 s{sT0}, s{sT0}, 0xf")
e(f"v_mov_b32 v8, s{sT0}")
e(f"v_mov_b32 v9, s{sTAG}")
e(f"s_lshl_b32 s{sT1}, s{sR}, 3")
e(f"s_add_u32 s{sT1}, s{sT1}, {WS_XCC}")
sentinel_store(sT1, 8)
e("s_branch L_T_MODS")
lab("L_T_W")
e(f"s_cmp_ge_u32 s{sR}, 28")
e("s_cbranch_scc1 L_T_WEND")
srd(12, P_WG, 512*1792*2)
srd(16, P_WU, 512*1792*2)
srd(20, P_WD, 1792*512*2)
def gu_dma(srdname, ldsbase):
    line_dma_voff(3584)
    e(f"s_lshl_b32 s{sT0}, s{sWAVE}, 3")
    e(f"s_mul_i32 s{sT2}, s{sT0}, {8*3584}")
    e(f"s_lshl_b32 s{sT3}, s{sR}, 7")
    e(f"s_add_u32 s{sT2}, s{sT2}, s{sT3}")
    e(f"s_lshl_b32 s{sT1}, s{sWAVE}, 13")
    e(f"s_add_u32 s{sT1}, s{sT1}, {ldsbase}")
    for k in range(8):
        e(f"s_mov_b32 m0, s{sT1}")
        e(f"s_add_u32 s{sT1}, s{sT1}, 1024")
        e(f"buffer_load_dwordx4 v4, {srdname}, s{sT2} offen nt lds")
        e(f"s_add_u32 s{sT2}, s{sT2}, {8*3584}")
def gu_frags(ldsbase):
    e(f"s_mov_b32 s{sT0}, {ldsbase}")
    tr_line_addr(4, sT0)
    for ks in range(16):
        e(f"ds_read_b64_tr_b16 v[{32+4*ks}:{33+4*ks}], v4 offset:{4096*ks}")
        e(f"ds_read_b64_tr_b16 v[{34+4*ks}:{35+4*ks}], v4 offset:{4096*ks+2048}")
    e("s_waitcnt lgkmcnt(0)")
wait_cnt(T_CNT, C_SC if ("tearly" in OPT and "tq" not in OPT) else C_GO, 1, 8, 9, sleep=2)
stamp(19)
gu_dma(SB, 65536)
lq = uid("NQD")
e(f"s_cmp_ge_u32 s{sR}, 16")
e(f"s_cbranch_scc1 {lq}")
wait_cnt(T_CNT, C_QD, 4, 8, 9, sleep=1)
lab(lq)
gu_dma(SA, 0)
e("s_waitcnt vmcnt(8)")
signal(T_CNT, C_UP, 8, 9)
lnu = uid("NU")
e(f"s_cmp_lt_u32 s{sWAVE}, 4")
e(f"s_cbranch_scc1 {lnu}")
wait_cnt(T_CNT, C_UP, 8, 8, 9, sleep=1)
gu_frags(65536)
signal(T_CNT, C_UPR, 8, 9)
lab(lnu)
wait_cnt(T_CNT, C_UPR, 4, 8, 9, sleep=1)
stamp(15)
e("v_lshlrev_b32 v4, 4, v1")
e(f"s_lshl_b32 s{sT0}, s{sWAVE}, 13")
e(f"s_add_u32 s{sT1}, s{sT0}, 65536")
e(f"s_lshl_b32 s{sT2}, s{sR}, 16")
e(f"s_add_u32 s{sT2}, s{sT2}, s{sT0}")
for k in range(8):
    e(f"v_xor_b32 v5, {32*k}, v4")
    e(f"s_mov_b32 m0, s{sT1}")
    e(f"s_add_u32 s{sT1}, s{sT1}, 1024")
    e(f"buffer_load_dwordx4 v5, {SC}, s{sT2} offen nt lds")
    e(f"s_add_u32 s{sT2}, s{sT2}, 1024")
e("s_waitcnt vmcnt(8)")
signal(T_CNT, C_G, 8, 9)
lng = uid("NG")
e(f"s_cmp_ge_u32 s{sWAVE}, 4")
e(f"s_cbranch_scc1 {lng}")
wait_cnt(T_CNT, C_G, 8, 8, 9, sleep=1)
gu_frags(0)
lab(lng)
e("s_waitcnt vmcnt(0)")
signal(T_CNT, C_DL, 8, 9)
stamp(1)
lab("L_T_WEND")
def down_frags():
    lsk = uid("DF")
    e(f"s_cmp_ge_u32 s{sR}, 28")
    e(f"s_cbranch_scc1 {lsk}")
    wait_cnt(T_CNT, C_DL, 8, 8, 9, sleep=1)
    e("v_lshrrev_b32 v10, 2, v3")
    e("v_lshl_add_u32 v10, v2, 2, v10")
    e("v_and_b32 v11, 7, v10")
    e(f"s_lshl_b32 s{sT0}, s{sWAVE}, 1")
    e(f"v_xor_b32 v11, s{sT0}, v11")
    e("v_lshlrev_b32 v11, 5, v11")
    e("v_lshl_add_u32 v11, v10, 10, v11")
    e("v_and_b32 v10, 3, v1")
    e("v_lshl_add_u32 v11, v10, 3, v11")
    e("v_add_u32 v11, 0x10000, v11")
    e("v_xor_b32 v10, 32, v11")
    for j in range(2):
        for ks in range(2):
            d = 96 + 8*j + 4*ks
            e(f"ds_read_b64_tr_b16 v[{d}:{d+1}], v{[11,10][j]} offset:{32768*ks}")
            e(f"ds_read_b64_tr_b16 v[{d+2}:{d+3}], v{[11,10][j]} offset:{32768*ks+16384}")
    e("s_waitcnt lgkmcnt(0)")
    lab(lsk)
wait_cnt(T_CNT, C_XS, 1, 8, 9, sleep=2)
e(f"v_mov_b32 v8, {T_SAME}")
e("ds_read_b32 v9, v8")
e("s_waitcnt lgkmcnt(0)")
e(f"v_readfirstlane_b32 s{sSAME}, v9")
down_frags()
def tail_addr():
    e(f"s_lshl_b32 s{sT6}, s{sWAVE}, 10")
    e("v_lshlrev_b32 v126, 4, v1")
    e(f"v_add_u32 v126, s{sT6}, v126")
    e(f"s_mul_i32 s{sT0}, s{sR}, {28*256}")
    e(f"s_add_u32 s{sT0}, s{sT0}, {WS_DP}")
    e(f"v_add_u32 v126, s{sT0}, v126")
    e(f"s_lshl_b32 s{sT0}, s{sWAVE}, 8")
    e("v_and_b32 v127, 31, v1")
    e("v_lshlrev_b32 v127, 3, v127")
    e(f"v_add_u32 v127, s{sT0}, v127")
    e(f"v_add_u32 v127, {T_RED}, v127")
tail_addr()
e("s_branch L_T_H2")
lab("L_T_STREAM")
e(f"s_sub_u32 s{sT4}, s{sWAVE}, 12")
e(f"s_lshl_b32 s{sT0}, s{sT4}, 10")
e("v_lshlrev_b32 v4, 4, v1")
e(f"buffer_load_dwordx4 v[8:11], v4, {SE}, s{sT0} offen")
e("s_barrier")
load_tag()
e("s_waitcnt vmcnt(0)")
silu_to_act(T_ACT, T_CNT)
fin_tag()
lab("L_T_MODS")
lb2 = uid("B2")
C_SC = C_P
wait_cnt(T_CNT, C_SC, 1, 4, 5, sleep=4)
lm1 = uid("LM"); lm2 = uid("LM")
e(f"s_cmp_ge_u32 s{sWAVE}, 12")
e(f"s_cbranch_scc1 {lm1}")
e(f"s_sub_u32 s{sT0}, s{sWAVE}, 8")
e(f"s_lshl_b32 s{sT0}, s{sT0}, 13")
e(f"s_add_u32 s{sT0}, s{sT0}, {WS_M}")
e("v_lshlrev_b32 v4, 4, v1")
e(f"v_add_u32 v4, s{sT0}, v4")
e("v_add_u32 v5, 2048, v4")
e("v_add_u32 v6, 4096, v4")
poll([(32, 5, 0), (36, 5, 1024), (40, 6, 0), (44, 6, 1024)], sleep=2)
for (src, dst) in ((32, 48), (36, 52)):
    unpack2(src, dst, dst+1); unpack2(src+2, dst+2, dst+3)
for (src, dst) in ((40, 56), (44, 60)):
    unpack2(src, dst, dst+1); unpack2(src+2, dst+2, dst+3)
for i in range(8):
    e(f"v_add_f32 v{56+i}, 1.0, v{56+i}")
for i in range(0, 8, 2):
    rnd2(56+i, 57+i, 4)
e(f"s_branch {lb2}")
lab(lm1)
e(f"s_cmp_lg_u32 s{sWAVE}, 12")
e(f"s_cbranch_scc1 {lm2}")
e("v_lshrrev_b32 v4, 2, v1")
e("v_lshlrev_b32 v4, 13, v4")
e("v_and_b32 v5, 3, v1")
e("v_lshl_add_u32 v4, v5, 4, v4")
e(f"s_lshl_b32 s{sT0}, s{sR}, 6")
e(f"s_add_u32 s{sT0}, s{sT0}, {WS_M}")
e(f"v_add_u32 v4, s{sT0}, v4")
e("v_add_u32 v6, 6144, v4")
e("v_lshrrev_b32 v7, 2, v1")
e("v_lshlrev_b32 v7, 10, v7")
e("v_lshl_add_u32 v7, v5, 3, v7")
e(f"s_lshl_b32 s{sT0}, s{sR}, 5")
e("s_mov_b64 s[98:99], exec")
e("s_mov_b64 exec, 0xffff")
e(f"buffer_load_dwordx2 v[44:45], v7, {SF}, s{sT0} offen")
poll([(32, 4, 0), (36, 6, 0)], sleep=2)
e("s_mov_b64 exec, s[98:99]")
unpack2(32, 48, 49); unpack2(34, 50, 51)
unpack2(36, 52, 53); unpack2(38, 54, 55)
unpack2(44, 56, 57); unpack2(45, 58, 59)
e(f"s_branch {lb2}")
lab(lm2)
e(f"s_cmp_lg_u32 s{sWAVE}, 13")
e(f"s_cbranch_scc1 {lb2}")
e("v_lshlrev_b32 v5, 4, v1")
e(f"v_add_u32 v5, {WS_XCC}, v5")
e("s_mov_b64 s[98:99], exec")
e("s_mov_b64 exec, 0xffff")
poll([(8, 5, 0)], sleep=4)
e(f"s_getreg_b32 s{sT0}, hwreg(HW_REG_XCC_ID)")
e(f"s_and_b32 s{sT0}, s{sT0}, 0xf")
e(f"v_cmp_eq_u32 vcc, s{sT0}, v8")
e(f"v_cmp_eq_u32 s[{sM0}:{sM1}], s{sT0}, v10")
e(f"s_and_b64 vcc, vcc, s[{sM0}:{sM1}]")
e("s_cmp_eq_u64 vcc, exec")
e(f"s_cselect_b32 s{sSAME}, 1, 0")
if "forcesc1" in OPT: e(f"s_mov_b32 s{sSAME}, 0")
e("s_mov_b64 exec, s[98:99]")
e(f"v_mov_b32 v8, {T_SAME}")
e(f"v_mov_b32 v9, s{sSAME}")
e("ds_write_b32 v8, v9")
signal(T_CNT, C_XS, 10, 11)
lab(lb2)
def read_same():
    e(f"v_mov_b32 v8, {T_SAME}")
    e("ds_read_b32 v9, v8")
    e("s_waitcnt lgkmcnt(0)")
    e(f"v_readfirstlane_b32 s{sSAME}, v9")
wait_cnt(T_CNT, C_XS, 1, 8, 9, sleep=2)
read_same()
tail_addr()
e(f"s_sub_u32 s{sT4}, s{sWAVE}, 8")
e(f"s_lshl_b32 s{sT6}, s{sT4}, 10")
e("v_lshlrev_b32 v124, 4, v1")
e(f"v_add_u32 v124, s{sT6}, v124")
e(f"s_lshl_b32 s{sT0}, s{sR}, 13")
e(f"s_add_u32 s{sT0}, s{sT0}, {WS_AP}")
e(f"v_add_u32 v124, s{sT0}, v124")
e(f"s_lshl_b32 s{sT0}, s{sT4}, 8")
e("v_lshlrev_b32 v125, 4, v3")
e(f"v_add_u32 v125, s{sT0}, v125")
e(f"v_add_u32 v125, {T_RED}, v125")
e(f"s_lshl_b32 s{sT6}, s{sT4}, 10")
e("v_lshlrev_b32 v4, 4, v1")
e(f"v_add_u32 v4, s{sT6}, v4")
e(f"s_mul_i32 s{sT0}, s{sR}, {28*256}")
e(f"s_add_u32 s{sT0}, s{sT0}, {WS_DP}")
e(f"buffer_load_dwordx4 v[8:11], v4, {WS}, s{sT0} offen nt")
e(f"s_lshl_b32 s{sT0}, s{sR}, 8")
e(f"s_add_u32 s{sT0}, s{sT0}, {WS_X2}")
e("v_lshlrev_b32 v4, 4, v1")
e("s_mov_b64 exec, 0xffff")
e(f"buffer_load_dwordx4 v[16:19], v4, {WS}, s{sT0} offen nt")
e("s_mov_b64 exec, -1")
e("s_waitcnt vmcnt(0)")
stamp(3)
larm = uid("ARM"); lal = uid("AL"); lgo = uid("GO"); lad = uid("AD")
e(f"s_cmp_lg_u32 s{sWAVE}, 8")
e(f"s_cbranch_scc1 {larm}")
e(f"s_mul_i32 s{sT0}, s{sR}, {28*16}")
e(f"s_add_u32 s{sT0}, s{sT0}, {WS_OML}")
e("v_lshlrev_b32 v4, 4, v1")
e(f"v_add_u32 v4, s{sT0}, v4")
e(f"s_mov_b32 s{sT5}, 0")
e(f"s_mov_b32 s{sSPIN}, 0")
e("s_mov_b32 exec_lo, 0x0fffffff")
e("s_mov_b32 exec_hi, 0")
lab(lal)
e(f"buffer_load_dwordx4 v[8:11], v4, {WS}, 0 offen sc1")
e("s_waitcnt vmcnt(0)")
e(f"v_cmp_eq_u32 vcc, s{sTAG}, v9")
e(f"v_cmp_eq_u32 s[{sM0}:{sM1}], s{sTAG}, v11")
e(f"s_and_b64 vcc, vcc, s[{sM0}:{sM1}]")
e("s_cmp_eq_u64 vcc, 0")
e(f"s_cbranch_scc1 {lgo}")
e(f"s_cmp_lg_u32 s{sT5}, 0")
e(f"s_cbranch_scc1 {lgo}")
e(f"s_mov_b32 s{sT5}, 1")
e("s_mov_b64 s[96:97], vcc")
signal(T_CNT, C_GO, 12, 13)
e("s_mov_b64 vcc, s[96:97]")
lab(lgo)
e("s_cmp_eq_u64 vcc, exec")
e(f"s_cbranch_scc1 {lad}")
e("s_sleep 3")
e(f"s_add_u32 s{sSPIN}, s{sSPIN}, 1")
e(f"s_cmp_lt_u32 s{sSPIN}, {SPIN_MAX}")
e(f"s_cbranch_scc1 {lal}")
e("s_branch L_END")
lab(lad)
e("s_mov_b64 exec, -1")
signal(T_CNT, C_ARM, 12, 13)
lab(larm)
wait_cnt(T_CNT, C_ARM, 1, 8, 9, sleep=1)
stamp(17)
poll([(8, 124, 0)])
stamp(9)
def red_write(addr):
    e("v_mov_b32 v12, v8")
    e("v_mov_b32 v13, v10")
    nop(2)
    e("v_permlane32_swap_b32 v8, v12")
    e("v_permlane32_swap_b32 v10, v13")
    nop(1)
    e("v_add_f32 v8, v8, v12")
    e("v_add_f32 v9, v10, v13")
    e("s_mov_b32 exec_hi, 0")
    e(f"ds_write_b64 v{addr}, v[8:9]")
    e("s_mov_b32 exec_hi, -1")
def red_read(nw):
    per = 4 if nw > 8 else 2
    e(f"v_lshlrev_b32 v4, {10 if per == 4 else 9}, v2")
    e("v_lshl_add_u32 v4, v3, 4, v4")
    e(f"v_add_u32 v4, {T_RED}, v4")
    for i in range(per):
        e(f"ds_read_b128 v[{8+4*i}:{11+4*i}], v4 offset:{256*i}")
def red_sum(nw):
    e("s_waitcnt lgkmcnt(0)")
    if nw == 7:
        e("v_cmp_eq_u32 vcc, 3, v2")
        nop(2)
        for i in range(12, 16): e(f"v_cndmask_b32 v{i}, v{i}, v30, vcc")
    e("v_pk_add_f32 v[8:9], v[8:9], v[12:13]")
    e("v_pk_add_f32 v[10:11], v[10:11], v[14:15]")
    if nw > 8:
        e("v_pk_add_f32 v[16:17], v[16:17], v[20:21]")
        e("v_pk_add_f32 v[18:19], v[18:19], v[22:23]")
        e("v_pk_add_f32 v[8:9], v[8:9], v[16:17]")
        e("v_pk_add_f32 v[10:11], v[10:11], v[18:19]")
    for sw in ("v_permlane16_swap_b32", "v_permlane32_swap_b32"):
        for i in range(4): e(f"v_mov_b32 v{12+i}, v{8+i}")
        nop(1)
        for i in range(4): e(f"{sw} v{8+i}, v{12+i}")
        nop(1)
        e("v_pk_add_f32 v[8:9], v[8:9], v[12:13]")
        e("v_pk_add_f32 v[10:11], v[10:11], v[14:15]")
def quad_reduce_write(addr):
    unpack2(8, 12, 13); unpack2(10, 14, 15)
    for sw in ("v_permlane16_swap_b32", "v_permlane32_swap_b32"):
        for i in range(4): e(f"v_mov_b32 v{16+i}, v{12+i}")
        nop(1)
        for i in range(4): e(f"{sw} v{12+i}, v{16+i}")
        nop(1)
        e("v_pk_add_f32 v[12:13], v[12:13], v[16:17]")
        e("v_pk_add_f32 v[14:15], v[14:15], v[18:19]")
    e("s_mov_b64 exec, 0xffff")
    e(f"ds_write_b128 v{addr}, v[12:15]")
    e("s_mov_b64 exec, -1")
quad_reduce_write(125)
signal(T_CNT, C_RED, 12, 13)
stamp(4)
lw12 = uid("W12"); lw12b = uid("W12B")
e(f"s_cmp_eq_u32 s{sWAVE}, 12")
e(f"s_cbranch_scc1 {lw12b}")
down_frags()
e(f"s_branch {lw12}")
lab(lw12b)
wait_cnt(T_CNT, C_RED, 8, 8, 9, sleep=0)
red_read(8)
e("v_lshrrev_b32 v4, 2, v1")
e("v_lshlrev_b32 v4, 11, v4")
e("v_and_b32 v5, 3, v1")
e("v_lshl_add_u32 v4, v5, 4, v4")
e(f"s_lshl_b32 s{sT0}, s{sR}, 6")
e(f"s_add_u32 s{sT0}, s{sT0}, {WS_X2}")
red_sum(8)
e(f"v_mov_b32 v17, s{sTAG}")
e(f"v_mov_b32 v19, s{sTAG}")
rnd2(8, 9, 12); rnd2(10, 11, 13)
e("v_pk_mul_f32 v[8:9], v[48:49], v[8:9]")
e("v_pk_mul_f32 v[10:11], v[50:51], v[10:11]")
rnd2(8, 9, 12); rnd2(10, 11, 13)
e("v_pk_add_f32 v[8:9], v[56:57], v[8:9]")
e("v_pk_add_f32 v[10:11], v[58:59], v[10:11]")
e("v_cvt_pk_bf16_f32 v16, v8, v9")
e("v_cvt_pk_bf16_f32 v18, v10, v11")
e("s_mov_b64 exec, 0xffff")
lsc = uid("SC"); lsd = uid("SD")
e(f"s_cmp_eq_u32 s{sSAME}, 1")
e(f"s_cbranch_scc0 {lsc}")
e(f"buffer_store_dwordx4 v[16:19], v4, {WS}, s{sT0} offen")
e(f"s_branch {lsd}")
lab(lsc)
e(f"buffer_store_dwordx4 v[16:19], v4, {WS}, s{sT0} offen sc1")
lab(lsd)
e("s_mov_b64 exec, -1")
unpack2(16, 60, 61); unpack2(18, 62, 63)
stamp(10)
down_frags()
lab(lw12)
lln = uid("LN")
e(f"s_cmp_lt_u32 s{sWAVE}, 8")
e(f"s_cbranch_scc1 {lln}")
e(f"s_cmp_ge_u32 s{sWAVE}, 12")
e(f"s_cbranch_scc1 {lln}")
e(f"s_sub_u32 s{sT4}, s{sWAVE}, 8")
e(f"s_lshl_b32 s{sT0}, s{sT4}, 11")
e(f"s_add_u32 s{sT0}, s{sT0}, {WS_X2}")
e("v_lshlrev_b32 v4, 4, v1")
e(f"v_add_u32 v4, s{sT0}, v4")
e("v_lshrrev_b32 v6, 3, v1")
e("v_lshlrev_b32 v6, 6, v6")
e("v_and_b32 v7, 3, v1")
e("v_lshl_add_u32 v6, v7, 4, v6")
e("v_bfe_u32 v7, v1, 2, 1")
e("v_lshl_add_u32 v6, v7, 3, v6")
e(f"s_mul_i32 s{sT0}, s{sT4}, 1088")
e(f"s_add_u32 s{sT0}, s{sT0}, {T_H2}")
e(f"v_add_u32 v6, s{sT0}, v6")
poll([(8, 4, 0), (12, 4, 1024)], intra=True)
stamp(11)
unpack2(8, 16, 17); unpack2(10, 18, 19); unpack2(12, 20, 21); unpack2(14, 22, 23)
layernorm8(16, 24)
for i in range(0, 8, 2):
    e(f"v_pk_mul_f32 v[{16+i}:{17+i}], v[{16+i}:{17+i}], v[{56+i}:{57+i}]")
for i in range(0, 8, 2):
    rnd2(16+i, 17+i, 24)
for i in range(0, 8, 2):
    e(f"v_pk_add_f32 v[{16+i}:{17+i}], v[{16+i}:{17+i}], v[{48+i}:{49+i}]")
for i in range(4):
    e(f"v_cvt_pk_bf16_f32 v{8+i}, v{16+2*i}, v{17+2*i}")
e("ds_write_b64 v6, v[8:9]")
e("ds_write_b64 v6, v[10:11] offset:512")
stamp(12)
lab(lln)
lab("L_T_H2")
e("v_and_b32 v5, 3, v1")
e("v_mul_u32_u24 v6, 1088, v5")
e("v_lshl_add_u32 v6, v2, 4, v6")
e(f"v_add_u32 v6, {T_H2}, v6")
e("v_lshlrev_b32 v4, 6, v3")
e("v_lshlrev_b32 v7, 6, v5")
e(f"s_cmp_lt_u32 s{sWAVE}, 4")
e(f"s_cselect_b32 s{sT1}, 1024, 0")
lgu = uid("GU")
e(f"s_cbranch_scc0 {lgu}")
e("v_mov_b32 v4, v7")
lab(lgu)
e("v_lshl_add_u32 v4, v2, 4, v4")
e(f"s_lshl_b32 s{sT0}, s{sWAVE}, 8")
e(f"s_add_u32 s{sT0}, s{sT0}, s{sT1}")
e(f"s_add_u32 s{sT0}, s{sT0}, {T_GU}")
e(f"v_add_u32 v4, s{sT0}, v4")
e("v_mul_u32_u24 v7, 192, v5")
e("v_lshl_add_u32 v7, v2, 4, v7")
e(f"v_add_u32 v124, {T_ACTL}, v7")
e(f"s_lshr_b32 s{sT0}, s{sWAVE}, 1")
e(f"s_lshl_b32 s{sT0}, s{sT0}, 6")
e(f"s_and_b32 s{sT1}, s{sWAVE}, 1")
e(f"s_lshl_b32 s{sT1}, s{sT1}, 3")
e(f"s_add_u32 s{sT0}, s{sT0}, s{sT1}")
e(f"s_add_u32 s{sT0}, s{sT0}, {T_ACTL}")
e(f"v_add_u32 v7, s{sT0}, v7")
e("v_lshlrev_b32 v125, 6, v5")
e("v_lshl_add_u32 v125, v2, 4, v125")
e("v_bfe_u32 v8, v1, 2, 1")
e("v_cmp_eq_u32 s[86:87], 1, v8")
e(f"v_mul_u32_u24 v9, {28*256}, v8")
e("v_add_u32 v125, v125, v9")
e("v_bfe_u32 v8, v1, 3, 1")
e("v_cmp_eq_u32 s[96:97], 0, v8")
e(f"s_lshl_b32 s{sT0}, s{sWAVE}, 1")
e(f"s_mul_i32 s{sT0}, s{sT0}, {28*256}")
e(f"s_lshl_b32 s{sT1}, s{sR}, 8")
e(f"s_add_u32 s{sT0}, s{sT0}, s{sT1}")
e(f"s_add_u32 s{sT0}, s{sT0}, {WS_DP}")
e(f"v_add_u32 v125, s{sT0}, v125")
e("s_waitcnt lgkmcnt(0)")
e("s_barrier")
stamp(5)
lfin = uid("FIN")
e(f"s_cmp_ge_u32 s{sR}, 28")
e(f"s_cbranch_scc1 {lfin}")
lg = uid("G")
e(f"s_cmp_ge_u32 s{sWAVE}, 8")
e(f"s_cbranch_scc1 {lg}")
def tbread(grp):
    base = [8, 112][grp % 2]
    for k in range(4):
        ks = 4*grp + k
        e(f"ds_read_b128 v[{base+4*k}:{base+4*k+3}], v6 offset:{64*ks}")
def tb_regs(grp, k):
    if grp % 2 == 0: return 8 + 4*k
    return [112, 116, 120, 28][k]
def tbread2(grp):
    for k in range(4):
        ks = 4*grp + k; b_ = tb_regs(grp, k)
        e(f"ds_read_b128 v[{b_}:{b_+3}], v6 offset:{64*ks}")
tbread2(0); tbread2(1)
for grp in range(4):
    e(f"s_waitcnt lgkmcnt({4 if grp < 3 else 0})")
    for k in range(4):
        ks = 4*grp + k; b_ = tb_regs(grp, k)
        cin = "0" if ks == 0 else "v[24:27]"
        e(f"v_mfma_f32_16x16x32_bf16 v[24:27], v[{32+4*ks}:{35+4*ks}], v[{b_}:{b_+3}], {cin}")
    if grp + 2 < 4: tbread2(grp + 2)
nop(8)
stamp(13)
rnd2(24, 25, 28); rnd2(26, 27, 29)
lup2 = uid("UPW")
e(f"s_cmp_ge_u32 s{sWAVE}, 4")
e(f"s_cbranch_scc1 {lup2}")
for i in range(4): e(f"v_mul_f32 v{16+i}, {NLOG2E:#x}, v{24+i}")
for i in range(4): e(f"v_exp_f32 v{16+i}, v{16+i}")
nop(1)
for i in range(4): e(f"v_add_f32 v{16+i}, 1.0, v{16+i}")
for i in range(4): e(f"v_rcp_f32 v{16+i}, v{16+i}")
nop(1)
e("v_pk_mul_f32 v[24:25], v[24:25], v[16:17]")
e("v_pk_mul_f32 v[26:27], v[26:27], v[18:19]")
rnd2(24, 25, 28); rnd2(26, 27, 29)
e(f"s_branch {lg}")
lab(lup2)
e("v_cmp_gt_u32 vcc, 4, v3")
e(f"s_and_saveexec_b64 s[{sM0}:{sM1}], vcc")
e("ds_write_b128 v4, v[24:27]")
e(f"s_mov_b64 exec, s[{sM0}:{sM1}]")
lab(lg)
e("s_waitcnt lgkmcnt(0)")
e("s_barrier")
la = uid("A")
e(f"s_cmp_ge_u32 s{sWAVE}, 4")
e(f"s_cbranch_scc1 {la}")
e("ds_read_b128 v[12:15], v4")
e("v_cmp_gt_u32 vcc, 4, v3")
e("s_waitcnt lgkmcnt(0)")
e("v_pk_mul_f32 v[24:25], v[24:25], v[12:13]")
e("v_pk_mul_f32 v[26:27], v[26:27], v[14:15]")
e("v_cvt_pk_bf16_f32 v8, v24, v25")
e("v_cvt_pk_bf16_f32 v9, v26, v27")
e(f"s_and_saveexec_b64 s[{sM0}:{sM1}], vcc")
e("ds_write_b64 v7, v[8:9]")
e(f"s_mov_b64 exec, s[{sM0}:{sM1}]")
lab(la)
e(f"v_mov_b32 v29, s{sTAG}")
e(f"v_mov_b32 v31, s{sTAG}")
e("s_waitcnt lgkmcnt(0)")
e("s_barrier")
stamp(6)
e("ds_read_b128 v[8:11], v124")
e("ds_read_b128 v[12:15], v124 offset:64")
e("s_waitcnt lgkmcnt(0)")
for ks in range(2):
    for j in range(2):
        d = 96 + 8*j + 4*ks
        cin = "0" if ks == 0 else f"v[{16+4*j}:{19+4*j}]"
        e(f"v_mfma_f32_16x16x32_bf16 v[{16+4*j}:{19+4*j}], v[{d}:{d+3}], v[{8+4*ks}:{11+4*ks}], {cin}")
nop(8)
for i in range(4): e(f"v_cndmask_b32 v{24+i}, v{16+i}, v{20+i}, s[86:87]")
e("v_cvt_pk_bf16_f32 v28, v24, v25")
e("v_cvt_pk_bf16_f32 v30, v26, v27")
e("s_mov_b64 exec, s[96:97]")
lsc = uid("SC"); lsd = uid("SD")
e(f"s_cmp_eq_u32 s{sSAME}, 1")
e(f"s_cbranch_scc0 {lsc}")
e(f"buffer_store_dwordx4 v[28:31], v125, {WS}, 0 offen")
e(f"s_branch {lsd}")
lab(lsc)
e(f"buffer_store_dwordx4 v[28:31], v125, {WS}, 0 offen sc1")
lab(lsd)
e("s_mov_b64 exec, -1")
stamp(7)
lab(lfin)
lf2 = uid("F2")
e(f"s_cmp_ge_u32 s{sWAVE}, 7")
e(f"s_cbranch_scc1 {lf2}")
e(f"s_lshl_b32 s{sT0}, s{sWAVE}, 8")
e("v_lshlrev_b32 v127, 4, v3")
e(f"v_add_u32 v127, s{sT0}, v127")
e(f"v_add_u32 v127, {T_RED}, v127")
poll([(8, 126, 0)], intra=True)
stamp(14)
unpack2(8, 12, 13); unpack2(10, 14, 15)
for sw in ("v_permlane16_swap_b32", "v_permlane32_swap_b32"):
    for i in range(4): e(f"v_mov_b32 v{16+i}, v{12+i}")
    nop(1)
    for i in range(4): e(f"{sw} v{12+i}, v{16+i}")
    nop(1)
    e("v_pk_add_f32 v[12:13], v[12:13], v[16:17]")
    e("v_pk_add_f32 v[14:15], v[14:15], v[18:19]")
e("s_mov_b64 exec, 0xffff")
e("ds_write_b128 v127, v[12:15]")
e("s_mov_b64 exec, -1")
lab(lf2)
e("s_waitcnt lgkmcnt(0)")
stamp(16)
e("s_barrier")
e(f"s_cmp_lg_u32 s{sWAVE}, 12")
e("s_cbranch_scc1 L_END")
red_read(8)
e("v_mov_b32 v30, 0")
e("v_lshrrev_b32 v4, 2, v1")
e("v_lshlrev_b32 v4, 10, v4")
e("v_and_b32 v5, 3, v1")
e("v_lshl_add_u32 v4, v5, 3, v4")
e(f"s_lshl_b32 s{sT0}, s{sR}, 5")
red_sum(7)
rnd2(8, 9, 12); rnd2(10, 11, 13)
e("v_pk_mul_f32 v[8:9], v[52:53], v[8:9]")
e("v_pk_mul_f32 v[10:11], v[54:55], v[10:11]")
rnd2(8, 9, 12); rnd2(10, 11, 13)
e("v_pk_add_f32 v[8:9], v[60:61], v[8:9]")
e("v_pk_add_f32 v[10:11], v[62:63], v[10:11]")
e("v_cvt_pk_bf16_f32 v16, v8, v9")
e("v_cvt_pk_bf16_f32 v17, v10, v11")
e("s_mov_b64 exec, 0xffff")
e(f"buffer_store_dwordx2 v[16:17], v4, {SD}, s{sT0} offen")
le = uid("EP")
e(f"s_cmp_lg_u32 s{sR}, 0")
e(f"s_cbranch_scc1 {le}")
e("s_mov_b64 exec, 1")
e(f"v_mov_b32 v8, s{sTAG}")
e(f"s_mov_b32 s{sT0}, {WS_EPOCH}")
e(f"buffer_store_dword v8, off, {WS}, s{sT0} sc1")
lab(le)
if "span" in OPT:
    e(f"s_mov_b32 s28, s{P_DBG}")
    e(f"s_and_b32 s29, s{P_DBG+1}, 0xffff")
    e("s_mov_b32 s30, 256")
    e("s_mov_b32 s31, 0x20000")
    e("s_waitcnt vmcnt(0)")
    e(f"s_memrealtime s[{sST0}:{sST1}]")
    e("s_waitcnt lgkmcnt(0)")
    e(f"v_mov_b32 v8, s{sST0}")
    e("s_mov_b64 exec, 1")
    e("buffer_atomic_umax v8, off, s[28:31], 0 offset:4")
stamp(8)
lab("L_END")
if DIAG:
    e("s_mov_b64 exec, -1")
    stamp(31)
    e("v_lshlrev_b32 v4, 2, v1")
    e("v_cmp_gt_u32 vcc, 32, v1")
    e(f"s_and_saveexec_b64 s[{sM0}:{sM1}], vcc")
    e(f"buffer_store_dword v0, v4, {WS}, s{sSTAMP} offen")
lab("L_EXIT")
e("s_endpgm")

L.append('.section .rodata,"a"')
L.append(".p2align 6")
L.append(f".amdhsa_kernel {NAME}_kernel")
L.append("  .amdhsa_next_free_vgpr 128")
L.append("  .amdhsa_next_free_sgpr 102")
L.append("  .amdhsa_accum_offset 128")
L.append("  .amdhsa_group_segment_fixed_size 0")
L.append("  .amdhsa_kernarg_size 112")
L.append("  .amdhsa_user_sgpr_count 2")
L.append("  .amdhsa_user_sgpr_kernarg_segment_ptr 1")
L.append("  .amdhsa_system_sgpr_workgroup_id_x 1")
L.append("  .amdhsa_float_denorm_mode_32 3")
L.append(".end_amdhsa_kernel")

open(sys.argv[1], "w").write("\n".join(x for x in L if x is not None) + "\n")
```

```python
import sys

DIAG = int(sys.argv[2]) if len(sys.argv) > 2 else 0
import os
OPT = set(os.environ.get("OPT", "").split(","))
NAME = "adaLN_cond__sliding_block_cached__swiglu_ffn__decode"

L = []
def e(s): L.append("    " + s)
def lab(s): L.append(s + ":")
def c(s): L.append("    ; " + s)
def nop(n):
    while n > 0:
        k = min(n, 16); e(f"s_nop {k-1}"); n -= k
_uid = [0]
def uid(p):
    _uid[0] += 1
    return f"{p}_{_uid[0]}"

WS_EPOCH = 0
WS_XCC   = 0x100
WS_HS    = 0x200
WS_QS    = 0x400
WS_MS    = 0xC00
WS_H     = 0x1000
WS_X2    = 0x3000
WS_M     = 0x8000
WS_Q     = 0x10000
WS_OML   = 0x20000
WS_OD    = 0x40000
WS_AP    = 0xC0000
WS_DP    = 0x140000
WS_SC    = 0x1B0000
WS_STAMP = 0x200000
WS_SIZE  = 0x300000

S_V    = 0
S_E    = 81920
S_L    = 114688
S_MISC = 147456
S_ACT  = S_MISC
S_QL   = S_ACT + 4352
S_XN   = S_QL + 1280
S_EXC  = S_XN + 256
S_MAXB = S_EXC + 256
S_PB   = S_MAXB + 256
S_CNT  = S_PB + 2560
S_CG   = S_V
S_CML  = S_V + 8704
LDS_BYTES = 163840
C_EARLY, C_ACT, C_EXC, C_XN, C_KL, C_Q, C_MAX, C_P, F_V, C_PVD, C_LATE, C_HD, C_WQ, C_QD = range(14)

T_W    = 0
T_WQ   = 0
T_HST  = 122880
T_HM   = 155648
T_ACT  = T_HM
T_XN   = T_ACT + 4352
T_EXC  = T_XN + 256
T_CNT  = T_EXC + 256
T_SAME = T_CNT + 64
T_HL   = 131072 + 16384
T_MISC = 131072
T_ACC1 = T_MISC
T_ACC2 = T_ACC1 + 256
T_H2   = T_ACC2 + 256
T_GU   = T_H2 + 4352
T_ACTL = T_GU + 2048
T_RED  = T_ACTL + 768

sWAVE, sTAG, sX8, sR, sS = 3, 4, 5, 6, 7
WS, SA, SB, SC, SD, SE, SF = "s[8:11]", "s[12:15]", "s[16:19]", "s[20:23]", "s[24:27]", "s[28:31]", "s[32:35]"
P_X, P_K, P_V, P_WQ, P_WO, P_BX, P_WG, P_WU, P_WD, P_C, P_WM, P_OUT, P_DBG, P_WS = [36 + 2*i for i in range(14)]
sT0, sT1, sT2, sT3, sT4, sT5, sT6, sT7 = 64, 65, 66, 67, 68, 69, 70, 71
sM0, sM1 = 72, 73
sM2, sM3 = 74, 75
sSTAMP = 76
sKV = 77
sNT = 78
sU = 79
sUI = 80
sLATE = 81
sSPIN = 82
sSTRIDE = 83
sCB0, sCB1 = 84, 85
sP, sJ = 86, 87
sSAME = 88
sST0, sST1 = 90, 91
sH = 92; sNQ = 93; sQCU = 95; sKDONE = 100

SPIN_MAX = 200000
LSPIN_MAX = 4000000

def csel2(dst, a, b):
    e(f"s_mov_b32 s{dst}, {b}")
    e(f"s_cselect_b32 s{dst}, {a}, s{dst}")

def srd(dst0, ptr, nbytes):
    e(f"s_mov_b32 s{dst0}, s{ptr}")
    e(f"s_and_b32 s{dst0+1}, s{ptr+1}, 0xffff")
    e(f"s_mov_b32 s{dst0+2}, {nbytes}")
    e(f"s_mov_b32 s{dst0+3}, 0x20000")

def stamp(k, wave=None):
    if not DIAG: return
    l = None
    if wave is not None:
        l = uid("ST"); e(f"s_cmp_lg_u32 s{sWAVE}, {wave}"); e(f"s_cbranch_scc1 {l}")
    e(f"s_memrealtime s[{sST0}:{sST1}]")
    e("s_waitcnt lgkmcnt(0)")
    e(f"v_writelane_b32 v0, s{sST0}, {k}")
    if l: lab(l)

def signal(cnt_base, k, vt0, vt1):
    e(f"v_mov_b32 v{vt0}, {cnt_base + 4*k}")
    e(f"v_mov_b32 v{vt1}, 1")
    e(f"s_mov_b64 s[{sM2}:{sM3}], exec")
    e("s_mov_b64 exec, 1")
    e(f"ds_add_u32 v{vt0}, v{vt1}")
    e(f"s_mov_b64 exec, s[{sM2}:{sM3}]")

def wait_cnt(cnt_base, k, target, vt0, vt1, sleep=1):
    l = uid("W"); d = uid("WD")
    e(f"v_mov_b32 v{vt0}, {cnt_base + 4*k}")
    e(f"s_mov_b32 s{sSPIN}, 0")
    lab(l)
    e(f"ds_read_b32 v{vt1}, v{vt0}")
    e("s_waitcnt lgkmcnt(0)")
    e(f"v_readfirstlane_b32 s{sT7}, v{vt1}")
    e(f"s_cmp_ge_u32 s{sT7}, {target}")
    e(f"s_cbranch_scc1 {d}")
    if sleep: e(f"s_sleep {sleep}")
    e(f"s_add_u32 s{sSPIN}, s{sSPIN}, 1")
    e(f"s_cmp_lt_u32 s{sSPIN}, {LSPIN_MAX}")
    e(f"s_cbranch_scc1 {l}")
    e("s_branch L_END")
    lab(d)

def wait_mask(cnt_base, k, need, vt0, vt1, sleep=0):
    l = uid("W"); d = uid("WD")
    e(f"v_mov_b32 v{vt0}, {cnt_base + 4*k}")
    e(f"s_mov_b32 s{sSPIN}, 0")
    lab(l)
    e(f"ds_read_b32 v{vt1}, v{vt0}")
    e("s_waitcnt lgkmcnt(0)")
    e(f"v_readfirstlane_b32 s{sT7}, v{vt1}")
    e(f"s_and_b32 s{sT7}, s{sT7}, {need}")
    e(f"s_cmp_eq_u32 s{sT7}, {need}")
    e(f"s_cbranch_scc1 {d}")
    if sleep: e(f"s_sleep {sleep}")
    e(f"s_add_u32 s{sSPIN}, s{sSPIN}, 1")
    e(f"s_cmp_lt_u32 s{sSPIN}, {LSPIN_MAX}")
    e(f"s_cbranch_scc1 {l}")
    e("s_branch L_END")
    lab(d)

def signal_or(cnt_base, k, sbit, vt0, vt1):
    e(f"v_mov_b32 v{vt0}, {cnt_base + 4*k}")
    e(f"v_mov_b32 v{vt1}, s{sbit}")
    e(f"s_mov_b64 s[{sM2}:{sM3}], exec")
    e("s_mov_b64 exec, 1")
    e(f"ds_or_b32 v{vt0}, v{vt1}")
    e(f"s_mov_b64 exec, s[{sM2}:{sM3}]")

def poll(loads, sleep=0, intra=False, pre=0):
    d = uid("PD")
    if pre: e(f"s_sleep {pre}")
    e(f"s_mov_b32 s{sSPIN}, 0")
    flavs = ["sc1"]
    lsc = None
    if intra:
        lsc = uid("PS")
        e(f"s_cmp_eq_u32 s{sSAME}, 1")
        e(f"s_cbranch_scc0 {lsc}")
        flavs = ["nt", "sc1"]
    for fi, fl in enumerate(flavs):
        if intra and fi == 1: lab(lsc)
        l = uid("P")
        lab(l)
        for (dst, voff, imm) in loads:
            e(f"buffer_load_dwordx4 v[{dst}:{dst+3}], v{voff}, {WS}, 0 offen offset:{imm} {fl}")
        e("s_waitcnt vmcnt(0)")
        first = True
        for (dst, voff, imm) in loads:
            if first:
                e(f"v_cmp_eq_u32 vcc, s{sTAG}, v{dst+1}")
                first = False
            else:
                e(f"v_cmp_eq_u32 s[{sM0}:{sM1}], s{sTAG}, v{dst+1}")
                e(f"s_and_b64 vcc, vcc, s[{sM0}:{sM1}]")
            e(f"v_cmp_eq_u32 s[{sM0}:{sM1}], s{sTAG}, v{dst+3}")
            e(f"s_and_b64 vcc, vcc, s[{sM0}:{sM1}]")
        e("s_cmp_eq_u64 vcc, exec")
        e(f"s_cbranch_scc1 {d}")
        if sleep: e(f"s_sleep {sleep}")
        e(f"s_add_u32 s{sSPIN}, s{sSPIN}, 1")
        e(f"s_cmp_lt_u32 s{sSPIN}, {SPIN_MAX}")
        e(f"s_cbranch_scc1 {l}")
        e("s_branch L_END")
    lab(d)

def load_tag():
    e(f"s_load_dword s{sTAG}, s[{P_WS}:{P_WS+1}], {WS_EPOCH}")

def fin_tag():
    e("s_waitcnt lgkmcnt(0)")
    e(f"s_add_u32 s{sTAG}, s{sTAG}, 0x9E3779B9")

def sentinel_store(soff_sgpr, vpair):
    e(f"s_mov_b64 s[{sM2}:{sM3}], exec")
    e("s_mov_b64 exec, 1")
    e(f"buffer_store_dwordx2 v[{vpair}:{vpair+1}], off, {WS}, s{soff_sgpr} sc1")
    e(f"s_mov_b64 exec, s[{sM2}:{sM3}]")

def poll_lanes(nlanes, dst, voff, sleep):
    e("s_mov_b64 s[98:99], exec")
    if nlanes < 64:
        m = (1 << nlanes) - 1
        e(f"s_mov_b32 exec_lo, {m & 0xffffffff:#x}")
        e(f"s_mov_b32 exec_hi, {m >> 32:#x}")
    poll([(dst, voff, 0)], sleep=sleep)
    e("s_mov_b64 exec, s[98:99]")

def allreduce2(va, vb, t0, t1, op="add"):
    ins = f"v_{op}_f32"
    nop(2)
    for ctl in ("quad_perm:[1,0,3,2]", "quad_perm:[2,3,0,1]", "row_half_mirror", "row_mirror"):
        e(f"{ins}_dpp v{va}, v{va}, v{va} {ctl} row_mask:0xf bank_mask:0xf")
        e(f"{ins}_dpp v{vb}, v{vb}, v{vb} {ctl} row_mask:0xf bank_mask:0xf")
        nop(1)
    for sw in ("v_permlane16_swap_b32", "v_permlane32_swap_b32"):
        e(f"v_mov_b32 v{t0}, v{va}")
        e(f"v_mov_b32 v{t1}, v{vb}")
        nop(2)
        e(f"{sw} v{va}, v{t0}")
        e(f"{sw} v{vb}, v{t1}")
        nop(1)
        e(f"{ins} v{va}, v{va}, v{t0}")
        e(f"{ins} v{vb}, v{vb}, v{t1}")

def rnd2(a, b, t):
    e(f"v_cvt_pk_bf16_f32 v{t}, v{a}, v{b}")
    e(f"v_lshlrev_b32 v{a}, 16, v{t}")
    e(f"v_and_b32 v{b}, 0xffff0000, v{t}")

def unpack2(src, lo, hi):
    e(f"v_lshlrev_b32 v{lo}, 16, v{src}")
    e(f"v_and_b32 v{hi}, 0xffff0000, v{src}")

LOG2E = 0x3fb8aa3b
NLOG2E = 0xbfb8aa3b
SCALE = 0x3db504f3
EPS = 0x3727c5ac
INV512 = 0x3b000000

def layernorm8(x0, t):
    d = t + 4
    a, b, t0, t1 = t, t+1, t+2, t+3
    e(f"v_readfirstlane_b32 s{sT0}, v{x0}")
    e(f"v_readfirstlane_b32 s{sT1}, v{x0}")
    nop(2)
    for i in range(0, 8, 2):
        e(f"v_pk_add_f32 v[{d+i}:{d+i+1}], v[{x0+i}:{x0+i+1}], s[{sT0}:{sT1}] neg_lo:[0,1] neg_hi:[0,1]")
    e(f"v_pk_add_f32 v[{t0}:{t1}], v[{d}:{d+1}], v[{d+2}:{d+3}]")
    e(f"v_pk_mul_f32 v[{a}:{b}], v[{d}:{d+1}], v[{d}:{d+1}]")
    e(f"v_pk_add_f32 v[{t0}:{t1}], v[{t0}:{t1}], v[{d+4}:{d+5}]")
    e(f"v_pk_fma_f32 v[{a}:{b}], v[{d+2}:{d+3}], v[{d+2}:{d+3}], v[{a}:{b}]")
    e(f"v_pk_add_f32 v[{t0}:{t1}], v[{t0}:{t1}], v[{d+6}:{d+7}]")
    e(f"v_pk_fma_f32 v[{a}:{b}], v[{d+4}:{d+5}], v[{d+4}:{d+5}], v[{a}:{b}]")
    e(f"v_pk_fma_f32 v[{a}:{b}], v[{d+6}:{d+7}], v[{d+6}:{d+7}], v[{a}:{b}]")
    e(f"v_add_f32 v{b}, v{a}, v{b}")
    e(f"v_add_f32 v{a}, v{t0}, v{t1}")
    allreduce2(a, b, t0, t1)
    e(f"v_mul_f32 v{a}, {INV512:#x}, v{a}")
    e(f"v_mul_f32 v{b}, {INV512:#x}, v{b}")
    e(f"v_fma_f32 v{b}, -v{a}, v{a}, v{b}")
    e(f"v_add_f32 v{a}, s{sT0}, v{a}")
    e(f"v_max_f32 v{b}, 0, v{b}")
    rnd2(a, b, t0)
    e(f"v_add_f32 v{b}, {EPS:#x}, v{b}")
    e(f"v_cvt_pk_bf16_f32 v{t0}, v{b}, v{b}")
    e(f"v_lshlrev_b32 v{b}, 16, v{t0}")
    e(f"v_sqrt_f32 v{b}, v{b}")
    nop(1)
    for i in range(0, 8, 2):
        e(f"v_pk_add_f32 v[{x0+i}:{x0+i+1}], v[{x0+i}:{x0+i+1}], v[{a}:{b}] op_sel_hi:[1,0] neg_lo:[0,1] neg_hi:[0,1]")
    e(f"v_cvt_pk_bf16_f32 v{t0}, v{b}, v{b}")
    e(f"v_lshlrev_b32 v{b}, 16, v{t0}")
    e(f"v_rcp_f32 v{t0}, v{b}")
    for i in range(0, 8, 2):
        rnd2(x0+i, x0+i+1, d)
    for i in range(0, 8, 2):
        e(f"v_pk_mul_f32 v[{x0+i}:{x0+i+1}], v[{x0+i}:{x0+i+1}], v[{t0}:{t1}] op_sel_hi:[1,0]")
    for i in range(0, 8, 2):
        rnd2(x0+i, x0+i+1, d)

def silu_inplace(x, t0, t1):
    e(f"v_mul_f32 v{t0}, {NLOG2E:#x}, v{x}")
    e(f"v_exp_f32 v{t0}, v{t0}")
    nop(1)
    e(f"v_add_f32 v{t0}, 1.0, v{t0}")
    e(f"v_rcp_f32 v{t1}, v{t0}")
    nop(1)
    e(f"v_mul_f32 v{x}, v{x}, v{t1}")


SSL = int(os.environ.get("SSL", "2"))
TSL = int(os.environ.get("TSL", "4"))
ENT = "" if "Enont" in OPT else " nt"
SCS = int(os.environ.get("SCS", "1"))
EK = int(os.environ.get("EK", "3"))
PSL = int(os.environ.get("PSL", "8"))
QKW = int(os.environ.get("QKW", "0"))
WK = int(os.environ.get("WK", "4"))
KOV = int(os.environ.get("KOV", "2"))
hdr = open("cdna_kernels/" + NAME + ".s.ref").read().split("\n")
for ln in hdr:
    if ln.startswith("; Override") or ln.startswith("; grid=") or ln.startswith("; @launch"): continue
    if ln.startswith(";"): L.append(ln)
    else: break
L.append(f"; @launch grid=(256,1,1) block=(1024,1,1) lds={LDS_BYTES}")
for ln in """
 One persistent launch, one 16-wave workgroup per CU (160 KiB LDS), generated by a hand-written script.
 Roles by workgroup id w (x8 = w & 7, r = w >> 3); ids >= 256 exit:
   x8 < 7  "S": attention for (batch, kv head) pair r, key split x8 of the 2048-key window. K goes to registers in
           MFMA layout, V is staged in LDS by LDS-DMA and read transposed. Scores are rounded like the reference,
           softmax uses the true max of the split, splits are merged with their (max, sum). Extra duties by
           d = (x8 - r) mod 7: q projection (d = 0, 3), adaLN rows ga/sb/cb/gb (d = 1, 4), wo slice (d = 1, 2, 4, 5).
   x8 == 7 "T": sa/ca rows of the modulation, then x2 = x + ga*attn, LayerNorm, SwiGLU FFN and the output.
 Hand-offs between workgroups are 8-byte granules {payload, tag} in d_ws; tag = (word 0 of d_ws at entry) + constant,
 and the last workgroup stores the tag back, so granules of earlier launches never match. Cross-XCD granules use
 sc1 stores and loads; the T group checks at run time (XCC ids exchanged through d_ws) whether it sits on one XCD
 and only then uses L2-local stores/loads among its own members, otherwise sc1. All spin loops are bounded.
""".strip("\n").split("\n"):
    L.append(";" + ln)
L.append('.amdgcn_target "amdgcn-amd-amdhsa--gfx950"')
L.append(".text")
L.append(f".globl {NAME}_kernel")
L.append(".p2align 8")
L.append(f".type {NAME}_kernel,@function")
lab(f"{NAME}_kernel")

sKVB = 94
sEX0, sEX1 = 96, 97

e("s_cmp_ge_u32 s2, 256")
e("s_cbranch_scc1 L_EXIT")
e("s_load_dwordx16 s[36:51], s[0:1], 0")
e("s_load_dwordx8 s[52:59], s[0:1], 64")
e("s_load_dwordx4 s[60:63], s[0:1], 96")
e("v_lshrrev_b32 v2, 6, v0")
e("v_and_b32 v1, 63, v0")
e(f"v_readfirstlane_b32 s{sWAVE}, v2")
e(f"s_and_b32 s{sX8}, s2, 7")
e(f"s_lshr_b32 s{sR}, s2, 3")
e("v_lshrrev_b32 v2, 4, v1")
e("v_and_b32 v3, 15, v1")
e(f"s_lshl_b32 s{sSTAMP}, s2, 4")
e(f"s_add_u32 s{sSTAMP}, s{sSTAMP}, s{sWAVE}")
e(f"s_lshl_b32 s{sSTAMP}, s{sSTAMP}, 7")
e(f"s_add_u32 s{sSTAMP}, s{sSTAMP}, {WS_STAMP}")
if DIAG: e("v_mov_b32 v0, 0")
stamp(0)
e("s_waitcnt lgkmcnt(0)")
srd(8, P_WS, WS_SIZE)
if "span" in OPT:
    lsp = uid("SP")
    e(f"s_cmp_lg_u32 s{sWAVE}, 0")
    e(f"s_cbranch_scc1 {lsp}")
    e(f"s_mov_b32 s28, s{P_DBG}")
    e(f"s_and_b32 s29, s{P_DBG+1}, 0xffff")
    e("s_mov_b32 s30, 256")
    e("s_mov_b32 s31, 0x20000")
    e(f"s_memrealtime s[{sST0}:{sST1}]")
    e("s_waitcnt lgkmcnt(0)")
    e(f"s_not_b32 s{sST0}, s{sST0}")
    e(f"v_mov_b32 v8, s{sST0}")
    e("s_mov_b64 exec, 1")
    e("buffer_atomic_umax v8, off, s[28:31], 0")
    e("s_mov_b64 exec, -1")
    lab(lsp)
e(f"s_cmp_eq_u32 s{sX8}, 7")
e("s_cbranch_scc1 L_T")

def line_dma_voff(stride):
    e("v_lshrrev_b32 v4, 3, v1")
    e(f"v_mul_u32_u24 v4, {stride}, v4")
    e("v_bfe_u32 v5, v1, 1, 2")
    e("v_bfe_u32 v6, v1, 4, 2")
    e("v_xor_b32 v5, v5, v6")
    e("v_lshl_add_u32 v4, v5, 5, v4")
    e("v_and_b32 v5, 1, v1")
    e("v_lshl_add_u32 v4, v5, 4, v4")
def tr_line_addr(dst, base_sgpr):
    e("v_lshrrev_b32 v4, 2, v3")
    e("v_lshl_add_u32 v4, v2, 2, v4")
    e("v_bfe_u32 v5, v4, 1, 2")
    e(f"s_and_b32 s{sT1}, s{sWAVE}, 3")
    e(f"v_xor_b32 v5, s{sT1}, v5")
    e("v_lshlrev_b32 v4, 7, v4")
    e("v_lshl_add_u32 v4, v5, 5, v4")
    e("v_and_b32 v5, 3, v1")
    e("v_lshl_add_u32 v4, v5, 3, v4")
    e(f"v_add_u32 v{dst}, s{base_sgpr}, v4")
def mfma16(vaddr):
    def regs(grp, k):
        if grp % 2 == 0: return 8 + 4*k
        return [112, 116, 120, 28][k]
    def rd(grp):
        for k in range(4):
            b_ = regs(grp, k)
            e(f"ds_read_b128 v[{b_}:{b_+3}], v{vaddr} offset:{64*(4*grp+k)}")
    rd(0); rd(1)
    for grp in range(4):
        e(f"s_waitcnt lgkmcnt({4 if grp < 3 else 0})")
        for k in range(4):
            ks = 4*grp + k; b_ = regs(grp, k)
            cin = "0" if ks == 0 else "v[24:27]"
            e(f"v_mfma_f32_16x16x32_bf16 v[24:27], v[{32+4*ks}:{35+4*ks}], v[{b_}:{b_+3}], {cin}")
        if grp + 2 < 4: rd(grp + 2)
    nop(8)
def line_dma(stride):
    line_dma_voff(stride)
    e(f"s_lshl_b32 s{sT1}, s{sWAVE}, 13")
    e(f"s_mul_i32 s{sT2}, s{sWAVE}, {64*stride}")
    e(f"s_add_u32 s{sT2}, s{sT2}, s{sCB0}")
    for k in range(8):
        e(f"s_mov_b32 m0, s{sT1}")
        e(f"s_add_u32 s{sT1}, s{sT1}, 1024")
        e(f"buffer_load_dwordx4 v4, {SC}, s{sT2} offen nt lds")
        e(f"s_add_u32 s{sT2}, s{sT2}, {8*stride}")
def line_mfma(actbase, cnt, rowshift):
    e(f"s_mov_b32 s{sT2}, 0")
    tr_line_addr(7, sT2)
    e("v_and_b32 v5, 3, v1")
    e("v_mul_u32_u24 v6, 1088, v5")
    e("v_lshl_add_u32 v6, v2, 4, v6")
    e(f"v_add_u32 v6, {actbase}, v6")
    wait_cnt(cnt, C_WQ, 8, 8, 9, sleep=1)
    stamp(1)
    for ks in range(16):
        e(f"ds_read_b64_tr_b16 v[{32+4*ks}:{33+4*ks}], v7 offset:{4096*ks}")
        e(f"ds_read_b64_tr_b16 v[{34+4*ks}:{35+4*ks}], v7 offset:{4096*ks+2048}")
    wait_cnt(cnt, C_ACT, 4, 8, 9, sleep=1)
    stamp(2)
    mfma16(6)
    e("v_cvt_pk_bf16_f32 v28, v24, v25")
    e(f"v_mov_b32 v29, s{sTAG}")
    e("v_cvt_pk_bf16_f32 v30, v26, v27")
    e(f"v_mov_b32 v31, s{sTAG}")
    e(f"s_and_b32 s{sT2}, s{sWAVE}, 3")
    e(f"s_lshl_b32 s{sT2}, s{sT2}, 6")
    e(f"s_add_u32 s{sT1}, s{sCB1}, s{sT2}")
    e(f"v_lshlrev_b32 v8, {rowshift}, v3")
    e("v_lshl_add_u32 v8, v2, 4, v8")
    e("v_cmp_gt_u32 vcc, 4, v3")
    e(f"s_and_saveexec_b64 s[{sM0}:{sM1}], vcc")
    e(f"buffer_store_dwordx4 v[28:31], v8, {WS}, s{sT1} offen sc1")
    e(f"s_mov_b64 exec, s[{sM0}:{sM1}]")
    signal(cnt, C_QD, 8, 9)
    stamp(3)
def line_unit(actbase, cnt, stride, rowshift):
    lq8 = uid("Q8"); lq4 = uid("Q4")
    e(f"s_cmp_ge_u32 s{sWAVE}, 8")
    e(f"s_cbranch_scc1 {lq8}")
    line_dma(stride)
    load_tag()
    e("s_waitcnt vmcnt(0)")
    signal(cnt, C_WQ, 8, 9)
    fin_tag()
    e(f"s_cmp_ge_u32 s{sWAVE}, 4")
    e(f"s_cbranch_scc1 {lq4}")
    line_mfma(actbase, cnt, rowshift)
    e(f"s_branch {lq4}")
    lab(lq8)
    load_tag()
    fin_tag()
    lab(lq4)
def q_params():
    e(f"s_lshl_b32 s{sCB0}, s{sUI}, 7")
    e(f"s_lshl_b32 s{sCB1}, s{sUI}, 8")
    e(f"s_add_u32 s{sCB1}, s{sCB1}, {WS_Q}")

c("S role")
e(f"s_lshl_b32 s{sS}, s{sX8}, 5")
e(f"s_add_u32 s{sS}, s{sS}, s{sR}")
e(f"s_mul_i32 s{sT0}, s{sR}, 37")
e(f"s_lshr_b32 s{sT0}, s{sT0}, 8")
e(f"s_mul_i32 s{sT0}, s{sT0}, 7")
e(f"s_sub_u32 s{sT0}, s{sR}, s{sT0}")
e(f"s_add_u32 s{sT1}, s{sX8}, 7")
e(f"s_sub_u32 s{sT1}, s{sT1}, s{sT0}")
e(f"s_sub_u32 s{sT2}, s{sT1}, 7")
e(f"s_cmp_ge_u32 s{sT1}, 7")
e(f"s_cselect_b32 s{sT1}, s{sT2}, s{sT1}")
e(f"s_lshl_b32 s{sUI}, s{sR}, 1")
e(f"s_cmp_eq_u32 s{sT1}, 0")
e(f"s_cselect_b32 s{sQCU}, 1, 0")
e(f"s_cmp_eq_u32 s{sT1}, 3")
e(f"s_cselect_b32 s{sQCU}, 1, s{sQCU}")
e(f"s_cmp_eq_u32 s{sT1}, 1")
e(f"s_cselect_b32 s{sU}, 1, 0")
e(f"s_cmp_eq_u32 s{sT1}, 4")
e(f"s_cselect_b32 s{sU}, 1, s{sU}")
e(f"s_cmp_ge_u32 s{sT1}, 3")
e(f"s_addc_u32 s{sUI}, s{sUI}, 0")
if "modpair" in OPT:
    e(f"s_sub_u32 s{sT2}, s{sR}, 4")
    e(f"s_and_b32 s{sT2}, s{sT2}, 31")
    e(f"s_lshl_b32 s{sT2}, s{sT2}, 1")
    e(f"s_add_u32 s{sT2}, s{sT2}, 1")
    e(f"s_cmp_eq_u32 s{sT1}, 4")
    e(f"s_cselect_b32 s{sUI}, s{sT2}, s{sUI}")
e(f"s_lshr_b32 s{sT2}, 0x36, s{sT1}")
e(f"s_and_b32 s{sLATE}, s{sT2}, 1")
e(f"s_sub_u32 s{sNQ}, s{sT1}, 1")
e(f"s_cmp_ge_u32 s{sT1}, 4")
e(f"s_cselect_b32 s{sT2}, 1, 0")
e(f"s_sub_u32 s{sNQ}, s{sNQ}, s{sT2}")
e(f"s_mov_b32 s{sH}, s{sR}")
e(f"s_cmp_eq_u32 s{sQCU}, 1")
e(f"s_cselect_b32 s{sNT}, 7, 10")
e(f"s_add_u32 s{sT2}, s{sT0}, 3")
e(f"s_sub_u32 s{sT3}, s{sT2}, 7")
e(f"s_cmp_ge_u32 s{sT2}, 7")
e(f"s_cselect_b32 s{sT2}, s{sT3}, s{sT2}")
e(f"s_mul_i32 s{sT3}, s{sX8}, 10")
e(f"s_cmp_lt_u32 s{sT0}, s{sX8}")
e(f"s_cselect_b32 s{sT5}, 3, 0")
e(f"s_sub_u32 s{sT3}, s{sT3}, s{sT5}")
e(f"s_cmp_lt_u32 s{sT2}, s{sX8}")
e(f"s_cselect_b32 s{sT5}, 3, 0")
e(f"s_sub_u32 s{sT3}, s{sT3}, s{sT5}")
e(f"s_lshl_b32 s{sT0}, s{sT3}, 13")
e(f"s_lshl_b32 s{sT1}, s{sR}, 21")
e(f"s_add_u32 s{sKVB}, s{sT0}, s{sT1}")
e(f"s_add_u32 s{sKVB}, s{sKVB}, {6144*256}")

e(f"s_cmp_ge_u32 s{sWAVE}, 12")
e("s_cbranch_scc1 L_S_STREAM")
e(f"s_cmp_ge_u32 s{sWAVE}, 10")
e("s_cbranch_scc1 L_S_JOB")

c("tile waves 0..9")
srd(12, P_K, 4*8*8192*128*2)
e(f"s_lshl_b32 s{sT0}, s{sWAVE}, 13")
e(f"s_add_u32 s{sKV}, s{sKVB}, s{sT0}")
def k_addr():
    e("v_lshrrev_b32 v4, 2, v3")
    e("v_and_b32 v5, 1, v1")
    e("v_lshl_add_u32 v4, v4, 1, v5")
    e("v_lshlrev_b32 v4, 8, v4")
    e("v_bfe_u32 v5, v1, 1, 1")
    e("v_lshl_add_u32 v4, v5, 6, v4")
    e("v_lshl_add_u32 v4, v2, 4, v4")
def k_issue():
    e(f"s_add_u32 s{sT0}, s{sKV}, 4096")
    for kg in range(4):
        so = sKV if kg < 2 else sT0
        for s_ in range(2):
            d = 32 + 8*kg + 4*s_
            e(f"buffer_load_dwordx4 v[{d}:{d+3}], v4, {SA}, s{so} offen offset:{(kg & 1)*2048 + 128*s_} nt")
e(f"s_mov_b32 s{sT6}, 0")
le0 = uid("E0")
e(f"s_cmp_eq_u32 s{sQCU}, 1")
e(f"s_cbranch_scc1 {le0}")
e(f"s_cmp_ge_u32 s{sWAVE}, {min(WK, EK)}")
e(f"s_cbranch_scc1 {le0}")
k_addr()
k_issue()
e(f"s_mov_b32 s{sT6}, 1")
lab(le0)
e(f"s_mov_b32 s{sKDONE}, s{sT6}")
e("s_barrier")
lnq = uid("NOQ")
e(f"s_cmp_eq_u32 s{sQCU}, 0")
e(f"s_cbranch_scc1 {lnq}")
q_params()
lq8 = uid("Q8"); lq7 = uid("Q7")
e(f"s_cmp_ge_u32 s{sWAVE}, 8")
e(f"s_cbranch_scc1 {lq8}")
srd(20, P_WQ, 512*4096*2)
line_dma(8192)
if "kq_landed" in OPT:
    e("s_waitcnt vmcnt(0)")
    signal(S_CNT, C_WQ, 8, 9)
    wait_cnt(S_CNT, C_WQ, 8, 8, 9, sleep=1)
    e(f"s_branch {lnq}")
signal(S_CNT, C_XN, 8, 9)
wait_cnt(S_CNT, C_XN, 8, 8, 9, sleep=0)
e(f"s_cmp_ge_u32 s{sWAVE}, 7")
e(f"s_cbranch_scc1 {lq7}")
k_addr()
k_issue()
e(f"s_mov_b32 s{sKDONE}, 1")
e("s_waitcnt vmcnt(8)")
signal(S_CNT, C_WQ, 8, 9)
e(f"s_branch {lnq}")
lab(lq7)
e("s_waitcnt vmcnt(0)")
signal(S_CNT, C_WQ, 8, 9)
e(f"s_branch {lnq}")
lab(lq8)
load_tag()
fin_tag()
line_mfma(S_ACT, S_CNT, 14)
lab(lnq)
e("v_and_b32 v8, 3, v1")
e("v_lshl_add_u32 v13, v2, 2, v8")
e("v_lshlrev_b32 v13, 4, v13")
e(f"v_add_u32 v13, {S_PB}, v13")
e(f"s_cmp_ge_u32 s{sWAVE}, s{sNT}")
e("s_cbranch_scc1 L_S_ATT_IDLE")
if "kafter" in OPT: wait_cnt(S_CNT, C_EARLY, 4, 8, 9, sleep=1)
lk = uid("K"); lkd = uid("KD")
e(f"s_cmp_eq_u32 s{sKDONE}, 1")
e(f"s_cbranch_scc1 {lkd}")
e(f"s_cmp_lt_u32 s{sWAVE}, {WK}")
e(f"s_cbranch_scc1 {lk}")
e(f"s_sub_u32 s{sT5}, s{sWAVE}, {WK-1}")
wait_cnt(S_CNT, C_KL, f"s{sT5}", 8, 9, sleep=1)
lab(lk)
k_addr()
k_issue()
lab(lkd)
load_tag()
stamp(11)
e("v_and_b32 v8, 3, v1")
e("v_mul_u32_u24 v10, 320, v8")
e("v_lshl_add_u32 v10, v2, 4, v10")
e("v_bfe_u32 v11, v1, 2, 1")
e("v_lshl_add_u32 v10, v11, 6, v10")
e(f"v_add_u32 v10, {S_QL}, v10")
e("v_lshlrev_b32 v11, 6, v8")
e(f"v_add_u32 v11, {S_MAXB}, v11")
e(f"s_lshl_b32 s{sT0}, s{sWAVE}, 2")
e(f"v_add_u32 v12, s{sT0}, v11")
e(f"s_lshl_b32 s{sT0}, s{sWAVE}, 8")
e(f"v_add_u32 v14, s{sT0}, v13")
e("s_waitcnt vmcnt(0)")
signal(S_CNT, C_KL, 8, 9)
fin_tag()
stamp(12)
wait_cnt(S_CNT, C_Q, 2, 8, 9, sleep=1)
stamp(14)
for s_ in range(2):
    e(f"ds_read_b128 v[{64+4*s_}:{67+4*s_}], v10 offset:{128*s_}")
e("s_waitcnt lgkmcnt(0)")
for s_ in range(2):
    for kg in range(4):
        A = 96 + 4*kg
        cin = "0" if s_ == 0 else f"v[{A}:{A+3}]"
        e(f"v_mfma_f32_16x16x32_bf16 v[{A}:{A+3}], v[{32+8*kg+4*s_}:{35+8*kg+4*s_}], v[{64+4*s_}:{67+4*s_}], {cin}")
e(f"s_mov_b32 s{sT2}, {SCALE:#x}")
e(f"s_mov_b32 s{sT3}, {SCALE:#x}")
e(f"s_mov_b32 s{sT4}, {LOG2E:#x}")
nop(5)
for kg in range(4):
    for e_ in range(2):
        A = 96 + 4*kg
        e(f"v_add_f32_dpp v{80+2*kg+e_}, v{A+2+e_}, v{A+e_} row_shl:4 row_mask:0xf bank_mask:0xf")
for i in range(0, 8, 2):
    rnd2(80+i, 81+i, 16)
for i in range(0, 8, 2):
    e(f"v_pk_mul_f32 v[{80+i}:{81+i}], v[{80+i}:{81+i}], s[{sT2}:{sT3}]")
for i in range(0, 8, 2):
    rnd2(80+i, 81+i, 16)
e("v_max3_f32 v16, v80, v81, v82")
e("v_max3_f32 v16, v16, v83, v84")
e("v_max3_f32 v16, v16, v85, v86")
e("v_max_f32 v16, v16, v87")
for sw in ("v_permlane16_swap_b32", "v_permlane32_swap_b32"):
    e("v_mov_b32 v17, v16")
    nop(2)
    e(f"{sw} v16, v17")
    nop(1)
    e("v_max_f32 v16, v16, v17")
e("v_cmp_gt_u32 vcc, 4, v1")
e(f"s_and_saveexec_b64 s[{sM0}:{sM1}], vcc")
e("ds_write_b32 v12, v16")
e(f"s_mov_b64 exec, s[{sM0}:{sM1}]")
signal(S_CNT, C_MAX, 8, 9)
wait_cnt(S_CNT, C_MAX, f"s{sNT}", 8, 9, sleep=0)
for i in range(3):
    e(f"ds_read_b128 v[{16+4*i}:{19+4*i}], v11 offset:{16*i}")
e("s_waitcnt lgkmcnt(0)")
e("v_max3_f32 v16, v16, v17, v18")
e("v_max3_f32 v19, v19, v20, v21")
e("v_max3_f32 v22, v22, v23, v24")
e("v_max3_f32 v25, v25, v26, v27")
e("v_max3_f32 v16, v16, v19, v22")
e("v_max_f32 v16, v16, v25")
e(f"v_mul_f32 v15, s{sT4}, v16")
for i in range(8):
    e(f"v_fma_f32 v{80+i}, v{80+i}, s{sT4}, -v15")
for i in range(8):
    e(f"v_exp_f32 v{80+i}, v{80+i}")
nop(1)
for i in range(4):
    e(f"v_cvt_pk_bf16_f32 v{16+i}, v{80+2*i}, v{81+2*i}")
e("v_cmp_gt_u32 vcc, 4, v3")
e(f"s_and_saveexec_b64 s[{sM0}:{sM1}], vcc")
e("ds_write_b128 v14, v[16:19]")
e(f"s_mov_b64 exec, s[{sM0}:{sM1}]")
signal(S_CNT, C_P, 8, 9)
stamp(15)
lab("L_S_PVSTART")
e(f"s_cmp_ge_u32 s{sWAVE}, 8")
e("s_cbranch_scc1 L_S_LATE")
e("v_bfe_u32 v9, v1, 3, 1")
e("v_bfe_u32 v10, v1, 2, 1")
e("v_lshl_add_u32 v10, v2, 1, v10")
e("v_lshl_add_u32 v11, v9, 3, v10")
e("v_lshlrev_b32 v9, 2, v9")
e("v_xor_b32 v10, v10, v9")
e(f"v_xor_b32 v10, s{sWAVE}, v10")
e("v_lshlrev_b32 v10, 5, v10")
e("v_lshl_add_u32 v10, v11, 8, v10")
e("v_and_b32 v11, 3, v1")
e("v_lshl_add_u32 v10, v11, 3, v10")
e("v_add_u32 v11, 0x10000, v10")
for i in range(4): e(f"v_mov_b32 v{28+i}, 0x3f803f80")
e(f"s_and_b32 s{sT0}, s{sR}, 7")
e(f"s_lshr_b32 s{sT1}, s{sR}, 3")
e(f"s_mul_i32 s{sT1}, s{sT1}, 7")
e(f"s_add_u32 s{sT1}, s{sT1}, s{sX8}")
e(f"s_mul_i32 s{sT0}, s{sT0}, {4*28}")
e(f"s_add_u32 s{sT0}, s{sT0}, s{sT1}")
e("v_mul_u32_u24 v12, 28, v3")
e(f"v_add_u32 v12, s{sT0}, v12")
e("v_lshlrev_b32 v14, 4, v12")
e("v_lshlrev_b32 v12, 9, v12")
e("v_lshl_add_u32 v12, v2, 4, v12")
e(f"s_lshl_b32 s{sT0}, s{sWAVE}, 6")
e(f"v_add_u32 v12, s{sT0}, v12")
e(f"v_mov_b32 v17, s{sTAG}")
e(f"v_mov_b32 v19, s{sTAG}")
e(f"v_mov_b32 v21, s{sTAG}")
e(f"v_mov_b32 v23, s{sTAG}")
wait_cnt(S_CNT, C_P, f"s{sNT}", 8, 9, sleep=0)
def vbase(a): return (10, a*8192) if a < 8 else (11, (a-8)*8192)
for NTv in (7, 10):
    lnext = uid("NT")
    if NTv == 7:
        e(f"s_cmp_eq_u32 s{sNT}, 7")
        e(f"s_cbranch_scc0 {lnext}")
    for a in range(NTv):
        e(f"ds_read_b128 v[{80+4*a}:{83+4*a}], v13 offset:{256*a}")
    for a in range(NTv):
        e(f"s_waitcnt lgkmcnt({NTv-1-a})")
        cin = "0" if a == 0 else "v[124:127]"
        e(f"v_mfma_f32_16x16x32_bf16 v[124:127], v[28:31], v[{80+4*a}:{83+4*a}], {cin}")
    wait_mask(S_CNT, F_V, (1 << (NTv-1)) - 1, 8, 9, sleep=1)
    stamp(16)
    n = NTv - 1; WIN = 7
    def vread(a):
        vb, off = vbase(a)
        e(f"ds_read_b64_tr_b16 v[{32+4*a}:{33+4*a}], v{vb} offset:{off}")
        e(f"ds_read_b64_tr_b16 v[{34+4*a}:{35+4*a}], v{vb} offset:{off+4096}")
    for a in range(min(WIN, n)): vread(a)
    for a in range(n):
        rem = 2*(min(a + WIN, n) - (a + 1))
        e(f"s_waitcnt lgkmcnt({rem})")
        cin = "0" if a == 0 else "v[120:123]"
        e(f"v_mfma_f32_16x16x32_bf16 v[120:123], v[{32+4*a}:{35+4*a}], v[{80+4*a}:{83+4*a}], {cin}")
        if a + WIN < n: vread(a + WIN)
    e("v_rcp_f32 v24, v124")
    wait_mask(S_CNT, F_V, (1 << NTv) - 1, 8, 9, sleep=0)
    stamp(13)
    a = NTv - 1
    vb, off = vbase(a)
    e(f"ds_read_b64_tr_b16 v[{32+4*a}:{33+4*a}], v{vb} offset:{off}")
    e(f"ds_read_b64_tr_b16 v[{34+4*a}:{35+4*a}], v{vb} offset:{off+4096}")
    e("s_waitcnt lgkmcnt(0)")
    e(f"v_mfma_f32_16x16x32_bf16 v[120:123], v[{32+4*a}:{35+4*a}], v[{80+4*a}:{83+4*a}], v[120:123]")
    if NTv == 7:
        e("s_branch L_S_PVEND")
        lab(lnext)
lab("L_S_PVEND")
signal(S_CNT, C_PVD, 8, 9)
e("v_mov_b32 v20, v15")
e("v_mov_b32 v22, v124")
nop(2)
e("v_pk_mul_f32 v[120:121], v[120:121], v[24:25] op_sel_hi:[1,0]")
e("v_pk_mul_f32 v[122:123], v[122:123], v[24:25] op_sel_hi:[1,0]")
e("v_cvt_pk_bf16_f32 v16, v120, v121")
e("v_cvt_pk_bf16_f32 v18, v122, v123")
e(f"s_mov_b32 s{sT2}, {WS_OD}")
e("v_cmp_gt_u32 vcc, 4, v3")
e(f"s_and_saveexec_b64 s[{sM0}:{sM1}], vcc")
e(f"buffer_store_dwordx4 v[16:19], v12, {WS}, s{sT2} offen sc1")
lml = uid("ML")
e(f"s_cmp_lg_u32 s{sWAVE}, 0")
e(f"s_cbranch_scc1 {lml}")
e("s_mov_b64 exec, 15")
e(f"s_mov_b32 s{sT2}, {WS_OML}")
e(f"buffer_store_dwordx4 v[20:23], v14, {WS}, s{sT2} offen sc1")
lab(lml)
e(f"s_mov_b64 exec, s[{sM0}:{sM1}]")
stamp(7)
e("s_branch L_S_LATE")
lab("L_S_ATT_IDLE")
load_tag()
fin_tag()
e("s_branch L_S_PVSTART")

lab("L_S_JOB")
c("job waves 10,11")
e("s_setprio 3")
def zero_counters(cnt, maxb=None):
    e("v_lshlrev_b32 v4, 2, v1")
    if maxb is not None:
        e(f"v_add_u32 v5, {maxb}, v4")
        e("v_mov_b32 v6, 0xff800000")
        e("ds_write_b32 v5, v6")
    e(f"v_add_u32 v4, {cnt}, v4")
    e("v_mov_b32 v5, 0")
    e("v_cmp_gt_u32 vcc, 16, v1")
    e(f"s_and_saveexec_b64 s[{sM0}:{sM1}], vcc")
    e("ds_write_b32 v4, v5")
    e(f"s_mov_b64 exec, s[{sM0}:{sM1}]")
    e("s_waitcnt lgkmcnt(0)")
zero_counters(S_CNT, S_MAXB)
e("s_barrier")
load_tag()
e(f"s_sub_u32 s{sT4}, s{sWAVE}, 10")
stamp(20)
def gemv_job(ebase, actbase, cnt, act_target):
    e("v_lshrrev_b32 v4, 2, v3")
    e("v_lshl_add_u32 v4, v2, 2, v4")
    e("v_lshlrev_b32 v4, 6, v4")
    e("v_and_b32 v5, 1, v2")
    e(f"v_xor_b32 v5, s{sT4}, v5")
    e("v_lshl_add_u32 v4, v5, 5, v4")
    e("v_and_b32 v5, 3, v1")
    e("v_lshl_add_u32 v4, v5, 3, v4")
    e(f"v_add_u32 v4, {ebase}, v4")
    e("v_mul_u32_u24 v6, 1088, v5")
    e("v_lshl_add_u32 v6, v2, 4, v6")
    e(f"v_add_u32 v6, {actbase}, v6")
    wait_cnt(cnt, C_EARLY, 4, 8, 9, sleep=1)
    stamp(1)
    for ks in range(16):
        e(f"ds_read_b64_tr_b16 v[{32+4*ks}:{33+4*ks}], v4 offset:{2048*ks}")
        e(f"ds_read_b64_tr_b16 v[{34+4*ks}:{35+4*ks}], v4 offset:{2048*ks+1024}")
    wait_cnt(cnt, C_ACT, act_target, 8, 9, sleep=1)
    stamp(2)
    BB = [96, 8]
    def bread(grp):
        base = BB[grp % 2]
        for k in range(4):
            ks = 4*grp + k
            e(f"ds_read_b128 v[{base+4*k}:{base+4*k+3}], v6 offset:{64*ks}")
    bread(0); bread(1)
    for grp in range(4):
        e(f"s_waitcnt lgkmcnt({4 if grp < 3 else 0})")
        base = BB[grp % 2]
        for k in range(4):
            ks = 4*grp + k
            cin = "0" if ks == 0 else "v[24:27]"
            e(f"v_mfma_f32_16x16x32_bf16 v[24:27], v[{32+4*ks}:{35+4*ks}], v[{base+4*k}:{base+4*k+3}], {cin}")
        if grp + 2 < 4: bread(grp + 2)
    nop(8)
fin_tag()
e(f"s_cmp_eq_u32 s{sU}, 0")
e("s_cbranch_scc1 L_S_JOB_Q")
gemv_job(S_E, S_ACT, S_CNT, 4)
e("v_cvt_pk_bf16_f32 v28, v24, v25")
e(f"v_mov_b32 v29, s{sTAG}")
e("v_cvt_pk_bf16_f32 v30, v26, v27")
e(f"v_mov_b32 v31, s{sTAG}")
e(f"s_lshl_b32 s{sT1}, s{sUI}, 7")
e(f"s_add_u32 s{sT1}, s{sT1}, {WS_M}")
e(f"s_lshl_b32 s{sT2}, s{sT4}, 6")
e(f"s_add_u32 s{sT1}, s{sT1}, s{sT2}")
e("v_lshlrev_b32 v8, 13, v3")
e("v_lshl_add_u32 v8, v2, 4, v8")
e("v_cmp_gt_u32 vcc, 4, v3")
e(f"s_and_saveexec_b64 s[{sM0}:{sM1}], vcc")
e(f"buffer_store_dwordx4 v[28:31], v8, {WS}, s{sT1} offen sc1")
e(f"s_mov_b64 exec, s[{sM0}:{sM1}]")
stamp(3)
lab("L_S_JOB_Q")
ljq = uid("JQ")
e(f"s_cmp_eq_u32 s{sQCU}, 0")
e(f"s_cbranch_scc1 {ljq}")
q_params()
line_mfma(S_ACT, S_CNT, 14)
e(f"s_sub_u32 s{sT4}, s{sWAVE}, 10")
wait_cnt(S_CNT, C_QD, 4, 8, 9, sleep=2)
lab(ljq)
if "bafterk" in OPT:
    e(f"s_sub_u32 s{sT5}, s{sNT}, 2")
    e(f"s_cmp_eq_u32 s{sQCU}, 1")
    e(f"s_cselect_b32 s{sT5}, 0, s{sT5}")
    wait_cnt(S_CNT, C_KL, f"s{sT5}", 8, 9, sleep=2)
e(f"s_lshr_b32 s{sT0}, s{sR}, 3")
e(f"s_lshl_b32 s{sT0}, s{sT0}, 14")
e(f"s_and_b32 s{sT1}, s{sR}, 7")
e(f"s_lshl_b32 s{sT1}, s{sT1}, 11")
e(f"s_add_u32 s{sT0}, s{sT0}, s{sT1}")
e(f"s_lshl_b32 s{sT1}, s{sT4}, 10")
e(f"s_add_u32 s{sT0}, s{sT0}, s{sT1}")
e(f"s_add_u32 s{sT0}, s{sT0}, {WS_Q}")
e("v_lshlrev_b32 v5, 4, v1")
e(f"v_add_u32 v5, s{sT0}, v5")
e("v_lshrrev_b32 v6, 5, v1")
e(f"s_lshl_b32 s{sT0}, s{sT4}, 1")
e(f"v_add_u32 v6, s{sT0}, v6")
e("v_mul_u32_u24 v6, 320, v6")
e("v_and_b32 v7, 31, v1")
e("v_lshl_add_u32 v6, v7, 3, v6")
e(f"v_add_u32 v6, {S_QL}, v6")
if "nopipe" in OPT:
    poll([(8, 5, 0)], sleep=SSL)
    e("v_mov_b32 v9, v10")
    e("ds_write_b64 v6, v[8:9]")
else:
    R = [100, 104, 108]
    lpl = uid("PP"); lpd = uid("PPD")
    e(f"s_mov_b32 s{sSPIN}, 0")
    for r_ in R:
        e(f"buffer_load_dwordx4 v[{r_}:{r_+3}], v5, {WS}, 0 offen sc1")
        if r_ != R[-1]: e(f"s_sleep {PSL}")
    lab(lpl)
    oks = []
    for r_ in R:
        ok = uid("OK"); oks.append(ok)
        e("s_waitcnt vmcnt(2)")
        e(f"v_cmp_eq_u32 vcc, s{sTAG}, v{r_+1}")
        e(f"v_cmp_eq_u32 s[{sM0}:{sM1}], s{sTAG}, v{r_+3}")
        e(f"s_and_b64 vcc, vcc, s[{sM0}:{sM1}]")
        e("s_cmp_eq_u64 vcc, exec")
        e(f"s_cbranch_scc1 {ok}")
        e(f"s_sleep {PSL}")
        e(f"buffer_load_dwordx4 v[{r_}:{r_+3}], v5, {WS}, 0 offen sc1")
    e(f"s_add_u32 s{sSPIN}, s{sSPIN}, 1")
    e(f"s_cmp_lt_u32 s{sSPIN}, {SPIN_MAX}")
    e(f"s_cbranch_scc1 {lpl}")
    e("s_branch L_END")
    for r_, ok in zip(R, oks):
        lab(ok)
        e(f"v_mov_b32 v8, v{r_}")
        e(f"v_mov_b32 v9, v{r_+2}")
        e(f"s_branch {lpd}")
    lab(lpd)
    e("ds_write_b64 v6, v[8:9]")
signal(S_CNT, C_Q, 24, 25)
stamp(5)
e("s_branch L_S_LATE")

def early_dma(ebase, scb0, scb1, stride):
    e("v_lshrrev_b32 v5, 2, v1")
    e(f"v_mul_u32_u24 v5, {stride}, v5")
    e("v_bfe_u32 v6, v1, 1, 1")
    e("v_bfe_u32 v7, v1, 4, 1")
    e("v_xor_b32 v6, v6, v7")
    e(f"v_mov_b32 v7, s{scb0}")
    e(f"v_mov_b32 v16, s{scb1}")
    e("v_cmp_eq_u32 vcc, 1, v6")
    nop(2)
    e("v_cndmask_b32 v7, v7, v16, vcc")
    e("v_add_u32 v5, v5, v7")
    e("v_and_b32 v6, 1, v1")
    e("v_lshl_add_u32 v5, v6, 4, v5")
    e(f"s_lshl_b32 s{sT1}, s{sT4}, 3")
    e(f"s_mul_i32 s{sT2}, s{sT1}, {16*stride}")
    e(f"s_lshl_b32 s{sT1}, s{sT1}, 10")
    e(f"s_add_u32 s{sT1}, s{sT1}, {ebase}")
    for k in range(8):
        e(f"s_mov_b32 m0, s{sT1}")
        e(f"s_add_u32 s{sT1}, s{sT1}, 1024")
        e(f"buffer_load_dwordx4 v5, {SC}, s{sT2} offen nt lds")
        e(f"s_add_u32 s{sT2}, s{sT2}, {16*stride}")
def silu_to_act(actbase, cnt):
    for i in range(4):
        unpack2(8+i, 16+2*i, 17+2*i)
    for i in range(8):
        silu_inplace(16+i, 24, 25)
    for i in range(4):
        e(f"v_cvt_pk_bf16_f32 v{8+i}, v{16+2*i}, v{17+2*i}")
    e("v_lshrrev_b32 v6, 2, v1")
    e("v_lshlrev_b32 v6, 6, v6")
    e("v_and_b32 v7, 1, v1")
    e("v_lshl_add_u32 v6, v7, 5, v6")
    e("v_bfe_u32 v7, v1, 1, 1")
    e("v_lshl_add_u32 v6, v7, 3, v6")
    e(f"s_mul_i32 s{sT0}, s{sT4}, 1088")
    e(f"s_add_u32 s{sT0}, s{sT0}, {actbase}")
    e(f"v_add_u32 v6, s{sT0}, v6")
    e("ds_write_b64 v6, v[8:9]")
    e("ds_write_b64 v6, v[10:11] offset:16")
    signal(cnt, C_ACT, 24, 25)

lab("L_S_STREAM")
c("streamer waves 12..15")
e("s_setprio 2")
e(f"s_sub_u32 s{sT4}, s{sWAVE}, 12")
if "bfirst" in OPT: e("s_barrier")
lnoe = uid("NOE")
e(f"s_cmp_eq_u32 s{sU}, 0")
e(f"s_cbranch_scc1 {lnoe}")
srd(28, P_C, 4096)
srd(20, P_WM, 512*3072*2)
e(f"s_lshl_b32 s{sT0}, s{sT4}, 10")
e("v_lshlrev_b32 v4, 4, v1")
e(f"buffer_load_dwordx4 v[8:11], v4, {SE}, s{sT0} offen")
e(f"s_lshl_b32 s{sCB0}, s{sUI}, 6")
e(f"s_add_u32 s{sCB0}, s{sCB0}, 2048")
e(f"s_add_u32 s{sCB1}, s{sCB0}, 32")
early_dma(S_E, sCB0, sCB1, 6144)
lab(lnoe)
if "bfirst" not in OPT: e("s_barrier")
load_tag()
srd(16, P_V, 4*8*8192*128*2)
srd(24, P_WO, 4096*512*2)
lafter = uid("LAF")
e(f"s_cmp_eq_u32 s{sU}, 0")
e(f"s_cbranch_scc1 {lafter}")
e("s_waitcnt vmcnt(8)")
silu_to_act(S_ACT, S_CNT)
lab(lafter)
lnq2 = uid("NOQ")
e(f"s_cmp_eq_u32 s{sQCU}, 0")
e(f"s_cbranch_scc1 {lnq2}")
srd(32, P_X, 4096)
e(f"s_lshl_b32 s{sT0}, s{sT4}, 10")
e("v_lshlrev_b32 v4, 3, v1")
e(f"buffer_load_dwordx2 v[8:9], v4, {SF}, s{sT0} offen")
e(f"buffer_load_dwordx2 v[10:11], v4, {SF}, s{sT0} offen offset:512")
e(f"s_lshl_b32 s{sT0}, s{sT4}, 12")
e(f"s_add_u32 s{sT0}, s{sT0}, {WS_SC}")
e("v_lshlrev_b32 v5, 4, v1")
e(f"v_add_u32 v5, s{sT0}, v5")
e("v_lshrrev_b32 v6, 3, v1")
e("v_lshlrev_b32 v6, 6, v6")
e("v_and_b32 v7, 3, v1")
e("v_lshl_add_u32 v6, v7, 4, v6")
e("v_bfe_u32 v7, v1, 2, 1")
e("v_lshl_add_u32 v6, v7, 3, v6")
e(f"s_mul_i32 s{sT0}, s{sT4}, 1088")
e(f"s_add_u32 s{sT0}, s{sT0}, {S_ACT}")
e(f"v_add_u32 v6, s{sT0}, v6")
e("s_waitcnt vmcnt(0) lgkmcnt(0)")
e(f"s_add_u32 s{sTAG}, s{sTAG}, 0x9E3779B9")
for i in range(4): unpack2(8+i, 16+2*i, 17+2*i)
layernorm8(16, 24)
wait_cnt(S_CNT, C_WQ, 8, 36, 37, sleep=1)
poll([(40, 5, 0), (44, 5, 1024), (48, 5, 2048), (52, 5, 3072)], sleep=SCS)
for (src, dst) in ((48, 56), (50, 58), (52, 60), (54, 62)): unpack2(src, dst, dst+1)
for i in range(0, 8, 2): e(f"v_pk_add_f32 v[{56+i}:{57+i}], v[{56+i}:{57+i}], 1.0 op_sel_hi:[1,0]")
for i in range(0, 8, 2): rnd2(56+i, 57+i, 24)
for i in range(0, 8, 2): e(f"v_pk_mul_f32 v[{16+i}:{17+i}], v[{16+i}:{17+i}], v[{56+i}:{57+i}]")
for i in range(0, 8, 2): rnd2(16+i, 17+i, 24)
for (src, dst) in ((40, 56), (42, 58), (44, 60), (46, 62)): unpack2(src, dst, dst+1)
for i in range(0, 8, 2): e(f"v_pk_add_f32 v[{16+i}:{17+i}], v[{16+i}:{17+i}], v[{56+i}:{57+i}]")
for i in range(4): e(f"v_cvt_pk_bf16_f32 v{8+i}, v{16+2*i}, v{17+2*i}")
e("ds_write_b64 v6, v[8:9]")
e("ds_write_b64 v6, v[10:11] offset:512")
signal(S_CNT, C_ACT, 24, 25)
stamp(6)
wait_cnt(S_CNT, C_QD, 4, 24, 25, sleep=1)
e(f"s_sub_u32 s{sTAG}, s{sTAG}, 0x9E3779B9")
lab(lnq2)
e("v_lshrrev_b32 v5, 1, v3")
e("v_xor_b32 v5, v5, v2")
e("v_lshlrev_b32 v5, 5, v5")
e("v_and_b32 v6, 1, v1")
e("v_lshl_add_u32 v5, v6, 4, v5")
e("v_lshl_add_u32 v7, v2, 10, v5")
e("v_lshl_add_u32 v5, v2, 8, v5")
e("v_xor_b32 v6, 128, v5")
e("v_xor_b32 v10, 128, v7")
e("s_waitcnt vmcnt(0)")
signal(S_CNT, C_EARLY, 24, 25)
fin_tag()
stamp(4)
e(f"s_sub_u32 s{sT5}, s{sNT}, {KOV}")
e(f"s_cmp_eq_u32 s{sQCU}, 1")
e(f"s_cselect_b32 s{sT5}, {QKW}, s{sT5}")
wait_cnt(S_CNT, C_KL, f"s{sT5}", 24, 25, sleep=1)
stamp(18)
def v_issue(sa):
    e(f"s_lshl_b32 s{sT1}, s{sa}, 13")
    e(f"s_add_u32 s{sT0}, s{sKVB}, s{sT1}")
    e(f"s_mov_b32 m0, s{sT1}")
    e(f"s_add_u32 s{sT1}, s{sT1}, 4096")
    for i in range(4):
        e(f"buffer_load_dwordx4 v{5 + ((i ^ (i >> 1)) & 1)}, {SB}, s{sT0} offen offset:{1024*i} nt lds")
    e(f"s_mov_b32 m0, s{sT1}")
    e(f"s_add_u32 s{sT0}, s{sT0}, 4096")
    for i in range(4):
        e(f"buffer_load_dwordx4 v{5 + ((i ^ (i >> 1)) & 1)}, {SB}, s{sT0} offen offset:{1024*i} nt lds")
if "vdeep" in OPT:
    ldone = uid("VD"); l2 = uid("V2"); l1 = uid("V1")
    e(f"s_mov_b32 s{sT5}, s{sT4}"); v_issue(sT5)
    e(f"s_add_u32 s{sT5}, s{sT4}, 4")
    e(f"s_cmp_lt_u32 s{sT5}, s{sNT}")
    e(f"s_cbranch_scc0 {l1}")
    v_issue(sT5)
    e(f"s_add_u32 s{sT5}, s{sT4}, 8")
    e(f"s_cmp_lt_u32 s{sT5}, s{sNT}")
    e(f"s_cbranch_scc0 {l2}")
    v_issue(sT5)
    e(f"s_lshl_b32 s{sT2}, 1, s{sT4}")
    for w in (16, 8, 0):
        e(f"s_waitcnt vmcnt({w})")
        signal_or(S_CNT, F_V, sT2, 24, 25)
        if w: e(f"s_lshl_b32 s{sT2}, s{sT2}, 4")
    e(f"s_branch {ldone}")
    lab(l2)
    e(f"s_lshl_b32 s{sT2}, 1, s{sT4}")
    for w in (8, 0):
        e(f"s_waitcnt vmcnt({w})")
        signal_or(S_CNT, F_V, sT2, 24, 25)
        if w: e(f"s_lshl_b32 s{sT2}, s{sT2}, 4")
    e(f"s_branch {ldone}")
    lab(l1)
    e(f"s_lshl_b32 s{sT2}, 1, s{sT4}")
    e("s_waitcnt vmcnt(0)")
    signal_or(S_CNT, F_V, sT2, 24, 25)
    lab(ldone)
else:
    e(f"s_mov_b32 s{sT5}, s{sT4}")
    lv = uid("V"); lvd = uid("VD")
    lab(lv)
    v_issue(sT5)
    e(f"s_lshl_b32 s{sT2}, 1, s{sT5}")
    e("s_waitcnt vmcnt(0)")
    signal_or(S_CNT, F_V, sT2, 24, 25)
    e(f"s_add_u32 s{sT5}, s{sT5}, 4")
    e(f"s_cmp_lt_u32 s{sT5}, s{sNT}")
    e(f"s_cbranch_scc1 {lv}")
stamp(19)
e(f"s_cmp_eq_u32 s{sLATE}, 0")
e("s_cbranch_scc1 L_END")
if "latepv" in OPT: wait_cnt(S_CNT, C_PVD, 8, 24, 25, sleep=2)
if "latep" in OPT: wait_cnt(S_CNT, C_P, f"s{sNT}", 24, 25, sleep=2)
e(f"s_lshl_b32 s{sT0}, s{sT4}, 3")
e(f"s_lshl_b32 s{sT1}, s{sT0}, 10")
e(f"s_add_u32 s{sT1}, s{sT1}, {S_L}")
e(f"s_lshl_b32 s{sT2}, s{sT0}, 12")
e(f"s_lshl_b32 s{sT3}, s{sH}, 17")
e(f"s_add_u32 s{sT2}, s{sT2}, s{sT3}")
e(f"s_lshl_b32 s{sT3}, s{sNQ}, 8")
e(f"s_add_u32 s{sT2}, s{sT2}, s{sT3}")
for k in range(8):
    e(f"s_mov_b32 m0, s{sT1}")
    e(f"s_add_u32 s{sT1}, s{sT1}, 1024")
    e(f"buffer_load_dwordx4 v{[7, 10][(k >> 1) & 1]}, {SD}, s{sT2} offen nt lds")
    e(f"s_add_u32 s{sT2}, s{sT2}, 4096")
e("s_waitcnt vmcnt(0)")
signal(S_CNT, C_LATE, 24, 25)

lab("L_S_LATE")
e(f"s_cmp_eq_u32 s{sLATE}, 0")
e("s_cbranch_scc1 L_END")
e("s_setprio 0")
e("v_mov_b32 v58, 0")
e(f"s_lshl_b32 s{sT6}, s{sWAVE}, 6"); e(f"v_add_u32 v4, s{sT6}, v1")
e(f"s_mul_i32 s{sT0}, s{sH}, {28*512}")
e(f"s_add_u32 s{sT0}, s{sT0}, {WS_OD}")
e(f"s_mul_i32 s{sT1}, s{sH}, {28*16}")
e(f"s_add_u32 s{sT1}, s{sT1}, {WS_OML - 896*16}")
e(f"s_cmp_lt_u32 s{sWAVE}, 14")
e(f"s_cselect_b32 s{sT0}, s{sT0}, s{sT1}")
e("v_lshlrev_b32 v5, 4, v4")
e(f"v_add_u32 v5, s{sT0}, v5")
e("v_lshrrev_b32 v6, 5, v4")
e(f"s_cmp_lt_u32 s{sWAVE}, 14")
lw = uid("LW"); lw2 = uid("LW")
e(f"s_cbranch_scc1 {lw}")
e("v_mov_b32 v6, v1")
lab(lw)
e("v_mul_u32_u24 v7, 37, v6")
e("v_lshrrev_b32 v7, 8, v7")
e("v_add_u32 v6, v6, v7")
e(f"s_cmp_lt_u32 s{sWAVE}, 14")
e(f"s_cbranch_scc1 {lw2}")
e("v_lshlrev_b32 v6, 3, v6")
e(f"v_add_u32 v6, {S_CML}, v6")
lw3 = uid("LW")
e(f"s_branch {lw3}")
lab(lw2)
e("v_mul_u32_u24 v6, 272, v6")
e("v_and_b32 v7, 31, v4")
e("v_lshl_add_u32 v6, v7, 3, v6")
e(f"v_add_u32 v6, {S_CG}, v6")
lab(lw3)
lnw = uid("LNW")
e(f"s_cmp_ge_u32 s{sWAVE}, 8")
e(f"s_cbranch_scc1 {lnw}")
wait_cnt(S_CNT, C_LATE, 4, 8, 9, sleep=1)
e("v_lshrrev_b32 v12, 2, v3")
e("v_lshl_add_u32 v13, v2, 3, v12")
e("v_and_b32 v14, 1, v2")
e("v_lshl_add_u32 v12, v14, 2, v12")
e(f"v_xor_b32 v12, s{sWAVE}, v12")
e("v_lshlrev_b32 v12, 5, v12")
e("v_lshl_add_u32 v12, v13, 8, v12")
e("v_and_b32 v14, 3, v1")
e("v_lshl_add_u32 v12, v14, 3, v12")
e(f"v_add_u32 v12, {S_L}, v12")
for ks in range(4):
    e(f"ds_read_b64_tr_b16 v[{32+4*ks}:{33+4*ks}], v12 offset:{8192*ks}")
    e(f"ds_read_b64_tr_b16 v[{34+4*ks}:{35+4*ks}], v12 offset:{8192*ks+1024}")
e("v_mul_u32_u24 v56, 272, v3")
e("v_lshl_add_u32 v56, v2, 4, v56")
e(f"v_add_u32 v56, {S_CG}, v56")
e("v_lshlrev_b32 v57, 3, v3")
e(f"v_add_u32 v57, {S_CML}, v57")
e(f"s_lshl_b32 s{sT0}, s{sNQ}, 3")
e(f"s_add_u32 s{sT0}, s{sT0}, s{sWAVE}")
e(f"s_lshl_b32 s{sT0}, s{sT0}, 5")
e(f"s_add_u32 s{sT0}, s{sT0}, s{sH}")
e(f"s_lshl_b32 s{sT0}, s{sT0}, 8")
e(f"s_add_u32 s{sT0}, s{sT0}, {WS_AP}")
e("v_bfe_u32 v58, v1, 3, 1")
e("v_lshlrev_b32 v58, 6, v58")
e("v_lshl_add_u32 v58, v2, 4, v58")
e("v_and_b32 v59, 1, v1")
e("v_lshl_add_u32 v58, v59, 7, v58")
e(f"v_add_u32 v58, s{sT0}, v58")
e(f"v_mov_b32 v61, s{sTAG}")
e(f"v_mov_b32 v63, s{sTAG}")
e("v_cmp_eq_u32 s[88:89], 1, v59")
e("v_and_b32 v14, 6, v1")
e("v_cmp_eq_u32 s[86:87], 0, v14")
lab(lnw)
lz = uid("LZ"); lzd = uid("LZD")
e(f"s_cmp_eq_u32 s{sWAVE}, 15")
e(f"s_cbranch_scc1 {lz}")
e("s_mov_b64 s[98:99], exec")
e(f"s_cmp_lg_u32 s{sWAVE}, 14")
lfull = uid("LF")
e(f"s_cbranch_scc1 {lfull}")
e("s_mov_b32 exec_lo, 0x0fffffff")
e("s_mov_b32 exec_hi, 0")
lab(lfull)
poll([(8, 5, 0)])
stamp(17)
e("v_mov_b32 v9, v10")
wait_cnt(S_CNT, C_PVD, 8, 12, 13, sleep=0)
e("ds_write_b64 v6, v[8:9]")
e("s_mov_b64 exec, s[98:99]")
e(f"s_branch {lzd}")
lab(lz)
wait_cnt(S_CNT, C_PVD, 8, 12, 13, sleep=1)
e("v_lshlrev_b32 v6, 3, v2")
e("v_add_u32 v6, 7, v6")
e("v_mul_u32_u24 v7, 272, v6")
e("v_lshl_add_u32 v7, v3, 4, v7")
e(f"v_add_u32 v7, {S_CG}, v7")
for i in range(4): e(f"v_mov_b32 v{12+i}, 0")
e("ds_write_b128 v7, v[12:15]")
e("v_lshlrev_b32 v6, 3, v6")
e(f"v_add_u32 v6, {S_CML}, v6")
e("v_mov_b32 v12, 0xff800000")
e("ds_write_b64 v6, v[12:13]")
lab(lzd)
e("s_waitcnt lgkmcnt(0)")
e("s_barrier")
e(f"s_cmp_ge_u32 s{sWAVE}, 8")
e("s_cbranch_scc1 L_END")
stamp(9)
e("ds_read_b64 v[8:9], v57")
e("ds_read_b64 v[10:11], v57 offset:128")
for ct in range(2):
    for ks in range(4):
        d = 64 + 16*ct + 4*ks
        e(f"ds_read_b128 v[{d}:{d+3}], v56 offset:{16*272*ct + 64*ks}")
e("s_waitcnt lgkmcnt(8)")
e("v_mov_b32 v12, v8")
e("v_mov_b32 v13, v10")
nop(1)
for ctl in ("quad_perm:[1,0,3,2]", "quad_perm:[2,3,0,1]", "row_half_mirror"):
    e(f"v_max_f32_dpp v12, v12, v12 {ctl} row_mask:0xf bank_mask:0xf")
    e(f"v_max_f32_dpp v13, v13, v13 {ctl} row_mask:0xf bank_mask:0xf")
    nop(1)
e("v_sub_f32 v8, v8, v12")
e("v_sub_f32 v10, v10, v13")
e("v_exp_f32 v8, v8")
e("v_exp_f32 v10, v10")
e("s_waitcnt lgkmcnt(0)")
for ks in range(4):
    for ct in range(2):
        d = 64 + 16*ct + 4*ks
        cin = "0" if ks == 0 else f"v[{16+4*ct}:{19+4*ct}]"
        e(f"v_mfma_f32_16x16x32_bf16 v[{16+4*ct}:{19+4*ct}], v[{32+4*ks}:{35+4*ks}], v[{d}:{d+3}], {cin}")
e("v_mul_f32 v8, v8, v9")
e("v_mul_f32 v10, v10, v11")
e("v_mov_b32 v12, v8")
e("v_mov_b32 v13, v10")
nop(1)
for ctl in ("quad_perm:[1,0,3,2]", "quad_perm:[2,3,0,1]", "row_half_mirror"):
    e(f"v_add_f32_dpp v12, v12, v12 {ctl} row_mask:0xf bank_mask:0xf")
    e(f"v_add_f32_dpp v13, v13, v13 {ctl} row_mask:0xf bank_mask:0xf")
    nop(1)
e("v_rcp_f32 v12, v12")
e("v_rcp_f32 v13, v13")
nop(1)
e("v_mul_f32 v8, v8, v12")
e("v_mul_f32 v10, v10, v13")
nop(1)
e("v_pk_mul_f32 v[16:17], v[16:17], v[8:9] op_sel_hi:[1,0]")
e("v_pk_mul_f32 v[18:19], v[18:19], v[8:9] op_sel_hi:[1,0]")
e("v_pk_mul_f32 v[20:21], v[20:21], v[10:11] op_sel_hi:[1,0]")
e("v_pk_mul_f32 v[22:23], v[22:23], v[10:11] op_sel_hi:[1,0]")
nop(1)
for ctl in ("quad_perm:[1,0,3,2]", "quad_perm:[2,3,0,1]", "row_half_mirror"):
    for i in range(8):
        e(f"v_add_f32_dpp v{16+i}, v{16+i}, v{16+i} {ctl} row_mask:0xf bank_mask:0xf")
for i in range(4): e(f"v_cndmask_b32 v{24+i}, v{16+i}, v{20+i}, s[88:89]")
e("v_cvt_pk_bf16_f32 v60, v24, v25")
e("v_cvt_pk_bf16_f32 v62, v26, v27")
e("s_mov_b64 exec, s[86:87]")
e(f"buffer_store_dwordx4 v[60:63], v58, {WS}, 0 offen sc1")
e("s_mov_b64 exec, -1")
stamp(10)
e("s_branch L_END")

lab("L_T")
c("T role: t = sR")
srd(20, P_WM, 512*3072*2)
srd(28, P_C, 4096)
srd(32, P_X, 4096)
srd(24, P_OUT, 4096)
e(f"s_cmp_ge_u32 s{sWAVE}, 12")
e("s_cbranch_scc1 L_T_STREAM")
lt1 = uid("T1")
e(f"s_cmp_lg_u32 s{sWAVE}, 10")
e(f"s_cbranch_scc1 {lt1}")
zero_counters(T_CNT)
lab(lt1)
e("s_barrier")
lt2 = uid("T2")
e(f"s_cmp_ge_u32 s{sR}, 16")
e(f"s_cbranch_scc1 {lt2}")
e(f"s_lshl_b32 s{sCB0}, s{sR}, 7")
e(f"s_lshl_b32 s{sCB1}, s{sR}, 8")
e(f"s_add_u32 s{sCB1}, s{sCB1}, {WS_SC}")
line_unit(T_ACT, T_CNT, 6144, 12)
e("s_branch L_T_AUX")
lab(lt2)
load_tag()
fin_tag()
lab("L_T_AUX")
C_UP, C_UPR, C_G, C_SC = C_KL, C_Q, C_MAX, C_P
C_GO, C_ARM, C_RED, C_XS = F_V, C_PVD, C_LATE, C_HD
C_DL = C_EXC
e(f"s_cmp_lt_u32 s{sWAVE}, 8")
e("s_cbranch_scc1 L_T_W")
lw9 = uid("W9"); lw8 = uid("W8")
e(f"s_cmp_lg_u32 s{sWAVE}, 9")
e(f"s_cbranch_scc1 {lw9}")
e("v_lshlrev_b32 v5, 8, v1")
e(f"v_add_u32 v5, {WS_SC}, v5")
poll_lanes(16, 8, 5, 4)
signal(T_CNT, C_SC, 10, 11)
if "tq" in OPT:
    e("v_lshlrev_b32 v5, 8, v1")
    e(f"v_add_u32 v5, {WS_Q}, v5")
    poll_lanes(64, 8, 5, 4)
    signal(T_CNT, C_GO, 10, 11)
e("s_branch L_T_MODS")
lab(lw9)
e(f"s_cmp_lg_u32 s{sWAVE}, 8")
e("s_cbranch_scc1 L_T_MODS")
e(f"s_getreg_b32 s{sT0}, hwreg(HW_REG_XCC_ID)")
e(f"s_and_b32 s{sT0}, s{sT0}, 0xf")
e(f"v_mov_b32 v8, s{sT0}")
e(f"v_mov_b32 v9, s{sTAG}")
e(f"s_lshl_b32 s{sT1}, s{sR}, 3")
e(f"s_add_u32 s{sT1}, s{sT1}, {WS_XCC}")
sentinel_store(sT1, 8)
e("s_branch L_T_MODS")
lab("L_T_W")
e(f"s_cmp_ge_u32 s{sR}, 28")
e("s_cbranch_scc1 L_T_WEND")
srd(12, P_WG, 512*1792*2)
srd(16, P_WU, 512*1792*2)
srd(20, P_WD, 1792*512*2)
def gu_dma(srdname, ldsbase):
    line_dma_voff(3584)
    e(f"s_lshl_b32 s{sT0}, s{sWAVE}, 3")
    e(f"s_mul_i32 s{sT2}, s{sT0}, {8*3584}")
    e(f"s_lshl_b32 s{sT3}, s{sR}, 7")
    e(f"s_add_u32 s{sT2}, s{sT2}, s{sT3}")
    e(f"s_lshl_b32 s{sT1}, s{sWAVE}, 13")
    e(f"s_add_u32 s{sT1}, s{sT1}, {ldsbase}")
    for k in range(8):
        e(f"s_mov_b32 m0, s{sT1}")
        e(f"s_add_u32 s{sT1}, s{sT1}, 1024")
        e(f"buffer_load_dwordx4 v4, {srdname}, s{sT2} offen nt lds")
        e(f"s_add_u32 s{sT2}, s{sT2}, {8*3584}")
def gu_frags(ldsbase):
    e(f"s_mov_b32 s{sT0}, {ldsbase}")
    tr_line_addr(4, sT0)
    for ks in range(16):
        e(f"ds_read_b64_tr_b16 v[{32+4*ks}:{33+4*ks}], v4 offset:{4096*ks}")
        e(f"ds_read_b64_tr_b16 v[{34+4*ks}:{35+4*ks}], v4 offset:{4096*ks+2048}")
    e("s_waitcnt lgkmcnt(0)")
wait_cnt(T_CNT, C_SC if ("tearly" in OPT and "tq" not in OPT) else C_GO, 1, 8, 9, sleep=2)
stamp(19)
gu_dma(SB, 65536)
lq = uid("NQD")
e(f"s_cmp_ge_u32 s{sR}, 16")
e(f"s_cbranch_scc1 {lq}")
wait_cnt(T_CNT, C_QD, 4, 8, 9, sleep=1)
lab(lq)
gu_dma(SA, 0)
e("s_waitcnt vmcnt(8)")
signal(T_CNT, C_UP, 8, 9)
lnu = uid("NU")
e(f"s_cmp_lt_u32 s{sWAVE}, 4")
e(f"s_cbranch_scc1 {lnu}")
wait_cnt(T_CNT, C_UP, 8, 8, 9, sleep=1)
gu_frags(65536)
signal(T_CNT, C_UPR, 8, 9)
lab(lnu)
wait_cnt(T_CNT, C_UPR, 4, 8, 9, sleep=1)
stamp(15)
e("v_lshlrev_b32 v4, 4, v1")
e(f"s_lshl_b32 s{sT0}, s{sWAVE}, 13")
e(f"s_add_u32 s{sT1}, s{sT0}, 65536")
e(f"s_lshl_b32 s{sT2}, s{sR}, 16")
e(f"s_add_u32 s{sT2}, s{sT2}, s{sT0}")
for k in range(8):
    e(f"v_xor_b32 v5, {32*k}, v4")
    e(f"s_mov_b32 m0, s{sT1}")
    e(f"s_add_u32 s{sT1}, s{sT1}, 1024")
    e(f"buffer_load_dwordx4 v5, {SC}, s{sT2} offen nt lds")
    e(f"s_add_u32 s{sT2}, s{sT2}, 1024")
e("s_waitcnt vmcnt(8)")
signal(T_CNT, C_G, 8, 9)
lng = uid("NG")
e(f"s_cmp_ge_u32 s{sWAVE}, 4")
e(f"s_cbranch_scc1 {lng}")
wait_cnt(T_CNT, C_G, 8, 8, 9, sleep=1)
gu_frags(0)
lab(lng)
e("s_waitcnt vmcnt(0)")
signal(T_CNT, C_DL, 8, 9)
stamp(1)
lab("L_T_WEND")
def down_frags():
    lsk = uid("DF")
    e(f"s_cmp_ge_u32 s{sR}, 28")
    e(f"s_cbranch_scc1 {lsk}")
    wait_cnt(T_CNT, C_DL, 8, 8, 9, sleep=1)
    e("v_lshrrev_b32 v10, 2, v3")
    e("v_lshl_add_u32 v10, v2, 2, v10")
    e("v_and_b32 v11, 7, v10")
    e(f"s_lshl_b32 s{sT0}, s{sWAVE}, 1")
    e(f"v_xor_b32 v11, s{sT0}, v11")
    e("v_lshlrev_b32 v11, 5, v11")
    e("v_lshl_add_u32 v11, v10, 10, v11")
    e("v_and_b32 v10, 3, v1")
    e("v_lshl_add_u32 v11, v10, 3, v11")
    e("v_add_u32 v11, 0x10000, v11")
    e("v_xor_b32 v10, 32, v11")
    for j in range(2):
        for ks in range(2):
            d = 96 + 8*j + 4*ks
            e(f"ds_read_b64_tr_b16 v[{d}:{d+1}], v{[11,10][j]} offset:{32768*ks}")
            e(f"ds_read_b64_tr_b16 v[{d+2}:{d+3}], v{[11,10][j]} offset:{32768*ks+16384}")
    e("s_waitcnt lgkmcnt(0)")
    lab(lsk)
wait_cnt(T_CNT, C_XS, 1, 8, 9, sleep=2)
e(f"v_mov_b32 v8, {T_SAME}")
e("ds_read_b32 v9, v8")
e("s_waitcnt lgkmcnt(0)")
e(f"v_readfirstlane_b32 s{sSAME}, v9")
down_frags()
def tail_addr():
    e(f"s_lshl_b32 s{sT6}, s{sWAVE}, 10")
    e("v_lshlrev_b32 v126, 4, v1")
    e(f"v_add_u32 v126, s{sT6}, v126")
    e(f"s_mul_i32 s{sT0}, s{sR}, {28*256}")
    e(f"s_add_u32 s{sT0}, s{sT0}, {WS_DP}")
    e(f"v_add_u32 v126, s{sT0}, v126")
    e(f"s_lshl_b32 s{sT0}, s{sWAVE}, 8")
    e("v_and_b32 v127, 31, v1")
    e("v_lshlrev_b32 v127, 3, v127")
    e(f"v_add_u32 v127, s{sT0}, v127")
    e(f"v_add_u32 v127, {T_RED}, v127")
tail_addr()
e("s_branch L_T_H2")
lab("L_T_STREAM")
e(f"s_sub_u32 s{sT4}, s{sWAVE}, 12")
e(f"s_lshl_b32 s{sT0}, s{sT4}, 10")
e("v_lshlrev_b32 v4, 4, v1")
e(f"buffer_load_dwordx4 v[8:11], v4, {SE}, s{sT0} offen")
e("s_barrier")
load_tag()
e("s_waitcnt vmcnt(0)")
silu_to_act(T_ACT, T_CNT)
fin_tag()
lab("L_T_MODS")
lb2 = uid("B2")
C_SC = C_P
wait_cnt(T_CNT, C_SC, 1, 4, 5, sleep=4)
lm1 = uid("LM"); lm2 = uid("LM")
e(f"s_cmp_ge_u32 s{sWAVE}, 12")
e(f"s_cbranch_scc1 {lm1}")
e(f"s_sub_u32 s{sT0}, s{sWAVE}, 8")
e(f"s_lshl_b32 s{sT0}, s{sT0}, 13")
e(f"s_add_u32 s{sT0}, s{sT0}, {WS_M}")
e("v_lshlrev_b32 v4, 4, v1")
e(f"v_add_u32 v4, s{sT0}, v4")
e("v_add_u32 v5, 2048, v4")
e("v_add_u32 v6, 4096, v4")
poll([(32, 5, 0), (36, 5, 1024), (40, 6, 0), (44, 6, 1024)], sleep=2)
for (src, dst) in ((32, 48), (36, 52)):
    unpack2(src, dst, dst+1); unpack2(src+2, dst+2, dst+3)
for (src, dst) in ((40, 56), (44, 60)):
    unpack2(src, dst, dst+1); unpack2(src+2, dst+2, dst+3)
for i in range(8):
    e(f"v_add_f32 v{56+i}, 1.0, v{56+i}")
for i in range(0, 8, 2):
    rnd2(56+i, 57+i, 4)
e(f"s_branch {lb2}")
lab(lm1)
e(f"s_cmp_lg_u32 s{sWAVE}, 12")
e(f"s_cbranch_scc1 {lm2}")
e("v_lshrrev_b32 v4, 2, v1")
e("v_lshlrev_b32 v4, 13, v4")
e("v_and_b32 v5, 3, v1")
e("v_lshl_add_u32 v4, v5, 4, v4")
e(f"s_lshl_b32 s{sT0}, s{sR}, 6")
e(f"s_add_u32 s{sT0}, s{sT0}, {WS_M}")
e(f"v_add_u32 v4, s{sT0}, v4")
e("v_add_u32 v6, 6144, v4")
e("v_lshrrev_b32 v7, 2, v1")
e("v_lshlrev_b32 v7, 10, v7")
e("v_lshl_add_u32 v7, v5, 3, v7")
e(f"s_lshl_b32 s{sT0}, s{sR}, 5")
e("s_mov_b64 s[98:99], exec")
e("s_mov_b64 exec, 0xffff")
e(f"buffer_load_dwordx2 v[44:45], v7, {SF}, s{sT0} offen")
poll([(32, 4, 0), (36, 6, 0)], sleep=2)
e("s_mov_b64 exec, s[98:99]")
unpack2(32, 48, 49); unpack2(34, 50, 51)
unpack2(36, 52, 53); unpack2(38, 54, 55)
unpack2(44, 56, 57); unpack2(45, 58, 59)
e(f"s_branch {lb2}")
lab(lm2)
e(f"s_cmp_lg_u32 s{sWAVE}, 13")
e(f"s_cbranch_scc1 {lb2}")
e("v_lshlrev_b32 v5, 4, v1")
e(f"v_add_u32 v5, {WS_XCC}, v5")
e("s_mov_b64 s[98:99], exec")
e("s_mov_b64 exec, 0xffff")
poll([(8, 5, 0)], sleep=4)
e(f"s_getreg_b32 s{sT0}, hwreg(HW_REG_XCC_ID)")
e(f"s_and_b32 s{sT0}, s{sT0}, 0xf")
e(f"v_cmp_eq_u32 vcc, s{sT0}, v8")
e(f"v_cmp_eq_u32 s[{sM0}:{sM1}], s{sT0}, v10")
e(f"s_and_b64 vcc, vcc, s[{sM0}:{sM1}]")
e("s_cmp_eq_u64 vcc, exec")
e(f"s_cselect_b32 s{sSAME}, 1, 0")
if "forcesc1" in OPT: e(f"s_mov_b32 s{sSAME}, 0")
e("s_mov_b64 exec, s[98:99]")
e(f"v_mov_b32 v8, {T_SAME}")
e(f"v_mov_b32 v9, s{sSAME}")
e("ds_write_b32 v8, v9")
signal(T_CNT, C_XS, 10, 11)
lab(lb2)
def read_same():
    e(f"v_mov_b32 v8, {T_SAME}")
    e("ds_read_b32 v9, v8")
    e("s_waitcnt lgkmcnt(0)")
    e(f"v_readfirstlane_b32 s{sSAME}, v9")
wait_cnt(T_CNT, C_XS, 1, 8, 9, sleep=2)
read_same()
tail_addr()
e(f"s_sub_u32 s{sT4}, s{sWAVE}, 8")
e(f"s_lshl_b32 s{sT6}, s{sT4}, 10")
e("v_lshlrev_b32 v124, 4, v1")
e(f"v_add_u32 v124, s{sT6}, v124")
e(f"s_lshl_b32 s{sT0}, s{sR}, 13")
e(f"s_add_u32 s{sT0}, s{sT0}, {WS_AP}")
e(f"v_add_u32 v124, s{sT0}, v124")
e(f"s_lshl_b32 s{sT0}, s{sT4}, 8")
e("v_lshlrev_b32 v125, 4, v3")
e(f"v_add_u32 v125, s{sT0}, v125")
e(f"v_add_u32 v125, {T_RED}, v125")
e(f"s_lshl_b32 s{sT6}, s{sT4}, 10")
e("v_lshlrev_b32 v4, 4, v1")
e(f"v_add_u32 v4, s{sT6}, v4")
e(f"s_mul_i32 s{sT0}, s{sR}, {28*256}")
e(f"s_add_u32 s{sT0}, s{sT0}, {WS_DP}")
e(f"buffer_load_dwordx4 v[8:11], v4, {WS}, s{sT0} offen nt")
e(f"s_lshl_b32 s{sT0}, s{sR}, 8")
e(f"s_add_u32 s{sT0}, s{sT0}, {WS_X2}")
e("v_lshlrev_b32 v4, 4, v1")
e("s_mov_b64 exec, 0xffff")
e(f"buffer_load_dwordx4 v[16:19], v4, {WS}, s{sT0} offen nt")
e("s_mov_b64 exec, -1")
e("s_waitcnt vmcnt(0)")
stamp(3)
larm = uid("ARM"); lal = uid("AL"); lgo = uid("GO"); lad = uid("AD")
e(f"s_cmp_lg_u32 s{sWAVE}, 8")
e(f"s_cbranch_scc1 {larm}")
e(f"s_mul_i32 s{sT0}, s{sR}, {28*16}")
e(f"s_add_u32 s{sT0}, s{sT0}, {WS_OML}")
e("v_lshlrev_b32 v4, 4, v1")
e(f"v_add_u32 v4, s{sT0}, v4")
e(f"s_mov_b32 s{sT5}, 0")
e(f"s_mov_b32 s{sSPIN}, 0")
e("s_mov_b32 exec_lo, 0x0fffffff")
e("s_mov_b32 exec_hi, 0")
lab(lal)
e(f"buffer_load_dwordx4 v[8:11], v4, {WS}, 0 offen sc1")
e("s_waitcnt vmcnt(0)")
e(f"v_cmp_eq_u32 vcc, s{sTAG}, v9")
e(f"v_cmp_eq_u32 s[{sM0}:{sM1}], s{sTAG}, v11")
e(f"s_and_b64 vcc, vcc, s[{sM0}:{sM1}]")
e("s_cmp_eq_u64 vcc, 0")
e(f"s_cbranch_scc1 {lgo}")
e(f"s_cmp_lg_u32 s{sT5}, 0")
e(f"s_cbranch_scc1 {lgo}")
e(f"s_mov_b32 s{sT5}, 1")
e("s_mov_b64 s[96:97], vcc")
signal(T_CNT, C_GO, 12, 13)
e("s_mov_b64 vcc, s[96:97]")
lab(lgo)
e("s_cmp_eq_u64 vcc, exec")
e(f"s_cbranch_scc1 {lad}")
e("s_sleep 3")
e(f"s_add_u32 s{sSPIN}, s{sSPIN}, 1")
e(f"s_cmp_lt_u32 s{sSPIN}, {SPIN_MAX}")
e(f"s_cbranch_scc1 {lal}")
e("s_branch L_END")
lab(lad)
e("s_mov_b64 exec, -1")
signal(T_CNT, C_ARM, 12, 13)
lab(larm)
wait_cnt(T_CNT, C_ARM, 1, 8, 9, sleep=1)
stamp(17)
poll([(8, 124, 0)])
stamp(9)
def red_write(addr):
    e("v_mov_b32 v12, v8")
    e("v_mov_b32 v13, v10")
    nop(2)
    e("v_permlane32_swap_b32 v8, v12")
    e("v_permlane32_swap_b32 v10, v13")
    nop(1)
    e("v_add_f32 v8, v8, v12")
    e("v_add_f32 v9, v10, v13")
    e("s_mov_b32 exec_hi, 0")
    e(f"ds_write_b64 v{addr}, v[8:9]")
    e("s_mov_b32 exec_hi, -1")
def red_read(nw):
    per = 4 if nw > 8 else 2
    e(f"v_lshlrev_b32 v4, {10 if per == 4 else 9}, v2")
    e("v_lshl_add_u32 v4, v3, 4, v4")
    e(f"v_add_u32 v4, {T_RED}, v4")
    for i in range(per):
        e(f"ds_read_b128 v[{8+4*i}:{11+4*i}], v4 offset:{256*i}")
def red_sum(nw):
    e("s_waitcnt lgkmcnt(0)")
    if nw == 7:
        e("v_cmp_eq_u32 vcc, 3, v2")
        nop(2)
        for i in range(12, 16): e(f"v_cndmask_b32 v{i}, v{i}, v30, vcc")
    e("v_pk_add_f32 v[8:9], v[8:9], v[12:13]")
    e("v_pk_add_f32 v[10:11], v[10:11], v[14:15]")
    if nw > 8:
        e("v_pk_add_f32 v[16:17], v[16:17], v[20:21]")
        e("v_pk_add_f32 v[18:19], v[18:19], v[22:23]")
        e("v_pk_add_f32 v[8:9], v[8:9], v[16:17]")
        e("v_pk_add_f32 v[10:11], v[10:11], v[18:19]")
    for sw in ("v_permlane16_swap_b32", "v_permlane32_swap_b32"):
        for i in range(4): e(f"v_mov_b32 v{12+i}, v{8+i}")
        nop(1)
        for i in range(4): e(f"{sw} v{8+i}, v{12+i}")
        nop(1)
        e("v_pk_add_f32 v[8:9], v[8:9], v[12:13]")
        e("v_pk_add_f32 v[10:11], v[10:11], v[14:15]")
def quad_reduce_write(addr):
    unpack2(8, 12, 13); unpack2(10, 14, 15)
    for sw in ("v_permlane16_swap_b32", "v_permlane32_swap_b32"):
        for i in range(4): e(f"v_mov_b32 v{16+i}, v{12+i}")
        nop(1)
        for i in range(4): e(f"{sw} v{12+i}, v{16+i}")
        nop(1)
        e("v_pk_add_f32 v[12:13], v[12:13], v[16:17]")
        e("v_pk_add_f32 v[14:15], v[14:15], v[18:19]")
    e("s_mov_b64 exec, 0xffff")
    e(f"ds_write_b128 v{addr}, v[12:15]")
    e("s_mov_b64 exec, -1")
quad_reduce_write(125)
signal(T_CNT, C_RED, 12, 13)
stamp(4)
lw12 = uid("W12"); lw12b = uid("W12B")
e(f"s_cmp_eq_u32 s{sWAVE}, 12")
e(f"s_cbranch_scc1 {lw12b}")
down_frags()
e(f"s_branch {lw12}")
lab(lw12b)
wait_cnt(T_CNT, C_RED, 8, 8, 9, sleep=0)
red_read(8)
e("v_lshrrev_b32 v4, 2, v1")
e("v_lshlrev_b32 v4, 11, v4")
e("v_and_b32 v5, 3, v1")
e("v_lshl_add_u32 v4, v5, 4, v4")
e(f"s_lshl_b32 s{sT0}, s{sR}, 6")
e(f"s_add_u32 s{sT0}, s{sT0}, {WS_X2}")
red_sum(8)
e(f"v_mov_b32 v17, s{sTAG}")
e(f"v_mov_b32 v19, s{sTAG}")
rnd2(8, 9, 12); rnd2(10, 11, 13)
e("v_pk_mul_f32 v[8:9], v[48:49], v[8:9]")
e("v_pk_mul_f32 v[10:11], v[50:51], v[10:11]")
rnd2(8, 9, 12); rnd2(10, 11, 13)
e("v_pk_add_f32 v[8:9], v[56:57], v[8:9]")
e("v_pk_add_f32 v[10:11], v[58:59], v[10:11]")
e("v_cvt_pk_bf16_f32 v16, v8, v9")
e("v_cvt_pk_bf16_f32 v18, v10, v11")
e("s_mov_b64 exec, 0xffff")
lsc = uid("SC"); lsd = uid("SD")
e(f"s_cmp_eq_u32 s{sSAME}, 1")
e(f"s_cbranch_scc0 {lsc}")
e(f"buffer_store_dwordx4 v[16:19], v4, {WS}, s{sT0} offen")
e(f"s_branch {lsd}")
lab(lsc)
e(f"buffer_store_dwordx4 v[16:19], v4, {WS}, s{sT0} offen sc1")
lab(lsd)
e("s_mov_b64 exec, -1")
unpack2(16, 60, 61); unpack2(18, 62, 63)
stamp(10)
down_frags()
lab(lw12)
lln = uid("LN")
e(f"s_cmp_lt_u32 s{sWAVE}, 8")
e(f"s_cbranch_scc1 {lln}")
e(f"s_cmp_ge_u32 s{sWAVE}, 12")
e(f"s_cbranch_scc1 {lln}")
e(f"s_sub_u32 s{sT4}, s{sWAVE}, 8")
e(f"s_lshl_b32 s{sT0}, s{sT4}, 11")
e(f"s_add_u32 s{sT0}, s{sT0}, {WS_X2}")
e("v_lshlrev_b32 v4, 4, v1")
e(f"v_add_u32 v4, s{sT0}, v4")
e("v_lshrrev_b32 v6, 3, v1")
e("v_lshlrev_b32 v6, 6, v6")
e("v_and_b32 v7, 3, v1")
e("v_lshl_add_u32 v6, v7, 4, v6")
e("v_bfe_u32 v7, v1, 2, 1")
e("v_lshl_add_u32 v6, v7, 3, v6")
e(f"s_mul_i32 s{sT0}, s{sT4}, 1088")
e(f"s_add_u32 s{sT0}, s{sT0}, {T_H2}")
e(f"v_add_u32 v6, s{sT0}, v6")
poll([(8, 4, 0), (12, 4, 1024)], intra=True)
stamp(11)
unpack2(8, 16, 17); unpack2(10, 18, 19); unpack2(12, 20, 21); unpack2(14, 22, 23)
layernorm8(16, 24)
for i in range(0, 8, 2):
    e(f"v_pk_mul_f32 v[{16+i}:{17+i}], v[{16+i}:{17+i}], v[{56+i}:{57+i}]")
for i in range(0, 8, 2):
    rnd2(16+i, 17+i, 24)
for i in range(0, 8, 2):
    e(f"v_pk_add_f32 v[{16+i}:{17+i}], v[{16+i}:{17+i}], v[{48+i}:{49+i}]")
for i in range(4):
    e(f"v_cvt_pk_bf16_f32 v{8+i}, v{16+2*i}, v{17+2*i}")
e("ds_write_b64 v6, v[8:9]")
e("ds_write_b64 v6, v[10:11] offset:512")
stamp(12)
lab(lln)
lab("L_T_H2")
e("v_and_b32 v5, 3, v1")
e("v_mul_u32_u24 v6, 1088, v5")
e("v_lshl_add_u32 v6, v2, 4, v6")
e(f"v_add_u32 v6, {T_H2}, v6")
e("v_lshlrev_b32 v4, 6, v3")
e("v_lshlrev_b32 v7, 6, v5")
e(f"s_cmp_lt_u32 s{sWAVE}, 4")
e(f"s_cselect_b32 s{sT1}, 1024, 0")
lgu = uid("GU")
e(f"s_cbranch_scc0 {lgu}")
e("v_mov_b32 v4, v7")
lab(lgu)
e("v_lshl_add_u32 v4, v2, 4, v4")
e(f"s_lshl_b32 s{sT0}, s{sWAVE}, 8")
e(f"s_add_u32 s{sT0}, s{sT0}, s{sT1}")
e(f"s_add_u32 s{sT0}, s{sT0}, {T_GU}")
e(f"v_add_u32 v4, s{sT0}, v4")
e("v_mul_u32_u24 v7, 192, v5")
e("v_lshl_add_u32 v7, v2, 4, v7")
e(f"v_add_u32 v124, {T_ACTL}, v7")
e(f"s_lshr_b32 s{sT0}, s{sWAVE}, 1")
e(f"s_lshl_b32 s{sT0}, s{sT0}, 6")
e(f"s_and_b32 s{sT1}, s{sWAVE}, 1")
e(f"s_lshl_b32 s{sT1}, s{sT1}, 3")
e(f"s_add_u32 s{sT0}, s{sT0}, s{sT1}")
e(f"s_add_u32 s{sT0}, s{sT0}, {T_ACTL}")
e(f"v_add_u32 v7, s{sT0}, v7")
e("v_lshlrev_b32 v125, 6, v5")
e("v_lshl_add_u32 v125, v2, 4, v125")
e("v_bfe_u32 v8, v1, 2, 1")
e("v_cmp_eq_u32 s[86:87], 1, v8")
e(f"v_mul_u32_u24 v9, {28*256}, v8")
e("v_add_u32 v125, v125, v9")
e("v_bfe_u32 v8, v1, 3, 1")
e("v_cmp_eq_u32 s[96:97], 0, v8")
e(f"s_lshl_b32 s{sT0}, s{sWAVE}, 1")
e(f"s_mul_i32 s{sT0}, s{sT0}, {28*256}")
e(f"s_lshl_b32 s{sT1}, s{sR}, 8")
e(f"s_add_u32 s{sT0}, s{sT0}, s{sT1}")
e(f"s_add_u32 s{sT0}, s{sT0}, {WS_DP}")
e(f"v_add_u32 v125, s{sT0}, v125")
e("s_waitcnt lgkmcnt(0)")
e("s_barrier")
stamp(5)
lfin = uid("FIN")
e(f"s_cmp_ge_u32 s{sR}, 28")
e(f"s_cbranch_scc1 {lfin}")
lg = uid("G")
e(f"s_cmp_ge_u32 s{sWAVE}, 8")
e(f"s_cbranch_scc1 {lg}")
def tbread(grp):
    base = [8, 112][grp % 2]
    for k in range(4):
        ks = 4*grp + k
        e(f"ds_read_b128 v[{base+4*k}:{base+4*k+3}], v6 offset:{64*ks}")
def tb_regs(grp, k):
    if grp % 2 == 0: return 8 + 4*k
    return [112, 116, 120, 28][k]
def tbread2(grp):
    for k in range(4):
        ks = 4*grp + k; b_ = tb_regs(grp, k)
        e(f"ds_read_b128 v[{b_}:{b_+3}], v6 offset:{64*ks}")
tbread2(0); tbread2(1)
for grp in range(4):
    e(f"s_waitcnt lgkmcnt({4 if grp < 3 else 0})")
    for k in range(4):
        ks = 4*grp + k; b_ = tb_regs(grp, k)
        cin = "0" if ks == 0 else "v[24:27]"
        e(f"v_mfma_f32_16x16x32_bf16 v[24:27], v[{32+4*ks}:{35+4*ks}], v[{b_}:{b_+3}], {cin}")
    if grp + 2 < 4: tbread2(grp + 2)
nop(8)
stamp(13)
rnd2(24, 25, 28); rnd2(26, 27, 29)
lup2 = uid("UPW")
e(f"s_cmp_ge_u32 s{sWAVE}, 4")
e(f"s_cbranch_scc1 {lup2}")
for i in range(4): e(f"v_mul_f32 v{16+i}, {NLOG2E:#x}, v{24+i}")
for i in range(4): e(f"v_exp_f32 v{16+i}, v{16+i}")
nop(1)
for i in range(4): e(f"v_add_f32 v{16+i}, 1.0, v{16+i}")
for i in range(4): e(f"v_rcp_f32 v{16+i}, v{16+i}")
nop(1)
e("v_pk_mul_f32 v[24:25], v[24:25], v[16:17]")
e("v_pk_mul_f32 v[26:27], v[26:27], v[18:19]")
rnd2(24, 25, 28); rnd2(26, 27, 29)
e(f"s_branch {lg}")
lab(lup2)
e("v_cmp_gt_u32 vcc, 4, v3")
e(f"s_and_saveexec_b64 s[{sM0}:{sM1}], vcc")
e("ds_write_b128 v4, v[24:27]")
e(f"s_mov_b64 exec, s[{sM0}:{sM1}]")
lab(lg)
e("s_waitcnt lgkmcnt(0)")
e("s_barrier")
la = uid("A")
e(f"s_cmp_ge_u32 s{sWAVE}, 4")
e(f"s_cbranch_scc1 {la}")
e("ds_read_b128 v[12:15], v4")
e("v_cmp_gt_u32 vcc, 4, v3")
e("s_waitcnt lgkmcnt(0)")
e("v_pk_mul_f32 v[24:25], v[24:25], v[12:13]")
e("v_pk_mul_f32 v[26:27], v[26:27], v[14:15]")
e("v_cvt_pk_bf16_f32 v8, v24, v25")
e("v_cvt_pk_bf16_f32 v9, v26, v27")
e(f"s_and_saveexec_b64 s[{sM0}:{sM1}], vcc")
e("ds_write_b64 v7, v[8:9]")
e(f"s_mov_b64 exec, s[{sM0}:{sM1}]")
lab(la)
e(f"v_mov_b32 v29, s{sTAG}")
e(f"v_mov_b32 v31, s{sTAG}")
e("s_waitcnt lgkmcnt(0)")
e("s_barrier")
stamp(6)
e("ds_read_b128 v[8:11], v124")
e("ds_read_b128 v[12:15], v124 offset:64")
e("s_waitcnt lgkmcnt(0)")
for ks in range(2):
    for j in range(2):
        d = 96 + 8*j + 4*ks
        cin = "0" if ks == 0 else f"v[{16+4*j}:{19+4*j}]"
        e(f"v_mfma_f32_16x16x32_bf16 v[{16+4*j}:{19+4*j}], v[{d}:{d+3}], v[{8+4*ks}:{11+4*ks}], {cin}")
nop(8)
for i in range(4): e(f"v_cndmask_b32 v{24+i}, v{16+i}, v{20+i}, s[86:87]")
e("v_cvt_pk_bf16_f32 v28, v24, v25")
e("v_cvt_pk_bf16_f32 v30, v26, v27")
e("s_mov_b64 exec, s[96:97]")
lsc = uid("SC"); lsd = uid("SD")
e(f"s_cmp_eq_u32 s{sSAME}, 1")
e(f"s_cbranch_scc0 {lsc}")
e(f"buffer_store_dwordx4 v[28:31], v125, {WS}, 0 offen")
e(f"s_branch {lsd}")
lab(lsc)
e(f"buffer_store_dwordx4 v[28:31], v125, {WS}, 0 offen sc1")
lab(lsd)
e("s_mov_b64 exec, -1")
stamp(7)
lab(lfin)
lf2 = uid("F2")
e(f"s_cmp_ge_u32 s{sWAVE}, 7")
e(f"s_cbranch_scc1 {lf2}")
e(f"s_lshl_b32 s{sT0}, s{sWAVE}, 8")
e("v_lshlrev_b32 v127, 4, v3")
e(f"v_add_u32 v127, s{sT0}, v127")
e(f"v_add_u32 v127, {T_RED}, v127")
poll([(8, 126, 0)], intra=True)
stamp(14)
unpack2(8, 12, 13); unpack2(10, 14, 15)
for sw in ("v_permlane16_swap_b32", "v_permlane32_swap_b32"):
    for i in range(4): e(f"v_mov_b32 v{16+i}, v{12+i}")
    nop(1)
    for i in range(4): e(f"{sw} v{12+i}, v{16+i}")
    nop(1)
    e("v_pk_add_f32 v[12:13], v[12:13], v[16:17]")
    e("v_pk_add_f32 v[14:15], v[14:15], v[18:19]")
e("s_mov_b64 exec, 0xffff")
e("ds_write_b128 v127, v[12:15]")
e("s_mov_b64 exec, -1")
lab(lf2)
e("s_waitcnt lgkmcnt(0)")
stamp(16)
e("s_barrier")
e(f"s_cmp_lg_u32 s{sWAVE}, 12")
e("s_cbranch_scc1 L_END")
red_read(8)
e("v_mov_b32 v30, 0")
e("v_lshrrev_b32 v4, 2, v1")
e("v_lshlrev_b32 v4, 10, v4")
e("v_and_b32 v5, 3, v1")
e("v_lshl_add_u32 v4, v5, 3, v4")
e(f"s_lshl_b32 s{sT0}, s{sR}, 5")
red_sum(7)
rnd2(8, 9, 12); rnd2(10, 11, 13)
e("v_pk_mul_f32 v[8:9], v[52:53], v[8:9]")
e("v_pk_mul_f32 v[10:11], v[54:55], v[10:11]")
rnd2(8, 9, 12); rnd2(10, 11, 13)
e("v_pk_add_f32 v[8:9], v[60:61], v[8:9]")
e("v_pk_add_f32 v[10:11], v[62:63], v[10:11]")
e("v_cvt_pk_bf16_f32 v16, v8, v9")
e("v_cvt_pk_bf16_f32 v17, v10, v11")
e("s_mov_b64 exec, 0xffff")
e(f"buffer_store_dwordx2 v[16:17], v4, {SD}, s{sT0} offen")
le = uid("EP")
e(f"s_cmp_lg_u32 s{sR}, 0")
e(f"s_cbranch_scc1 {le}")
e("s_mov_b64 exec, 1")
e(f"v_mov_b32 v8, s{sTAG}")
e(f"s_mov_b32 s{sT0}, {WS_EPOCH}")
e(f"buffer_store_dword v8, off, {WS}, s{sT0} sc1")
lab(le)
if "span" in OPT:
    e(f"s_mov_b32 s28, s{P_DBG}")
    e(f"s_and_b32 s29, s{P_DBG+1}, 0xffff")
    e("s_mov_b32 s30, 256")
    e("s_mov_b32 s31, 0x20000")
    e("s_waitcnt vmcnt(0)")
    e(f"s_memrealtime s[{sST0}:{sST1}]")
    e("s_waitcnt lgkmcnt(0)")
    e(f"v_mov_b32 v8, s{sST0}")
    e("s_mov_b64 exec, 1")
    e("buffer_atomic_umax v8, off, s[28:31], 0 offset:4")
stamp(8)
lab("L_END")
if DIAG:
    e("s_mov_b64 exec, -1")
    stamp(31)
    e("v_lshlrev_b32 v4, 2, v1")
    e("v_cmp_gt_u32 vcc, 32, v1")
    e(f"s_and_saveexec_b64 s[{sM0}:{sM1}], vcc")
    e(f"buffer_store_dword v0, v4, {WS}, s{sSTAMP} offen")
lab("L_EXIT")
e("s_endpgm")

L.append('.section .rodata,"a"')
L.append(".p2align 6")
L.append(f".amdhsa_kernel {NAME}_kernel")
L.append("  .amdhsa_next_free_vgpr 128")
L.append("  .amdhsa_next_free_sgpr 102")
L.append("  .amdhsa_accum_offset 128")
L.append("  .amdhsa_group_segment_fixed_size 0")
L.append("  .amdhsa_kernarg_size 112")
L.append("  .amdhsa_user_sgpr_count 2")
L.append("  .amdhsa_user_sgpr_kernarg_segment_ptr 1")
L.append("  .amdhsa_system_sgpr_workgroup_id_x 1")
L.append("  .amdhsa_float_denorm_mode_32 3")
L.append(".end_amdhsa_kernel")

open(sys.argv[1], "w").write("\n".join(x for x in L if x is not None) + "\n")
```

```python
import sys

DIAG = int(sys.argv[2]) if len(sys.argv) > 2 else 0
import os
OPT = set(os.environ.get("OPT", "").split(","))
NAME = "adaLN_cond__sliding_block_cached__swiglu_ffn__decode"

L = []
def e(s): L.append("    " + s)
def lab(s): L.append(s + ":")
def c(s): L.append("    ; " + s)
def nop(n):
    while n > 0:
        k = min(n, 16); e(f"s_nop {k-1}"); n -= k
_uid = [0]
def uid(p):
    _uid[0] += 1
    return f"{p}_{_uid[0]}"

WS_EPOCH = 0
WS_XCC   = 0x100
WS_HS    = 0x200
WS_QS    = 0x400
WS_MS    = 0xC00
WS_H     = 0x1000
WS_X2    = 0x3000
WS_M     = 0x8000
WS_Q     = 0x10000
WS_OML   = 0x20000
WS_OD    = 0x40000
WS_AP    = 0xC0000
WS_DP    = 0x140000
WS_SC    = 0x1B0000
WS_STAMP = 0x200000
WS_SIZE  = 0x300000

S_V    = 0
S_E    = 81920
S_L    = 114688
S_MISC = 147456
S_ACT  = S_MISC
S_QL   = S_ACT + 4352
S_XN   = S_QL + 1280
S_EXC  = S_XN + 256
S_MAXB = S_EXC + 256
S_PB   = S_MAXB + 256
S_CNT  = S_PB + 2560
S_CG   = S_V
S_CML  = S_V + 8704
LDS_BYTES = 163840
C_EARLY, C_ACT, C_EXC, C_XN, C_KL, C_Q, C_MAX, C_P, F_V, C_PVD, C_LATE, C_HD, C_WQ, C_QD = range(14)

T_W    = 0
T_WQ   = 0
T_HST  = 122880
T_HM   = 155648
T_ACT  = T_HM
T_XN   = T_ACT + 4352
T_EXC  = T_XN + 256
T_CNT  = T_EXC + 256
T_SAME = T_CNT + 64
T_HL   = 131072 + 16384
T_MISC = 131072
T_ACC1 = T_MISC
T_ACC2 = T_ACC1 + 256
T_H2   = T_ACC2 + 256
T_GU   = T_H2 + 4352
T_ACTL = T_GU + 2048
T_RED  = T_ACTL + 768

sWAVE, sTAG, sX8, sR, sS = 3, 4, 5, 6, 7
WS, SA, SB, SC, SD, SE, SF = "s[8:11]", "s[12:15]", "s[16:19]", "s[20:23]", "s[24:27]", "s[28:31]", "s[32:35]"
P_X, P_K, P_V, P_WQ, P_WO, P_BX, P_WG, P_WU, P_WD, P_C, P_WM, P_OUT, P_DBG, P_WS = [36 + 2*i for i in range(14)]
sT0, sT1, sT2, sT3, sT4, sT5, sT6, sT7 = 64, 65, 66, 67, 68, 69, 70, 71
sM0, sM1 = 72, 73
sM2, sM3 = 74, 75
sSTAMP = 76
sKV = 77
sNT = 78
sU = 79
sUI = 80
sLATE = 81
sSPIN = 82
sSTRIDE = 83
sCB0, sCB1 = 84, 85
sP, sJ = 86, 87
sSAME = 88
sST0, sST1 = 90, 91
sH = 92; sNQ = 93; sQCU = 95; sKDONE = 100

SPIN_MAX = 200000
LSPIN_MAX = 4000000

def csel2(dst, a, b):
    e(f"s_mov_b32 s{dst}, {b}")
    e(f"s_cselect_b32 s{dst}, {a}, s{dst}")

def srd(dst0, ptr, nbytes):
    e(f"s_mov_b32 s{dst0}, s{ptr}")
    e(f"s_and_b32 s{dst0+1}, s{ptr+1}, 0xffff")
    e(f"s_mov_b32 s{dst0+2}, {nbytes}")
    e(f"s_mov_b32 s{dst0+3}, 0x20000")

def stamp(k, wave=None):
    if not DIAG: return
    l = None
    if wave is not None:
        l = uid("ST"); e(f"s_cmp_lg_u32 s{sWAVE}, {wave}"); e(f"s_cbranch_scc1 {l}")
    e(f"s_memrealtime s[{sST0}:{sST1}]")
    e("s_waitcnt lgkmcnt(0)")
    e(f"v_writelane_b32 v0, s{sST0}, {k}")
    if l: lab(l)

def signal(cnt_base, k, vt0, vt1):
    e(f"v_mov_b32 v{vt0}, {cnt_base + 4*k}")
    e(f"v_mov_b32 v{vt1}, 1")
    e(f"s_mov_b64 s[{sM2}:{sM3}], exec")
    e("s_mov_b64 exec, 1")
    e(f"ds_add_u32 v{vt0}, v{vt1}")
    e(f"s_mov_b64 exec, s[{sM2}:{sM3}]")

def wait_cnt(cnt_base, k, target, vt0, vt1, sleep=1):
    l = uid("W"); d = uid("WD")
    e(f"v_mov_b32 v{vt0}, {cnt_base + 4*k}")
    e(f"s_mov_b32 s{sSPIN}, 0")
    lab(l)
    e(f"ds_read_b32 v{vt1}, v{vt0}")
    e("s_waitcnt lgkmcnt(0)")
    e(f"v_readfirstlane_b32 s{sT7}, v{vt1}")
    e(f"s_cmp_ge_u32 s{sT7}, {target}")
    e(f"s_cbranch_scc1 {d}")
    if sleep: e(f"s_sleep {sleep}")
    e(f"s_add_u32 s{sSPIN}, s{sSPIN}, 1")
    e(f"s_cmp_lt_u32 s{sSPIN}, {LSPIN_MAX}")
    e(f"s_cbranch_scc1 {l}")
    e("s_branch L_END")
    lab(d)

def wait_mask(cnt_base, k, need, vt0, vt1, sleep=0):
    l = uid("W"); d = uid("WD")
    e(f"v_mov_b32 v{vt0}, {cnt_base + 4*k}")
    e(f"s_mov_b32 s{sSPIN}, 0")
    lab(l)
    e(f"ds_read_b32 v{vt1}, v{vt0}")
    e("s_waitcnt lgkmcnt(0)")
    e(f"v_readfirstlane_b32 s{sT7}, v{vt1}")
    e(f"s_and_b32 s{sT7}, s{sT7}, {need}")
    e(f"s_cmp_eq_u32 s{sT7}, {need}")
    e(f"s_cbranch_scc1 {d}")
    if sleep: e(f"s_sleep {sleep}")
    e(f"s_add_u32 s{sSPIN}, s{sSPIN}, 1")
    e(f"s_cmp_lt_u32 s{sSPIN}, {LSPIN_MAX}")
    e(f"s_cbranch_scc1 {l}")
    e("s_branch L_END")
    lab(d)

def signal_or(cnt_base, k, sbit, vt0, vt1):
    e(f"v_mov_b32 v{vt0}, {cnt_base + 4*k}")
    e(f"v_mov_b32 v{vt1}, s{sbit}")
    e(f"s_mov_b64 s[{sM2}:{sM3}], exec")
    e("s_mov_b64 exec, 1")
    e(f"ds_or_b32 v{vt0}, v{vt1}")
    e(f"s_mov_b64 exec, s[{sM2}:{sM3}]")

def poll(loads, sleep=0, intra=False, pre=0):
    d = uid("PD")
    if pre: e(f"s_sleep {pre}")
    e(f"s_mov_b32 s{sSPIN}, 0")
    flavs = ["sc1"]
    lsc = None
    if intra:
        lsc = uid("PS")
        e(f"s_cmp_eq_u32 s{sSAME}, 1")
        e(f"s_cbranch_scc0 {lsc}")
        flavs = ["nt", "sc1"]
    for fi, fl in enumerate(flavs):
        if intra and fi == 1: lab(lsc)
        l = uid("P")
        lab(l)
        for (dst, voff, imm) in loads:
            e(f"buffer_load_dwordx4 v[{dst}:{dst+3}], v{voff}, {WS}, 0 offen offset:{imm} {fl}")
        e("s_waitcnt vmcnt(0)")
        first = True
        for (dst, voff, imm) in loads:
            if first:
                e(f"v_cmp_eq_u32 vcc, s{sTAG}, v{dst+1}")
                first = False
            else:
                e(f"v_cmp_eq_u32 s[{sM0}:{sM1}], s{sTAG}, v{dst+1}")
                e(f"s_and_b64 vcc, vcc, s[{sM0}:{sM1}]")
            e(f"v_cmp_eq_u32 s[{sM0}:{sM1}], s{sTAG}, v{dst+3}")
            e(f"s_and_b64 vcc, vcc, s[{sM0}:{sM1}]")
        e("s_cmp_eq_u64 vcc, exec")
        e(f"s_cbranch_scc1 {d}")
        if sleep: e(f"s_sleep {sleep}")
        e(f"s_add_u32 s{sSPIN}, s{sSPIN}, 1")
        e(f"s_cmp_lt_u32 s{sSPIN}, {SPIN_MAX}")
        e(f"s_cbranch_scc1 {l}")
        e("s_branch L_END")
    lab(d)

def load_tag():
    e(f"s_load_dword s{sTAG}, s[{P_WS}:{P_WS+1}], {WS_EPOCH}")

def fin_tag():
    e("s_waitcnt lgkmcnt(0)")
    e(f"s_add_u32 s{sTAG}, s{sTAG}, 0x9E3779B9")

def sentinel_store(soff_sgpr, vpair):
    e(f"s_mov_b64 s[{sM2}:{sM3}], exec")
    e("s_mov_b64 exec, 1")
    e(f"buffer_store_dwordx2 v[{vpair}:{vpair+1}], off, {WS}, s{soff_sgpr} sc1")
    e(f"s_mov_b64 exec, s[{sM2}:{sM3}]")

def poll_lanes(nlanes, dst, voff, sleep):
    e("s_mov_b64 s[98:99], exec")
    if nlanes < 64:
        m = (1 << nlanes) - 1
        e(f"s_mov_b32 exec_lo, {m & 0xffffffff:#x}")
        e(f"s_mov_b32 exec_hi, {m >> 32:#x}")
    poll([(dst, voff, 0)], sleep=sleep)
    e("s_mov_b64 exec, s[98:99]")

def allreduce2(va, vb, t0, t1, op="add"):
    ins = f"v_{op}_f32"
    nop(2)
    for ctl in ("quad_perm:[1,0,3,2]", "quad_perm:[2,3,0,1]", "row_half_mirror", "row_mirror"):
        e(f"{ins}_dpp v{va}, v{va}, v{va} {ctl} row_mask:0xf bank_mask:0xf")
        e(f"{ins}_dpp v{vb}, v{vb}, v{vb} {ctl} row_mask:0xf bank_mask:0xf")
        nop(1)
    for sw in ("v_permlane16_swap_b32", "v_permlane32_swap_b32"):
        e(f"v_mov_b32 v{t0}, v{va}")
        e(f"v_mov_b32 v{t1}, v{vb}")
        nop(2)
        e(f"{sw} v{va}, v{t0}")
        e(f"{sw} v{vb}, v{t1}")
        nop(1)
        e(f"{ins} v{va}, v{va}, v{t0}")
        e(f"{ins} v{vb}, v{vb}, v{t1}")

def rnd2(a, b, t):
    e(f"v_cvt_pk_bf16_f32 v{t}, v{a}, v{b}")
    e(f"v_lshlrev_b32 v{a}, 16, v{t}")
    e(f"v_and_b32 v{b}, 0xffff0000, v{t}")

def unpack2(src, lo, hi):
    e(f"v_lshlrev_b32 v{lo}, 16, v{src}")
    e(f"v_and_b32 v{hi}, 0xffff0000, v{src}")

LOG2E = 0x3fb8aa3b
NLOG2E = 0xbfb8aa3b
SCALE = 0x3db504f3
EPS = 0x3727c5ac
INV512 = 0x3b000000

def layernorm8(x0, t):
    d = t + 4
    a, b, t0, t1 = t, t+1, t+2, t+3
    e(f"v_readfirstlane_b32 s{sT0}, v{x0}")
    e(f"v_readfirstlane_b32 s{sT1}, v{x0}")
    nop(2)
    for i in range(0, 8, 2):
        e(f"v_pk_add_f32 v[{d+i}:{d+i+1}], v[{x0+i}:{x0+i+1}], s[{sT0}:{sT1}] neg_lo:[0,1] neg_hi:[0,1]")
    e(f"v_pk_add_f32 v[{t0}:{t1}], v[{d}:{d+1}], v[{d+2}:{d+3}]")
    e(f"v_pk_mul_f32 v[{a}:{b}], v[{d}:{d+1}], v[{d}:{d+1}]")
    e(f"v_pk_add_f32 v[{t0}:{t1}], v[{t0}:{t1}], v[{d+4}:{d+5}]")
    e(f"v_pk_fma_f32 v[{a}:{b}], v[{d+2}:{d+3}], v[{d+2}:{d+3}], v[{a}:{b}]")
    e(f"v_pk_add_f32 v[{t0}:{t1}], v[{t0}:{t1}], v[{d+6}:{d+7}]")
    e(f"v_pk_fma_f32 v[{a}:{b}], v[{d+4}:{d+5}], v[{d+4}:{d+5}], v[{a}:{b}]")
    e(f"v_pk_fma_f32 v[{a}:{b}], v[{d+6}:{d+7}], v[{d+6}:{d+7}], v[{a}:{b}]")
    e(f"v_add_f32 v{b}, v{a}, v{b}")
    e(f"v_add_f32 v{a}, v{t0}, v{t1}")
    allreduce2(a, b, t0, t1)
    e(f"v_mul_f32 v{a}, {INV512:#x}, v{a}")
    e(f"v_mul_f32 v{b}, {INV512:#x}, v{b}")
    e(f"v_fma_f32 v{b}, -v{a}, v{a}, v{b}")
    e(f"v_add_f32 v{a}, s{sT0}, v{a}")
    e(f"v_max_f32 v{b}, 0, v{b}")
    rnd2(a, b, t0)
    e(f"v_add_f32 v{b}, {EPS:#x}, v{b}")
    e(f"v_cvt_pk_bf16_f32 v{t0}, v{b}, v{b}")
    e(f"v_lshlrev_b32 v{b}, 16, v{t0}")
    e(f"v_sqrt_f32 v{b}, v{b}")
    nop(1)
    for i in range(0, 8, 2):
        e(f"v_pk_add_f32 v[{x0+i}:{x0+i+1}], v[{x0+i}:{x0+i+1}], v[{a}:{b}] op_sel_hi:[1,0] neg_lo:[0,1] neg_hi:[0,1]")
    e(f"v_cvt_pk_bf16_f32 v{t0}, v{b}, v{b}")
    e(f"v_lshlrev_b32 v{b}, 16, v{t0}")
    e(f"v_rcp_f32 v{t0}, v{b}")
    for i in range(0, 8, 2):
        rnd2(x0+i, x0+i+1, d)
    for i in range(0, 8, 2):
        e(f"v_pk_mul_f32 v[{x0+i}:{x0+i+1}], v[{x0+i}:{x0+i+1}], v[{t0}:{t1}] op_sel_hi:[1,0]")
    for i in range(0, 8, 2):
        rnd2(x0+i, x0+i+1, d)

def silu_inplace(x, t0, t1):
    e(f"v_mul_f32 v{t0}, {NLOG2E:#x}, v{x}")
    e(f"v_exp_f32 v{t0}, v{t0}")
    nop(1)
    e(f"v_add_f32 v{t0}, 1.0, v{t0}")
    e(f"v_rcp_f32 v{t1}, v{t0}")
    nop(1)
    e(f"v_mul_f32 v{x}, v{x}, v{t1}")


SSL = int(os.environ.get("SSL", "2"))
TSL = int(os.environ.get("TSL", "4"))
ENT = "" if "Enont" in OPT else " nt"
SCS = int(os.environ.get("SCS", "1"))
EK = int(os.environ.get("EK", "3"))
PSL = int(os.environ.get("PSL", "8"))
QKW = int(os.environ.get("QKW", "0"))
WK = int(os.environ.get("WK", "4"))
KOV = int(os.environ.get("KOV", "2"))
hdr = open("cdna_kernels/" + NAME + ".s.ref").read().split("\n")
for ln in hdr:
    if ln.startswith("; Override") or ln.startswith("; grid=") or ln.startswith("; @launch"): continue
    if ln.startswith(";"): L.append(ln)
    else: break
L.append(f"; @launch grid=(256,1,1) block=(1024,1,1) lds={LDS_BYTES}")
for ln in """
 One persistent launch, one 16-wave workgroup per CU (160 KiB LDS), generated by a hand-written script.
 Roles by workgroup id w (x8 = w & 7, r = w >> 3); ids >= 256 exit:
   x8 < 7  "S": attention for (batch, kv head) pair r, key split x8 of the 2048-key window. K goes to registers in
           MFMA layout, V is staged in LDS by LDS-DMA and read transposed. Scores are rounded like the reference,
           softmax uses the true max of the split, splits are merged with their (max, sum). Extra duties by
           d = (x8 - r) mod 7: q projection (d = 0, 3), adaLN rows ga/sb/cb/gb (d = 1, 4), wo slice (d = 1, 2, 4, 5).
   x8 == 7 "T": sa/ca rows of the modulation, then x2 = x + ga*attn, LayerNorm, SwiGLU FFN and the output.
 Hand-offs between workgroups are 8-byte granules {payload, tag} in d_ws; tag = (word 0 of d_ws at entry) + constant,
 and the last workgroup stores the tag back, so granules of earlier launches never match. Cross-XCD granules use
 sc1 stores and loads; the T group checks at run time (XCC ids exchanged through d_ws) whether it sits on one XCD
 and only then uses L2-local stores/loads among its own members, otherwise sc1. All spin loops are bounded.
""".strip("\n").split("\n"):
    L.append(";" + ln)
L.append('.amdgcn_target "amdgcn-amd-amdhsa--gfx950"')
L.append(".text")
L.append(f".globl {NAME}_kernel")
L.append(".p2align 8")
L.append(f".type {NAME}_kernel,@function")
lab(f"{NAME}_kernel")

sKVB = 94
sEX0, sEX1 = 96, 97

e("s_cmp_ge_u32 s2, 256")
e("s_cbranch_scc1 L_EXIT")
e("s_load_dwordx16 s[36:51], s[0:1], 0")
e("s_load_dwordx8 s[52:59], s[0:1], 64")
e("s_load_dwordx4 s[60:63], s[0:1], 96")
e("v_lshrrev_b32 v2, 6, v0")
e("v_and_b32 v1, 63, v0")
e(f"v_readfirstlane_b32 s{sWAVE}, v2")
e(f"s_and_b32 s{sX8}, s2, 7")
e(f"s_lshr_b32 s{sR}, s2, 3")
e("v_lshrrev_b32 v2, 4, v1")
e("v_and_b32 v3, 15, v1")
e(f"s_lshl_b32 s{sSTAMP}, s2, 4")
e(f"s_add_u32 s{sSTAMP}, s{sSTAMP}, s{sWAVE}")
e(f"s_lshl_b32 s{sSTAMP}, s{sSTAMP}, 7")
e(f"s_add_u32 s{sSTAMP}, s{sSTAMP}, {WS_STAMP}")
if DIAG: e("v_mov_b32 v0, 0")
stamp(0)
e("s_waitcnt lgkmcnt(0)")
srd(8, P_WS, WS_SIZE)
if "span" in OPT:
    lsp = uid("SP")
    e(f"s_cmp_lg_u32 s{sWAVE}, 0")
    e(f"s_cbranch_scc1 {lsp}")
    e(f"s_mov_b32 s28, s{P_DBG}")
    e(f"s_and_b32 s29, s{P_DBG+1}, 0xffff")
    e("s_mov_b32 s30, 256")
    e("s_mov_b32 s31, 0x20000")
    e(f"s_memrealtime s[{sST0}:{sST1}]")
    e("s_waitcnt lgkmcnt(0)")
    e(f"s_not_b32 s{sST0}, s{sST0}")
    e(f"v_mov_b32 v8, s{sST0}")
    e("s_mov_b64 exec, 1")
    e("buffer_atomic_umax v8, off, s[28:31], 0")
    e("s_mov_b64 exec, -1")
    lab(lsp)
e(f"s_cmp_eq_u32 s{sX8}, 7")
e("s_cbranch_scc1 L_T")

def line_dma_voff(stride):
    e("v_lshrrev_b32 v4, 3, v1")
    e(f"v_mul_u32_u24 v4, {stride}, v4")
    e("v_bfe_u32 v5, v1, 1, 2")
    e("v_bfe_u32 v6, v1, 4, 2")
    e("v_xor_b32 v5, v5, v6")
    e("v_lshl_add_u32 v4, v5, 5, v4")
    e("v_and_b32 v5, 1, v1")
    e("v_lshl_add_u32 v4, v5, 4, v4")
def tr_line_addr(dst, base_sgpr):
    e("v_lshrrev_b32 v4, 2, v3")
    e("v_lshl_add_u32 v4, v2, 2, v4")
    e("v_bfe_u32 v5, v4, 1, 2")
    e(f"s_and_b32 s{sT1}, s{sWAVE}, 3")
    e(f"v_xor_b32 v5, s{sT1}, v5")
    e("v_lshlrev_b32 v4, 7, v4")
    e("v_lshl_add_u32 v4, v5, 5, v4")
    e("v_and_b32 v5, 3, v1")
    e("v_lshl_add_u32 v4, v5, 3, v4")
    e(f"v_add_u32 v{dst}, s{base_sgpr}, v4")
def mfma16(vaddr):
    def regs(grp, k):
        if grp % 2 == 0: return 8 + 4*k
        return [112, 116, 120, 28][k]
    def rd(grp):
        for k in range(4):
            b_ = regs(grp, k)
            e(f"ds_read_b128 v[{b_}:{b_+3}], v{vaddr} offset:{64*(4*grp+k)}")
    rd(0); rd(1)
    for grp in range(4):
        e(f"s_waitcnt lgkmcnt({4 if grp < 3 else 0})")
        for k in range(4):
            ks = 4*grp + k; b_ = regs(grp, k)
            cin = "0" if ks == 0 else "v[24:27]"
            e(f"v_mfma_f32_16x16x32_bf16 v[24:27], v[{32+4*ks}:{35+4*ks}], v[{b_}:{b_+3}], {cin}")
        if grp + 2 < 4: rd(grp + 2)
    nop(8)
def line_dma(stride):
    line_dma_voff(stride)
    e(f"s_lshl_b32 s{sT1}, s{sWAVE}, 13")
    e(f"s_mul_i32 s{sT2}, s{sWAVE}, {64*stride}")
    e(f"s_add_u32 s{sT2}, s{sT2}, s{sCB0}")
    for k in range(8):
        e(f"s_mov_b32 m0, s{sT1}")
        e(f"s_add_u32 s{sT1}, s{sT1}, 1024")
        e(f"buffer_load_dwordx4 v4, {SC}, s{sT2} offen nt lds")
        e(f"s_add_u32 s{sT2}, s{sT2}, {8*stride}")
def line_mfma(actbase, cnt, rowshift):
    e(f"s_mov_b32 s{sT2}, 0")
    tr_line_addr(7, sT2)
    e("v_and_b32 v5, 3, v1")
    e("v_mul_u32_u24 v6, 1088, v5")
    e("v_lshl_add_u32 v6, v2, 4, v6")
    e(f"v_add_u32 v6, {actbase}, v6")
    wait_cnt(cnt, C_WQ, 8, 8, 9, sleep=1)
    stamp(1)
    for ks in range(16):
        e(f"ds_read_b64_tr_b16 v[{32+4*ks}:{33+4*ks}], v7 offset:{4096*ks}")
        e(f"ds_read_b64_tr_b16 v[{34+4*ks}:{35+4*ks}], v7 offset:{4096*ks+2048}")
    wait_cnt(cnt, C_ACT, 4, 8, 9, sleep=1)
    stamp(2)
    mfma16(6)
    e("v_cvt_pk_bf16_f32 v28, v24, v25")
    e(f"v_mov_b32 v29, s{sTAG}")
    e("v_cvt_pk_bf16_f32 v30, v26, v27")
    e(f"v_mov_b32 v31, s{sTAG}")
    e(f"s_and_b32 s{sT2}, s{sWAVE}, 3")
    e(f"s_lshl_b32 s{sT2}, s{sT2}, 6")
    e(f"s_add_u32 s{sT1}, s{sCB1}, s{sT2}")
    e(f"v_lshlrev_b32 v8, {rowshift}, v3")
    e("v_lshl_add_u32 v8, v2, 4, v8")
    e("v_cmp_gt_u32 vcc, 4, v3")
    e(f"s_and_saveexec_b64 s[{sM0}:{sM1}], vcc")
    e(f"buffer_store_dwordx4 v[28:31], v8, {WS}, s{sT1} offen sc1")
    e(f"s_mov_b64 exec, s[{sM0}:{sM1}]")
    signal(cnt, C_QD, 8, 9)
    stamp(3)
def line_unit(actbase, cnt, stride, rowshift):
    lq8 = uid("Q8"); lq4 = uid("Q4")
    e(f"s_cmp_ge_u32 s{sWAVE}, 8")
    e(f"s_cbranch_scc1 {lq8}")
    line_dma(stride)
    load_tag()
    e("s_waitcnt vmcnt(0)")
    signal(cnt, C_WQ, 8, 9)
    fin_tag()
    e(f"s_cmp_ge_u32 s{sWAVE}, 4")
    e(f"s_cbranch_scc1 {lq4}")
    line_mfma(actbase, cnt, rowshift)
    e(f"s_branch {lq4}")
    lab(lq8)
    load_tag()
    fin_tag()
    lab(lq4)
def q_params():
    e(f"s_lshl_b32 s{sCB0}, s{sUI}, 7")
    e(f"s_lshl_b32 s{sCB1}, s{sUI}, 8")
    e(f"s_add_u32 s{sCB1}, s{sCB1}, {WS_Q}")

c("S role")
e(f"s_lshl_b32 s{sS}, s{sX8}, 5")
e(f"s_add_u32 s{sS}, s{sS}, s{sR}")
e(f"s_mul_i32 s{sT0}, s{sR}, 37")
e(f"s_lshr_b32 s{sT0}, s{sT0}, 8")
e(f"s_mul_i32 s{sT0}, s{sT0}, 7")
e(f"s_sub_u32 s{sT0}, s{sR}, s{sT0}")
e(f"s_add_u32 s{sT1}, s{sX8}, 7")
e(f"s_sub_u32 s{sT1}, s{sT1}, s{sT0}")
e(f"s_sub_u32 s{sT2}, s{sT1}, 7")
e(f"s_cmp_ge_u32 s{sT1}, 7")
e(f"s_cselect_b32 s{sT1}, s{sT2}, s{sT1}")
e(f"s_lshl_b32 s{sUI}, s{sR}, 1")
e(f"s_cmp_eq_u32 s{sT1}, 0")
e(f"s_cselect_b32 s{sQCU}, 1, 0")
e(f"s_cmp_eq_u32 s{sT1}, 3")
e(f"s_cselect_b32 s{sQCU}, 1, s{sQCU}")
e(f"s_cmp_eq_u32 s{sT1}, 1")
e(f"s_cselect_b32 s{sU}, 1, 0")
e(f"s_cmp_eq_u32 s{sT1}, 4")
e(f"s_cselect_b32 s{sU}, 1, s{sU}")
e(f"s_cmp_ge_u32 s{sT1}, 3")
e(f"s_addc_u32 s{sUI}, s{sUI}, 0")
if "modpair" in OPT:
    e(f"s_sub_u32 s{sT2}, s{sR}, 4")
    e(f"s_and_b32 s{sT2}, s{sT2}, 31")
    e(f"s_lshl_b32 s{sT2}, s{sT2}, 1")
    e(f"s_add_u32 s{sT2}, s{sT2}, 1")
    e(f"s_cmp_eq_u32 s{sT1}, 4")
    e(f"s_cselect_b32 s{sUI}, s{sT2}, s{sUI}")
e(f"s_lshr_b32 s{sT2}, 0x36, s{sT1}")
e(f"s_and_b32 s{sLATE}, s{sT2}, 1")
e(f"s_sub_u32 s{sNQ}, s{sT1}, 1")
e(f"s_cmp_ge_u32 s{sT1}, 4")
e(f"s_cselect_b32 s{sT2}, 1, 0")
e(f"s_sub_u32 s{sNQ}, s{sNQ}, s{sT2}")
e(f"s_mov_b32 s{sH}, s{sR}")
e(f"s_cmp_eq_u32 s{sQCU}, 1")
e(f"s_cselect_b32 s{sNT}, 7, 10")
e(f"s_add_u32 s{sT2}, s{sT0}, 3")
e(f"s_sub_u32 s{sT3}, s{sT2}, 7")
e(f"s_cmp_ge_u32 s{sT2}, 7")
e(f"s_cselect_b32 s{sT2}, s{sT3}, s{sT2}")
e(f"s_mul_i32 s{sT3}, s{sX8}, 10")
e(f"s_cmp_lt_u32 s{sT0}, s{sX8}")
e(f"s_cselect_b32 s{sT5}, 3, 0")
e(f"s_sub_u32 s{sT3}, s{sT3}, s{sT5}")
e(f"s_cmp_lt_u32 s{sT2}, s{sX8}")
e(f"s_cselect_b32 s{sT5}, 3, 0")
e(f"s_sub_u32 s{sT3}, s{sT3}, s{sT5}")
e(f"s_lshl_b32 s{sT0}, s{sT3}, 13")
e(f"s_lshl_b32 s{sT1}, s{sR}, 21")
e(f"s_add_u32 s{sKVB}, s{sT0}, s{sT1}")
e(f"s_add_u32 s{sKVB}, s{sKVB}, {6144*256}")

e(f"s_cmp_ge_u32 s{sWAVE}, 12")
e("s_cbranch_scc1 L_S_STREAM")
e(f"s_cmp_ge_u32 s{sWAVE}, 10")
e("s_cbranch_scc1 L_S_JOB")

c("tile waves 0..9")
srd(12, P_K, 4*8*8192*128*2)
e(f"s_lshl_b32 s{sT0}, s{sWAVE}, 13")
e(f"s_add_u32 s{sKV}, s{sKVB}, s{sT0}")
def k_addr():
    e("v_lshrrev_b32 v4, 2, v3")
    e("v_and_b32 v5, 1, v1")
    e("v_lshl_add_u32 v4, v4, 1, v5")
    e("v_lshlrev_b32 v4, 8, v4")
    e("v_bfe_u32 v5, v1, 1, 1")
    e("v_lshl_add_u32 v4, v5, 6, v4")
    e("v_lshl_add_u32 v4, v2, 4, v4")
def k_issue():
    e(f"s_add_u32 s{sT0}, s{sKV}, 4096")
    for kg in range(4):
        so = sKV if kg < 2 else sT0
        for s_ in range(2):
            d = 32 + 8*kg + 4*s_
            e(f"buffer_load_dwordx4 v[{d}:{d+3}], v4, {SA}, s{so} offen offset:{(kg & 1)*2048 + 128*s_} nt")
e(f"s_mov_b32 s{sT6}, 0")
le0 = uid("E0")
e(f"s_cmp_eq_u32 s{sQCU}, 1")
e(f"s_cbranch_scc1 {le0}")
e(f"s_cmp_ge_u32 s{sWAVE}, {min(WK, EK)}")
e(f"s_cbranch_scc1 {le0}")
k_addr()
k_issue()
e(f"s_mov_b32 s{sT6}, 1")
lab(le0)
e(f"s_mov_b32 s{sKDONE}, s{sT6}")
e("s_barrier")
lnq = uid("NOQ")
e(f"s_cmp_eq_u32 s{sQCU}, 0")
e(f"s_cbranch_scc1 {lnq}")
q_params()
lq8 = uid("Q8"); lq7 = uid("Q7")
e(f"s_cmp_ge_u32 s{sWAVE}, 8")
e(f"s_cbranch_scc1 {lq8}")
srd(20, P_WQ, 512*4096*2)
line_dma(8192)
if "kq_landed" in OPT:
    e("s_waitcnt vmcnt(0)")
    signal(S_CNT, C_WQ, 8, 9)
    wait_cnt(S_CNT, C_WQ, 8, 8, 9, sleep=1)
    e(f"s_branch {lnq}")
signal(S_CNT, C_XN, 8, 9)
wait_cnt(S_CNT, C_XN, 8, 8, 9, sleep=0)
e(f"s_cmp_ge_u32 s{sWAVE}, 7")
e(f"s_cbranch_scc1 {lq7}")
k_addr()
k_issue()
e(f"s_mov_b32 s{sKDONE}, 1")
e("s_waitcnt vmcnt(8)")
signal(S_CNT, C_WQ, 8, 9)
e(f"s_branch {lnq}")
lab(lq7)
e("s_waitcnt vmcnt(0)")
signal(S_CNT, C_WQ, 8, 9)
e(f"s_branch {lnq}")
lab(lq8)
load_tag()
fin_tag()
line_mfma(S_ACT, S_CNT, 14)
lab(lnq)
e("v_and_b32 v8, 3, v1")
e("v_lshl_add_u32 v13, v2, 2, v8")
e("v_lshlrev_b32 v13, 4, v13")
e(f"v_add_u32 v13, {S_PB}, v13")
e(f"s_cmp_ge_u32 s{sWAVE}, s{sNT}")
e("s_cbranch_scc1 L_S_ATT_IDLE")
if "kafter" in OPT: wait_cnt(S_CNT, C_EARLY, 4, 8, 9, sleep=1)
lk = uid("K"); lkd = uid("KD")
e(f"s_cmp_eq_u32 s{sKDONE}, 1")
e(f"s_cbranch_scc1 {lkd}")
e(f"s_cmp_lt_u32 s{sWAVE}, {WK}")
e(f"s_cbranch_scc1 {lk}")
e(f"s_sub_u32 s{sT5}, s{sWAVE}, {WK-1}")
wait_cnt(S_CNT, C_KL, f"s{sT5}", 8, 9, sleep=1)
lab(lk)
k_addr()
k_issue()
lab(lkd)
load_tag()
stamp(11)
e("v_and_b32 v8, 3, v1")
e("v_mul_u32_u24 v10, 320, v8")
e("v_lshl_add_u32 v10, v2, 4, v10")
e("v_bfe_u32 v11, v1, 2, 1")
e("v_lshl_add_u32 v10, v11, 6, v10")
e(f"v_add_u32 v10, {S_QL}, v10")
e("v_lshlrev_b32 v11, 6, v8")
e(f"v_add_u32 v11, {S_MAXB}, v11")
e(f"s_lshl_b32 s{sT0}, s{sWAVE}, 2")
e(f"v_add_u32 v12, s{sT0}, v11")
e(f"s_lshl_b32 s{sT0}, s{sWAVE}, 8")
e(f"v_add_u32 v14, s{sT0}, v13")
e("s_waitcnt vmcnt(0)")
signal(S_CNT, C_KL, 8, 9)
fin_tag()
stamp(12)
wait_cnt(S_CNT, C_Q, 2, 8, 9, sleep=1)
stamp(14)
for s_ in range(2):
    e(f"ds_read_b128 v[{64+4*s_}:{67+4*s_}], v10 offset:{128*s_}")
e("s_waitcnt lgkmcnt(0)")
for s_ in range(2):
    for kg in range(4):
        A = 96 + 4*kg
        cin = "0" if s_ == 0 else f"v[{A}:{A+3}]"
        e(f"v_mfma_f32_16x16x32_bf16 v[{A}:{A+3}], v[{32+8*kg+4*s_}:{35+8*kg+4*s_}], v[{64+4*s_}:{67+4*s_}], {cin}")
e(f"s_mov_b32 s{sT2}, {SCALE:#x}")
e(f"s_mov_b32 s{sT3}, {SCALE:#x}")
e(f"s_mov_b32 s{sT4}, {LOG2E:#x}")
nop(5)
for kg in range(4):
    for e_ in range(2):
        A = 96 + 4*kg
        e(f"v_add_f32_dpp v{80+2*kg+e_}, v{A+2+e_}, v{A+e_} row_shl:4 row_mask:0xf bank_mask:0xf")
for i in range(0, 8, 2):
    rnd2(80+i, 81+i, 16)
for i in range(0, 8, 2):
    e(f"v_pk_mul_f32 v[{80+i}:{81+i}], v[{80+i}:{81+i}], s[{sT2}:{sT3}]")
for i in range(0, 8, 2):
    rnd2(80+i, 81+i, 16)
e("v_max3_f32 v16, v80, v81, v82")
e("v_max3_f32 v16, v16, v83, v84")
e("v_max3_f32 v16, v16, v85, v86")
e("v_max_f32 v16, v16, v87")
for sw in ("v_permlane16_swap_b32", "v_permlane32_swap_b32"):
    e("v_mov_b32 v17, v16")
    nop(2)
    e(f"{sw} v16, v17")
    nop(1)
    e("v_max_f32 v16, v16, v17")
e("v_cmp_gt_u32 vcc, 4, v1")
e(f"s_and_saveexec_b64 s[{sM0}:{sM1}], vcc")
e("ds_write_b32 v12, v16")
e(f"s_mov_b64 exec, s[{sM0}:{sM1}]")
signal(S_CNT, C_MAX, 8, 9)
wait_cnt(S_CNT, C_MAX, f"s{sNT}", 8, 9, sleep=0)
for i in range(3):
    e(f"ds_read_b128 v[{16+4*i}:{19+4*i}], v11 offset:{16*i}")
e("s_waitcnt lgkmcnt(0)")
e("v_max3_f32 v16, v16, v17, v18")
e("v_max3_f32 v19, v19, v20, v21")
e("v_max3_f32 v22, v22, v23, v24")
e("v_max3_f32 v25, v25, v26, v27")
e("v_max3_f32 v16, v16, v19, v22")
e("v_max_f32 v16, v16, v25")
e(f"v_mul_f32 v15, s{sT4}, v16")
for i in range(8):
    e(f"v_fma_f32 v{80+i}, v{80+i}, s{sT4}, -v15")
for i in range(8):
    e(f"v_exp_f32 v{80+i}, v{80+i}")
nop(1)
for i in range(4):
    e(f"v_cvt_pk_bf16_f32 v{16+i}, v{80+2*i}, v{81+2*i}")
e("v_cmp_gt_u32 vcc, 4, v3")
e(f"s_and_saveexec_b64 s[{sM0}:{sM1}], vcc")
e("ds_write_b128 v14, v[16:19]")
e(f"s_mov_b64 exec, s[{sM0}:{sM1}]")
signal(S_CNT, C_P, 8, 9)
stamp(15)
lab("L_S_PVSTART")
e(f"s_cmp_ge_u32 s{sWAVE}, 8")
e("s_cbranch_scc1 L_S_LATE")
e("v_bfe_u32 v9, v1, 3, 1")
e("v_bfe_u32 v10, v1, 2, 1")
e("v_lshl_add_u32 v10, v2, 1, v10")
e("v_lshl_add_u32 v11, v9, 3, v10")
e("v_lshlrev_b32 v9, 2, v9")
e("v_xor_b32 v10, v10, v9")
e(f"v_xor_b32 v10, s{sWAVE}, v10")
e("v_lshlrev_b32 v10, 5, v10")
e("v_lshl_add_u32 v10, v11, 8, v10")
e("v_and_b32 v11, 3, v1")
e("v_lshl_add_u32 v10, v11, 3, v10")
e("v_add_u32 v11, 0x10000, v10")
for i in range(4): e(f"v_mov_b32 v{28+i}, 0x3f803f80")
e(f"s_and_b32 s{sT0}, s{sR}, 7")
e(f"s_lshr_b32 s{sT1}, s{sR}, 3")
e(f"s_mul_i32 s{sT1}, s{sT1}, 7")
e(f"s_add_u32 s{sT1}, s{sT1}, s{sX8}")
e(f"s_mul_i32 s{sT0}, s{sT0}, {4*28}")
e(f"s_add_u32 s{sT0}, s{sT0}, s{sT1}")
e("v_mul_u32_u24 v12, 28, v3")
e(f"v_add_u32 v12, s{sT0}, v12")
e("v_lshlrev_b32 v14, 4, v12")
e("v_lshlrev_b32 v12, 9, v12")
e("v_lshl_add_u32 v12, v2, 4, v12")
e(f"s_lshl_b32 s{sT0}, s{sWAVE}, 6")
e(f"v_add_u32 v12, s{sT0}, v12")
e(f"v_mov_b32 v17, s{sTAG}")
e(f"v_mov_b32 v19, s{sTAG}")
e(f"v_mov_b32 v21, s{sTAG}")
e(f"v_mov_b32 v23, s{sTAG}")
wait_cnt(S_CNT, C_P, f"s{sNT}", 8, 9, sleep=0)
def vbase(a): return (10, a*8192) if a < 8 else (11, (a-8)*8192)
for NTv in (7, 10):
    lnext = uid("NT")
    if NTv == 7:
        e(f"s_cmp_eq_u32 s{sNT}, 7")
        e(f"s_cbranch_scc0 {lnext}")
    for a in range(NTv):
        e(f"ds_read_b128 v[{80+4*a}:{83+4*a}], v13 offset:{256*a}")
    for a in range(NTv):
        e(f"s_waitcnt lgkmcnt({NTv-1-a})")
        cin = "0" if a == 0 else "v[124:127]"
        e(f"v_mfma_f32_16x16x32_bf16 v[124:127], v[28:31], v[{80+4*a}:{83+4*a}], {cin}")
    wait_mask(S_CNT, F_V, (1 << (NTv-1)) - 1, 8, 9, sleep=1)
    stamp(16)
    n = NTv - 1; WIN = 7
    def vread(a):
        vb, off = vbase(a)
        e(f"ds_read_b64_tr_b16 v[{32+4*a}:{33+4*a}], v{vb} offset:{off}")
        e(f"ds_read_b64_tr_b16 v[{34+4*a}:{35+4*a}], v{vb} offset:{off+4096}")
    for a in range(min(WIN, n)): vread(a)
    for a in range(n):
        rem = 2*(min(a + WIN, n) - (a + 1))
        e(f"s_waitcnt lgkmcnt({rem})")
        cin = "0" if a == 0 else "v[120:123]"
        e(f"v_mfma_f32_16x16x32_bf16 v[120:123], v[{32+4*a}:{35+4*a}], v[{80+4*a}:{83+4*a}], {cin}")
        if a + WIN < n: vread(a + WIN)
    e("v_rcp_f32 v24, v124")
    wait_mask(S_CNT, F_V, (1 << NTv) - 1, 8, 9, sleep=0)
    stamp(13)
    a = NTv - 1
    vb, off = vbase(a)
    e(f"ds_read_b64_tr_b16 v[{32+4*a}:{33+4*a}], v{vb} offset:{off}")
    e(f"ds_read_b64_tr_b16 v[{34+4*a}:{35+4*a}], v{vb} offset:{off+4096}")
    e("s_waitcnt lgkmcnt(0)")
    e(f"v_mfma_f32_16x16x32_bf16 v[120:123], v[{32+4*a}:{35+4*a}], v[{80+4*a}:{83+4*a}], v[120:123]")
    if NTv == 7:
        e("s_branch L_S_PVEND")
        lab(lnext)
lab("L_S_PVEND")
signal(S_CNT, C_PVD, 8, 9)
e("v_mov_b32 v20, v15")
e("v_mov_b32 v22, v124")
nop(2)
e("v_pk_mul_f32 v[120:121], v[120:121], v[24:25] op_sel_hi:[1,0]")
e("v_pk_mul_f32 v[122:123], v[122:123], v[24:25] op_sel_hi:[1,0]")
e("v_cvt_pk_bf16_f32 v16, v120, v121")
e("v_cvt_pk_bf16_f32 v18, v122, v123")
e(f"s_mov_b32 s{sT2}, {WS_OD}")
e("v_cmp_gt_u32 vcc, 4, v3")
e(f"s_and_saveexec_b64 s[{sM0}:{sM1}], vcc")
e(f"buffer_store_dwordx4 v[16:19], v12, {WS}, s{sT2} offen sc1")
lml = uid("ML")
e(f"s_cmp_lg_u32 s{sWAVE}, 0")
e(f"s_cbranch_scc1 {lml}")
e("s_mov_b64 exec, 15")
e(f"s_mov_b32 s{sT2}, {WS_OML}")
e(f"buffer_store_dwordx4 v[20:23], v14, {WS}, s{sT2} offen sc1")
lab(lml)
e(f"s_mov_b64 exec, s[{sM0}:{sM1}]")
stamp(7)
e("s_branch L_S_LATE")
lab("L_S_ATT_IDLE")
load_tag()
fin_tag()
e("s_branch L_S_PVSTART")

lab("L_S_JOB")
c("job waves 10,11")
e("s_setprio 3")
def zero_counters(cnt, maxb=None):
    e("v_lshlrev_b32 v4, 2, v1")
    if maxb is not None:
        e(f"v_add_u32 v5, {maxb}, v4")
        e("v_mov_b32 v6, 0xff800000")
        e("ds_write_b32 v5, v6")
    e(f"v_add_u32 v4, {cnt}, v4")
    e("v_mov_b32 v5, 0")
    e("v_cmp_gt_u32 vcc, 16, v1")
    e(f"s_and_saveexec_b64 s[{sM0}:{sM1}], vcc")
    e("ds_write_b32 v4, v5")
    e(f"s_mov_b64 exec, s[{sM0}:{sM1}]")
    e("s_waitcnt lgkmcnt(0)")
zero_counters(S_CNT, S_MAXB)
e("s_barrier")
load_tag()
e(f"s_sub_u32 s{sT4}, s{sWAVE}, 10")
stamp(20)
def gemv_job(ebase, actbase, cnt, act_target):
    e("v_lshrrev_b32 v4, 2, v3")
    e("v_lshl_add_u32 v4, v2, 2, v4")
    e("v_lshlrev_b32 v4, 6, v4")
    e("v_and_b32 v5, 1, v2")
    e(f"v_xor_b32 v5, s{sT4}, v5")
    e("v_lshl_add_u32 v4, v5, 5, v4")
    e("v_and_b32 v5, 3, v1")
    e("v_lshl_add_u32 v4, v5, 3, v4")
    e(f"v_add_u32 v4, {ebase}, v4")
    e("v_mul_u32_u24 v6, 1088, v5")
    e("v_lshl_add_u32 v6, v2, 4, v6")
    e(f"v_add_u32 v6, {actbase}, v6")
    wait_cnt(cnt, C_EARLY, 4, 8, 9, sleep=1)
    stamp(1)
    for ks in range(16):
        e(f"ds_read_b64_tr_b16 v[{32+4*ks}:{33+4*ks}], v4 offset:{2048*ks}")
        e(f"ds_read_b64_tr_b16 v[{34+4*ks}:{35+4*ks}], v4 offset:{2048*ks+1024}")
    wait_cnt(cnt, C_ACT, act_target, 8, 9, sleep=1)
    stamp(2)
    BB = [96, 8]
    def bread(grp):
        base = BB[grp % 2]
        for k in range(4):
            ks = 4*grp + k
            e(f"ds_read_b128 v[{base+4*k}:{base+4*k+3}], v6 offset:{64*ks}")
    bread(0); bread(1)
    for grp in range(4):
        e(f"s_waitcnt lgkmcnt({4 if grp < 3 else 0})")
        base = BB[grp % 2]
        for k in range(4):
            ks = 4*grp + k
            cin = "0" if ks == 0 else "v[24:27]"
            e(f"v_mfma_f32_16x16x32_bf16 v[24:27], v[{32+4*ks}:{35+4*ks}], v[{base+4*k}:{base+4*k+3}], {cin}")
        if grp + 2 < 4: bread(grp + 2)
    nop(8)
fin_tag()
e(f"s_cmp_eq_u32 s{sU}, 0")
e("s_cbranch_scc1 L_S_JOB_Q")
gemv_job(S_E, S_ACT, S_CNT, 4)
e("v_cvt_pk_bf16_f32 v28, v24, v25")
e(f"v_mov_b32 v29, s{sTAG}")
e("v_cvt_pk_bf16_f32 v30, v26, v27")
e(f"v_mov_b32 v31, s{sTAG}")
e(f"s_lshl_b32 s{sT1}, s{sUI}, 7")
e(f"s_add_u32 s{sT1}, s{sT1}, {WS_M}")
e(f"s_lshl_b32 s{sT2}, s{sT4}, 6")
e(f"s_add_u32 s{sT1}, s{sT1}, s{sT2}")
e("v_lshlrev_b32 v8, 13, v3")
e("v_lshl_add_u32 v8, v2, 4, v8")
e("v_cmp_gt_u32 vcc, 4, v3")
e(f"s_and_saveexec_b64 s[{sM0}:{sM1}], vcc")
e(f"buffer_store_dwordx4 v[28:31], v8, {WS}, s{sT1} offen sc1")
e(f"s_mov_b64 exec, s[{sM0}:{sM1}]")
stamp(3)
lab("L_S_JOB_Q")
ljq = uid("JQ")
e(f"s_cmp_eq_u32 s{sQCU}, 0")
e(f"s_cbranch_scc1 {ljq}")
q_params()
line_mfma(S_ACT, S_CNT, 14)
e(f"s_sub_u32 s{sT4}, s{sWAVE}, 10")
wait_cnt(S_CNT, C_QD, 4, 8, 9, sleep=2)
lab(ljq)
if "bafterk" in OPT:
    e(f"s_sub_u32 s{sT5}, s{sNT}, 2")
    e(f"s_cmp_eq_u32 s{sQCU}, 1")
    e(f"s_cselect_b32 s{sT5}, 0, s{sT5}")
    wait_cnt(S_CNT, C_KL, f"s{sT5}", 8, 9, sleep=2)
e(f"s_lshr_b32 s{sT0}, s{sR}, 3")
e(f"s_lshl_b32 s{sT0}, s{sT0}, 14")
e(f"s_and_b32 s{sT1}, s{sR}, 7")
e(f"s_lshl_b32 s{sT1}, s{sT1}, 11")
e(f"s_add_u32 s{sT0}, s{sT0}, s{sT1}")
e(f"s_lshl_b32 s{sT1}, s{sT4}, 10")
e(f"s_add_u32 s{sT0}, s{sT0}, s{sT1}")
e(f"s_add_u32 s{sT0}, s{sT0}, {WS_Q}")
e("v_lshlrev_b32 v5, 4, v1")
e(f"v_add_u32 v5, s{sT0}, v5")
e("v_lshrrev_b32 v6, 5, v1")
e(f"s_lshl_b32 s{sT0}, s{sT4}, 1")
e(f"v_add_u32 v6, s{sT0}, v6")
e("v_mul_u32_u24 v6, 320, v6")
e("v_and_b32 v7, 31, v1")
e("v_lshl_add_u32 v6, v7, 3, v6")
e(f"v_add_u32 v6, {S_QL}, v6")
if "nopipe" in OPT:
    poll([(8, 5, 0)], sleep=SSL)
    e("v_mov_b32 v9, v10")
    e("ds_write_b64 v6, v[8:9]")
else:
    R = [100, 104, 108]
    lpl = uid("PP"); lpd = uid("PPD")
    e(f"s_mov_b32 s{sSPIN}, 0")
    for r_ in R:
        e(f"buffer_load_dwordx4 v[{r_}:{r_+3}], v5, {WS}, 0 offen sc1")
        if r_ != R[-1]: e(f"s_sleep {PSL}")
    lab(lpl)
    oks = []
    for r_ in R:
        ok = uid("OK"); oks.append(ok)
        e("s_waitcnt vmcnt(2)")
        e(f"v_cmp_eq_u32 vcc, s{sTAG}, v{r_+1}")
        e(f"v_cmp_eq_u32 s[{sM0}:{sM1}], s{sTAG}, v{r_+3}")
        e(f"s_and_b64 vcc, vcc, s[{sM0}:{sM1}]")
        e("s_cmp_eq_u64 vcc, exec")
        e(f"s_cbranch_scc1 {ok}")
        e(f"s_sleep {PSL}")
        e(f"buffer_load_dwordx4 v[{r_}:{r_+3}], v5, {WS}, 0 offen sc1")
    e(f"s_add_u32 s{sSPIN}, s{sSPIN}, 1")
    e(f"s_cmp_lt_u32 s{sSPIN}, {SPIN_MAX}")
    e(f"s_cbranch_scc1 {lpl}")
    e("s_branch L_END")
    for r_, ok in zip(R, oks):
        lab(ok)
        e(f"v_mov_b32 v8, v{r_}")
        e(f"v_mov_b32 v9, v{r_+2}")
        e(f"s_branch {lpd}")
    lab(lpd)
    e("ds_write_b64 v6, v[8:9]")
signal(S_CNT, C_Q, 24, 25)
stamp(5)
e("s_branch L_S_LATE")

def early_dma(ebase, scb0, scb1, stride):
    e("v_lshrrev_b32 v5, 2, v1")
    e(f"v_mul_u32_u24 v5, {stride}, v5")
    e("v_bfe_u32 v6, v1, 1, 1")
    e("v_bfe_u32 v7, v1, 4, 1")
    e("v_xor_b32 v6, v6, v7")
    e(f"v_mov_b32 v7, s{scb0}")
    e(f"v_mov_b32 v16, s{scb1}")
    e("v_cmp_eq_u32 vcc, 1, v6")
    nop(2)
    e("v_cndmask_b32 v7, v7, v16, vcc")
    e("v_add_u32 v5, v5, v7")
    e("v_and_b32 v6, 1, v1")
    e("v_lshl_add_u32 v5, v6, 4, v5")
    e(f"s_lshl_b32 s{sT1}, s{sT4}, 3")
    e(f"s_mul_i32 s{sT2}, s{sT1}, {16*stride}")
    e(f"s_lshl_b32 s{sT1}, s{sT1}, 10")
    e(f"s_add_u32 s{sT1}, s{sT1}, {ebase}")
    for k in range(8):
        e(f"s_mov_b32 m0, s{sT1}")
        e(f"s_add_u32 s{sT1}, s{sT1}, 1024")
        e(f"buffer_load_dwordx4 v5, {SC}, s{sT2} offen nt lds")
        e(f"s_add_u32 s{sT2}, s{sT2}, {16*stride}")
def silu_to_act(actbase, cnt):
    for i in range(4):
        unpack2(8+i, 16+2*i, 17+2*i)
    for i in range(8):
        silu_inplace(16+i, 24, 25)
    for i in range(4):
        e(f"v_cvt_pk_bf16_f32 v{8+i}, v{16+2*i}, v{17+2*i}")
    e("v_lshrrev_b32 v6, 2, v1")
    e("v_lshlrev_b32 v6, 6, v6")
    e("v_and_b32 v7, 1, v1")
    e("v_lshl_add_u32 v6, v7, 5, v6")
    e("v_bfe_u32 v7, v1, 1, 1")
    e("v_lshl_add_u32 v6, v7, 3, v6")
    e(f"s_mul_i32 s{sT0}, s{sT4}, 1088")
    e(f"s_add_u32 s{sT0}, s{sT0}, {actbase}")
    e(f"v_add_u32 v6, s{sT0}, v6")
    e("ds_write_b64 v6, v[8:9]")
    e("ds_write_b64 v6, v[10:11] offset:16")
    signal(cnt, C_ACT, 24, 25)

lab("L_S_STREAM")
c("streamer waves 12..15")
e("s_setprio 2")
e(f"s_sub_u32 s{sT4}, s{sWAVE}, 12")
if "bfirst" in OPT: e("s_barrier")
lnoe = uid("NOE")
e(f"s_cmp_eq_u32 s{sU}, 0")
e(f"s_cbranch_scc1 {lnoe}")
srd(28, P_C, 4096)
srd(20, P_WM, 512*3072*2)
e(f"s_lshl_b32 s{sT0}, s{sT4}, 10")
e("v_lshlrev_b32 v4, 4, v1")
e(f"buffer_load_dwordx4 v[8:11], v4, {SE}, s{sT0} offen")
e(f"s_lshl_b32 s{sCB0}, s{sUI}, 6")
e(f"s_add_u32 s{sCB0}, s{sCB0}, 2048")
e(f"s_add_u32 s{sCB1}, s{sCB0}, 32")
early_dma(S_E, sCB0, sCB1, 6144)
lab(lnoe)
if "bfirst" not in OPT: e("s_barrier")
load_tag()
srd(16, P_V, 4*8*8192*128*2)
srd(24, P_WO, 4096*512*2)
lafter = uid("LAF")
e(f"s_cmp_eq_u32 s{sU}, 0")
e(f"s_cbranch_scc1 {lafter}")
e("s_waitcnt vmcnt(8)")
silu_to_act(S_ACT, S_CNT)
lab(lafter)
lnq2 = uid("NOQ")
e(f"s_cmp_eq_u32 s{sQCU}, 0")
e(f"s_cbranch_scc1 {lnq2}")
srd(32, P_X, 4096)
e(f"s_lshl_b32 s{sT0}, s{sT4}, 10")
e("v_lshlrev_b32 v4, 3, v1")
e(f"buffer_load_dwordx2 v[8:9], v4, {SF}, s{sT0} offen")
e(f"buffer_load_dwordx2 v[10:11], v4, {SF}, s{sT0} offen offset:512")
e(f"s_lshl_b32 s{sT0}, s{sT4}, 12")
e(f"s_add_u32 s{sT0}, s{sT0}, {WS_SC}")
e("v_lshlrev_b32 v5, 4, v1")
e(f"v_add_u32 v5, s{sT0}, v5")
e("v_lshrrev_b32 v6, 3, v1")
e("v_lshlrev_b32 v6, 6, v6")
e("v_and_b32 v7, 3, v1")
e("v_lshl_add_u32 v6, v7, 4, v6")
e("v_bfe_u32 v7, v1, 2, 1")
e("v_lshl_add_u32 v6, v7, 3, v6")
e(f"s_mul_i32 s{sT0}, s{sT4}, 1088")
e(f"s_add_u32 s{sT0}, s{sT0}, {S_ACT}")
e(f"v_add_u32 v6, s{sT0}, v6")
e("s_waitcnt vmcnt(0) lgkmcnt(0)")
e(f"s_add_u32 s{sTAG}, s{sTAG}, 0x9E3779B9")
for i in range(4): unpack2(8+i, 16+2*i, 17+2*i)
layernorm8(16, 24)
wait_cnt(S_CNT, C_WQ, 8, 36, 37, sleep=1)
poll([(40, 5, 0), (44, 5, 1024), (48, 5, 2048), (52, 5, 3072)], sleep=SCS)
for (src, dst) in ((48, 56), (50, 58), (52, 60), (54, 62)): unpack2(src, dst, dst+1)
for i in range(0, 8, 2): e(f"v_pk_add_f32 v[{56+i}:{57+i}], v[{56+i}:{57+i}], 1.0 op_sel_hi:[1,0]")
for i in range(0, 8, 2): rnd2(56+i, 57+i, 24)
for i in range(0, 8, 2): e(f"v_pk_mul_f32 v[{16+i}:{17+i}], v[{16+i}:{17+i}], v[{56+i}:{57+i}]")
for i in range(0, 8, 2): rnd2(16+i, 17+i, 24)
for (src, dst) in ((40, 56), (42, 58), (44, 60), (46, 62)): unpack2(src, dst, dst+1)
for i in range(0, 8, 2): e(f"v_pk_add_f32 v[{16+i}:{17+i}], v[{16+i}:{17+i}], v[{56+i}:{57+i}]")
for i in range(4): e(f"v_cvt_pk_bf16_f32 v{8+i}, v{16+2*i}, v{17+2*i}")
e("ds_write_b64 v6, v[8:9]")
e("ds_write_b64 v6, v[10:11] offset:512")
signal(S_CNT, C_ACT, 24, 25)
stamp(6)
wait_cnt(S_CNT, C_QD, 4, 24, 25, sleep=1)
e(f"s_sub_u32 s{sTAG}, s{sTAG}, 0x9E3779B9")
lab(lnq2)
e("v_lshrrev_b32 v5, 1, v3")
e("v_xor_b32 v5, v5, v2")
e("v_lshlrev_b32 v5, 5, v5")
e("v_and_b32 v6, 1, v1")
e("v_lshl_add_u32 v5, v6, 4, v5")
e("v_lshl_add_u32 v7, v2, 10, v5")
e("v_lshl_add_u32 v5, v2, 8, v5")
e("v_xor_b32 v6, 128, v5")
e("v_xor_b32 v10, 128, v7")
e("s_waitcnt vmcnt(0)")
signal(S_CNT, C_EARLY, 24, 25)
fin_tag()
stamp(4)
e(f"s_sub_u32 s{sT5}, s{sNT}, {KOV}")
e(f"s_cmp_eq_u32 s{sQCU}, 1")
e(f"s_cselect_b32 s{sT5}, {QKW}, s{sT5}")
wait_cnt(S_CNT, C_KL, f"s{sT5}", 24, 25, sleep=1)
stamp(18)
def v_issue(sa):
    e(f"s_lshl_b32 s{sT1}, s{sa}, 13")
    e(f"s_add_u32 s{sT0}, s{sKVB}, s{sT1}")
    e(f"s_mov_b32 m0, s{sT1}")
    e(f"s_add_u32 s{sT1}, s{sT1}, 4096")
    for i in range(4):
        e(f"buffer_load_dwordx4 v{5 + ((i ^ (i >> 1)) & 1)}, {SB}, s{sT0} offen offset:{1024*i} nt lds")
    e(f"s_mov_b32 m0, s{sT1}")
    e(f"s_add_u32 s{sT0}, s{sT0}, 4096")
    for i in range(4):
        e(f"buffer_load_dwordx4 v{5 + ((i ^ (i >> 1)) & 1)}, {SB}, s{sT0} offen offset:{1024*i} nt lds")
if "vdeep" in OPT:
    ldone = uid("VD"); l2 = uid("V2"); l1 = uid("V1")
    e(f"s_mov_b32 s{sT5}, s{sT4}"); v_issue(sT5)
    e(f"s_add_u32 s{sT5}, s{sT4}, 4")
    e(f"s_cmp_lt_u32 s{sT5}, s{sNT}")
    e(f"s_cbranch_scc0 {l1}")
    v_issue(sT5)
    e(f"s_add_u32 s{sT5}, s{sT4}, 8")
    e(f"s_cmp_lt_u32 s{sT5}, s{sNT}")
    e(f"s_cbranch_scc0 {l2}")
    v_issue(sT5)
    e(f"s_lshl_b32 s{sT2}, 1, s{sT4}")
    for w in (16, 8, 0):
        e(f"s_waitcnt vmcnt({w})")
        signal_or(S_CNT, F_V, sT2, 24, 25)
        if w: e(f"s_lshl_b32 s{sT2}, s{sT2}, 4")
    e(f"s_branch {ldone}")
    lab(l2)
    e(f"s_lshl_b32 s{sT2}, 1, s{sT4}")
    for w in (8, 0):
        e(f"s_waitcnt vmcnt({w})")
        signal_or(S_CNT, F_V, sT2, 24, 25)
        if w: e(f"s_lshl_b32 s{sT2}, s{sT2}, 4")
    e(f"s_branch {ldone}")
    lab(l1)
    e(f"s_lshl_b32 s{sT2}, 1, s{sT4}")
    e("s_waitcnt vmcnt(0)")
    signal_or(S_CNT, F_V, sT2, 24, 25)
    lab(ldone)
else:
    e(f"s_mov_b32 s{sT5}, s{sT4}")
    lv = uid("V"); lvd = uid("VD")
    lab(lv)
    v_issue(sT5)
    e(f"s_lshl_b32 s{sT2}, 1, s{sT5}")
    e("s_waitcnt vmcnt(0)")
    signal_or(S_CNT, F_V, sT2, 24, 25)
    e(f"s_add_u32 s{sT5}, s{sT5}, 4")
    e(f"s_cmp_lt_u32 s{sT5}, s{sNT}")
    e(f"s_cbranch_scc1 {lv}")
stamp(19)
e(f"s_cmp_eq_u32 s{sLATE}, 0")
e("s_cbranch_scc1 L_END")
if "latepv" in OPT: wait_cnt(S_CNT, C_PVD, 8, 24, 25, sleep=2)
if "latep" in OPT: wait_cnt(S_CNT, C_P, f"s{sNT}", 24, 25, sleep=2)
e(f"s_lshl_b32 s{sT0}, s{sT4}, 3")
e(f"s_lshl_b32 s{sT1}, s{sT0}, 10")
e(f"s_add_u32 s{sT1}, s{sT1}, {S_L}")
e(f"s_lshl_b32 s{sT2}, s{sT0}, 12")
e(f"s_lshl_b32 s{sT3}, s{sH}, 17")
e(f"s_add_u32 s{sT2}, s{sT2}, s{sT3}")
e(f"s_lshl_b32 s{sT3}, s{sNQ}, 8")
e(f"s_add_u32 s{sT2}, s{sT2}, s{sT3}")
for k in range(8):
    e(f"s_mov_b32 m0, s{sT1}")
    e(f"s_add_u32 s{sT1}, s{sT1}, 1024")
    e(f"buffer_load_dwordx4 v{[7, 10][(k >> 1) & 1]}, {SD}, s{sT2} offen nt lds")
    e(f"s_add_u32 s{sT2}, s{sT2}, 4096")
e("s_waitcnt vmcnt(0)")
signal(S_CNT, C_LATE, 24, 25)

lab("L_S_LATE")
e(f"s_cmp_eq_u32 s{sLATE}, 0")
e("s_cbranch_scc1 L_END")
e("s_setprio 0")
e("v_mov_b32 v58, 0")
e(f"s_lshl_b32 s{sT6}, s{sWAVE}, 6"); e(f"v_add_u32 v4, s{sT6}, v1")
e(f"s_mul_i32 s{sT0}, s{sH}, {28*512}")
e(f"s_add_u32 s{sT0}, s{sT0}, {WS_OD}")
e(f"s_mul_i32 s{sT1}, s{sH}, {28*16}")
e(f"s_add_u32 s{sT1}, s{sT1}, {WS_OML - 896*16}")
e(f"s_cmp_lt_u32 s{sWAVE}, 14")
e(f"s_cselect_b32 s{sT0}, s{sT0}, s{sT1}")
e("v_lshlrev_b32 v5, 4, v4")
e(f"v_add_u32 v5, s{sT0}, v5")
e("v_lshrrev_b32 v6, 5, v4")
e(f"s_cmp_lt_u32 s{sWAVE}, 14")
lw = uid("LW"); lw2 = uid("LW")
e(f"s_cbranch_scc1 {lw}")
e("v_mov_b32 v6, v1")
lab(lw)
e("v_mul_u32_u24 v7, 37, v6")
e("v_lshrrev_b32 v7, 8, v7")
e("v_add_u32 v6, v6, v7")
e(f"s_cmp_lt_u32 s{sWAVE}, 14")
e(f"s_cbranch_scc1 {lw2}")
e("v_lshlrev_b32 v6, 3, v6")
e(f"v_add_u32 v6, {S_CML}, v6")
lw3 = uid("LW")
e(f"s_branch {lw3}")
lab(lw2)
e("v_mul_u32_u24 v6, 272, v6")
e("v_and_b32 v7, 31, v4")
e("v_lshl_add_u32 v6, v7, 3, v6")
e(f"v_add_u32 v6, {S_CG}, v6")
lab(lw3)
lnw = uid("LNW")
e(f"s_cmp_ge_u32 s{sWAVE}, 8")
e(f"s_cbranch_scc1 {lnw}")
wait_cnt(S_CNT, C_LATE, 4, 8, 9, sleep=1)
e("v_lshrrev_b32 v12, 2, v3")
e("v_lshl_add_u32 v13, v2, 3, v12")
e("v_and_b32 v14, 1, v2")
e("v_lshl_add_u32 v12, v14, 2, v12")
e(f"v_xor_b32 v12, s{sWAVE}, v12")
e("v_lshlrev_b32 v12, 5, v12")
e("v_lshl_add_u32 v12, v13, 8, v12")
e("v_and_b32 v14, 3, v1")
e("v_lshl_add_u32 v12, v14, 3, v12")
e(f"v_add_u32 v12, {S_L}, v12")
for ks in range(4):
    e(f"ds_read_b64_tr_b16 v[{32+4*ks}:{33+4*ks}], v12 offset:{8192*ks}")
    e(f"ds_read_b64_tr_b16 v[{34+4*ks}:{35+4*ks}], v12 offset:{8192*ks+1024}")
e("v_mul_u32_u24 v56, 272, v3")
e("v_lshl_add_u32 v56, v2, 4, v56")
e(f"v_add_u32 v56, {S_CG}, v56")
e("v_lshlrev_b32 v57, 3, v3")
e(f"v_add_u32 v57, {S_CML}, v57")
e(f"s_lshl_b32 s{sT0}, s{sNQ}, 3")
e(f"s_add_u32 s{sT0}, s{sT0}, s{sWAVE}")
e(f"s_lshl_b32 s{sT0}, s{sT0}, 5")
e(f"s_add_u32 s{sT0}, s{sT0}, s{sH}")
e(f"s_lshl_b32 s{sT0}, s{sT0}, 8")
e(f"s_add_u32 s{sT0}, s{sT0}, {WS_AP}")
e("v_bfe_u32 v58, v1, 3, 1")
e("v_lshlrev_b32 v58, 6, v58")
e("v_lshl_add_u32 v58, v2, 4, v58")
e("v_and_b32 v59, 1, v1")
e("v_lshl_add_u32 v58, v59, 7, v58")
e(f"v_add_u32 v58, s{sT0}, v58")
e(f"v_mov_b32 v61, s{sTAG}")
e(f"v_mov_b32 v63, s{sTAG}")
e("v_cmp_eq_u32 s[88:89], 1, v59")
e("v_and_b32 v14, 6, v1")
e("v_cmp_eq_u32 s[86:87], 0, v14")
lab(lnw)
lz = uid("LZ"); lzd = uid("LZD")
e(f"s_cmp_eq_u32 s{sWAVE}, 15")
e(f"s_cbranch_scc1 {lz}")
e("s_mov_b64 s[98:99], exec")
e(f"s_cmp_lg_u32 s{sWAVE}, 14")
lfull = uid("LF")
e(f"s_cbranch_scc1 {lfull}")
e("s_mov_b32 exec_lo, 0x0fffffff")
e("s_mov_b32 exec_hi, 0")
lab(lfull)
poll([(8, 5, 0)])
stamp(17)
e("v_mov_b32 v9, v10")
wait_cnt(S_CNT, C_PVD, 8, 12, 13, sleep=0)
e("ds_write_b64 v6, v[8:9]")
e("s_mov_b64 exec, s[98:99]")
e(f"s_branch {lzd}")
lab(lz)
wait_cnt(S_CNT, C_PVD, 8, 12, 13, sleep=1)
e("v_lshlrev_b32 v6, 3, v2")
e("v_add_u32 v6, 7, v6")
e("v_mul_u32_u24 v7, 272, v6")
e("v_lshl_add_u32 v7, v3, 4, v7")
e(f"v_add_u32 v7, {S_CG}, v7")
for i in range(4): e(f"v_mov_b32 v{12+i}, 0")
e("ds_write_b128 v7, v[12:15]")
e("v_lshlrev_b32 v6, 3, v6")
e(f"v_add_u32 v6, {S_CML}, v6")
e("v_mov_b32 v12, 0xff800000")
e("ds_write_b64 v6, v[12:13]")
lab(lzd)
e("s_waitcnt lgkmcnt(0)")
e("s_barrier")
e(f"s_cmp_ge_u32 s{sWAVE}, 8")
e("s_cbranch_scc1 L_END")
stamp(9)
e("ds_read_b64 v[8:9], v57")
e("ds_read_b64 v[10:11], v57 offset:128")
for ct in range(2):
    for ks in range(4):
        d = 64 + 16*ct + 4*ks
        e(f"ds_read_b128 v[{d}:{d+3}], v56 offset:{16*272*ct + 64*ks}")
e("s_waitcnt lgkmcnt(8)")
e("v_mov_b32 v12, v8")
e("v_mov_b32 v13, v10")
nop(1)
for ctl in ("quad_perm:[1,0,3,2]", "quad_perm:[2,3,0,1]", "row_half_mirror"):
    e(f"v_max_f32_dpp v12, v12, v12 {ctl} row_mask:0xf bank_mask:0xf")
    e(f"v_max_f32_dpp v13, v13, v13 {ctl} row_mask:0xf bank_mask:0xf")
    nop(1)
e("v_sub_f32 v8, v8, v12")
e("v_sub_f32 v10, v10, v13")
e("v_exp_f32 v8, v8")
e("v_exp_f32 v10, v10")
e("s_waitcnt lgkmcnt(0)")
for ks in range(4):
    for ct in range(2):
        d = 64 + 16*ct + 4*ks
        cin = "0" if ks == 0 else f"v[{16+4*ct}:{19+4*ct}]"
        e(f"v_mfma_f32_16x16x32_bf16 v[{16+4*ct}:{19+4*ct}], v[{32+4*ks}:{35+4*ks}], v[{d}:{d+3}], {cin}")
e("v_mul_f32 v8, v8, v9")
e("v_mul_f32 v10, v10, v11")
e("v_mov_b32 v12, v8")
e("v_mov_b32 v13, v10")
nop(1)
for ctl in ("quad_perm:[1,0,3,2]", "quad_perm:[2,3,0,1]", "row_half_mirror"):
    e(f"v_add_f32_dpp v12, v12, v12 {ctl} row_mask:0xf bank_mask:0xf")
    e(f"v_add_f32_dpp v13, v13, v13 {ctl} row_mask:0xf bank_mask:0xf")
    nop(1)
e("v_rcp_f32 v12, v12")
e("v_rcp_f32 v13, v13")
nop(1)
e("v_mul_f32 v8, v8, v12")
e("v_mul_f32 v10, v10, v13")
nop(1)
e("v_pk_mul_f32 v[16:17], v[16:17], v[8:9] op_sel_hi:[1,0]")
e("v_pk_mul_f32 v[18:19], v[18:19], v[8:9] op_sel_hi:[1,0]")
e("v_pk_mul_f32 v[20:21], v[20:21], v[10:11] op_sel_hi:[1,0]")
e("v_pk_mul_f32 v[22:23], v[22:23], v[10:11] op_sel_hi:[1,0]")
nop(1)
for ctl in ("quad_perm:[1,0,3,2]", "quad_perm:[2,3,0,1]", "row_half_mirror"):
    for i in range(8):
        e(f"v_add_f32_dpp v{16+i}, v{16+i}, v{16+i} {ctl} row_mask:0xf bank_mask:0xf")
for i in range(4): e(f"v_cndmask_b32 v{24+i}, v{16+i}, v{20+i}, s[88:89]")
e("v_cvt_pk_bf16_f32 v60, v24, v25")
e("v_cvt_pk_bf16_f32 v62, v26, v27")
e("s_mov_b64 exec, s[86:87]")
e(f"buffer_store_dwordx4 v[60:63], v58, {WS}, 0 offen sc1")
e("s_mov_b64 exec, -1")
stamp(10)
e("s_branch L_END")

lab("L_T")
c("T role: t = sR")
srd(20, P_WM, 512*3072*2)
srd(28, P_C, 4096)
srd(32, P_X, 4096)
srd(24, P_OUT, 4096)
e(f"s_cmp_ge_u32 s{sWAVE}, 12")
e("s_cbranch_scc1 L_T_STREAM")
lt1 = uid("T1")
e(f"s_cmp_lg_u32 s{sWAVE}, 10")
e(f"s_cbranch_scc1 {lt1}")
zero_counters(T_CNT)
lab(lt1)
e("s_barrier")
lt2 = uid("T2")
e(f"s_cmp_ge_u32 s{sR}, 16")
e(f"s_cbranch_scc1 {lt2}")
e(f"s_lshl_b32 s{sCB0}, s{sR}, 7")
e(f"s_lshl_b32 s{sCB1}, s{sR}, 8")
e(f"s_add_u32 s{sCB1}, s{sCB1}, {WS_SC}")
line_unit(T_ACT, T_CNT, 6144, 12)
e("s_branch L_T_AUX")
lab(lt2)
load_tag()
fin_tag()
lab("L_T_AUX")
C_UP, C_UPR, C_G, C_SC = C_KL, C_Q, C_MAX, C_P
C_GO, C_ARM, C_RED, C_XS = F_V, C_PVD, C_LATE, C_HD
C_DL = C_EXC
e(f"s_cmp_lt_u32 s{sWAVE}, 8")
e("s_cbranch_scc1 L_T_W")
lw9 = uid("W9"); lw8 = uid("W8")
e(f"s_cmp_lg_u32 s{sWAVE}, 9")
e(f"s_cbranch_scc1 {lw9}")
e("v_lshlrev_b32 v5, 8, v1")
e(f"v_add_u32 v5, {WS_SC}, v5")
poll_lanes(16, 8, 5, 4)
signal(T_CNT, C_SC, 10, 11)
if "tq" in OPT:
    e("v_lshlrev_b32 v5, 8, v1")
    e(f"v_add_u32 v5, {WS_Q}, v5")
    poll_lanes(64, 8, 5, 4)
    signal(T_CNT, C_GO, 10, 11)
e("s_branch L_T_MODS")
lab(lw9)
e(f"s_cmp_lg_u32 s{sWAVE}, 8")
e("s_cbranch_scc1 L_T_MODS")
e(f"s_getreg_b32 s{sT0}, hwreg(HW_REG_XCC_ID)")
e(f"s_and_b32 s{sT0}, s{sT0}, 0xf")
e(f"v_mov_b32 v8, s{sT0}")
e(f"v_mov_b32 v9, s{sTAG}")
e(f"s_lshl_b32 s{sT1}, s{sR}, 3")
e(f"s_add_u32 s{sT1}, s{sT1}, {WS_XCC}")
sentinel_store(sT1, 8)
e("s_branch L_T_MODS")
lab("L_T_W")
e(f"s_cmp_ge_u32 s{sR}, 28")
e("s_cbranch_scc1 L_T_WEND")
srd(12, P_WG, 512*1792*2)
srd(16, P_WU, 512*1792*2)
srd(20, P_WD, 1792*512*2)
def gu_dma(srdname, ldsbase):
    line_dma_voff(3584)
    e(f"s_lshl_b32 s{sT0}, s{sWAVE}, 3")
    e(f"s_mul_i32 s{sT2}, s{sT0}, {8*3584}")
    e(f"s_lshl_b32 s{sT3}, s{sR}, 7")
    e(f"s_add_u32 s{sT2}, s{sT2}, s{sT3}")
    e(f"s_lshl_b32 s{sT1}, s{sWAVE}, 13")
    e(f"s_add_u32 s{sT1}, s{sT1}, {ldsbase}")
    for k in range(8):
        e(f"s_mov_b32 m0, s{sT1}")
        e(f"s_add_u32 s{sT1}, s{sT1}, 1024")
        e(f"buffer_load_dwordx4 v4, {srdname}, s{sT2} offen nt lds")
        e(f"s_add_u32 s{sT2}, s{sT2}, {8*3584}")
def gu_frags(ldsbase):
    e(f"s_mov_b32 s{sT0}, {ldsbase}")
    tr_line_addr(4, sT0)
    for ks in range(16):
        e(f"ds_read_b64_tr_b16 v[{32+4*ks}:{33+4*ks}], v4 offset:{4096*ks}")
        e(f"ds_read_b64_tr_b16 v[{34+4*ks}:{35+4*ks}], v4 offset:{4096*ks+2048}")
    e("s_waitcnt lgkmcnt(0)")
wait_cnt(T_CNT, C_SC if ("tearly" in OPT and "tq" not in OPT) else C_GO, 1, 8, 9, sleep=2)
stamp(19)
gu_dma(SB, 65536)
lq = uid("NQD")
e(f"s_cmp_ge_u32 s{sR}, 16")
e(f"s_cbranch_scc1 {lq}")
wait_cnt(T_CNT, C_QD, 4, 8, 9, sleep=1)
lab(lq)
gu_dma(SA, 0)
e("s_waitcnt vmcnt(8)")
signal(T_CNT, C_UP, 8, 9)
lnu = uid("NU")
e(f"s_cmp_lt_u32 s{sWAVE}, 4")
e(f"s_cbranch_scc1 {lnu}")
wait_cnt(T_CNT, C_UP, 8, 8, 9, sleep=1)
gu_frags(65536)
signal(T_CNT, C_UPR, 8, 9)
lab(lnu)
wait_cnt(T_CNT, C_UPR, 4, 8, 9, sleep=1)
stamp(15)
e("v_lshlrev_b32 v4, 4, v1")
e(f"s_lshl_b32 s{sT0}, s{sWAVE}, 13")
e(f"s_add_u32 s{sT1}, s{sT0}, 65536")
e(f"s_lshl_b32 s{sT2}, s{sR}, 16")
e(f"s_add_u32 s{sT2}, s{sT2}, s{sT0}")
for k in range(8):
    e(f"v_xor_b32 v5, {32*k}, v4")
    e(f"s_mov_b32 m0, s{sT1}")
    e(f"s_add_u32 s{sT1}, s{sT1}, 1024")
    e(f"buffer_load_dwordx4 v5, {SC}, s{sT2} offen nt lds")
    e(f"s_add_u32 s{sT2}, s{sT2}, 1024")
e("s_waitcnt vmcnt(8)")
signal(T_CNT, C_G, 8, 9)
lng = uid("NG")
e(f"s_cmp_ge_u32 s{sWAVE}, 4")
e(f"s_cbranch_scc1 {lng}")
wait_cnt(T_CNT, C_G, 8, 8, 9, sleep=1)
gu_frags(0)
lab(lng)
e("s_waitcnt vmcnt(0)")
signal(T_CNT, C_DL, 8, 9)
stamp(1)
lab("L_T_WEND")
def down_frags():
    lsk = uid("DF")
    e(f"s_cmp_ge_u32 s{sR}, 28")
    e(f"s_cbranch_scc1 {lsk}")
    wait_cnt(T_CNT, C_DL, 8, 8, 9, sleep=1)
    e("v_lshrrev_b32 v10, 2, v3")
    e("v_lshl_add_u32 v10, v2, 2, v10")
    e("v_and_b32 v11, 7, v10")
    e(f"s_lshl_b32 s{sT0}, s{sWAVE}, 1")
    e(f"v_xor_b32 v11, s{sT0}, v11")
    e("v_lshlrev_b32 v11, 5, v11")
    e("v_lshl_add_u32 v11, v10, 10, v11")
    e("v_and_b32 v10, 3, v1")
    e("v_lshl_add_u32 v11, v10, 3, v11")
    e("v_add_u32 v11, 0x10000, v11")
    e("v_xor_b32 v10, 32, v11")
    for j in range(2):
        for ks in range(2):
            d = 96 + 8*j + 4*ks
            e(f"ds_read_b64_tr_b16 v[{d}:{d+1}], v{[11,10][j]} offset:{32768*ks}")
            e(f"ds_read_b64_tr_b16 v[{d+2}:{d+3}], v{[11,10][j]} offset:{32768*ks+16384}")
    e("s_waitcnt lgkmcnt(0)")
    lab(lsk)
wait_cnt(T_CNT, C_XS, 1, 8, 9, sleep=2)
e(f"v_mov_b32 v8, {T_SAME}")
e("ds_read_b32 v9, v8")
e("s_waitcnt lgkmcnt(0)")
e(f"v_readfirstlane_b32 s{sSAME}, v9")
down_frags()
def tail_addr():
    e(f"s_lshl_b32 s{sT6}, s{sWAVE}, 10")
    e("v_lshlrev_b32 v126, 4, v1")
    e(f"v_add_u32 v126, s{sT6}, v126")
    e(f"s_mul_i32 s{sT0}, s{sR}, {28*256}")
    e(f"s_add_u32 s{sT0}, s{sT0}, {WS_DP}")
    e(f"v_add_u32 v126, s{sT0}, v126")
    e(f"s_lshl_b32 s{sT0}, s{sWAVE}, 8")
    e("v_and_b32 v127, 31, v1")
    e("v_lshlrev_b32 v127, 3, v127")
    e(f"v_add_u32 v127, s{sT0}, v127")
    e(f"v_add_u32 v127, {T_RED}, v127")
tail_addr()
e("s_branch L_T_H2")
lab("L_T_STREAM")
e(f"s_sub_u32 s{sT4}, s{sWAVE}, 12")
e(f"s_lshl_b32 s{sT0}, s{sT4}, 10")
e("v_lshlrev_b32 v4, 4, v1")
e(f"buffer_load_dwordx4 v[8:11], v4, {SE}, s{sT0} offen")
e("s_barrier")
load_tag()
e("s_waitcnt vmcnt(0)")
silu_to_act(T_ACT, T_CNT)
fin_tag()
lab("L_T_MODS")
lb2 = uid("B2")
C_SC = C_P
wait_cnt(T_CNT, C_SC, 1, 4, 5, sleep=4)
lm1 = uid("LM"); lm2 = uid("LM")
e(f"s_cmp_ge_u32 s{sWAVE}, 12")
e(f"s_cbranch_scc1 {lm1}")
e(f"s_sub_u32 s{sT0}, s{sWAVE}, 8")
e(f"s_lshl_b32 s{sT0}, s{sT0}, 13")
e(f"s_add_u32 s{sT0}, s{sT0}, {WS_M}")
e("v_lshlrev_b32 v4, 4, v1")
e(f"v_add_u32 v4, s{sT0}, v4")
e("v_add_u32 v5, 2048, v4")
e("v_add_u32 v6, 4096, v4")
poll([(32, 5, 0), (36, 5, 1024), (40, 6, 0), (44, 6, 1024)], sleep=2)
for (src, dst) in ((32, 48), (36, 52)):
    unpack2(src, dst, dst+1); unpack2(src+2, dst+2, dst+3)
for (src, dst) in ((40, 56), (44, 60)):
    unpack2(src, dst, dst+1); unpack2(src+2, dst+2, dst+3)
for i in range(8):
    e(f"v_add_f32 v{56+i}, 1.0, v{56+i}")
for i in range(0, 8, 2):
    rnd2(56+i, 57+i, 4)
e(f"s_branch {lb2}")
lab(lm1)
e(f"s_cmp_lg_u32 s{sWAVE}, 12")
e(f"s_cbranch_scc1 {lm2}")
e("v_lshrrev_b32 v4, 2, v1")
e("v_lshlrev_b32 v4, 13, v4")
e("v_and_b32 v5, 3, v1")
e("v_lshl_add_u32 v4, v5, 4, v4")
e(f"s_lshl_b32 s{sT0}, s{sR}, 6")
e(f"s_add_u32 s{sT0}, s{sT0}, {WS_M}")
e(f"v_add_u32 v4, s{sT0}, v4")
e("v_add_u32 v6, 6144, v4")
e("v_lshrrev_b32 v7, 2, v1")
e("v_lshlrev_b32 v7, 10, v7")
e("v_lshl_add_u32 v7, v5, 3, v7")
e(f"s_lshl_b32 s{sT0}, s{sR}, 5")
e("s_mov_b64 s[98:99], exec")
e("s_mov_b64 exec, 0xffff")
e(f"buffer_load_dwordx2 v[44:45], v7, {SF}, s{sT0} offen")
poll([(32, 4, 0), (36, 6, 0)], sleep=2)
e("s_mov_b64 exec, s[98:99]")
unpack2(32, 48, 49); unpack2(34, 50, 51)
unpack2(36, 52, 53); unpack2(38, 54, 55)
unpack2(44, 56, 57); unpack2(45, 58, 59)
e(f"s_branch {lb2}")
lab(lm2)
e(f"s_cmp_lg_u32 s{sWAVE}, 13")
e(f"s_cbranch_scc1 {lb2}")
e("v_lshlrev_b32 v5, 4, v1")
e(f"v_add_u32 v5, {WS_XCC}, v5")
e("s_mov_b64 s[98:99], exec")
e("s_mov_b64 exec, 0xffff")
poll([(8, 5, 0)], sleep=4)
e(f"s_getreg_b32 s{sT0}, hwreg(HW_REG_XCC_ID)")
e(f"s_and_b32 s{sT0}, s{sT0}, 0xf")
e(f"v_cmp_eq_u32 vcc, s{sT0}, v8")
e(f"v_cmp_eq_u32 s[{sM0}:{sM1}], s{sT0}, v10")
e(f"s_and_b64 vcc, vcc, s[{sM0}:{sM1}]")
e("s_cmp_eq_u64 vcc, exec")
e(f"s_cselect_b32 s{sSAME}, 1, 0")
if "forcesc1" in OPT: e(f"s_mov_b32 s{sSAME}, 0")
e("s_mov_b64 exec, s[98:99]")
e(f"v_mov_b32 v8, {T_SAME}")
e(f"v_mov_b32 v9, s{sSAME}")
e("ds_write_b32 v8, v9")
signal(T_CNT, C_XS, 10, 11)
lab(lb2)
def read_same():
    e(f"v_mov_b32 v8, {T_SAME}")
    e("ds_read_b32 v9, v8")
    e("s_waitcnt lgkmcnt(0)")
    e(f"v_readfirstlane_b32 s{sSAME}, v9")
wait_cnt(T_CNT, C_XS, 1, 8, 9, sleep=2)
read_same()
tail_addr()
e(f"s_sub_u32 s{sT4}, s{sWAVE}, 8")
e(f"s_lshl_b32 s{sT6}, s{sT4}, 10")
e("v_lshlrev_b32 v124, 4, v1")
e(f"v_add_u32 v124, s{sT6}, v124")
e(f"s_lshl_b32 s{sT0}, s{sR}, 13")
e(f"s_add_u32 s{sT0}, s{sT0}, {WS_AP}")
e(f"v_add_u32 v124, s{sT0}, v124")
e(f"s_lshl_b32 s{sT0}, s{sT4}, 8")
e("v_lshlrev_b32 v125, 4, v3")
e(f"v_add_u32 v125, s{sT0}, v125")
e(f"v_add_u32 v125, {T_RED}, v125")
lpw = uid("PW")
e(f"s_cmp_eq_u32 s{sSAME}, 1")
e(f"s_cbranch_scc0 {lpw}")
e(f"s_lshl_b32 s{sT6}, s{sT4}, 10")
e("v_lshlrev_b32 v4, 4, v1")
e(f"v_add_u32 v4, s{sT6}, v4")
e(f"s_mul_i32 s{sT0}, s{sR}, {28*256}")
e(f"s_add_u32 s{sT0}, s{sT0}, {WS_DP}")
e(f"buffer_load_dwordx4 v[8:11], v4, {WS}, s{sT0} offen nt")
e(f"s_lshl_b32 s{sT0}, s{sR}, 8")
e(f"s_add_u32 s{sT0}, s{sT0}, {WS_X2}")
e("v_lshlrev_b32 v4, 4, v1")
e("s_mov_b64 exec, 0xffff")
e(f"buffer_load_dwordx4 v[16:19], v4, {WS}, s{sT0} offen nt")
e("s_mov_b64 exec, -1")
e("s_waitcnt vmcnt(0)")
lab(lpw)
stamp(3)
larm = uid("ARM"); lal = uid("AL"); lgo = uid("GO"); lad = uid("AD")
e(f"s_cmp_lg_u32 s{sWAVE}, 8")
e(f"s_cbranch_scc1 {larm}")
e(f"s_mul_i32 s{sT0}, s{sR}, {28*16}")
e(f"s_add_u32 s{sT0}, s{sT0}, {WS_OML}")
e("v_lshlrev_b32 v4, 4, v1")
e(f"v_add_u32 v4, s{sT0}, v4")
e(f"s_mov_b32 s{sT5}, 0")
e(f"s_mov_b32 s{sSPIN}, 0")
e("s_mov_b32 exec_lo, 0x0fffffff")
e("s_mov_b32 exec_hi, 0")
lab(lal)
e(f"buffer_load_dwordx4 v[8:11], v4, {WS}, 0 offen sc1")
e("s_waitcnt vmcnt(0)")
e(f"v_cmp_eq_u32 vcc, s{sTAG}, v9")
e(f"v_cmp_eq_u32 s[{sM0}:{sM1}], s{sTAG}, v11")
e(f"s_and_b64 vcc, vcc, s[{sM0}:{sM1}]")
e("s_cmp_eq_u64 vcc, 0")
e(f"s_cbranch_scc1 {lgo}")
e(f"s_cmp_lg_u32 s{sT5}, 0")
e(f"s_cbranch_scc1 {lgo}")
e(f"s_mov_b32 s{sT5}, 1")
e("s_mov_b64 s[96:97], vcc")
signal(T_CNT, C_GO, 12, 13)
e("s_mov_b64 vcc, s[96:97]")
lab(lgo)
e("s_cmp_eq_u64 vcc, exec")
e(f"s_cbranch_scc1 {lad}")
e("s_sleep 3")
e(f"s_add_u32 s{sSPIN}, s{sSPIN}, 1")
e(f"s_cmp_lt_u32 s{sSPIN}, {SPIN_MAX}")
e(f"s_cbranch_scc1 {lal}")
e("s_branch L_END")
lab(lad)
e("s_mov_b64 exec, -1")
signal(T_CNT, C_ARM, 12, 13)
lab(larm)
wait_cnt(T_CNT, C_ARM, 1, 8, 9, sleep=1)
stamp(17)
poll([(8, 124, 0)])
stamp(9)
def red_write(addr):
    e("v_mov_b32 v12, v8")
    e("v_mov_b32 v13, v10")
    nop(2)
    e("v_permlane32_swap_b32 v8, v12")
    e("v_permlane32_swap_b32 v10, v13")
    nop(1)
    e("v_add_f32 v8, v8, v12")
    e("v_add_f32 v9, v10, v13")
    e("s_mov_b32 exec_hi, 0")
    e(f"ds_write_b64 v{addr}, v[8:9]")
    e("s_mov_b32 exec_hi, -1")
def red_read(nw):
    per = 4 if nw > 8 else 2
    e(f"v_lshlrev_b32 v4, {10 if per == 4 else 9}, v2")
    e("v_lshl_add_u32 v4, v3, 4, v4")
    e(f"v_add_u32 v4, {T_RED}, v4")
    for i in range(per):
        e(f"ds_read_b128 v[{8+4*i}:{11+4*i}], v4 offset:{256*i}")
def red_sum(nw):
    e("s_waitcnt lgkmcnt(0)")
    if nw == 7:
        e("v_cmp_eq_u32 vcc, 3, v2")
        nop(2)
        for i in range(12, 16): e(f"v_cndmask_b32 v{i}, v{i}, v30, vcc")
    e("v_pk_add_f32 v[8:9], v[8:9], v[12:13]")
    e("v_pk_add_f32 v[10:11], v[10:11], v[14:15]")
    if nw > 8:
        e("v_pk_add_f32 v[16:17], v[16:17], v[20:21]")
        e("v_pk_add_f32 v[18:19], v[18:19], v[22:23]")
        e("v_pk_add_f32 v[8:9], v[8:9], v[16:17]")
        e("v_pk_add_f32 v[10:11], v[10:11], v[18:19]")
    for sw in ("v_permlane16_swap_b32", "v_permlane32_swap_b32"):
        for i in range(4): e(f"v_mov_b32 v{12+i}, v{8+i}")
        nop(1)
        for i in range(4): e(f"{sw} v{8+i}, v{12+i}")
        nop(1)
        e("v_pk_add_f32 v[8:9], v[8:9], v[12:13]")
        e("v_pk_add_f32 v[10:11], v[10:11], v[14:15]")
def quad_reduce_write(addr):
    unpack2(8, 12, 13); unpack2(10, 14, 15)
    for sw in ("v_permlane16_swap_b32", "v_permlane32_swap_b32"):
        for i in range(4): e(f"v_mov_b32 v{16+i}, v{12+i}")
        nop(1)
        for i in range(4): e(f"{sw} v{12+i}, v{16+i}")
        nop(1)
        e("v_pk_add_f32 v[12:13], v[12:13], v[16:17]")
        e("v_pk_add_f32 v[14:15], v[14:15], v[18:19]")
    e("s_mov_b64 exec, 0xffff")
    e(f"ds_write_b128 v{addr}, v[12:15]")
    e("s_mov_b64 exec, -1")
quad_reduce_write(125)
signal(T_CNT, C_RED, 12, 13)
stamp(4)
lw12 = uid("W12"); lw12b = uid("W12B")
e(f"s_cmp_eq_u32 s{sWAVE}, 12")
e(f"s_cbranch_scc1 {lw12b}")
down_frags()
e(f"s_branch {lw12}")
lab(lw12b)
wait_cnt(T_CNT, C_RED, 8, 8, 9, sleep=0)
red_read(8)
e("v_lshrrev_b32 v4, 2, v1")
e("v_lshlrev_b32 v4, 11, v4")
e("v_and_b32 v5, 3, v1")
e("v_lshl_add_u32 v4, v5, 4, v4")
e(f"s_lshl_b32 s{sT0}, s{sR}, 6")
e(f"s_add_u32 s{sT0}, s{sT0}, {WS_X2}")
red_sum(8)
e(f"v_mov_b32 v17, s{sTAG}")
e(f"v_mov_b32 v19, s{sTAG}")
rnd2(8, 9, 12); rnd2(10, 11, 13)
e("v_pk_mul_f32 v[8:9], v[48:49], v[8:9]")
e("v_pk_mul_f32 v[10:11], v[50:51], v[10:11]")
rnd2(8, 9, 12); rnd2(10, 11, 13)
e("v_pk_add_f32 v[8:9], v[56:57], v[8:9]")
e("v_pk_add_f32 v[10:11], v[58:59], v[10:11]")
e("v_cvt_pk_bf16_f32 v16, v8, v9")
e("v_cvt_pk_bf16_f32 v18, v10, v11")
e("s_mov_b64 exec, 0xffff")
lsc = uid("SC"); lsd = uid("SD")
e(f"s_cmp_eq_u32 s{sSAME}, 1")
e(f"s_cbranch_scc0 {lsc}")
e(f"buffer_store_dwordx4 v[16:19], v4, {WS}, s{sT0} offen")
e(f"s_branch {lsd}")
lab(lsc)
e(f"buffer_store_dwordx4 v[16:19], v4, {WS}, s{sT0} offen sc1")
lab(lsd)
e("s_mov_b64 exec, -1")
unpack2(16, 60, 61); unpack2(18, 62, 63)
stamp(10)
down_frags()
lab(lw12)
lln = uid("LN")
e(f"s_cmp_lt_u32 s{sWAVE}, 8")
e(f"s_cbranch_scc1 {lln}")
e(f"s_cmp_ge_u32 s{sWAVE}, 12")
e(f"s_cbranch_scc1 {lln}")
e(f"s_sub_u32 s{sT4}, s{sWAVE}, 8")
e(f"s_lshl_b32 s{sT0}, s{sT4}, 11")
e(f"s_add_u32 s{sT0}, s{sT0}, {WS_X2}")
e("v_lshlrev_b32 v4, 4, v1")
e(f"v_add_u32 v4, s{sT0}, v4")
e("v_lshrrev_b32 v6, 3, v1")
e("v_lshlrev_b32 v6, 6, v6")
e("v_and_b32 v7, 3, v1")
e("v_lshl_add_u32 v6, v7, 4, v6")
e("v_bfe_u32 v7, v1, 2, 1")
e("v_lshl_add_u32 v6, v7, 3, v6")
e(f"s_mul_i32 s{sT0}, s{sT4}, 1088")
e(f"s_add_u32 s{sT0}, s{sT0}, {T_H2}")
e(f"v_add_u32 v6, s{sT0}, v6")
poll([(8, 4, 0), (12, 4, 1024)], intra=True)
stamp(11)
unpack2(8, 16, 17); unpack2(10, 18, 19); unpack2(12, 20, 21); unpack2(14, 22, 23)
layernorm8(16, 24)
for i in range(0, 8, 2):
    e(f"v_pk_mul_f32 v[{16+i}:{17+i}], v[{16+i}:{17+i}], v[{56+i}:{57+i}]")
for i in range(0, 8, 2):
    rnd2(16+i, 17+i, 24)
for i in range(0, 8, 2):
    e(f"v_pk_add_f32 v[{16+i}:{17+i}], v[{16+i}:{17+i}], v[{48+i}:{49+i}]")
for i in range(4):
    e(f"v_cvt_pk_bf16_f32 v{8+i}, v{16+2*i}, v{17+2*i}")
e("ds_write_b64 v6, v[8:9]")
e("ds_write_b64 v6, v[10:11] offset:512")
stamp(12)
lab(lln)
lab("L_T_H2")
e("v_and_b32 v5, 3, v1")
e("v_mul_u32_u24 v6, 1088, v5")
e("v_lshl_add_u32 v6, v2, 4, v6")
e(f"v_add_u32 v6, {T_H2}, v6")
e("v_lshlrev_b32 v4, 6, v3")
e("v_lshlrev_b32 v7, 6, v5")
e(f"s_cmp_lt_u32 s{sWAVE}, 4")
e(f"s_cselect_b32 s{sT1}, 1024, 0")
lgu = uid("GU")
e(f"s_cbranch_scc0 {lgu}")
e("v_mov_b32 v4, v7")
lab(lgu)
e("v_lshl_add_u32 v4, v2, 4, v4")
e(f"s_lshl_b32 s{sT0}, s{sWAVE}, 8")
e(f"s_add_u32 s{sT0}, s{sT0}, s{sT1}")
e(f"s_add_u32 s{sT0}, s{sT0}, {T_GU}")
e(f"v_add_u32 v4, s{sT0}, v4")
e("v_mul_u32_u24 v7, 192, v5")
e("v_lshl_add_u32 v7, v2, 4, v7")
e(f"v_add_u32 v124, {T_ACTL}, v7")
e(f"s_lshr_b32 s{sT0}, s{sWAVE}, 1")
e(f"s_lshl_b32 s{sT0}, s{sT0}, 6")
e(f"s_and_b32 s{sT1}, s{sWAVE}, 1")
e(f"s_lshl_b32 s{sT1}, s{sT1}, 3")
e(f"s_add_u32 s{sT0}, s{sT0}, s{sT1}")
e(f"s_add_u32 s{sT0}, s{sT0}, {T_ACTL}")
e(f"v_add_u32 v7, s{sT0}, v7")
e("v_lshlrev_b32 v125, 6, v5")
e("v_lshl_add_u32 v125, v2, 4, v125")
e("v_bfe_u32 v8, v1, 2, 1")
e("v_cmp_eq_u32 s[86:87], 1, v8")
e(f"v_mul_u32_u24 v9, {28*256}, v8")
e("v_add_u32 v125, v125, v9")
e("v_bfe_u32 v8, v1, 3, 1")
e("v_cmp_eq_u32 s[96:97], 0, v8")
e(f"s_lshl_b32 s{sT0}, s{sWAVE}, 1")
e(f"s_mul_i32 s{sT0}, s{sT0}, {28*256}")
e(f"s_lshl_b32 s{sT1}, s{sR}, 8")
e(f"s_add_u32 s{sT0}, s{sT0}, s{sT1}")
e(f"s_add_u32 s{sT0}, s{sT0}, {WS_DP}")
e(f"v_add_u32 v125, s{sT0}, v125")
e("s_waitcnt lgkmcnt(0)")
e("s_barrier")
stamp(5)
lfin = uid("FIN")
e(f"s_cmp_ge_u32 s{sR}, 28")
e(f"s_cbranch_scc1 {lfin}")
lg = uid("G")
e(f"s_cmp_ge_u32 s{sWAVE}, 8")
e(f"s_cbranch_scc1 {lg}")
def tbread(grp):
    base = [8, 112][grp % 2]
    for k in range(4):
        ks = 4*grp + k
        e(f"ds_read_b128 v[{base+4*k}:{base+4*k+3}], v6 offset:{64*ks}")
def tb_regs(grp, k):
    if grp % 2 == 0: return 8 + 4*k
    return [112, 116, 120, 28][k]
def tbread2(grp):
    for k in range(4):
        ks = 4*grp + k; b_ = tb_regs(grp, k)
        e(f"ds_read_b128 v[{b_}:{b_+3}], v6 offset:{64*ks}")
tbread2(0); tbread2(1)
for grp in range(4):
    e(f"s_waitcnt lgkmcnt({4 if grp < 3 else 0})")
    for k in range(4):
        ks = 4*grp + k; b_ = tb_regs(grp, k)
        cin = "0" if ks == 0 else "v[24:27]"
        e(f"v_mfma_f32_16x16x32_bf16 v[24:27], v[{32+4*ks}:{35+4*ks}], v[{b_}:{b_+3}], {cin}")
    if grp + 2 < 4: tbread2(grp + 2)
nop(8)
stamp(13)
rnd2(24, 25, 28); rnd2(26, 27, 29)
lup2 = uid("UPW")
e(f"s_cmp_ge_u32 s{sWAVE}, 4")
e(f"s_cbranch_scc1 {lup2}")
for i in range(4): e(f"v_mul_f32 v{16+i}, {NLOG2E:#x}, v{24+i}")
for i in range(4): e(f"v_exp_f32 v{16+i}, v{16+i}")
nop(1)
for i in range(4): e(f"v_add_f32 v{16+i}, 1.0, v{16+i}")
for i in range(4): e(f"v_rcp_f32 v{16+i}, v{16+i}")
nop(1)
e("v_pk_mul_f32 v[24:25], v[24:25], v[16:17]")
e("v_pk_mul_f32 v[26:27], v[26:27], v[18:19]")
rnd2(24, 25, 28); rnd2(26, 27, 29)
e(f"s_branch {lg}")
lab(lup2)
e("v_cmp_gt_u32 vcc, 4, v3")
e(f"s_and_saveexec_b64 s[{sM0}:{sM1}], vcc")
e("ds_write_b128 v4, v[24:27]")
e(f"s_mov_b64 exec, s[{sM0}:{sM1}]")
lab(lg)
e("s_waitcnt lgkmcnt(0)")
e("s_barrier")
la = uid("A")
e(f"s_cmp_ge_u32 s{sWAVE}, 4")
e(f"s_cbranch_scc1 {la}")
e("ds_read_b128 v[12:15], v4")
e("v_cmp_gt_u32 vcc, 4, v3")
e("s_waitcnt lgkmcnt(0)")
e("v_pk_mul_f32 v[24:25], v[24:25], v[12:13]")
e("v_pk_mul_f32 v[26:27], v[26:27], v[14:15]")
e("v_cvt_pk_bf16_f32 v8, v24, v25")
e("v_cvt_pk_bf16_f32 v9, v26, v27")
e(f"s_and_saveexec_b64 s[{sM0}:{sM1}], vcc")
e("ds_write_b64 v7, v[8:9]")
e(f"s_mov_b64 exec, s[{sM0}:{sM1}]")
lab(la)
e(f"v_mov_b32 v29, s{sTAG}")
e(f"v_mov_b32 v31, s{sTAG}")
e("s_waitcnt lgkmcnt(0)")
e("s_barrier")
stamp(6)
e("ds_read_b128 v[8:11], v124")
e("ds_read_b128 v[12:15], v124 offset:64")
e("s_waitcnt lgkmcnt(0)")
for ks in range(2):
    for j in range(2):
        d = 96 + 8*j + 4*ks
        cin = "0" if ks == 0 else f"v[{16+4*j}:{19+4*j}]"
        e(f"v_mfma_f32_16x16x32_bf16 v[{16+4*j}:{19+4*j}], v[{d}:{d+3}], v[{8+4*ks}:{11+4*ks}], {cin}")
nop(8)
for i in range(4): e(f"v_cndmask_b32 v{24+i}, v{16+i}, v{20+i}, s[86:87]")
e("v_cvt_pk_bf16_f32 v28, v24, v25")
e("v_cvt_pk_bf16_f32 v30, v26, v27")
e("s_mov_b64 exec, s[96:97]")
lsc = uid("SC"); lsd = uid("SD")
e(f"s_cmp_eq_u32 s{sSAME}, 1")
e(f"s_cbranch_scc0 {lsc}")
e(f"buffer_store_dwordx4 v[28:31], v125, {WS}, 0 offen")
e(f"s_branch {lsd}")
lab(lsc)
e(f"buffer_store_dwordx4 v[28:31], v125, {WS}, 0 offen sc1")
lab(lsd)
e("s_mov_b64 exec, -1")
stamp(7)
lab(lfin)
lf2 = uid("F2")
e(f"s_cmp_ge_u32 s{sWAVE}, 7")
e(f"s_cbranch_scc1 {lf2}")
e(f"s_lshl_b32 s{sT0}, s{sWAVE}, 8")
e("v_lshlrev_b32 v127, 4, v3")
e(f"v_add_u32 v127, s{sT0}, v127")
e(f"v_add_u32 v127, {T_RED}, v127")
poll([(8, 126, 0)], intra=True)
stamp(14)
unpack2(8, 12, 13); unpack2(10, 14, 15)
for sw in ("v_permlane16_swap_b32", "v_permlane32_swap_b32"):
    for i in range(4): e(f"v_mov_b32 v{16+i}, v{12+i}")
    nop(1)
    for i in range(4): e(f"{sw} v{12+i}, v{16+i}")
    nop(1)
    e("v_pk_add_f32 v[12:13], v[12:13], v[16:17]")
    e("v_pk_add_f32 v[14:15], v[14:15], v[18:19]")
e("s_mov_b64 exec, 0xffff")
e("ds_write_b128 v127, v[12:15]")
e("s_mov_b64 exec, -1")
lab(lf2)
e("s_waitcnt lgkmcnt(0)")
stamp(16)
e("s_barrier")
e(f"s_cmp_lg_u32 s{sWAVE}, 12")
e("s_cbranch_scc1 L_END")
red_read(8)
e("v_mov_b32 v30, 0")
e("v_lshrrev_b32 v4, 2, v1")
e("v_lshlrev_b32 v4, 10, v4")
e("v_and_b32 v5, 3, v1")
e("v_lshl_add_u32 v4, v5, 3, v4")
e(f"s_lshl_b32 s{sT0}, s{sR}, 5")
red_sum(7)
rnd2(8, 9, 12); rnd2(10, 11, 13)
e("v_pk_mul_f32 v[8:9], v[52:53], v[8:9]")
e("v_pk_mul_f32 v[10:11], v[54:55], v[10:11]")
rnd2(8, 9, 12); rnd2(10, 11, 13)
e("v_pk_add_f32 v[8:9], v[60:61], v[8:9]")
e("v_pk_add_f32 v[10:11], v[62:63], v[10:11]")
e("v_cvt_pk_bf16_f32 v16, v8, v9")
e("v_cvt_pk_bf16_f32 v17, v10, v11")
e("s_mov_b64 exec, 0xffff")
e(f"buffer_store_dwordx2 v[16:17], v4, {SD}, s{sT0} offen")
le = uid("EP")
e(f"s_cmp_lg_u32 s{sR}, 0")
e(f"s_cbranch_scc1 {le}")
e("s_mov_b64 exec, 1")
e(f"v_mov_b32 v8, s{sTAG}")
e(f"s_mov_b32 s{sT0}, {WS_EPOCH}")
e(f"buffer_store_dword v8, off, {WS}, s{sT0} sc1")
lab(le)
if "span" in OPT:
    e(f"s_mov_b32 s28, s{P_DBG}")
    e(f"s_and_b32 s29, s{P_DBG+1}, 0xffff")
    e("s_mov_b32 s30, 256")
    e("s_mov_b32 s31, 0x20000")
    e("s_waitcnt vmcnt(0)")
    e(f"s_memrealtime s[{sST0}:{sST1}]")
    e("s_waitcnt lgkmcnt(0)")
    e(f"v_mov_b32 v8, s{sST0}")
    e("s_mov_b64 exec, 1")
    e("buffer_atomic_umax v8, off, s[28:31], 0 offset:4")
stamp(8)
lab("L_END")
if DIAG:
    e("s_mov_b64 exec, -1")
    stamp(31)
    e("v_lshlrev_b32 v4, 2, v1")
    e("v_cmp_gt_u32 vcc, 32, v1")
    e(f"s_and_saveexec_b64 s[{sM0}:{sM1}], vcc")
    e(f"buffer_store_dword v0, v4, {WS}, s{sSTAMP} offen")
lab("L_EXIT")
e("s_endpgm")

L.append('.section .rodata,"a"')
L.append(".p2align 6")
L.append(f".amdhsa_kernel {NAME}_kernel")
L.append("  .amdhsa_next_free_vgpr 128")
L.append("  .amdhsa_next_free_sgpr 102")
L.append("  .amdhsa_accum_offset 128")
L.append("  .amdhsa_group_segment_fixed_size 0")
L.append("  .amdhsa_kernarg_size 112")
L.append("  .amdhsa_user_sgpr_count 2")
L.append("  .amdhsa_user_sgpr_kernarg_segment_ptr 1")
L.append("  .amdhsa_system_sgpr_workgroup_id_x 1")
L.append("  .amdhsa_float_denorm_mode_32 3")
L.append(".end_amdhsa_kernel")

open(sys.argv[1], "w").write("\n".join(x for x in L if x is not None) + "\n")
```
